```python
import torch

def _softmax(x, axis=-1):
    return torch.softmax(x, dim=axis)
def _gelu(x):
    return torch.nn.functional.gelu(x, approximate="tanh")
def _silu(x):
    return torch.nn.functional.silu(x)
def _sigmoid(x):
    return torch.sigmoid(x)
def _layernorm(x, axis=-1, eps=1e-5):
    m = x.mean(dim=axis, keepdim=True)
    v = x.var(dim=axis, keepdim=True, unbiased=False)
    return (x - m) / torch.sqrt(v + eps)
def _scatter_add(tgt, idx, src, axis=0):
    return tgt.clone().index_add_(axis, idx, src)
def _segment_sum(src, seg, n):
    out = torch.zeros((n,) + src.shape[1:], dtype=src.dtype)
    return out.index_add_(0, seg, src)
def _pad(x, pw):
    flat = tuple(v for pair in reversed(pw) for v in pair)
    return torch.nn.functional.pad(x, flat)

kernel_name = 'gated_mix__mha_block__glu_gated_geglu__prompt'

def setup_inputs():

    _w = (lambda a: (lambda t: t.to(torch.bfloat16) if t.is_floating_point() else t)(torch.as_tensor(a)))
    def _A_setup():
        B, S, D, H = 1, 2048, 512, 32
        return {
            "x": _w((lambda *s: torch.randn(*s, dtype=torch.bfloat16) * 0.05)(B, S, D)),
            "wqkv": _w((lambda *s: torch.randn(*s, dtype=torch.bfloat16) * 0.8)(D, 3 * D)),
            "wo": _w((lambda *s: torch.randn(*s, dtype=torch.bfloat16) * 0.05)(D, D)),
        }
    _A_in = _A_setup()

    def _B_setup():
        B, S, Dm, Df = 1, 2048, 512, 1376
        return {
            "x": _w((lambda *s: torch.randn(*s, dtype=torch.bfloat16) * 0.05)(B, S, Dm)),
            "w_gate": _w((lambda *s: torch.randn(*s, dtype=torch.bfloat16) * 3.2)(Dm, Df) * (Dm ** -0.5)),
            "w_up": _w((lambda *s: torch.randn(*s, dtype=torch.bfloat16) * 3.2)(Dm, Df) * (Dm ** -0.5)),
            "w_down": _w((lambda *s: torch.randn(*s, dtype=torch.bfloat16) * 3.2)(Df, Dm) * (Df ** -0.5)),
        }
    _B_in = _B_setup()

    return {
        "A_x": _A_in["x"],
        "A_wqkv": _A_in["wqkv"],
        "A_wo": _A_in["wo"],
        "B_x": _B_in["x"],
        "B_w_gate": _B_in["w_gate"],
        "B_w_up": _B_in["w_up"],
        "B_w_down": _B_in["w_down"],
        "gate_w": _w((lambda *s: torch.randn(*s, dtype=torch.bfloat16) * 0.05)(512) * 16.0),
    }

def reference(A_x, A_wqkv, A_wo, B_x, B_w_gate, B_w_up, B_w_down, gate_w):
    def _A_ref(x, wqkv, wo):
        B, S, D = x.shape
        H = 32
        Dh = D // H
        qkv = (lambda x, *d: x.permute(*d))((x @ wqkv).reshape(B, S, 3, H, Dh), 2, 0, 3, 1, 4)
        q, k, v = qkv[0], qkv[1], qkv[2]
        scores = torch.einsum("bhqd,bhkd->bhqk", q, k) * (Dh ** -0.5)
        p = _softmax(scores, axis=-1)
        o = torch.einsum("bhqk,bhkd->bhqd", p, v)
        return (lambda x, *d: x.permute(*d))(o, 0, 2, 1, 3).reshape(B, S, D) @ wo

    def _B_ref(x, w_gate, w_up, w_down):
        g = torch.einsum("bsd,df->bsf", x, w_gate)
        u = torch.einsum("bsd,df->bsf", x, w_up)
        h = _gelu(g) * u
        return torch.einsum("bsf,fd->bsd", h, w_down)

    x = A_x
    g = _sigmoid((x * gate_w).sum(-1, keepdims=True))
    a = _A_ref(x, A_wqkv, A_wo)
    b = _B_ref(x, B_w_gate, B_w_up, B_w_down)
    return g * a + (1 - g) * b
```

```python
class Asm:
    def __init__(self):
        self.lines = []
        self._uid = 0

    def __call__(self, s):
        for l in s.split("\n"):
            l = l.strip()
            if l:
                self.lines.append("  " + l)

    def label(self, name):
        self.lines.append(name + ":")

    def raw(self, s):
        self.lines.append(s)

    def comment(self, s):
        self.lines.append("  ; " + s)

    def uid(self, prefix="L"):
        self._uid += 1
        return f"{prefix}_{self._uid}"

    def text(self):
        return "\n".join(self.lines) + "\n"


def vr(base, n=1):
    return f"v{base}" if n == 1 else f"v[{base}:{base + n - 1}]"


def sr(base, n=1):
    return f"s{base}" if n == 1 else f"s[{base}:{base + n - 1}]"


def kernel_header(a, name):
    a.raw(f".globl {name}")
    a.raw(".p2align 8")
    a.raw(f".type {name},@function")
    a.label(name)


def kernel_desc(name, nvgpr, nsgpr=102, kernarg=88):
    acc = (nvgpr + 3) // 4 * 4
    return f""".amdhsa_kernel {name}
  .amdhsa_next_free_vgpr {nvgpr}
  .amdhsa_next_free_sgpr {nsgpr}
  .amdhsa_accum_offset {acc}
  .amdhsa_group_segment_fixed_size 0
  .amdhsa_kernarg_size {kernarg}
  .amdhsa_user_sgpr_count 2
  .amdhsa_user_sgpr_kernarg_segment_ptr 1
  .amdhsa_system_sgpr_workgroup_id_x 1
  .amdhsa_float_denorm_mode_32 3
.end_amdhsa_kernel
"""


def make_srd(a, dst, base_lo, base_hi, size):
    a(f"s_mov_b32 s{dst}, s{base_lo}")
    a(f"s_and_b32 s{dst+1}, s{base_hi}, 0xffff")
    a(f"s_mov_b32 s{dst+2}, {size}")
    a(f"s_mov_b32 s{dst+3}, 0x20000")
```

```python
from asmlib import *
from layout import *
import os
DBG = os.environ.get('ATTN_DBG', '')

V_LANE16 = 1
V_VOFF = 2
V_T0 = 3
QA, QB = 4, 8
V_IDX = 12
V_T1, V_T2, V_T3 = 13, 14, 15
V_LANE16H = 152
KB = [16, 20]
V0B = [24, 28]
V1B = [32, 36]
SA, SB = 40, 56
OA, OB_ = 72, 88
CA, CB = 104, 120
TMP = 136
NV_ATTN = 156

SLOT = 16384
LDS_ONES = 3 * SLOT
LDS_FLAG = LDS_ONES + 8192
LDS_ATTN = LDS_FLAG + 64
V_VA = [153, 154, 155]

S_WS = 4
S_HEAD = 6
S_QB = 7
S_W = 8
S_KSRD = 12
S_VSRD = 16
S_MASK = 20
S_T = 22
S_PASS = 32
S_QBASE = 34
S_OBASE = 36
S_KBASE = 38


def dma_chunk(a, c):
    slot = (c % 3) * SLOT
    a(f"s_add_u32 m0, s{S_T}, {slot}")
    a(f"s_add_u32 s{S_T+3}, s{S_T}, {c * 8192}")
    a(f"buffer_load_dwordx4 v{V_LANE16}, s[{S_KSRD}:{S_KSRD+3}], s{S_T+3} offen lds")
    a(f"buffer_load_dwordx4 v{V_LANE16}, s[{S_KSRD}:{S_KSRD+3}], s{S_T+3} offen offset:1024 lds")
    a(f"s_add_u32 m0, s{S_T}, {slot + 8192}")
    a("s_nop 0")
    a(f"buffer_load_dwordx4 v{V_LANE16}, s[{S_VSRD}:{S_VSRD+3}], s{S_T+3} offen lds")
    a(f"buffer_load_dwordx4 v{V_LANE16}, s[{S_VSRD}:{S_VSRD+3}], s{S_T+3} offen offset:1024 lds")


def k_addr(t):
    c, i = t >> 3, t & 7
    return (c % 3) * SLOT + i * 1024


def ds_rd_k(a, dst, t):
    if 'nods' in DBG:
        return
    a(f"ds_read_b128 v[{dst}:{dst+3}], v{V_LANE16} offset:{k_addr(t)}")


def ds_rd_v(a, dst, t, half):
    if 'nods' in DBG:
        return
    c, i = t >> 3, t & 7
    a(f"ds_read_b128 v[{dst}:{dst+3}], v{V_VA[c % 3]} offset:{(2 * i + half) * 512}")


def qk(a, S, K, Q, C):
    if 'noqk' in DBG:
        return
    a(f"v_mfma_f32_32x32x16_bf16 v[{S}:{S+15}], v[{K}:{K+3}], v[{Q}:{Q+3}], v[{C}:{C+15}]")


def pv(a, O, V, P):
    if 'nopv' in DBG:
        return
    a(f"v_smfmac_f32_32x32x32_bf16 v[{O}:{O+15}], v[{V}:{V+3}], v[{P}:{P+7}], v{V_IDX}")


def exps(a, S, lo, hi):
    for r in range(lo, hi):
        a(f"v_exp_f32 v{S+r}, v{S+r}")


def main_loop(a):
    NT = 64
    ds_rd_k(a, KB[1], 0)
    ds_rd_v(a, V1B[0], 0, 1)
    ds_rd_k(a, KB[0], 1)
    ds_rd_v(a, V0B[0], 0, 0)
    a("s_waitcnt lgkmcnt(3)")
    qk(a, SA, KB[1], QA, CA)
    a("s_nop 7")
    a("s_nop 3")
    for t in range(NT):
        cur, prv = t & 1, (t - 1) & 1
        more = t + 1 < NT
        exps(a, SA, 0, 2)
        if t > 0:
            pv(a, OB_, V1B[prv], SB + 8)
        n = 0
        if more:
            ds_rd_v(a, V1B[prv], t + 1, 1); n += 1
        exps(a, SA, 2, 5)
        qk(a, SB, KB[prv], QB, CB)
        if t + 2 < NT:
            ds_rd_k(a, KB[prv], t + 2); n += 1
        exps(a, SA, 5, 10)
        if 'nowait' not in DBG:
            a(f"s_waitcnt lgkmcnt({n})")
        pv(a, OA, V0B[cur], SA)
        if more:
            ds_rd_v(a, V0B[prv], t + 1, 0)
        exps(a, SA, 10, 16)
        exps(a, SB, 0, 2)
        pv(a, OA, V1B[cur], SA + 8)
        exps(a, SB, 2, 5)
        if more:
            qk(a, SA, KB[cur], QA, CA)
        bnd = (t & 7) == 4 and 'nobar' not in DBG and (t >> 3) + 1 < 8
        if bnd:
            a("s_waitcnt vmcnt(0)")
            a("s_barrier")
        exps(a, SB, 5, 10)
        pv(a, OB_, V0B[cur], SB)
        if bnd and (t >> 3) + 2 < 8:
            dma_chunk(a, (t >> 3) + 2)
        exps(a, SB, 10, 16)
    a("s_nop 1")
    pv(a, OB_, V1B[(NT - 1) & 1], SB + 8)


STAMP = False
TWICE = False
S_ST = 40

def stamp(a, i):
    if STAMP:
        a(f"s_memtime s[{S_ST+2*i}:{S_ST+2*i+1}]")
        if i in (1, 2):
            a(f"s_memrealtime s[{S_ST+8+2*(i-1)}:{S_ST+8+2*(i-1)+1}]")


def attn_body(a, idreg, done_label):
    stamp(a, 0)
    a(f"s_load_dwordx2 s[{S_WS}:{S_WS+1}], s[0:1], {KA_WS}")
    a(f"s_and_b32 s{S_HEAD}, s{idreg}, 7")
    a(f"s_lshl_b32 s{S_HEAD}, s{S_HEAD}, 2")
    a(f"s_lshr_b32 s{S_T}, s{idreg}, 6")
    a(f"s_add_u32 s{S_HEAD}, s{S_HEAD}, s{S_T}")
    a(f"s_lshr_b32 s{S_QB}, s{idreg}, 3")
    a(f"s_and_b32 s{S_QB}, s{S_QB}, 7")
    a(f"v_lshrrev_b32 v{V_T0}, 6, v0")
    a(f"v_and_b32 v0, 63, v0")
    a(f"v_readfirstlane_b32 s{S_W}, v{V_T0}")
    a(f"v_lshlrev_b32 v{V_LANE16}, 4, v0")
    a(f"v_lshrrev_b32 v{V_T1}, 5, v0")
    a(f"v_lshlrev_b32 v{V_T1}, 8, v{V_T1}")
    a(f"v_and_b32 v{V_T2}, 15, v0")
    a(f"v_lshlrev_b32 v{V_T2}, 4, v{V_T2}")
    a(f"v_add_u32 v{V_VOFF}, v{V_T1}, v{V_T2}")
    a(f"v_and_b32 v{V_T1}, 16, v0")
    a(f"v_cmp_eq_u32 vcc, 0, v{V_T1}")
    for sl in range(3):
        a(f"v_mov_b32 v{V_T1}, {LDS_ONES}")
        a(f"v_mov_b32 v{V_T2}, {sl * SLOT + 8192}")
        a(f"v_cndmask_b32 v{V_T1}, v{V_T1}, v{V_T2}, vcc")
        a(f"v_add_u32 v{V_VA[sl]}, v{V_T1}, v{V_VOFF}")
    a(f"v_mov_b32 v{V_IDX}, 0xdddddddd")
    a(f"s_mov_b32 s{S_MASK}, 0x0000ffff")
    a(f"s_mov_b32 s{S_MASK+1}, 0x0000ffff")
    a(f"s_lshl_b32 s{S_T+4}, s{S_HEAD}, 16")
    a("s_waitcnt lgkmcnt(0)")
    a(f"s_add_u32 s{S_KBASE}, s{S_WS}, s{S_T+4}")
    a(f"s_addc_u32 s{S_KBASE+1}, s{S_WS+1}, 0")
    a(f"s_add_u32 s{S_QBASE}, s{S_KBASE}, {WS_QF}")
    a(f"s_addc_u32 s{S_QBASE+1}, s{S_KBASE+1}, 0")
    a(f"s_add_u32 s{S_T+5}, s{S_KBASE}, {WS_VF}")
    a(f"s_addc_u32 s{S_T+6}, s{S_KBASE+1}, 0")
    make_srd(a, S_VSRD, S_T + 5, S_T + 6, 65536)
    a(f"s_add_u32 s{S_KBASE}, s{S_KBASE}, {WS_KF}")
    a(f"s_addc_u32 s{S_KBASE+1}, s{S_KBASE+1}, 0")
    make_srd(a, S_KSRD, S_KBASE, S_KBASE + 1, 65536)
    a(f"s_lshl_b32 s{S_T}, s{S_W}, 11")
    a(f"s_lshr_b32 s{S_T+4}, s{S_HEAD}, 1")
    a(f"s_lshl_b32 s{S_T+4}, s{S_T+4}, 13")
    a(f"s_and_b32 s{S_T+5}, s{S_HEAD}, 1")
    a(f"s_lshl_b32 s{S_T+5}, s{S_T+5}, 5")
    a(f"s_add_u32 s{S_T+4}, s{S_T+4}, s{S_T+5}")
    a(f"s_add_u32 s{S_T+4}, s{S_T+4}, {WS_OB}")
    a(f"s_add_u32 s{S_OBASE}, s{S_WS}, s{S_T+4}")
    a(f"s_addc_u32 s{S_OBASE+1}, s{S_WS+1}, 0")
    a(f"s_lshl_b32 s{S_T+4}, s{S_QB}, 13")
    a(f"s_lshl_b32 s{S_T+5}, s{S_W}, 11")
    a(f"s_add_u32 s{S_T+4}, s{S_T+4}, s{S_T+5}")
    a(f"v_add_u32 v{V_T1}, s{S_T+4}, v{V_LANE16}")
    a(f"global_load_dwordx4 v[{QA}:{QA+3}], v{V_T1}, s[{S_QBASE}:{S_QBASE+1}]")
    a(f"global_load_dwordx4 v[{QB}:{QB+3}], v{V_T1}, s[{S_QBASE}:{S_QBASE+1}] offset:1024")
    dma_chunk(a, 0)
    dma_chunk(a, 1)
    for r in range(32):
        a(f"v_mov_b32 v{CA+r}, 0")
    a(f"s_mov_b32 s{S_PASS}, 0")
    a(f"v_and_b32 v{V_T1}, 11, v0")
    a(f"v_cmp_eq_u32 vcc, 0, v{V_T1}")
    a(f"v_mov_b32 v{V_T2}, 0x3f803f80")
    a("s_nop 1")
    a(f"v_cndmask_b32 v{TMP}, 0, v{V_T2}, vcc")
    for r in range(1, 4):
        a(f"v_mov_b32 v{TMP+r}, v{TMP}")
    a(f"v_add_u32 v{V_T1}, s{S_T}, v{V_LANE16}")
    for i in range(2):
        a(f"ds_write_b128 v{V_T1}, v[{TMP}:{TMP+3}] offset:{LDS_ONES + i * 1024}")
    a.label("attn_pass")
    for r in range(32):
        a(f"v_mov_b32 v{OA+r}, 0")
    a("s_waitcnt vmcnt(4) lgkmcnt(0)")
    a("s_barrier")
    stamp(a, 1)
    main_loop(a)
    stamp(a, 2)
    if TWICE:
        a(f"s_cmp_lg_u32 s{S_PASS}, 0")
        a("s_cbranch_scc1 attn_tw")
        a(f"s_mov_b32 s{S_PASS}, 1")
        a("s_waitcnt lgkmcnt(0)")
        a(f"s_mov_b64 s[{S_ST}:{S_ST+1}], s[{S_ST+4}:{S_ST+5}]")
        a("s_barrier")
        dma_chunk(a, 0)
        dma_chunk(a, 1)
        a("s_branch attn_pass")
        a.label("attn_tw")
    a("s_nop 7")
    a("s_nop 7")
    a(f"s_cmp_lg_u32 s{S_PASS}, 0")
    a("s_cbranch_scc1 attn_store")
    a(f"v_mov_b32 v{TMP}, 0")
    for O in (OA, OB_):
        for r in range(8):
            a(f"v_fma_f32 v{TMP}, v{O+r}, 0, v{TMP}")
    a(f"s_mov_b32 s{S_T+4}, 0x21800000")
    a(f"s_mov_b32 s{S_T+5}, 0x71800000")
    a(f"v_cmp_eq_f32 vcc, 0, v{TMP}")
    a(f"v_cmp_ge_f32 s[{S_T+6}:{S_T+7}], v{OA+8}, s{S_T+4}")
    a(f"s_and_b64 vcc, vcc, s[{S_T+6}:{S_T+7}]")
    a(f"v_cmp_le_f32 s[{S_T+6}:{S_T+7}], v{OA+8}, s{S_T+5}")
    a(f"s_and_b64 vcc, vcc, s[{S_T+6}:{S_T+7}]")
    a(f"v_cmp_ge_f32 s[{S_T+6}:{S_T+7}], v{OB_+8}, s{S_T+4}")
    a(f"s_and_b64 vcc, vcc, s[{S_T+6}:{S_T+7}]")
    a(f"v_cmp_le_f32 s[{S_T+6}:{S_T+7}], v{OB_+8}, s{S_T+5}")
    a(f"s_and_b64 vcc, vcc, s[{S_T+6}:{S_T+7}]")
    a(f"s_cmp_eq_u64 vcc, -1")
    a(f"s_cselect_b32 s{S_T+4}, 0, 1")
    a(f"s_lshl_b32 s{S_T+5}, s{S_W}, 2")
    a(f"s_add_u32 s{S_T+5}, s{S_T+5}, {LDS_FLAG}")
    a(f"v_mov_b32 v{TMP}, s{S_T+5}")
    a(f"v_mov_b32 v{TMP+1}, s{S_T+4}")
    a(f"ds_write_b32 v{TMP}, v{TMP+1}")
    a("s_waitcnt lgkmcnt(0)")
    a("s_barrier")
    a(f"v_mov_b32 v{TMP}, {LDS_FLAG}")
    a(f"ds_read_b128 v[{TMP+4}:{TMP+7}], v{TMP}")
    a("s_waitcnt lgkmcnt(0)")
    a(f"v_or_b32 v{TMP+4}, v{TMP+4}, v{TMP+5}")
    a(f"v_or3_b32 v{TMP+4}, v{TMP+4}, v{TMP+6}, v{TMP+7}")
    a("s_nop 1")
    a(f"v_readfirstlane_b32 s{S_T+4}, v{TMP+4}")
    a("s_nop 3")
    a(f"s_cmp_eq_u32 s{S_T+4}, 0")
    a("s_cbranch_scc1 attn_store")
    a(f"s_mov_b32 s{S_PASS}, 1")
    a(f"v_mov_b32 v{TMP+8}, 0xff800000")
    a(f"v_mov_b32 v{TMP+9}, 0xff800000")
    a(f"v_mov_b32 v{V_T1}, v{V_LANE16}")
    a(f"s_mov_b32 s{S_T+4}, 64")
    a.label("attn_maxloop")
    a(f"global_load_dwordx4 v[{KB[0]}:{KB[0]+3}], v{V_T1}, s[{S_KBASE}:{S_KBASE+1}]")
    a(f"v_add_u32 v{V_T1}, 1024, v{V_T1}")
    a("s_waitcnt vmcnt(0)")
    a(f"v_mfma_f32_32x32x16_bf16 v[{SA}:{SA+15}], v[{KB[0]}:{KB[0]+3}], v[{QA}:{QA+3}], 0")
    a(f"v_mfma_f32_32x32x16_bf16 v[{SB}:{SB+15}], v[{KB[0]}:{KB[0]+3}], v[{QB}:{QB+3}], 0")
    a("s_nop 15")
    a("s_nop 7")
    for S, M in ((SA, TMP + 8), (SB, TMP + 9)):
        for r in range(0, 16, 2):
            a(f"v_max3_f32 v{M}, v{S+r}, v{S+r+1}, v{M}")
    a(f"s_sub_u32 s{S_T+4}, s{S_T+4}, 1")
    a(f"s_cmp_lg_u32 s{S_T+4}, 0")
    a("s_cbranch_scc1 attn_maxloop")
    for M in (TMP + 8, TMP + 9):
        a(f"v_mov_b32 v{TMP+10}, v{M}")
        a("s_nop 1")
        a(f"v_permlane32_swap_b32 v{TMP+10}, v{M}")
        a("s_nop 1")
        a(f"v_max_f32 v{M}, v{TMP+10}, v{M}")
    for r in range(16):
        a(f"v_sub_f32 v{CA+r}, 0, v{TMP+8}")
        a(f"v_sub_f32 v{CB+r}, 0, v{TMP+9}")
    a("s_barrier")
    dma_chunk(a, 0)
    dma_chunk(a, 1)
    a("s_branch attn_pass")
    a.label("attn_store")
    a(f"s_lshl_b32 s{S_T+4}, s{S_QB}, 1")
    a(f"s_lshr_b32 s{S_T+5}, s{S_W}, 1")
    a(f"s_add_u32 s{S_T+4}, s{S_T+4}, s{S_T+5}")
    a(f"s_lshl_b32 s{S_T+4}, s{S_T+4}, 17")
    a(f"s_and_b32 s{S_T+5}, s{S_W}, 1")
    a(f"s_lshl_b32 s{S_T+5}, s{S_T+5}, 12")
    a(f"s_add_u32 s{S_T+4}, s{S_T+4}, s{S_T+5}")
    a(f"v_and_b32 v{V_T1}, 31, v0")
    a(f"v_lshlrev_b32 v{V_T1}, 6, v{V_T1}")
    a(f"v_lshrrev_b32 v{V_T2}, 5, v0")
    a(f"v_lshlrev_b32 v{V_T2}, 4, v{V_T2}")
    a(f"v_add3_u32 v{V_T1}, v{V_T1}, v{V_T2}, s{S_T+4}")
    a(f"v_add_u32 v{V_T2}, 2048, v{V_T1}")
    for O, T, A in ((OA, TMP, V_T1), (OB_, TMP + 4, V_T2)):
        a(f"v_rcp_f32 v{V_T3}, v{O+8}")
        a("s_nop 0")
        for r in range(8):
            a(f"v_mul_f32 v{O+r}, v{O+r}, v{V_T3}")
        for r in range(4):
            a(f"v_cvt_pk_bf16_f32 v{T+r}, v{O+2*r}, v{O+2*r+1}")
        a(f"global_store_dwordx4 v{A}, v[{T}:{T+3}], s[{S_OBASE}:{S_OBASE+1}]")
    if STAMP:
        stamp(a, 3)
        a("s_waitcnt lgkmcnt(0)")
        a(f"s_load_dwordx2 s[60:61], s[0:1], {KA_DBG}")
        a(f"s_lshl_b32 s62, s{idreg}, 2")
        a(f"s_add_u32 s62, s62, s{S_W}")
        a(f"s_lshl_b32 s62, s62, 4")
        a(f"s_sub_u32 s{S_ST+2}, s{S_ST+2}, s{S_ST}")
        a(f"s_sub_u32 s{S_ST+4}, s{S_ST+4}, s{S_ST}")
        a(f"s_sub_u32 s{S_ST+6}, s{S_ST+6}, s{S_ST}")
        a(f"s_sub_u32 s{S_ST}, s{S_ST+10}, s{S_ST+8}")
        a(f"v_mov_b32 v{TMP}, s{S_ST}")
        a(f"v_mov_b32 v{TMP+1}, s{S_ST+2}")
        a(f"v_mov_b32 v{TMP+2}, s{S_ST+4}")
        a(f"v_mov_b32 v{TMP+3}, s{S_ST+6}")
        a(f"v_mov_b32 v{TMP+4}, s62")
        a("s_waitcnt lgkmcnt(0)")
        a(f"global_store_dwordx4 v{TMP+4}, v[{TMP}:{TMP+3}], s[60:61]")
    a(f"s_branch {done_label}")
```

```python
from asmlib import *
from layout import *

S_W = 8
S_RB = 9
S_CB = 10
S_NP = 11
SRD_A = 12
SRD_W = 16
S_SOA = 20
S_SOW = 21
S_LDA = 22
S_LDW = 23
S_T = 24
S_P0 = 32
S_WS = 4

V_OA0, V_OA1 = 1, 2
V_OW = 3
V_RA = 6
V_RW = 8
V_RAH = 9
V_RWH = 11
V_T = 12
FA = 16
FW = 24
HI = 32768


class Job:
    def __init__(self, name, NC, nstages, ring, nW, a_rs, a_ss, w_ws, chunk, wrow, orient, acc, lds0=0):
        self.name, self.NC, self.NS, self.R, self.nW = name, NC, nstages, ring, nW
        self.a_rs, self.a_ss, self.w_ws = a_rs, a_ss, w_ws
        self.chunk, self.wrow, self.orient, self.acc = chunk, wrow, orient, acc
        self.stage = 8192 + NC * 2048
        self.lds0 = lds0
        self.n = 2 + nW

    def slot(self, st):
        return self.lds0 + (st % self.R) * self.stage


def lane_setup(a, j):
    T0, T1, T2 = V_T, V_T + 1, V_T + 2
    a(f"v_lshrrev_b32 v{T0}, 2, v0")
    a(f"v_and_b32 v{T1}, 3, v0")
    a(f"v_bfe_u32 v{T2}, v0, 4, 2")
    a(f"v_xor_b32 v{T2}, v{T1}, v{T2}")
    a(f"v_lshlrev_b32 v{T2}, 4, v{T2}")
    a(f"s_mul_i32 s{S_T}, s{S_W}, {32 * j.a_rs}")
    a(f"v_mul_u32_u24 v{V_OA0}, {j.a_rs}, v{T0}")
    a(f"v_add3_u32 v{V_OA0}, v{V_OA0}, v{T2}, s{S_T}")
    a(f"v_add_u32 v{V_OA1}, {16 * j.a_rs - 1024}, v{V_OA0}")
    a(f"v_mul_u32_u24 v{V_OW}, {j.w_ws}, v{T0}")
    a(f"v_lshlrev_b32 v{T1}, 4, v{T1}")
    a(f"v_add_u32 v{V_OW}, v{V_OW}, v{T1}")
    a(f"v_and_b32 v{T0}, 31, v0")
    a(f"v_lshrrev_b32 v{T1}, 5, v0")
    if j.chunk == 'hperm':
        a(f"v_lshlrev_b32 v{T1}, 1, v{T1}")
    a(f"v_bfe_u32 v{T2}, v0, 2, 2")
    a(f"v_xor_b32 v{T1}, v{T1}, v{T2}")
    a(f"v_lshlrev_b32 v{T1}, 4, v{T1}")
    a(f"v_lshlrev_b32 v{T0}, 6, v{T0}")
    a(f"s_lshl_b32 s{S_LDA}, s{S_W}, 11")
    a(f"v_add3_u32 v{V_RA}, v{T0}, v{T1}, s{S_LDA}")
    a(f"v_xor_b32 v{V_RA+1}, {16 if j.chunk == 'hperm' else 32}, v{V_RA}")
    a(f"v_add_u32 v{V_RAH}, {HI}, v{V_RA}")
    a(f"v_add_u32 v{V_RAH+1}, {HI}, v{V_RA+1}")
    a(f"v_lshrrev_b32 v{T0}, 5, v0")
    a(f"v_lshlrev_b32 v{T0}, {3 if j.wrow == 'plain' else 2}, v{T0}")
    a(f"v_bfe_u32 v{T1}, v0, 2, 2")
    a(f"v_add_u32 v{T0}, v{T0}, v{T1}")
    a(f"v_lshlrev_b32 v{T0}, 6, v{T0}")
    a(f"v_bfe_u32 v{T1}, v0, 4, 1")
    a(f"v_lshlrev_b32 v{T1}, 5, v{T1}")
    a(f"v_and_b32 v{T2}, 3, v0")
    a(f"v_lshlrev_b32 v{T2}, 3, v{T2}")
    a(f"v_add3_u32 v{V_RW}, v{T0}, v{T1}, v{T2}")
    a(f"v_add_u32 v{V_RWH}, {HI}, v{V_RW}")


def dma_stage(a, j, st):
    sl = j.slot(st)
    a(f"s_add_u32 m0, s{S_LDA}, {sl}")
    a("s_nop 0")
    a(f"buffer_load_dwordx4 v{V_OA0}, s[{SRD_A}:{SRD_A+3}], s{S_SOA} offen lds")
    a(f"buffer_load_dwordx4 v{V_OA1}, s[{SRD_A}:{SRD_A+3}], s{S_SOA} offen offset:1024 lds")
    a(f"s_add_u32 m0, s{S_LDW}, {sl + 8192}")
    a(f"s_add_u32 s{S_SOA}, s{S_SOA}, {j.a_ss}")
    for q in range(j.nW):
        off = f" offset:{1024 * q}" if q else ""
        a(f"buffer_load_dwordx4 v{V_OW+q}, s[{SRD_W}:{SRD_W+3}], s{S_SOW} offen{off} lds")
    a(f"s_add_u32 s{S_SOW}, s{S_SOW}, {32 * j.w_ws}")


def _ds(op, dst, n, vlo, vhi, off):
    reg = vlo
    if off >= 49152:
        reg, off = vhi, off - HI
    assert 0 <= off < 65536
    return f"{op} v[{dst}:{dst+n-1}], v{reg} offset:{off}"


def frag_reads(j, kap):
    st, s, b = kap >> 1, kap & 1, kap & 1
    sl = j.slot(st)
    out = [_ds("ds_read_b128", FA + 4 * b, 4, V_RA + s, V_RAH + s, sl)]
    for c in range(j.NC):
        d = FW + (b * j.NC + c) * 4
        for half in range(2):
            row = 16 * s + (4 * half if j.wrow == 'plain' else 8 * half)
            out.append(_ds("ds_read_b64_tr_b16", d + 2 * half, 2, V_RW, V_RWH, sl + 8192 + c * 2048 + row * 64))
    return out


def mfmas(j, kap, ncols=None):
    b = kap & 1
    out = []
    for c in range(j.NC if ncols is None else ncols):
        acc = j.acc + 16 * c
        w = FW + (b * j.NC + c) * 4
        f = FA + 4 * b
        if j.orient[c] == 'FM':
            out.append(f"v_mfma_f32_32x32x16_bf16 v[{acc}:{acc+15}], v[{w}:{w+3}], v[{f}:{f+3}], v[{acc}:{acc+15}]")
        else:
            out.append(f"v_mfma_f32_32x32x16_bf16 v[{acc}:{acc+15}], v[{f}:{f+3}], v[{w}:{w+3}], v[{acc}:{acc+15}]")
    return out


def interleave(a, ms, rs):
    n = len(ms)
    k = 0
    for i, m in enumerate(ms):
        a(m)
        upto = (len(rs) * (i + 1) + n - 1) // n
        while k < min(upto, len(rs)):
            a(rs[k]); k += 1


def prologue_dma(a, j):
    for st in range(min(j.R, j.NS)):
        dma_stage(a, j, st)


def zero_acc(a, j):
    for r in range(16 * j.NC):
        a(f"v_mov_b32 v{j.acc + r}, 0")


def main_loop(a, j):
    R, NS, n = j.R, j.NS, j.n
    issued = min(R, NS)
    a(f"s_waitcnt vmcnt({n * (issued - 1)})")
    a("s_barrier")
    for r in frag_reads(j, 0):
        a(r)
    for kap in range(2 * NS):
        st = kap >> 1
        a("s_waitcnt lgkmcnt(0)")
        ms = mfmas(j, kap)
        last = kap == 2 * NS - 1
        if last:
            for m in ms:
                a(m)
            break
        if kap & 1:
            a(ms[0])
            allowed = issued - (st + 2)
            a(f"s_waitcnt vmcnt({n * allowed})")
            a("s_barrier")
            if issued < NS:
                dma_stage(a, j, issued)
                issued += 1
            rs = frag_reads(j, kap + 1)
            if len(ms) > 1:
                interleave(a, ms[1:], rs)
            else:
                for r in rs:
                    a(r)
        else:
            interleave(a, ms, frag_reads(j, kap + 1))
```

```python
from asmlib import *
from layout import *
from gemm import *
import struct

def f2u(x):
    return struct.unpack("<I", struct.pack("<f", x))[0]


def common_entry(a):
    a(f"s_load_dwordx2 s[{S_WS}:{S_WS+1}], s[0:1], {KA_WS}")
    a(f"v_lshrrev_b32 v{V_T}, 6, v0")
    a("v_and_b32 v0, 63, v0")
    a(f"v_readfirstlane_b32 s{S_W}, v{V_T}")


def decode_rb_cb(a, idreg):
    a(f"s_and_b32 s{S_RB}, s{idreg}, 3")
    a(f"s_lshl_b32 s{S_RB}, s{S_RB}, 2")
    a(f"s_bfe_u32 s{S_T}, s{idreg}, 0x20003")
    a(f"s_add_u32 s{S_RB}, s{S_RB}, s{S_T}")
    a(f"s_bfe_u32 s{S_CB}, s{idreg}, 0x10002")
    a(f"s_lshl_b32 s{S_CB}, s{S_CB}, 3")
    a(f"s_lshr_b32 s{S_T}, s{idreg}, 5")
    a(f"s_add_u32 s{S_CB}, s{S_CB}, s{S_T}")


def srd_from(a, dst, lo, hi, size, add=0):
    if add > 0:
        a(f"s_add_u32 s{dst}, s{lo}, {add}")
        a(f"s_addc_u32 s{dst+1}, s{hi}, 0")
    elif add < 0:
        a(f"s_sub_u32 s{dst}, s{lo}, {-add}")
        a(f"s_subb_u32 s{dst+1}, s{hi}, 0")
    else:
        a(f"s_mov_b32 s{dst}, s{lo}")
        a(f"s_mov_b32 s{dst+1}, s{hi}")
    a(f"s_and_b32 s{dst+1}, s{dst+1}, 0xffff")
    a(f"s_mov_b32 s{dst+2}, {size}")
    a(f"s_mov_b32 s{dst+3}, 0x20000")


def store_pk8(a, src, tmp, scale_sreg=None):
    if scale_sreg is not None:
        for r in range(8):
            a(f"v_mul_f32 v{src+r}, s{scale_sreg}, v{src+r}")
    for r in range(4):
        a(f"v_cvt_pk_bf16_f32 v{tmp+r}, v{src+2*r}, v{src+2*r+1}")


def qkv_job(a, idreg, done, ring=5, lds0=0):
    ACC = 48
    j = Job("qkv", NC=3, nstages=16, ring=ring, nW=2, a_rs=1024, a_ss=64, w_ws=3072,
            chunk='plain', wrow='plain', orient=['FM', 'FM', 'TM'], acc=ACC, lds0=lds0)
    P_X, P_W, P_GW = S_P0, S_P0 + 2, S_P0 + 4
    a(f"s_load_dwordx2 s[{P_X}:{P_X+1}], s[0:1], {KA_AX}")
    a(f"s_load_dwordx2 s[{P_W}:{P_W+1}], s[0:1], {KA_WQKV}")
    a(f"s_load_dwordx2 s[{P_GW}:{P_GW+1}], s[0:1], {KA_GW}")
    common_entry(a)
    decode_rb_cb(a, idreg)
    lane_setup(a, j)
    a(f"s_min_u32 s{S_T}, s{S_W}, 2")
    a(f"s_lshl_b32 s{S_LDW}, s{S_T}, 11")
    a(f"s_lshl_b32 s{S_T}, s{S_T}, 10")
    a(f"s_lshl_b32 s{S_T+1}, s{S_CB}, 6")
    a(f"s_add_u32 s{S_T}, s{S_T}, s{S_T+1}")
    a(f"v_add_u32 v{V_OW}, s{S_T}, v{V_OW}")
    a(f"v_add_u32 v{V_OW+1}, {16 * 3072 - 1024}, v{V_OW}")
    a(f"s_lshl_b32 s{S_SOA}, s{S_RB}, 17")
    a(f"s_mov_b32 s{S_SOW}, 0")
    a("s_waitcnt lgkmcnt(0)")
    srd_from(a, SRD_A, P_X, P_X + 1, 2048 * 1024)
    srd_from(a, SRD_W, P_W, P_W + 1, 512 * 3072)
    GX, GWR = 100, 108
    a(f"s_lshl_b32 s{S_T}, s{S_RB}, 7")
    a(f"s_lshl_b32 s{S_T+1}, s{S_CB}, 3")
    a(f"s_add_u32 s{S_T}, s{S_T}, s{S_T+1}")
    a(f"s_lshl_b32 s{S_T+1}, s{S_W}, 1")
    a(f"s_add_u32 s{S_T+2}, s{S_T}, s{S_T+1}")
    a(f"s_lshl_b32 s{S_T+3}, s{S_T+2}, 10")
    a(f"v_lshlrev_b32 v{V_T}, 4, v0")
    a(f"v_add_u32 v{V_T+1}, s{S_T+3}, v{V_T}")
    a(f"global_load_dwordx4 v[{GX}:{GX+3}], v{V_T+1}, s[{P_X}:{P_X+1}]")
    a(f"global_load_dwordx4 v[{GX+4}:{GX+7}], v{V_T+1}, s[{P_X}:{P_X+1}] offset:1024")
    a(f"global_load_dwordx4 v[{GWR}:{GWR+3}], v{V_T}, s[{P_GW}:{P_GW+1}]")
    a(f"s_mov_b32 s{S_T+7}, s{S_T+2}")
    prologue_dma(a, j)
    zero_acc(a, j)
    main_loop(a, j)
    G0, G1 = 112, 113
    a(f"v_mov_b32 v{G0}, 0")
    a(f"v_mov_b32 v{G1}, 0")
    for r in range(4):
        a(f"v_dot2_f32_bf16 v{G0}, v{GX+r}, v{GWR+r}, v{G0}")
        a(f"v_dot2_f32_bf16 v{G1}, v{GX+4+r}, v{GWR+r}, v{G1}")
    for rot in (8, 4, 2, 1):
        a("s_nop 1")
        a(f"v_add_f32_dpp v{G0}, v{G0}, v{G0} row_ror:{rot} row_mask:0xf bank_mask:0xf")
        a(f"v_add_f32_dpp v{G1}, v{G1}, v{G1} row_ror:{rot} row_mask:0xf bank_mask:0xf")
    a("s_nop 1")
    for gi, g in enumerate((G0, G1)):
        for q in range(4):
            a(f"v_readlane_b32 s{S_T+q}, v{g}, {16*q}")
        a("s_nop 1")
        a(f"v_mov_b32 v{V_T+gi}, s{S_T}")
        a(f"v_add_f32 v{V_T+gi}, s{S_T+1}, v{V_T+gi}")
        a(f"v_add_f32 v{V_T+gi}, s{S_T+2}, v{V_T+gi}")
        a(f"v_add_f32 v{V_T+gi}, s{S_T+3}, v{V_T+gi}")
    a(f"v_cmp_eq_u32 vcc, 1, v0")
    a("s_nop 1")
    a(f"v_cndmask_b32 v{V_T}, v{V_T}, v{V_T+1}, vcc")
    a(f"v_mul_f32 v{V_T}, {f2u(-1.4426950408889634)}, v{V_T}")
    a(f"v_exp_f32 v{V_T}, v{V_T}")
    a("s_nop 0")
    a(f"v_add_f32 v{V_T}, 1.0, v{V_T}")
    a(f"v_rcp_f32 v{V_T}, v{V_T}")
    a(f"v_lshlrev_b32 v{V_T+1}, 2, v0")
    a(f"s_lshl_b32 s{S_T}, s{S_T+7}, 2")
    a(f"s_add_u32 s{S_T}, s{S_T}, {WS_G}")
    a(f"v_add_u32 v{V_T+1}, s{S_T}, v{V_T+1}")
    a(f"v_cmp_gt_u32 vcc, 2, v0")
    a(f"s_and_saveexec_b64 s[{S_T+2}:{S_T+3}], vcc")
    a(f"global_store_dword v{V_T+1}, v{V_T}, s[{S_WS}:{S_WS+1}]")
    a(f"s_mov_b64 exec, s[{S_T+2}:{S_T+3}]")
    TMP = 116
    a(f"s_lshl_b32 s{S_T}, s{S_RB}, 2")
    a(f"s_add_u32 s{S_T}, s{S_T}, s{S_W}")
    a(f"s_lshl_b32 s{S_T+1}, s{S_T}, 10")
    a(f"s_lshl_b32 s{S_T+2}, s{S_CB}, 17")
    a(f"s_add_u32 s{S_T+1}, s{S_T+1}, s{S_T+2}")
    a(f"v_lshlrev_b32 v{V_T}, 4, v0")
    a(f"v_add_u32 v{V_T}, s{S_T+1}, v{V_T}")
    a(f"v_add_u32 v{V_T+1}, 0x10000, v{V_T}")
    a(f"s_mov_b32 s{S_T+3}, {f2u(QSCALE)}")
    a(f"s_add_u32 s{S_P0+6}, s{S_WS}, {WS_KF}")
    a(f"s_addc_u32 s{S_P0+7}, s{S_WS+1}, 0")
    store_pk8(a, ACC, TMP, S_T + 3)
    a(f"global_store_dwordx4 v{V_T}, v[{TMP}:{TMP+3}], s[{S_WS}:{S_WS+1}]")
    store_pk8(a, ACC + 8, TMP + 4, S_T + 3)
    a(f"global_store_dwordx4 v{V_T+1}, v[{TMP+4}:{TMP+7}], s[{S_WS}:{S_WS+1}]")
    store_pk8(a, ACC + 16, TMP + 8)
    a(f"global_store_dwordx4 v{V_T}, v[{TMP+8}:{TMP+11}], s[{S_P0+6}:{S_P0+7}]")
    store_pk8(a, ACC + 24, TMP + 12)
    a(f"global_store_dwordx4 v{V_T+1}, v[{TMP+12}:{TMP+15}], s[{S_P0+6}:{S_P0+7}]")
    a(f"s_lshl_b32 s{S_T+1}, s{S_T}, 10")
    a(f"s_add_u32 s{S_T+1}, s{S_T+1}, s{S_T+2}")
    a(f"s_add_u32 s{S_T+1}, s{S_T+1}, {WS_VF}")
    a(f"v_bfe_u32 v{V_T+2}, v0, 4, 1")
    a(f"v_lshlrev_b32 v{V_T+2}, 16, v{V_T+2}")
    a(f"v_lshrrev_b32 v{V_T+3}, 5, v0")
    a(f"v_lshlrev_b32 v{V_T+3}, 8, v{V_T+3}")
    a(f"v_add3_u32 v{V_T+2}, v{V_T+2}, v{V_T+3}, s{S_T+1}")
    a(f"v_and_b32 v{V_T+3}, 15, v0")
    a(f"v_lshlrev_b32 v{V_T+3}, 4, v{V_T+3}")
    a(f"v_add_u32 v{V_T+2}, v{V_T+2}, v{V_T+3}")
    VT = TMP + 16
    for p in range(2):
        src = ACC + 32 + 8 * p
        t = VT + 4 * p
        for r in range(4):
            a(f"v_cvt_pk_bf16_f32 v{t+r}, v{src+2*r}, v{src+2*r+1}")
        a("s_nop 1")
        a(f"v_permlane32_swap_b32 v{t}, v{t+2}")
        a(f"v_permlane32_swap_b32 v{t+1}, v{t+3}")
        off = f" offset:512" if p else ""
        a(f"global_store_dwordx4 v{V_T+2}, v[{t}:{t+3}], s[{S_WS}:{S_WS+1}]{off}")
    a(f"s_branch {done}")
    return j


GA = -2.0 * 1.4426950408889634 * 0.7978845608028654
GB = GA * 0.044715

def g_job(a, idreg, done, ring=4, lds0=0, tail=None):
    ACC = 72
    j = Job("g", NC=6, nstages=16, ring=ring, nW=3, a_rs=1024, a_ss=64, w_ws=2752,
            chunk='plain', wrow='plain', orient=['FM'] * 6, acc=ACC, lds0=lds0)
    P_X, P_WG, P_WU = S_P0, S_P0 + 2, S_P0 + 4
    a(f"s_load_dwordx2 s[{P_X}:{P_X+1}], s[0:1], {KA_AX}")
    a(f"s_load_dwordx2 s[{P_WG}:{P_WG+1}], s[0:1], {KA_WG}")
    a(f"s_load_dwordx2 s[{P_WU}:{P_WU+1}], s[0:1], {KA_WU}")
    common_entry(a)
    decode_rb_cb(a, idreg)
    lane_setup(a, j)
    TILE0 = S_P0 + 6
    a(f"s_mul_i32 s{TILE0}, s{S_CB}, 3")
    a(f"s_lshl_b32 s{S_T}, s{S_CB}, 1")
    a(f"s_add_u32 s{S_T}, s{S_T}, 11")
    a(f"s_cmp_lt_u32 s{S_CB}, 11")
    a(f"s_cselect_b32 s{TILE0}, s{TILE0}, s{S_T}")
    a(f"s_cselect_b32 s{S_NP}, 3, 2")
    BIAS = 2048
    a(f"s_and_b32 s{S_T}, s{S_W}, 1")
    a(f"s_lshr_b32 s{S_T+1}, s{S_W}, 1")
    a(f"s_mul_i32 s{S_LDW}, s{S_T+1}, 6144")
    a(f"s_mul_i32 s{S_T+2}, s{S_T}, 3072")
    a(f"s_add_u32 s{S_LDW}, s{S_LDW}, s{S_T+2}")
    ex = lambda jx: 16 * (jx & 1) * 2752 + (jx >> 1) * 64
    a(f"s_cmp_eq_u32 s{S_T}, 0")
    for q in range(3):
        e0 = ex(q) - 1024 * q + BIAS
        e1 = ex(3 + q) - 1024 * q + BIAS
        a(f"s_mov_b32 s{S_T+3}, {e1}")
        a(f"s_cselect_b32 s{S_T+3}, {e0}, s{S_T+3}")
        a(f"v_add_u32 v{V_OW+ (q if q else 3 + 9)}, s{S_T+3}, v{V_OW}")
    a(f"v_mov_b32 v{V_OW}, v{V_OW+12}")
    a(f"s_lshl_b32 s{S_SOA}, s{S_RB}, 17")
    a(f"s_lshl_b32 s{S_SOW}, s{TILE0}, 6")
    a("s_waitcnt lgkmcnt(0)")
    srd_from(a, SRD_A, P_X, P_X + 1, 2048 * 1024)
    a(f"s_cmp_eq_u32 s{S_T+1}, 0")
    a(f"s_cselect_b32 s{S_T+4}, s{P_WG}, s{P_WU}")
    a(f"s_cselect_b32 s{S_T+5}, s{P_WG+1}, s{P_WU+1}")
    srd_from(a, SRD_W, S_T + 4, S_T + 5, 512 * 2752 + BIAS, add=-BIAS)
    prologue_dma(a, j)
    zero_acc(a, j)
    main_loop(a, j)
    a("s_nop 7")
    a("s_nop 7")
    T = 168
    a(f"s_mov_b32 s{S_T}, {f2u(GA)}")
    a(f"s_mov_b32 s{S_T+1}, {f2u(GB)}")
    a(f"s_mul_i32 s{S_T+2}, s{S_RB}, 43")
    a(f"s_add_u32 s{S_T+2}, s{S_T+2}, s{TILE0}")
    a(f"s_lshl_b32 s{S_T+2}, s{S_T+2}, 13")
    a(f"s_lshl_b32 s{S_T+3}, s{S_W}, 11")
    a(f"s_add_u32 s{S_T+2}, s{S_T+2}, s{S_T+3}")
    a(f"s_add_u32 s{S_T+2}, s{S_T+2}, {WS_H}")
    a(f"v_and_b32 v{V_T}, 31, v0")
    a(f"v_lshlrev_b32 v{V_T}, 6, v{V_T}")
    a(f"v_lshrrev_b32 v{V_T+1}, 5, v0")
    a(f"v_lshlrev_b32 v{V_T+1}, 5, v{V_T+1}")
    a(f"v_add3_u32 v{V_T}, v{V_T}, v{V_T+1}, s{S_T+2}")
    a(f"v_mov_b32 v{V_T+2}, s{S_T}")
    for p in range(3):
        if p == 2:
            a(f"s_cmp_lt_u32 s{S_NP}, 3")
            a(f"s_cbranch_scc1 g_skip")
        G, U = ACC + 16 * p, ACC + 16 * (3 + p)
        for r0 in range(0, 16, 4):
            rr = range(r0, r0 + 4)
            for r in rr:
                a(f"v_mul_f32 v{T + r - r0}, v{G+r}, v{G+r}")
            for r in rr:
                a(f"v_fma_f32 v{T + r - r0}, v{T + r - r0}, s{S_T+1}, v{V_T+2}")
            for r in rr:
                a(f"v_mul_f32 v{T + r - r0}, v{T + r - r0}, v{G+r}")
            for r in rr:
                a(f"v_exp_f32 v{T + r - r0}, v{T + r - r0}")
            for r in rr:
                a(f"v_mul_f32 v{U+r}, v{U+r}, v{G+r}")
            for r in rr:
                a(f"v_add_f32 v{T + r - r0}, 1.0, v{T + r - r0}")
            for r in rr:
                a(f"v_rcp_f32 v{T + r - r0}, v{T + r - r0}")
            a("s_nop 0")
            for r in rr:
                a(f"v_mul_f32 v{U+r}, v{U+r}, v{T + r - r0}")
        for r in range(8):
            a(f"v_cvt_pk_bf16_f32 v{G+r}, v{U+2*r}, v{U+2*r+1}")
        if p:
            a(f"v_add_u32 v{V_T}, 8192, v{V_T}")
        a(f"global_store_dwordx4 v{V_T}, v[{G}:{G+3}], s[{S_WS}:{S_WS+1}]")
        a(f"global_store_dwordx4 v{V_T}, v[{G+4}:{G+7}], s[{S_WS}:{S_WS+1}] offset:16")
    a.label("g_skip")
    a(f"s_branch {done}")
    return j


def nc1_setup(a, j, idreg, kaW, ws_off, nst):
    P_W = S_P0
    a(f"s_load_dwordx2 s[{P_W}:{P_W+1}], s[0:1], {kaW}")
    common_entry(a)
    decode_rb_cb(a, idreg)
    lane_setup(a, j)
    a(f"s_and_b32 s{S_T}, s{S_W}, 1")
    a(f"s_lshl_b32 s{S_LDW}, s{S_T}, 10")
    a(f"s_lshl_b32 s{S_T}, s{S_T}, 14")
    a(f"s_lshl_b32 s{S_T+1}, s{S_CB}, 6")
    a(f"s_add_u32 s{S_T}, s{S_T}, s{S_T+1}")
    a(f"v_add_u32 v{V_OW}, s{S_T}, v{V_OW}")
    a(f"s_mov_b32 s{S_SOA}, 0")
    a(f"s_mov_b32 s{S_SOW}, 0")
    a(f"s_mul_i32 s{S_T+2}, s{S_RB}, {nst * 8192}")
    a(f"s_add_u32 s{S_T+2}, s{S_T+2}, {ws_off}")
    a("s_waitcnt lgkmcnt(0)")
    a(f"s_add_u32 s{S_T+4}, s{S_WS}, s{S_T+2}")
    a(f"s_addc_u32 s{S_T+5}, s{S_WS+1}, 0")
    srd_from(a, SRD_A, S_T + 4, S_T + 5, nst * 8192)
    srd_from(a, SRD_W, P_W, P_W + 1, nst * 32 * 1024)


def bp_addr(a, dst):
    a(f"s_lshl_b32 s{S_T}, s{S_RB}, 4")
    a(f"s_add_u32 s{S_T}, s{S_T}, s{S_CB}")
    a(f"s_lshl_b32 s{S_T}, s{S_T}, 2")
    a(f"s_add_u32 s{S_T}, s{S_T}, s{S_W}")
    a(f"s_lshl_b32 s{S_T}, s{S_T}, 12")
    a(f"s_add_u32 s{S_T}, s{S_T}, {WS_BP}")
    a(f"v_lshlrev_b32 v{dst}, 4, v0")
    a(f"v_add_u32 v{dst}, s{S_T}, v{dst}")


def g_load(a, dst, tmp):
    a(f"s_lshl_b32 s{S_T}, s{S_RB}, 7")
    a(f"s_lshl_b32 s{S_T+1}, s{S_W}, 5")
    a(f"s_add_u32 s{S_T}, s{S_T}, s{S_T+1}")
    a(f"s_lshl_b32 s{S_T}, s{S_T}, 2")
    a(f"s_add_u32 s{S_T}, s{S_T}, {WS_G}")
    a(f"v_and_b32 v{tmp}, 31, v0")
    a(f"v_lshlrev_b32 v{tmp}, 2, v{tmp}")
    a(f"v_add_u32 v{tmp}, s{S_T}, v{tmp}")
    a(f"global_load_dword v{dst}, v{tmp}, s[{S_WS}:{S_WS+1}]")


def d_job(a, idreg, done, ring=8, lds0=0):
    ACC = 40
    j = Job("d", NC=1, nstages=43, ring=ring, nW=1, a_rs=64, a_ss=8192, w_ws=1024,
            chunk='hperm', wrow='perm', orient=['FM'], acc=ACC, lds0=lds0)
    nc1_setup(a, j, idreg, KA_WD, WS_H, 43)
    GV = 60
    g_load(a, GV, V_T)
    prologue_dma(a, j)
    zero_acc(a, j)
    main_loop(a, j)
    a("s_nop 7")
    a("s_nop 7")
    a(f"v_sub_f32 v{GV}, 1.0, v{GV}")
    bp_addr(a, V_T)
    for r in range(16):
        a(f"v_mul_f32 v{ACC+r}, v{ACC+r}, v{GV}")
    for q in range(4):
        off = f" offset:{1024*q}" if q else ""
        a(f"global_store_dwordx4 v{V_T}, v[{ACC+4*q}:{ACC+4*q+3}], s[{S_WS}:{S_WS+1}]{off}")
    a(f"s_branch {done}")
    return j


def wo_job(a, idreg, done, ring=8, lds0=0):
    ACC = 40
    j = Job("wo", NC=1, nstages=16, ring=ring, nW=1, a_rs=64, a_ss=8192, w_ws=1024,
            chunk='plain', wrow='perm', orient=['FM'], acc=ACC, lds0=lds0)
    P_OUT = S_P0 + 2
    a(f"s_load_dwordx2 s[{P_OUT}:{P_OUT+1}], s[0:1], {KA_OUT}")
    nc1_setup(a, j, idreg, KA_WO, WS_OB, 16)
    GV, BPV = 60, 64
    g_load(a, GV, V_T)
    bp_addr(a, V_T + 1)
    for q in range(4):
        off = f" offset:{1024*q}" if q else ""
        a(f"global_load_dwordx4 v[{BPV+4*q}:{BPV+4*q+3}], v{V_T+1}, s[{S_WS}:{S_WS+1}]{off}")
    prologue_dma(a, j)
    zero_acc(a, j)
    main_loop(a, j)
    a("s_nop 7")
    a("s_nop 7")
    for r in range(16):
        a(f"v_fma_f32 v{ACC+r}, v{ACC+r}, v{GV}, v{BPV+r}")
    a(f"s_lshl_b32 s{S_T}, s{S_RB}, 7")
    a(f"s_lshl_b32 s{S_T+1}, s{S_W}, 5")
    a(f"s_add_u32 s{S_T}, s{S_T}, s{S_T+1}")
    a(f"s_lshl_b32 s{S_T}, s{S_T}, 10")
    a(f"s_lshl_b32 s{S_T+1}, s{S_CB}, 6")
    a(f"s_add_u32 s{S_T}, s{S_T}, s{S_T+1}")
    a(f"v_and_b32 v{V_T}, 31, v0")
    a(f"v_lshlrev_b32 v{V_T}, 10, v{V_T}")
    a(f"v_lshrrev_b32 v{V_T+1}, 5, v0")
    a(f"v_lshlrev_b32 v{V_T+1}, 4, v{V_T+1}")
    a(f"v_add3_u32 v{V_T}, v{V_T}, v{V_T+1}, s{S_T}")
    T = 80
    for p in range(2):
        t = T + 4 * p
        for r in range(4):
            a(f"v_cvt_pk_bf16_f32 v{t+r}, v{ACC+8*p+2*r}, v{ACC+8*p+2*r+1}")
        a("s_nop 1")
        a(f"v_permlane32_swap_b32 v{t}, v{t+2}")
        a(f"v_permlane32_swap_b32 v{t+1}, v{t+3}")
        off = " offset:32" if p else ""
        a(f"global_store_dwordx4 v{V_T}, v[{t}:{t+3}], s[{P_OUT}:{P_OUT+1}]{off}")
    a(f"s_branch {done}")
    return j
```

```python
import os
WS_BASE = int(os.environ.get('WSBASE', '0'), 0)
WS_QF = 0x000000
WS_KF = 0x200000
WS_VF = 0x400000
WS_H  = 0x600000
WS_OB = 0xC00000
WS_BP = 0xE00000
WS_G  = 0x1240000
WS_FLAG = 0x1210000
WS_END = 0x1260000
KA_AX, KA_WQKV, KA_WO, KA_BX, KA_WG, KA_WU, KA_WD, KA_GW, KA_OUT, KA_DBG, KA_WS = [8 * i for i in range(11)]
QSCALE = 0.25 * 1.4426950408889634
```

```python
import sys, os
sys.path.insert(0, os.path.dirname(os.path.abspath(__file__)))
from asmlib import *
from layout import *
import attn, jobs

NAME = "gated_mix__mha_block__glu_gated_geglu__prompt"
HEADER = open(os.path.join(os.path.dirname(os.path.abspath(__file__)), "header.txt")).read()


def build(mode="Y"):
    a = Asm()
    a.raw(HEADER.rstrip("\n"))
    L1_LDS = 81920
    L2_LDS = 81920
    L3_LDS = 81920
    a.raw(f"; @launch kernel=k1_kernel grid=(512,1,1) block=(256,1,1) lds={L1_LDS}")
    a.raw(f"; @launch kernel=k2_kernel grid=(512,1,1) block=(256,1,1) lds={L2_LDS}")
    a.raw(f"; @launch kernel={NAME}_kernel grid=(256,1,1) block=(256,1,1) lds={L3_LDS}")
    a.raw('.amdgcn_target "amdgcn-amd-amdhsa--gfx950"')
    a.raw(".text")
    kernel_header(a, "k1_kernel")
    a("s_cmp_ge_u32 s2, 512")
    a("s_cbranch_scc1 k1_done")
    a("s_cmp_ge_u32 s2, 256")
    a("s_cbranch_scc1 k1_qkv")
    a("s_setprio 1")
    jobs.g_job(a, 2, "k1_done", ring=4)
    a.label("k1_qkv")
    a("s_sub_u32 s3, s2, 256")
    jobs.qkv_job(a, 3, "k1_done", ring=5)
    a.label("k1_done")
    a("s_endpgm")
    kernel_header(a, "k2_kernel")
    a("s_cmp_ge_u32 s2, 512")
    a("s_cbranch_scc1 k2_done")
    a("s_cmp_ge_u32 s2, 256")
    a("s_cbranch_scc1 k2_d")
    attn.attn_body(a, 2, "k2_done")
    a.label("k2_d")
    a("s_setprio 1")
    a("s_sub_u32 s3, s2, 256")
    jobs.d_job(a, 3, "k2_done", ring=8)
    a.label("k2_done")
    a("s_endpgm")
    kernel_header(a, f"{NAME}_kernel")
    a("s_cmp_ge_u32 s2, 256")
    a("s_cbranch_scc1 k3_done")
    jobs.wo_job(a, 2, "k3_done", ring=8)
    a.label("k3_done")
    a("s_endpgm")
    a.raw('.section .rodata,"a"')
    a.raw(".p2align 6")
    a.raw(kernel_desc("k1_kernel", 176))
    a.raw(".p2align 6")
    a.raw(kernel_desc("k2_kernel", 160))
    a.raw(".p2align 6")
    a.raw(kernel_desc(f"{NAME}_kernel", 96))
    return a.text()


if __name__ == "__main__":
    out = sys.argv[1] if len(sys.argv) > 1 else f"cdna_kernels/{NAME}.s"
    open(out, "w").write(build())
    print("wrote", out, os.path.getsize(out), "bytes")
```

```python
class Asm:
    def __init__(self):
        self.lines = []
        self._uid = 0

    def __call__(self, s):
        for l in s.split("\n"):
            l = l.strip()
            if l:
                self.lines.append("  " + l)

    def label(self, name):
        self.lines.append(name + ":")

    def raw(self, s):
        self.lines.append(s)

    def comment(self, s):
        self.lines.append("  ; " + s)

    def uid(self, prefix="L"):
        self._uid += 1
        return f"{prefix}_{self._uid}"

    def text(self):
        return "\n".join(self.lines) + "\n"


def vr(base, n=1):
    return f"v{base}" if n == 1 else f"v[{base}:{base + n - 1}]"


def sr(base, n=1):
    return f"s{base}" if n == 1 else f"s[{base}:{base + n - 1}]"


def kernel_header(a, name):
    a.raw(f".globl {name}")
    a.raw(".p2align 8")
    a.raw(f".type {name},@function")
    a.label(name)


def kernel_desc(name, nvgpr, nsgpr=102, kernarg=88):
    acc = (nvgpr + 3) // 4 * 4
    return f""".amdhsa_kernel {name}
  .amdhsa_next_free_vgpr {nvgpr}
  .amdhsa_next_free_sgpr {nsgpr}
  .amdhsa_accum_offset {acc}
  .amdhsa_group_segment_fixed_size 0
  .amdhsa_kernarg_size {kernarg}
  .amdhsa_user_sgpr_count 2
  .amdhsa_user_sgpr_kernarg_segment_ptr 1
  .amdhsa_system_sgpr_workgroup_id_x 1
  .amdhsa_float_denorm_mode_32 3
.end_amdhsa_kernel
"""


def make_srd(a, dst, base_lo, base_hi, size):
    a(f"s_mov_b32 s{dst}, s{base_lo}")
    a(f"s_and_b32 s{dst+1}, s{base_hi}, 0xffff")
    a(f"s_mov_b32 s{dst+2}, {size}")
    a(f"s_mov_b32 s{dst+3}, 0x20000")


import os
PROF = os.environ.get("PROF", "") != ""
WS_PROF = 0x1300000
S_PR = 64


NST = 16


def preset(a):
    a.pidx = 0
    a.pnames = []


def pstamp(a, name=""):
    if PROF:
        i = a.pidx
        if i >= NST:
            return
        a(f"s_memtime s[{S_PR+2*i}:{S_PR+2*i+1}]")
        a.pidx += 1
        a.pnames.append(name)


def pflush(a, wgid_sreg, wave_sreg, ws_lo, vtmp, kern):
    if not PROF:
        return
    n = a.pidx
    T = S_PR + 2 * NST
    a("s_waitcnt lgkmcnt(0)")
    a(f"s_lshl_b32 s{T}, s{wgid_sreg}, 2")
    a(f"s_add_u32 s{T}, s{T}, s{wave_sreg}")
    a(f"s_lshl_b32 s{T}, s{T}, 6")
    a(f"s_add_u32 s{T}, s{T}, {WS_PROF + kern * 0x20000}")
    a(f"v_mov_b32 v{vtmp}, s{T}")
    a(f"v_mov_b32 v{vtmp+1}, {n}")
    a(f"global_store_dword v{vtmp}, v{vtmp+1}, s[{ws_lo}:{ws_lo+1}]")
    for i in range(1, n):
        a(f"s_sub_u32 s{S_PR+2*i}, s{S_PR+2*i}, s{S_PR}")
        a(f"v_mov_b32 v{vtmp+1}, s{S_PR+2*i}")
        a(f"global_store_dword v{vtmp}, v{vtmp+1}, s[{ws_lo}:{ws_lo+1}] offset:{4*i}")
    print("PROF kern", kern, "stamps:", a.pnames)
```

```python
from asmlib import *
from layout import *
import os
DBG = os.environ.get('ATTN_DBG', '')

V_LANE16 = 1
V_VOFF = 2
V_T0 = 3
QA, QB = 4, 8
V_IDX = 12
V_T1, V_T2, V_T3 = 13, 14, 15
V_LANE16H = 152
KB = [16, 20]
V0B = [24, 28]
V1B = [32, 36]
SA, SB = 40, 56
OA, OB_ = 72, 88
CA, CB = 104, 120
TMP = 136
NV_ATTN = 156

SLOT = 16384
LDS_ONES = 3 * SLOT
LDS_FLAG = LDS_ONES + 8192
LDS_ATTN = LDS_FLAG + 64
V_VA = [153, 154, 155]

S_WS = 4
S_HEAD = 6
S_QB = 7
S_W = 8
S_KSRD = 12
S_VSRD = 16
S_MASK = 20
S_T = 22
S_PASS = 32
S_QBASE = 34
S_OBASE = 36
S_KBASE = 38


def dma_chunk(a, c):
    slot = (c % 3) * SLOT
    a(f"s_add_u32 m0, s{S_T}, {slot}")
    a(f"s_add_u32 s{S_T+3}, s{S_T}, {c * 8192}")
    a(f"buffer_load_dwordx4 v{V_LANE16}, s[{S_KSRD}:{S_KSRD+3}], s{S_T+3} offen{' sc1' if IN_SC1 else ''} lds")
    a(f"buffer_load_dwordx4 v{V_LANE16}, s[{S_KSRD}:{S_KSRD+3}], s{S_T+3} offen offset:1024{' sc1' if IN_SC1 else ''} lds")
    a(f"s_add_u32 m0, s{S_T}, {slot + 8192}")
    a("s_nop 0")
    a(f"buffer_load_dwordx4 v{V_LANE16}, s[{S_VSRD}:{S_VSRD+3}], s{S_T+3} offen{' sc1' if IN_SC1 else ''} lds")
    a(f"buffer_load_dwordx4 v{V_LANE16}, s[{S_VSRD}:{S_VSRD+3}], s{S_T+3} offen offset:1024{' sc1' if IN_SC1 else ''} lds")


def k_addr(t):
    c, i = t >> 3, t & 7
    return (c % 3) * SLOT + i * 1024


def ds_rd_k(a, dst, t):
    if 'nods' in DBG:
        return
    a(f"ds_read_b128 v[{dst}:{dst+3}], v{V_LANE16} offset:{k_addr(t)}")


def ds_rd_v(a, dst, t, half):
    if 'nods' in DBG:
        return
    c, i = t >> 3, t & 7
    a(f"ds_read_b128 v[{dst}:{dst+3}], v{V_VA[c % 3]} offset:{(2 * i + half) * 512}")


def qk(a, S, K, Q, C):
    if 'noqk' in DBG:
        return
    a(f"v_mfma_f32_32x32x16_bf16 v[{S}:{S+15}], v[{K}:{K+3}], v[{Q}:{Q+3}], v[{C}:{C+15}]")


def pv(a, O, V, P):
    if 'nopv' in DBG:
        return
    a(f"v_smfmac_f32_32x32x32_bf16 v[{O}:{O+15}], v[{V}:{V+3}], v[{P}:{P+7}], v{V_IDX}")


def exps(a, S, lo, hi):
    for r in range(lo, hi):
        a(f"v_exp_f32 v{S+r}, v{S+r}")


def main_loop(a):
    NT = 64
    ds_rd_k(a, KB[1], 0)
    ds_rd_v(a, V1B[0], 0, 1)
    ds_rd_k(a, KB[0], 1)
    ds_rd_v(a, V0B[0], 0, 0)
    a("s_waitcnt lgkmcnt(3)")
    qk(a, SA, KB[1], QA, CA)
    a("s_nop 7")
    a("s_nop 3")
    for t in range(NT):
        cur, prv = t & 1, (t - 1) & 1
        more = t + 1 < NT
        exps(a, SA, 0, 2)
        if t > 0:
            pv(a, OB_, V1B[prv], SB + 8)
        n = 0
        if more:
            ds_rd_v(a, V1B[prv], t + 1, 1); n += 1
        exps(a, SA, 2, 5)
        qk(a, SB, KB[prv], QB, CB)
        if t + 2 < NT:
            ds_rd_k(a, KB[prv], t + 2); n += 1
        exps(a, SA, 5, 10)
        if 'nowait' not in DBG:
            a(f"s_waitcnt lgkmcnt({n})")
        pv(a, OA, V0B[cur], SA)
        if more:
            ds_rd_v(a, V0B[prv], t + 1, 0)
        exps(a, SA, 10, 16)
        exps(a, SB, 0, 2)
        pv(a, OA, V1B[cur], SA + 8)
        exps(a, SB, 2, 5)
        if more:
            qk(a, SA, KB[cur], QA, CA)
        bnd = (t & 7) == 4 and 'nobar' not in DBG and (t >> 3) + 1 < 8
        if bnd:
            a("s_waitcnt vmcnt(0)")
            a("s_barrier")
        exps(a, SB, 5, 10)
        pv(a, OB_, V0B[cur], SB)
        if bnd and (t >> 3) + 2 < 8:
            dma_chunk(a, (t >> 3) + 2)
        exps(a, SB, 10, 16)
    a("s_nop 1")
    pv(a, OB_, V1B[(NT - 1) & 1], SB + 8)


STAMP = False
IN_SC1 = False
WAIT_IN = None
OUT_SC1 = False
TWICE = False
S_ST = 40

def stamp(a, i):
    if STAMP:
        a(f"s_memtime s[{S_ST+2*i}:{S_ST+2*i+1}]")
        if i in (1, 2):
            a(f"s_memrealtime s[{S_ST+8+2*(i-1)}:{S_ST+8+2*(i-1)+1}]")


def attn_body(a, idreg, done_label):
    stamp(a, 0)
    a(f"s_and_b32 s{S_HEAD}, s{idreg}, 7")
    a(f"s_lshl_b32 s{S_HEAD}, s{S_HEAD}, 2")
    a(f"s_lshr_b32 s{S_T}, s{idreg}, 6")
    a(f"s_add_u32 s{S_HEAD}, s{S_HEAD}, s{S_T}")
    a(f"s_lshr_b32 s{S_QB}, s{idreg}, 3")
    a(f"s_and_b32 s{S_QB}, s{S_QB}, 7")
    a(f"v_lshlrev_b32 v{V_LANE16}, 4, v0")
    a(f"v_lshrrev_b32 v{V_T1}, 5, v0")
    a(f"v_lshlrev_b32 v{V_T1}, 8, v{V_T1}")
    a(f"v_and_b32 v{V_T2}, 15, v0")
    a(f"v_lshlrev_b32 v{V_T2}, 4, v{V_T2}")
    a(f"v_add_u32 v{V_VOFF}, v{V_T1}, v{V_T2}")
    a(f"v_and_b32 v{V_T1}, 16, v0")
    a(f"v_cmp_eq_u32 vcc, 0, v{V_T1}")
    for sl in range(3):
        a(f"v_mov_b32 v{V_T1}, {LDS_ONES}")
        a(f"v_mov_b32 v{V_T2}, {sl * SLOT + 8192}")
        a(f"v_cndmask_b32 v{V_T1}, v{V_T1}, v{V_T2}, vcc")
        a(f"v_add_u32 v{V_VA[sl]}, v{V_T1}, v{V_VOFF}")
    a(f"v_mov_b32 v{V_IDX}, 0xdddddddd")
    a(f"s_mov_b32 s{S_MASK}, 0x0000ffff")
    a(f"s_mov_b32 s{S_MASK+1}, 0x0000ffff")
    a(f"s_lshl_b32 s{S_T+4}, s{S_HEAD}, 16")
    a("s_waitcnt lgkmcnt(0)")
    a(f"s_add_u32 s{S_KBASE}, s{S_WS}, s{S_T+4}")
    a(f"s_addc_u32 s{S_KBASE+1}, s{S_WS+1}, 0")
    a(f"s_add_u32 s{S_QBASE}, s{S_KBASE}, {WS_QF}")
    a(f"s_addc_u32 s{S_QBASE+1}, s{S_KBASE+1}, 0")
    a(f"s_add_u32 s{S_T+5}, s{S_KBASE}, {WS_VF}")
    a(f"s_addc_u32 s{S_T+6}, s{S_KBASE+1}, 0")
    make_srd(a, S_VSRD, S_T + 5, S_T + 6, 65536)
    a(f"s_add_u32 s{S_KBASE}, s{S_KBASE}, {WS_KF}")
    a(f"s_addc_u32 s{S_KBASE+1}, s{S_KBASE+1}, 0")
    make_srd(a, S_KSRD, S_KBASE, S_KBASE + 1, 65536)
    a(f"s_lshl_b32 s{S_T}, s{S_W}, 11")
    a(f"s_lshr_b32 s{S_T+4}, s{S_HEAD}, 1")
    a(f"s_lshl_b32 s{S_T+4}, s{S_T+4}, 13")
    a(f"s_and_b32 s{S_T+5}, s{S_HEAD}, 1")
    a(f"s_lshl_b32 s{S_T+5}, s{S_T+5}, 10")
    a(f"s_add_u32 s{S_T+4}, s{S_T+4}, s{S_T+5}")
    a(f"s_add_u32 s{S_T+4}, s{S_T+4}, {WS_OB}")
    a(f"s_add_u32 s{S_OBASE}, s{S_WS}, s{S_T+4}")
    a(f"s_addc_u32 s{S_OBASE+1}, s{S_WS+1}, 0")
    a(f"s_lshl_b32 s{S_T+4}, s{S_QB}, 13")
    a(f"s_lshl_b32 s{S_T+5}, s{S_W}, 11")
    a(f"s_add_u32 s{S_T+4}, s{S_T+4}, s{S_T+5}")
    a(f"v_add_u32 v{V_T1}, s{S_T+4}, v{V_LANE16}")
    for r in range(32):
        a(f"v_mov_b32 v{CA+r}, 0")
    a(f"s_mov_b32 s{S_PASS}, 0")
    a(f"v_and_b32 v{V_T1}, 11, v0")
    a(f"v_cmp_eq_u32 vcc, 0, v{V_T1}")
    a(f"v_mov_b32 v{V_T2}, 0x3f803f80")
    a("s_nop 1")
    a(f"v_cndmask_b32 v{TMP}, 0, v{V_T2}, vcc")
    for r in range(1, 4):
        a(f"v_mov_b32 v{TMP+r}, v{TMP}")
    a(f"v_add_u32 v{V_T1}, s{S_T}, v{V_LANE16}")
    for i in range(2):
        a(f"ds_write_b128 v{V_T1}, v[{TMP}:{TMP+3}] offset:{LDS_ONES + i * 1024}")
    a(f"v_add_u32 v{V_T1}, s{S_T+4}, v{V_LANE16}")
    if WAIT_IN:
        WAIT_IN(a)
    a(f"global_load_dwordx4 v[{QA}:{QA+3}], v{V_T1}, s[{S_QBASE}:{S_QBASE+1}]{' sc1' if IN_SC1 else ''}")
    a(f"global_load_dwordx4 v[{QB}:{QB+3}], v{V_T1}, s[{S_QBASE}:{S_QBASE+1}] offset:1024{' sc1' if IN_SC1 else ''}")
    dma_chunk(a, 0)
    dma_chunk(a, 1)
    a.label("attn_pass")
    for r in range(32):
        a(f"v_mov_b32 v{OA+r}, 0")
    a("s_waitcnt vmcnt(4) lgkmcnt(0)")
    a("s_barrier")
    stamp(a, 1)
    pstamp(a, 'attn:first')
    main_loop(a)
    stamp(a, 2)
    pstamp(a, 'attn:loopend')
    if TWICE:
        a(f"s_cmp_lg_u32 s{S_PASS}, 0")
        a("s_cbranch_scc1 attn_tw")
        a(f"s_mov_b32 s{S_PASS}, 1")
        a("s_waitcnt lgkmcnt(0)")
        a(f"s_mov_b64 s[{S_ST}:{S_ST+1}], s[{S_ST+4}:{S_ST+5}]")
        a("s_barrier")
        dma_chunk(a, 0)
        dma_chunk(a, 1)
        a("s_branch attn_pass")
        a.label("attn_tw")
    a("s_nop 7")
    a("s_nop 7")
    a(f"s_cmp_lg_u32 s{S_PASS}, 0")
    a("s_cbranch_scc1 attn_store")
    a(f"v_mov_b32 v{TMP}, 0")
    for O in (OA, OB_):
        for r in range(8):
            a(f"v_fma_f32 v{TMP}, v{O+r}, 0, v{TMP}")
    a(f"s_mov_b32 s{S_T+4}, 0x21800000")
    a(f"s_mov_b32 s{S_T+5}, 0x71800000")
    a(f"v_cmp_eq_f32 vcc, 0, v{TMP}")
    a(f"v_cmp_ge_f32 s[{S_T+6}:{S_T+7}], v{OA+8}, s{S_T+4}")
    a(f"s_and_b64 vcc, vcc, s[{S_T+6}:{S_T+7}]")
    a(f"v_cmp_le_f32 s[{S_T+6}:{S_T+7}], v{OA+8}, s{S_T+5}")
    a(f"s_and_b64 vcc, vcc, s[{S_T+6}:{S_T+7}]")
    a(f"v_cmp_ge_f32 s[{S_T+6}:{S_T+7}], v{OB_+8}, s{S_T+4}")
    a(f"s_and_b64 vcc, vcc, s[{S_T+6}:{S_T+7}]")
    a(f"v_cmp_le_f32 s[{S_T+6}:{S_T+7}], v{OB_+8}, s{S_T+5}")
    a(f"s_and_b64 vcc, vcc, s[{S_T+6}:{S_T+7}]")
    a(f"s_cmp_eq_u64 vcc, -1")
    a(f"s_cselect_b32 s{S_T+4}, 0, 1")
    a(f"s_lshl_b32 s{S_T+5}, s{S_W}, 2")
    a(f"s_add_u32 s{S_T+5}, s{S_T+5}, {LDS_FLAG}")
    a(f"v_mov_b32 v{TMP}, s{S_T+5}")
    a(f"v_mov_b32 v{TMP+1}, s{S_T+4}")
    a(f"ds_write_b32 v{TMP}, v{TMP+1}")
    a("s_waitcnt lgkmcnt(0)")
    a("s_barrier")
    a(f"v_mov_b32 v{TMP}, {LDS_FLAG}")
    a(f"ds_read_b128 v[{TMP+4}:{TMP+7}], v{TMP}")
    a("s_waitcnt lgkmcnt(0)")
    a(f"v_or_b32 v{TMP+4}, v{TMP+4}, v{TMP+5}")
    a(f"v_or3_b32 v{TMP+4}, v{TMP+4}, v{TMP+6}, v{TMP+7}")
    a("s_nop 1")
    a(f"v_readfirstlane_b32 s{S_T+4}, v{TMP+4}")
    a("s_nop 3")
    a(f"s_cmp_eq_u32 s{S_T+4}, 0")
    a("s_cbranch_scc1 attn_store")
    a(f"s_mov_b32 s{S_PASS}, 1")
    a(f"v_mov_b32 v{TMP+8}, 0xff800000")
    a(f"v_mov_b32 v{TMP+9}, 0xff800000")
    a(f"v_mov_b32 v{V_T1}, v{V_LANE16}")
    a(f"s_mov_b32 s{S_T+4}, 64")
    a.label("attn_maxloop")
    a(f"global_load_dwordx4 v[{KB[0]}:{KB[0]+3}], v{V_T1}, s[{S_KBASE}:{S_KBASE+1}]{' sc1' if IN_SC1 else ''}")
    a(f"v_add_u32 v{V_T1}, 1024, v{V_T1}")
    a("s_waitcnt vmcnt(0)")
    a(f"v_mfma_f32_32x32x16_bf16 v[{SA}:{SA+15}], v[{KB[0]}:{KB[0]+3}], v[{QA}:{QA+3}], 0")
    a(f"v_mfma_f32_32x32x16_bf16 v[{SB}:{SB+15}], v[{KB[0]}:{KB[0]+3}], v[{QB}:{QB+3}], 0")
    a("s_nop 15")
    a("s_nop 7")
    for S, M in ((SA, TMP + 8), (SB, TMP + 9)):
        for r in range(0, 16, 2):
            a(f"v_max3_f32 v{M}, v{S+r}, v{S+r+1}, v{M}")
    a(f"s_sub_u32 s{S_T+4}, s{S_T+4}, 1")
    a(f"s_cmp_lg_u32 s{S_T+4}, 0")
    a("s_cbranch_scc1 attn_maxloop")
    for M in (TMP + 8, TMP + 9):
        a(f"v_mov_b32 v{TMP+10}, v{M}")
        a("s_nop 1")
        a(f"v_permlane32_swap_b32 v{TMP+10}, v{M}")
        a("s_nop 1")
        a(f"v_max_f32 v{M}, v{TMP+10}, v{M}")
    for r in range(16):
        a(f"v_sub_f32 v{CA+r}, 0, v{TMP+8}")
        a(f"v_sub_f32 v{CB+r}, 0, v{TMP+9}")
    a("s_barrier")
    dma_chunk(a, 0)
    dma_chunk(a, 1)
    a("s_branch attn_pass")
    a.label("attn_store")
    a(f"s_lshl_b32 s{S_T+4}, s{S_QB}, 1")
    a(f"s_lshr_b32 s{S_T+5}, s{S_W}, 1")
    a(f"s_add_u32 s{S_T+4}, s{S_T+4}, s{S_T+5}")
    a(f"s_lshl_b32 s{S_T+4}, s{S_T+4}, 17")
    a(f"s_and_b32 s{S_T+5}, s{S_W}, 1")
    a(f"s_lshl_b32 s{S_T+5}, s{S_T+5}, 12")
    a(f"s_add_u32 s{S_T+4}, s{S_T+4}, s{S_T+5}")
    a(f"v_add_u32 v{V_T1}, s{S_T+4}, v{V_LANE16}")
    a(f"v_add_u32 v{V_T2}, 2048, v{V_T1}")
    for O, T, A in ((OA, TMP, V_T1), (OB_, TMP + 4, V_T2)):
        a(f"v_rcp_f32 v{V_T3}, v{O+8}")
        a("s_nop 0")
        for r in range(8):
            a(f"v_mul_f32 v{O+r}, v{O+r}, v{V_T3}")
        for r in range(4):
            a(f"v_cvt_pk_bf16_f32 v{T+r}, v{O+2*r}, v{O+2*r+1}")
        a(f"global_store_dwordx4 v{A}, v[{T}:{T+3}], s[{S_OBASE}:{S_OBASE+1}]{' sc1' if OUT_SC1 else ''}")
    if STAMP:
        stamp(a, 3)
        a("s_waitcnt lgkmcnt(0)")
        a(f"s_load_dwordx2 s[60:61], s[0:1], {KA_DBG}")
        a(f"s_lshl_b32 s62, s{idreg}, 2")
        a(f"s_add_u32 s62, s62, s{S_W}")
        a(f"s_lshl_b32 s62, s62, 4")
        a(f"s_sub_u32 s{S_ST+2}, s{S_ST+2}, s{S_ST}")
        a(f"s_sub_u32 s{S_ST+4}, s{S_ST+4}, s{S_ST}")
        a(f"s_sub_u32 s{S_ST+6}, s{S_ST+6}, s{S_ST}")
        a(f"s_sub_u32 s{S_ST}, s{S_ST+10}, s{S_ST+8}")
        a(f"v_mov_b32 v{TMP}, s{S_ST}")
        a(f"v_mov_b32 v{TMP+1}, s{S_ST+2}")
        a(f"v_mov_b32 v{TMP+2}, s{S_ST+4}")
        a(f"v_mov_b32 v{TMP+3}, s{S_ST+6}")
        a(f"v_mov_b32 v{TMP+4}, s62")
        a("s_waitcnt lgkmcnt(0)")
        a(f"global_store_dwordx4 v{TMP+4}, v[{TMP}:{TMP+3}], s[60:61]")
    pstamp(a, 'attn:end')
    if done_label:
        a(f"s_branch {done_label}")
```

```python
from asmlib import *
from layout import *

S_W = 8
S_RB = 9
S_CB = 10
S_NP = 11
SRD_A = 12
SRD_W = 16
S_SOA = 20
S_SOW = 21
S_LDA = 22
S_LDW = 23
S_T = 24
S_WM = 46
S_P0 = 32
S_WS = 4

V_OA0, V_OA1 = 1, 2
V_OW = 3
V_RA = 6
V_RW = 8
V_RAH = 9
V_RWH = 11
V_T = 12
FA = 16
FW = 24
HI = 32768


class Job:
    def __init__(self, name, NC, nstages, ring, nW, a_rs, a_ss, w_ws, chunk, wrow, orient, acc, lds0=0, a_sc1=False):
        self.a_sc1 = " sc1" if a_sc1 else ""
        self.wmask = False
        self.fa, self.fw = FA, FW
        self.name, self.NC, self.NS, self.R, self.nW = name, NC, nstages, ring, nW
        self.a_rs, self.a_ss, self.w_ws = a_rs, a_ss, w_ws
        self.chunk, self.wrow, self.orient, self.acc = chunk, wrow, orient, acc
        self.stage = 8192 + NC * 2048
        self.lds0 = lds0
        self.n = 2 + nW

    def slot(self, st):
        return self.lds0 + (st % self.R) * self.stage


def lane_setup(a, j):
    T0, T1, T2 = V_T, V_T + 1, V_T + 2
    a(f"s_lshl_b32 s{S_LDA}, s{S_W}, 11")
    a(f"v_lshrrev_b32 v{T0}, 2, v0")
    a(f"v_and_b32 v{T1}, 3, v0")
    a(f"v_mul_u32_u24 v{V_OW}, {j.w_ws}, v{T0}")
    a(f"v_lshlrev_b32 v{T2}, 4, v{T1}")
    a(f"v_add_u32 v{V_OW}, v{V_OW}, v{T2}")
    if j.chunk == 'frag':
        a(f"v_lshlrev_b32 v{T2}, 4, v0")
        a(f"v_add_u32 v{V_OA0}, s{S_LDA}, v{T2}")
        a(f"v_mov_b32 v{V_OA1}, v{V_OA0}")
        a(f"v_mov_b32 v{V_RA}, v{V_OA0}")
        a(f"v_add_u32 v{V_RA+1}, 1024, v{V_RA}")
    else:
        a(f"v_bfe_u32 v{T2}, v0, 4, 2")
        a(f"v_xor_b32 v{T2}, v{T1}, v{T2}")
        a(f"v_lshlrev_b32 v{T2}, 4, v{T2}")
        a(f"s_mul_i32 s{S_T}, s{S_W}, {32 * j.a_rs}")
        a(f"v_mul_u32_u24 v{V_OA0}, {j.a_rs}, v{T0}")
        a(f"v_add3_u32 v{V_OA0}, v{V_OA0}, v{T2}, s{S_T}")
        a(f"v_add_u32 v{V_OA1}, {16 * j.a_rs - 1024}, v{V_OA0}")
        a(f"v_and_b32 v{T0}, 31, v0")
        a(f"v_lshrrev_b32 v{T1}, 5, v0")
        a(f"v_bfe_u32 v{T2}, v0, 2, 2")
        a(f"v_xor_b32 v{T1}, v{T1}, v{T2}")
        a(f"v_lshlrev_b32 v{T1}, 4, v{T1}")
        a(f"v_lshlrev_b32 v{T0}, 6, v{T0}")
        a(f"v_add3_u32 v{V_RA}, v{T0}, v{T1}, s{S_LDA}")
        a(f"v_xor_b32 v{V_RA+1}, 32, v{V_RA}")
    a(f"v_add_u32 v{V_RAH}, {HI}, v{V_RA}")
    a(f"v_add_u32 v{V_RAH+1}, {HI}, v{V_RA+1}")
    a(f"v_lshrrev_b32 v{T0}, 5, v0")
    a(f"v_lshlrev_b32 v{T0}, {3 if j.wrow == 'plain' else 2}, v{T0}")
    a(f"v_bfe_u32 v{T1}, v0, 2, 2")
    a(f"v_add_u32 v{T0}, v{T0}, v{T1}")
    a(f"v_lshlrev_b32 v{T0}, 6, v{T0}")
    a(f"v_bfe_u32 v{T1}, v0, 4, 1")
    a(f"v_lshlrev_b32 v{T1}, 5, v{T1}")
    a(f"v_and_b32 v{T2}, 3, v0")
    a(f"v_lshlrev_b32 v{T2}, 3, v{T2}")
    a(f"v_add3_u32 v{V_RW}, v{T0}, v{T1}, v{T2}")
    a(f"v_add_u32 v{V_RWH}, {HI}, v{V_RW}")


def dma_stage(a, j, st):
    sl = j.slot(st)
    a(f"s_add_u32 m0, s{S_LDA}, {sl}")
    a("s_nop 0")
    a(f"buffer_load_dwordx4 v{V_OA0}, s[{SRD_A}:{SRD_A+3}], s{S_SOA} offen{j.a_sc1} lds")
    a(f"buffer_load_dwordx4 v{V_OA1}, s[{SRD_A}:{SRD_A+3}], s{S_SOA} offen offset:1024{j.a_sc1} lds")
    a(f"s_add_u32 m0, s{S_LDW}, {sl + 8192}")
    a(f"s_add_u32 s{S_SOA}, s{S_SOA}, {j.a_ss}")
    if j.wmask:
        a(f"s_mov_b64 exec, s[{S_WM}:{S_WM+1}]")
    for q in range(j.nW):
        off = f" offset:{1024 * q}" if q else ""
        a(f"buffer_load_dwordx4 v{V_OW+q}, s[{SRD_W}:{SRD_W+3}], s{S_SOW} offen{off} lds")
    if j.wmask:
        a("s_mov_b64 exec, -1")
    a(f"s_add_u32 s{S_SOW}, s{S_SOW}, {32 * j.w_ws}")


def _ds(op, dst, n, vlo, vhi, off):
    reg = vlo
    if off >= 49152:
        reg, off = vhi, off - HI
    assert 0 <= off < 65536
    return f"{op} v[{dst}:{dst+n-1}], v{reg} offset:{off}"


def frag_reads(j, kap):
    st, s, b = kap >> 1, kap & 1, kap & 1
    sl = j.slot(st)
    out = [_ds("ds_read_b128", FA + 4 * b, 4, V_RA + s, V_RAH + s, sl)]
    for c in range(j.NC):
        d = FW + (b * j.NC + c) * 4
        for half in range(2):
            row = 16 * s + (4 * half if j.wrow == 'plain' else 8 * half)
            out.append(_ds("ds_read_b64_tr_b16", d + 2 * half, 2, V_RW, V_RWH, sl + 8192 + c * 2048 + row * 64))
    return out


def mfmas(j, kap, ncols=None):
    b = kap & 1
    out = []
    for c in range(j.NC if ncols is None else ncols):
        acc = j.acc + 16 * c
        w = FW + (b * j.NC + c) * 4
        f = FA + 4 * b
        if j.orient[c] == 'FM':
            out.append(f"v_mfma_f32_32x32x16_bf16 v[{acc}:{acc+15}], v[{w}:{w+3}], v[{f}:{f+3}], v[{acc}:{acc+15}]")
        else:
            out.append(f"v_mfma_f32_32x32x16_bf16 v[{acc}:{acc+15}], v[{f}:{f+3}], v[{w}:{w+3}], v[{acc}:{acc+15}]")
    return out


def interleave(a, ms, rs):
    n = len(ms)
    k = 0
    for i, m in enumerate(ms):
        a(m)
        upto = (len(rs) * (i + 1) + n - 1) // n
        while k < min(upto, len(rs)):
            a(rs[k]); k += 1


def prologue_dma(a, j):
    for st in range(min(j.R, j.NS)):
        dma_stage(a, j, st)


def zero_acc(a, j):
    for r in range(16 * j.NC):
        a(f"v_mov_b32 v{j.acc + r}, 0")


def main_loop(a, j):
    R, NS, n = j.R, j.NS, j.n
    issued = min(R, NS)
    a(f"s_waitcnt vmcnt({n * (issued - 1)})")
    a("s_barrier")
    pstamp(a, j.name + ':first')
    for r in frag_reads(j, 0):
        a(r)
    for kap in range(2 * NS):
        st = kap >> 1
        a("s_waitcnt lgkmcnt(0)")
        ms = mfmas(j, kap)
        last = kap == 2 * NS - 1
        if last:
            for m in ms:
                a(m)
            break
        if kap & 1:
            a(ms[0])
            allowed = issued - (st + 2)
            a(f"s_waitcnt vmcnt({n * allowed})")
            a("s_barrier")
            if issued < NS:
                dma_stage(a, j, issued)
                issued += 1
            rs = frag_reads(j, kap + 1)
            if len(ms) > 1:
                interleave(a, ms[1:], rs)
            else:
                for r in rs:
                    a(r)
        else:
            interleave(a, ms, frag_reads(j, kap + 1))


import os
def stage_reads(j, st):
    if os.environ.get("NOCOMP"):
        return ["s_nop 0"] * 4
    b = st & 1
    sl = j.slot(st)
    out = []
    for s in range(2):
        out.append(_ds("ds_read_b128", j.fa + (2 * b + s) * 4, 4, V_RA + s, V_RAH + s, sl))
        for c in range(j.NC):
            d = j.fw + ((2 * b + s) * j.NC + c) * 4
            for half in range(2):
                row = 16 * s + (4 * half if j.wrow == 'plain' else 8 * half)
                out.append(_ds("ds_read_b64_tr_b16", d + 2 * half, 2, V_RW, V_RWH, sl + 8192 + c * 2048 + row * 64))
    return out


def stage_mfmas(j, st):
    if os.environ.get("NOCOMP"):
        return ["s_nop 0"] * 6
    b = st & 1
    out = []
    for s in range(2):
        for c in range(j.NC):
            acc = j.acc + 16 * c
            w = j.fw + ((2 * b + s) * j.NC + c) * 4
            f = j.fa + (2 * b + s) * 4
            if j.orient[c] == 'FM':
                out.append(f"v_mfma_f32_32x32x16_bf16 v[{acc}:{acc+15}], v[{w}:{w+3}], v[{f}:{f+3}], v[{acc}:{acc+15}]")
            else:
                out.append(f"v_mfma_f32_32x32x16_bf16 v[{acc}:{acc+15}], v[{f}:{f+3}], v[{w}:{w+3}], v[{acc}:{acc+15}]")
    return out


def main_loop_stage(a, j):
    R, NS, n = j.R, j.NS, j.n
    issued = min(R, NS)
    a(f"s_waitcnt vmcnt({n * (issued - 1)})")
    a("s_barrier")
    pstamp(a, j.name + ':first')
    for r in stage_reads(j, 0):
        a(r)
    for st in range(NS):
        ms = stage_mfmas(j, st)
        if st + 1 < NS:
            allowed = issued - (st + 2)
            a(f"s_waitcnt vmcnt({n * allowed}) lgkmcnt(0)")
            a("s_barrier")
            rs = stage_reads(j, st + 1)
            a(ms[0])
            k = 0
            for r in rs[:3]:
                a(r); k += 1
            a(ms[1])
            if issued < NS:
                dma_stage(a, j, issued)
                issued += 1
            interleave(a, ms[2:], rs[k:])
        else:
            a("s_waitcnt lgkmcnt(0)")
            for m in ms:
                a(m)
```

```python
from asmlib import *
from layout import *
from gemm import (S_W, S_RB, S_CB, S_NP, SRD_A, SRD_W, S_SOA, S_SOW, S_LDA, S_LDW, S_T, S_P0, S_WS, V_T, _ds, HI, interleave)
from splitk import VmQ

V_OA = 1
V_OW = 5
V_RA = 8


class J2:
    pass


def ds_rd(op, dst, n, lo, hi, off):
    return _ds(op, dst, n, lo, hi, off)


def engine(a, j):
    NS = j.NS
    q = VmQ()
    issuedW = min(j.RW, NS)
    issuedA = min(j.RA, NS // 2)
    ia = iw = 0
    while ia < issuedA or iw < issuedW:
        if ia < issuedA and 2 * ia <= iw:
            j.dmaA(a, ia); q.add(('A', ia), j.nA); ia += 1
        elif iw < issuedW:
            j.dmaW(a, iw); q.add(('W', iw), j.nW); iw += 1
        else:
            j.dmaA(a, ia); q.add(('A', ia), j.nA); ia += 1
    j.after_prologue(a)
    a(f"s_waitcnt vmcnt({q.wait_for([('A', 0), ('W', 0)])})")
    a("s_barrier")
    pstamp(a, j.name + ':first')
    for r in j.reads(0):
        a(r)
    for st in range(NS):
        ms = j.mfmas(st)
        if st + 1 < NS:
            a(f"s_waitcnt vmcnt({q.wait_for([('A', (st + 1) >> 1), ('W', st + 1)])}) lgkmcnt(0)")
            a("s_barrier")
            rs = j.reads(st + 1)
            a(ms[0])
            for r in rs[:3]:
                a(r)
            a(ms[1])
            if issuedW < NS:
                j.dmaW(a, issuedW); q.add(('W', issuedW), j.nW); issuedW += 1
            if (st & 1) and issuedA < NS // 2:
                j.dmaA(a, issuedA); q.add(('A', issuedA), j.nA); issuedA += 1
            interleave(a, ms[2:], rs[3:])
        else:
            a("s_waitcnt lgkmcnt(0)")
            for m in ms:
                a(m)


def mfma(acc, x, y):
    return f"v_mfma_f32_32x32x16_bf16 v[{acc}:{acc+15}], v[{x}:{x+3}], v[{y}:{y+3}], v[{acc}:{acc+15}]"


def a_read_setup(a, rowbase_sreg_or_none, hi0):
    T0, T1, T2 = V_T, V_T + 1, V_T + 2
    a(f"v_and_b32 v{T0}, 31, v0")
    a(f"v_lshrrev_b32 v{T1}, 5, v0")
    a(f"v_bfe_u32 v{T2}, v0, 1, 3")
    a(f"v_xor_b32 v{T1}, v{T1}, v{T2}")
    a(f"v_lshlrev_b32 v{T1}, 4, v{T1}")
    a(f"v_lshlrev_b32 v{T0}, 7, v{T0}")
    a(f"v_add3_u32 v{V_RA}, v{T0}, v{T1}, s{rowbase_sreg_or_none}")
    for k in range(1, 4):
        a(f"v_xor_b32 v{V_RA+k}, {32 * k}, v{V_RA}")
    for k in range(4):
        a(f"v_add_u32 v{hi0+k}, {HI}, v{V_RA+k}")


def a_dma_lane(a, dst, parity):
    T0, T1 = V_T, V_T + 1
    a(f"v_lshrrev_b32 v{T0}, 4, v0")
    if parity:
        a(f"v_add_u32 v{T0}, 4, v{T0}")
    a(f"v_and_b32 v{T1}, 7, v0")
    a(f"v_xor_b32 v{T0}, v{T0}, v{T1}")
    a(f"v_lshlrev_b32 v{T0}, 4, v{T0}")
    a(f"v_lshrrev_b32 v{T1}, 3, v0")
    a(f"v_lshlrev_b32 v{T1}, 10, v{T1}")
    a(f"v_add_u32 v{dst}, v{T0}, v{T1}")
```

```python
from asmlib import *
from layout import *
from gemm import *
from sync import *
import struct

def f2u(x):
    return struct.unpack("<I", struct.pack("<f", x))[0]


S_DBG = 48


def common_entry(a):
    a(f"s_load_dwordx2 s[{S_WS}:{S_WS+1}], s[0:1], {KA_WS}")
    a(f"s_load_dwordx2 s[{S_DBG}:{S_DBG+1}], s[0:1], {KA_DBG}")
    a(f"v_lshrrev_b32 v{V_T}, 6, v0")
    a("v_and_b32 v0, 63, v0")
    a(f"v_readfirstlane_b32 s{S_W}, v{V_T}")


def decode_rb_cb(a, idreg):
    a(f"s_and_b32 s{S_RB}, s{idreg}, 3")
    a(f"s_lshl_b32 s{S_RB}, s{S_RB}, 2")
    a(f"s_bfe_u32 s{S_T}, s{idreg}, 0x20003")
    a(f"s_add_u32 s{S_RB}, s{S_RB}, s{S_T}")
    a(f"s_bfe_u32 s{S_CB}, s{idreg}, 0x10002")
    a(f"s_lshl_b32 s{S_CB}, s{S_CB}, 3")
    a(f"s_lshr_b32 s{S_T}, s{idreg}, 5")
    a(f"s_add_u32 s{S_CB}, s{S_CB}, s{S_T}")


def srd_from(a, dst, lo, hi, size, add=0):
    if add > 0:
        a(f"s_add_u32 s{dst}, s{lo}, {add}")
        a(f"s_addc_u32 s{dst+1}, s{hi}, 0")
    elif add < 0:
        a(f"s_sub_u32 s{dst}, s{lo}, {-add}")
        a(f"s_subb_u32 s{dst+1}, s{hi}, 0")
    else:
        a(f"s_mov_b32 s{dst}, s{lo}")
        a(f"s_mov_b32 s{dst+1}, s{hi}")
    a(f"s_and_b32 s{dst+1}, s{dst+1}, 0xffff")
    a(f"s_mov_b32 s{dst+2}, {size}")
    a(f"s_mov_b32 s{dst+3}, 0x20000")


def store_pk8(a, src, tmp, scale_sreg=None):
    if scale_sreg is not None:
        for r in range(8):
            a(f"v_mul_f32 v{src+r}, s{scale_sreg}, v{src+r}")
    for r in range(4):
        a(f"v_cvt_pk_bf16_f32 v{tmp+r}, v{src+2*r}, v{src+2*r+1}")


def touch_x(a, vdst):
    a(f"s_and_b32 s{S_T}, s{S_CB}, 7")
    a(f"s_lshl_b32 s{S_T}, s{S_T}, 4")
    a(f"s_lshl_b32 s{S_T+1}, s{S_W}, 2")
    a(f"s_add_u32 s{S_T}, s{S_T}, s{S_T+1}")
    a(f"s_lshl_b32 s{S_T}, s{S_T}, 10")
    a(f"s_add_u32 s{S_T}, s{S_T}, s{S_SOA}")
    a(f"v_lshrrev_b32 v{V_T}, 3, v0")
    a(f"v_lshlrev_b32 v{V_T}, 10, v{V_T}")
    a(f"v_and_b32 v{V_T+1}, 7, v0")
    a(f"v_lshlrev_b32 v{V_T+1}, 7, v{V_T+1}")
    a(f"v_add_u32 v{V_T}, v{V_T}, v{V_T+1}")
    a(f"s_mov_b32 exec_hi, 0")
    a(f"buffer_load_dword v{vdst}, v{V_T}, s[{SRD_A}:{SRD_A+3}], s{S_T} offen")
    a(f"s_mov_b32 exec_hi, -1")


def decode_qkv(a, idreg):
    a(f"s_and_b32 s{S_RB}, s{idreg}, 3")
    a(f"s_lshl_b32 s{S_RB}, s{S_RB}, 3")
    a(f"s_bfe_u32 s{S_T}, s{idreg}, 0x30003")
    a(f"s_add_u32 s{S_RB}, s{S_RB}, s{S_T}")
    a(f"s_bfe_u32 s{S_CB}, s{idreg}, 0x10002")
    a(f"s_lshl_b32 s{S_CB}, s{S_CB}, 2")
    a(f"s_lshr_b32 s{S_T}, s{idreg}, 6")
    a(f"s_add_u32 s{S_CB}, s{S_CB}, s{S_T}")


def qkv_job(a, idreg, pre=None, post_loop=None, sc1=False):
    import gemm2 as g2
    SC = ' sc1' if sc1 else ''
    FA2, FW2, ACC = 16, 32, 80
    V_RW2, V_RW2H, RAH = 12 + 4 - 4 + 128, 141, 142
    V_RW2 = 140
    j = g2.J2()
    j.name, j.NS, j.RA, j.RW, j.nA, j.nW = "qkv", 16, 3, 4, 2, 3
    ASLOT, WSLOT, WBASE = 8192, 12288, 3 * 8192
    P_X, P_W, P_GW = S_P0, S_P0 + 2, S_P0 + 4
    a(f"s_load_dwordx2 s[{P_X}:{P_X+1}], s[0:1], {KA_AX}")
    a(f"s_load_dwordx2 s[{P_W}:{P_W+1}], s[0:1], {KA_WQKV}")
    a(f"s_load_dwordx2 s[{P_GW}:{P_GW+1}], s[0:1], {KA_GW}")
    decode_qkv(a, idreg)
    T0, T1, T2 = V_T, V_T + 1, V_T + 2
    a(f"s_lshl_b32 s{S_T}, s{S_W}, 14")
    g2.a_dma_lane(a, g2.V_OA, 0)
    a(f"v_add_u32 v{g2.V_OA}, s{S_T}, v{g2.V_OA}")
    g2.a_dma_lane(a, g2.V_OA + 1, 1)
    a(f"v_add_u32 v{g2.V_OA+1}, s{S_T}, v{g2.V_OA+1}")
    a(f"v_add_u32 v{g2.V_OA+1}, {8 * 1024 - 1024}, v{g2.V_OA+1}")
    a(f"s_lshl_b32 s{S_LDA}, s{S_W}, 11")
    a(f"v_lshrrev_b32 v{T0}, 3, v0")
    a(f"v_mul_u32_u24 v{T0}, 3072, v{T0}")
    a(f"v_bfe_u32 v{T1}, v0, 4, 1")
    a(f"v_lshlrev_b32 v{T1}, 2, v{T1}")
    a(f"v_and_b32 v{T2}, 7, v0")
    a(f"v_xor_b32 v{T1}, v{T1}, v{T2}")
    a(f"v_lshlrev_b32 v{T1}, 4, v{T1}")
    a(f"s_mul_i32 s{S_T}, s{S_W}, {8 * 3072}")
    a(f"s_lshl_b32 s{S_T+1}, s{S_CB}, 7")
    a(f"s_add_u32 s{S_T}, s{S_T}, s{S_T+1}")
    a(f"v_add3_u32 v{g2.V_OW}, v{T0}, v{T1}, s{S_T}")
    a(f"s_mul_i32 s{S_LDW}, s{S_W}, 3072")
    a(f"s_and_b32 s{S_T}, s{S_W}, 1")
    a(f"s_lshl_b32 s{S_T}, s{S_T}, 12")
    g2.a_read_setup(a, S_T, RAH)
    a(f"v_lshrrev_b32 v{T0}, 5, v0")
    a(f"v_mul_u32_u24 v{T0}, 3072, v{T0}")
    a(f"v_bfe_u32 v{T1}, v0, 2, 2")
    a(f"v_lshlrev_b32 v{T1}, 7, v{T1}")
    a(f"v_add_u32 v{T0}, v{T0}, v{T1}")
    a(f"s_lshr_b32 s{S_T}, s{S_W}, 1")
    a(f"v_bfe_u32 v{T1}, v0, 3, 1")
    a(f"v_xor_b32 v{T1}, s{S_T}, v{T1}")
    a(f"v_lshlrev_b32 v{T1}, 6, v{T1}")
    a(f"v_add_u32 v{T0}, v{T0}, v{T1}")
    a(f"v_bfe_u32 v{T1}, v0, 4, 1")
    a(f"v_lshlrev_b32 v{T1}, 5, v{T1}")
    a(f"v_and_b32 v{T2}, 3, v0")
    a(f"v_lshlrev_b32 v{T2}, 3, v{T2}")
    a(f"v_add3_u32 v{V_RW2}, v{T0}, v{T1}, v{T2}")
    a(f"v_add_u32 v{V_RW2H}, {HI}, v{V_RW2}")
    a(f"s_lshl_b32 s{S_SOA}, s{S_RB}, 16")
    a(f"s_mov_b32 s{S_SOW}, 0")
    a("s_waitcnt lgkmcnt(0)")
    srd_from(a, SRD_A, P_X, P_X + 1, 2048 * 1024)
    srd_from(a, SRD_W, P_W, P_W + 1, 512 * 3072)
    GX, GWR = 128, 136
    a(f"s_lshl_b32 s{S_T}, s{S_RB}, 6")
    a(f"s_lshl_b32 s{S_T+1}, s{S_CB}, 3")
    a(f"s_add_u32 s{S_T}, s{S_T}, s{S_T+1}")
    a(f"s_lshl_b32 s{S_T+1}, s{S_W}, 1")
    a(f"s_add_u32 s{S_T+7}, s{S_T}, s{S_T+1}")
    if pre:
        pre(a)
    a(f"s_lshl_b32 s{S_T+3}, s{S_T+7}, 10")
    a(f"v_lshlrev_b32 v{V_T}, 4, v0")
    a(f"v_add_u32 v{V_T+1}, s{S_T+3}, v{V_T}")
    a(f"global_load_dwordx4 v[{GX}:{GX+3}], v{V_T+1}, s[{P_X}:{P_X+1}]")
    a(f"global_load_dwordx4 v[{GX+4}:{GX+7}], v{V_T+1}, s[{P_X}:{P_X+1}] offset:1024")
    a(f"global_load_dwordx4 v[{GWR}:{GWR+3}], v{V_T}, s[{P_GW}:{P_GW+1}]")

    def dmaA(a, S):
        a(f"s_add_u32 m0, s{S_LDA}, {(S % j.RA) * ASLOT}")
        a("s_nop 0")
        a(f"buffer_load_dwordx4 v{g2.V_OA}, s[{SRD_A}:{SRD_A+3}], s{S_SOA} offen lds")
        a(f"buffer_load_dwordx4 v{g2.V_OA+1}, s[{SRD_A}:{SRD_A+3}], s{S_SOA} offen offset:1024 lds")
        a(f"s_add_u32 s{S_SOA}, s{S_SOA}, 128")

    def dmaW(a, s_):
        a(f"s_add_u32 m0, s{S_LDW}, {WBASE + (s_ % j.RW) * WSLOT}")
        a("s_nop 0")
        for t in range(3):
            off = f" offset:{1024 * t}" if t else ""
            a(f"buffer_load_dwordx4 v{g2.V_OW}, s[{SRD_W}:{SRD_W+3}], s{S_SOW} offen{off} lds")
        a(f"s_add_u32 s{S_SOW}, s{S_SOW}, {32 * 3072}")

    def reads(st):
        b = st & 1
        asl = ((st >> 1) % j.RA) * ASLOT
        wsl = WBASE + (st % j.RW) * WSLOT
        out = []
        for s_ in range(2):
            k = 2 * (st & 1) + s_
            out.append(g2.ds_rd("ds_read_b128", FA2 + (2 * b + s_) * 4, 4, g2.V_RA + k, RAH + k, asl))
            for t in range(3):
                d = FW2 + ((2 * b + s_) * 3 + t) * 4
                for half in range(2):
                    out.append(g2.ds_rd("ds_read_b64_tr_b16", d + 2 * half, 2, V_RW2, V_RW2H, wsl + s_ * 6144 + half * 512 + t * 1024))
        return out

    def mfmas(st):
        b = st & 1
        out = []
        for s_ in range(2):
            f = FA2 + (2 * b + s_) * 4
            for t in range(3):
                w = FW2 + ((2 * b + s_) * 3 + t) * 4
                out.append(g2.mfma(ACC + 16 * t, w, f) if t < 2 else g2.mfma(ACC + 16 * t, f, w))
        return out

    def after_prologue(a):
        for r in range(48):
            a(f"v_mov_b32 v{ACC + r}, 0")
    j.dmaA, j.dmaW, j.reads, j.mfmas, j.after_prologue = dmaA, dmaW, reads, mfmas, after_prologue
    g2.engine(a, j)
    pstamp(a, 'qkv:loopend')
    if post_loop:
        post_loop(a)
    G0, G1 = 146, 147
    a(f"v_mov_b32 v{G0}, 0")
    a(f"v_mov_b32 v{G1}, 0")
    for r in range(4):
        a(f"v_dot2_f32_bf16 v{G0}, v{GX+r}, v{GWR+r}, v{G0}")
        a(f"v_dot2_f32_bf16 v{G1}, v{GX+4+r}, v{GWR+r}, v{G1}")
    for rot in (8, 4, 2, 1):
        a("s_nop 1")
        a(f"v_add_f32_dpp v{G0}, v{G0}, v{G0} row_ror:{rot} row_mask:0xf bank_mask:0xf")
        a(f"v_add_f32_dpp v{G1}, v{G1}, v{G1} row_ror:{rot} row_mask:0xf bank_mask:0xf")
    a("s_nop 1")
    for gi, g in enumerate((G0, G1)):
        for q in range(4):
            a(f"v_readlane_b32 s{S_T+q}, v{g}, {16*q}")
        a("s_nop 1")
        a(f"v_mov_b32 v{V_T+gi}, s{S_T}")
        a(f"v_add_f32 v{V_T+gi}, s{S_T+1}, v{V_T+gi}")
        a(f"v_add_f32 v{V_T+gi}, s{S_T+2}, v{V_T+gi}")
        a(f"v_add_f32 v{V_T+gi}, s{S_T+3}, v{V_T+gi}")
    a(f"v_cmp_eq_u32 vcc, 1, v0")
    a("s_nop 1")
    a(f"v_cndmask_b32 v{V_T}, v{V_T}, v{V_T+1}, vcc")
    a(f"v_mul_f32 v{V_T}, {f2u(-1.4426950408889634)}, v{V_T}")
    a(f"v_exp_f32 v{V_T}, v{V_T}")
    a("s_nop 0")
    a(f"v_add_f32 v{V_T}, 1.0, v{V_T}")
    a(f"v_rcp_f32 v{V_T}, v{V_T}")
    a(f"v_lshlrev_b32 v{V_T+1}, 2, v0")
    a(f"s_lshl_b32 s{S_T}, s{S_T+7}, 2")
    a(f"s_add_u32 s{S_T}, s{S_T}, {WS_G}")
    a(f"v_add_u32 v{V_T+1}, s{S_T}, v{V_T+1}")
    a(f"v_cmp_gt_u32 vcc, 2, v0")
    a(f"s_and_saveexec_b64 s[{S_T+2}:{S_T+3}], vcc")
    a(f"global_store_dword v{V_T+1}, v{V_T}, s[{S_WS}:{S_WS+1}]{SC}")
    a(f"s_mov_b64 exec, s[{S_T+2}:{S_T+3}]")
    TMP = 148
    a(f"s_lshl_b32 s{S_T}, s{S_RB}, 1")
    a(f"s_and_b32 s{S_T+1}, s{S_W}, 1")
    a(f"s_add_u32 s{S_T}, s{S_T}, s{S_T+1}")
    a(f"s_lshl_b32 s{S_T+2}, s{S_CB}, 1")
    a(f"s_lshr_b32 s{S_T+1}, s{S_W}, 1")
    a(f"s_add_u32 s{S_T+2}, s{S_T+2}, s{S_T+1}")
    a(f"s_lshl_b32 s{S_T+2}, s{S_T+2}, 17")
    a(f"s_lshl_b32 s{S_T+1}, s{S_T}, 10")
    a(f"s_add_u32 s{S_T+1}, s{S_T+1}, s{S_T+2}")
    a(f"v_lshlrev_b32 v{V_T}, 4, v0")
    a(f"v_add_u32 v{V_T}, s{S_T+1}, v{V_T}")
    a(f"v_add_u32 v{V_T+1}, 0x10000, v{V_T}")
    a(f"s_mov_b32 s{S_T+3}, {f2u(QSCALE)}")
    a(f"s_add_u32 s{S_P0+6}, s{S_WS}, {WS_KF}")
    a(f"s_addc_u32 s{S_P0+7}, s{S_WS+1}, 0")
    store_pk8(a, ACC, TMP, S_T + 3)
    a(f"global_store_dwordx4 v{V_T}, v[{TMP}:{TMP+3}], s[{S_WS}:{S_WS+1}]{SC}")
    store_pk8(a, ACC + 8, TMP + 4, S_T + 3)
    a(f"global_store_dwordx4 v{V_T+1}, v[{TMP+4}:{TMP+7}], s[{S_WS}:{S_WS+1}]{SC}")
    store_pk8(a, ACC + 16, TMP + 8)
    a(f"global_store_dwordx4 v{V_T}, v[{TMP+8}:{TMP+11}], s[{S_P0+6}:{S_P0+7}]{SC}")
    store_pk8(a, ACC + 24, TMP + 12)
    a(f"global_store_dwordx4 v{V_T+1}, v[{TMP+12}:{TMP+15}], s[{S_P0+6}:{S_P0+7}]{SC}")
    a(f"s_lshl_b32 s{S_T+1}, s{S_T}, 10")
    a(f"s_add_u32 s{S_T+1}, s{S_T+1}, s{S_T+2}")
    a(f"s_add_u32 s{S_T+1}, s{S_T+1}, {WS_VF}")
    a(f"v_bfe_u32 v{V_T+2}, v0, 4, 1")
    a(f"v_lshlrev_b32 v{V_T+2}, 16, v{V_T+2}")
    a(f"v_lshrrev_b32 v{V_T+3}, 5, v0")
    a(f"v_lshlrev_b32 v{V_T+3}, 8, v{V_T+3}")
    a(f"v_add3_u32 v{V_T+2}, v{V_T+2}, v{V_T+3}, s{S_T+1}")
    a(f"v_and_b32 v{V_T+3}, 15, v0")
    a(f"v_lshlrev_b32 v{V_T+3}, 4, v{V_T+3}")
    a(f"v_add_u32 v{V_T+2}, v{V_T+2}, v{V_T+3}")
    VT = TMP + 16
    for p in range(2):
        src = ACC + 32 + 8 * p
        t = VT + 4 * p
        for r in range(4):
            a(f"v_cvt_pk_bf16_f32 v{t+r}, v{src+2*r}, v{src+2*r+1}")
        a("s_nop 1")
        a(f"v_permlane32_swap_b32 v{t}, v{t+2}")
        a(f"v_permlane32_swap_b32 v{t+1}, v{t+3}")
        off = f" offset:512" if p else ""
        a(f"global_store_dwordx4 v{V_T+2}, v[{t}:{t+3}], s[{S_WS}:{S_WS+1}]{off}{SC}")
    pstamp(a, 'qkv:end')
    return j


GA = -2.0 * 1.4426950408889634 * 0.7978845608028654
GB = GA * 0.044715

def g_job(a, idreg, done=None, sc1=False, epi_prio=None, loop_prio=None):
    import gemm2 as g2
    FA2, FW2, ACC = 16, 32, 128
    V_RW2, V_RW2H, RAH = 224, 225, 226
    j = g2.J2()
    j.name, j.NS, j.RA, j.RW, j.nA, j.nW = "g", 16, 2, 4, 4, 3
    ASLOT, WSLOT, WBASE = 16384, 12288, 2 * 16384
    P_X, P_WG, P_WU = S_P0, S_P0 + 2, S_P0 + 4
    a(f"s_load_dwordx2 s[{P_X}:{P_X+1}], s[0:1], {KA_AX}")
    a(f"s_load_dwordx2 s[{P_WG}:{P_WG+1}], s[0:1], {KA_WG}")
    a(f"s_load_dwordx2 s[{P_WU}:{P_WU+1}], s[0:1], {KA_WU}")
    decode_rb_cb(a, idreg)
    T0, T1, T2 = V_T, V_T + 1, V_T + 2
    a(f"s_lshl_b32 s{S_T}, s{S_W}, 15")
    g2.a_dma_lane(a, g2.V_OA, 0)
    g2.a_dma_lane(a, g2.V_OA + 1, 1)
    a(f"v_add_u32 v{g2.V_OA}, s{S_T}, v{g2.V_OA}")
    a(f"v_add_u32 v{g2.V_OA+1}, s{S_T}, v{g2.V_OA+1}")
    a(f"v_add_u32 v{g2.V_OA+2}, {2 * 7168}, v{g2.V_OA}")
    a(f"v_add_u32 v{g2.V_OA+3}, {3 * 7168}, v{g2.V_OA+1}")
    a(f"v_add_u32 v{g2.V_OA+1}, 7168, v{g2.V_OA+1}")
    a(f"s_lshl_b32 s{S_LDA}, s{S_W}, 12")
    g2.a_read_setup(a, S_LDA, RAH)
    a(f"v_lshrrev_b32 v{T0}, 2, v0")
    a(f"v_mul_u32_u24 v{T0}, 2752, v{T0}")
    a(f"v_and_b32 v{T1}, 3, v0")
    a(f"v_lshlrev_b32 v{T1}, 4, v{T1}")
    a(f"v_add_u32 v{T0}, v{T0}, v{T1}")
    TILE0 = S_P0 + 6
    a(f"s_mul_i32 s{TILE0}, s{S_CB}, 3")
    a(f"s_lshl_b32 s{S_T}, s{S_CB}, 1")
    a(f"s_add_u32 s{S_T}, s{S_T}, 11")
    a(f"s_cmp_lt_u32 s{S_CB}, 11")
    a(f"s_cselect_b32 s{TILE0}, s{TILE0}, s{S_T}")
    a(f"s_cselect_b32 s{S_NP}, 3, 2")
    BIAS = 2048
    a(f"s_and_b32 s{S_T}, s{S_W}, 1")
    a(f"s_lshr_b32 s{S_T+1}, s{S_W}, 1")
    a(f"s_mul_i32 s{S_LDW}, s{S_T+1}, 6144")
    a(f"s_mul_i32 s{S_T+2}, s{S_T}, 3072")
    a(f"s_add_u32 s{S_LDW}, s{S_LDW}, s{S_T+2}")
    ex = lambda jx: 16 * (jx & 1) * 2752 + (jx >> 1) * 64
    a(f"s_cmp_eq_u32 s{S_T}, 0")
    for q in range(3):
        e0 = ex(q) - 1024 * q + BIAS
        e1 = ex(3 + q) - 1024 * q + BIAS
        a(f"s_mov_b32 s{S_T+3}, {e1}")
        a(f"s_cselect_b32 s{S_T+3}, {e0}, s{S_T+3}")
        a(f"v_add_u32 v{g2.V_OW+q}, s{S_T+3}, v{T0}")
    a(f"v_lshrrev_b32 v{T0}, 5, v0")
    a(f"v_lshlrev_b32 v{T0}, 3, v{T0}")
    a(f"v_bfe_u32 v{T1}, v0, 2, 2")
    a(f"v_add_u32 v{T0}, v{T0}, v{T1}")
    a(f"v_lshlrev_b32 v{T0}, 6, v{T0}")
    a(f"v_bfe_u32 v{T1}, v0, 4, 1")
    a(f"v_lshlrev_b32 v{T1}, 5, v{T1}")
    a(f"v_and_b32 v{T2}, 3, v0")
    a(f"v_lshlrev_b32 v{T2}, 3, v{T2}")
    a(f"v_add3_u32 v{V_RW2}, v{T0}, v{T1}, v{T2}")
    a(f"v_add_u32 v{V_RW2H}, {HI}, v{V_RW2}")
    a(f"s_lshl_b32 s{S_SOA}, s{S_RB}, 17")
    a(f"s_lshl_b32 s{S_SOW}, s{TILE0}, 6")
    a("s_waitcnt lgkmcnt(0)")
    srd_from(a, SRD_A, P_X, P_X + 1, 2048 * 1024)
    a(f"s_cmp_eq_u32 s{S_T+1}, 0")
    a(f"s_cselect_b32 s{S_T+4}, s{P_WG}, s{P_WU}")
    a(f"s_cselect_b32 s{S_T+5}, s{P_WG+1}, s{P_WU+1}")
    srd_from(a, SRD_W, S_T + 4, S_T + 5, 512 * 2752 + BIAS, add=-BIAS)

    def dmaA(a, S):
        a(f"s_add_u32 m0, s{S_LDA}, {(S % j.RA) * ASLOT}")
        a("s_nop 0")
        for i in range(4):
            off = f" offset:{1024 * i}" if i else ""
            a(f"buffer_load_dwordx4 v{g2.V_OA+i}, s[{SRD_A}:{SRD_A+3}], s{S_SOA} offen{off} lds")
        a(f"s_add_u32 s{S_SOA}, s{S_SOA}, 128")

    def dmaW(a, s_):
        a(f"s_add_u32 m0, s{S_LDW}, {WBASE + (s_ % j.RW) * WSLOT}")
        a("s_nop 0")
        for q in range(3):
            off = f" offset:{1024 * q}" if q else ""
            a(f"buffer_load_dwordx4 v{g2.V_OW+q}, s[{SRD_W}:{SRD_W+3}], s{S_SOW} offen{off} lds")
        a(f"s_add_u32 s{S_SOW}, s{S_SOW}, {32 * 2752}")

    def reads(st):
        b = st & 1
        asl = ((st >> 1) % j.RA) * ASLOT
        wsl = WBASE + (st % j.RW) * WSLOT
        out = []
        for s_ in range(2):
            k = 2 * (st & 1) + s_
            out.append(g2.ds_rd("ds_read_b128", FA2 + (2 * b + s_) * 4, 4, g2.V_RA + k, RAH + k, asl))
            for c in range(6):
                d = FW2 + ((2 * b + s_) * 6 + c) * 4
                for half in range(2):
                    out.append(g2.ds_rd("ds_read_b64_tr_b16", d + 2 * half, 2, V_RW2, V_RW2H, wsl + c * 2048 + (16 * s_ + 4 * half) * 64))
        return out

    def mfmas(st):
        b = st & 1
        out = []
        for s_ in range(2):
            f = FA2 + (2 * b + s_) * 4
            for c in range(6):
                out.append(g2.mfma(ACC + 16 * c, FW2 + ((2 * b + s_) * 6 + c) * 4, f))
        return out

    def after_prologue(a):
        for r in range(96):
            a(f"v_mov_b32 v{ACC + r}, 0")
        if loop_prio is not None:
            a(f"s_setprio {loop_prio}")
    j.dmaA, j.dmaW, j.reads, j.mfmas, j.after_prologue = dmaA, dmaW, reads, mfmas, after_prologue
    g2.engine(a, j)
    pstamp(a, 'g:loopend')
    if epi_prio is not None:
        a(f"s_setprio {epi_prio}")
    a("s_nop 7")
    a("s_nop 7")
    T = 32
    a(f"s_mov_b32 s{S_T}, {f2u(GA)}")
    a(f"s_mov_b32 s{S_T+1}, {f2u(GB)}")
    a(f"s_mul_i32 s{S_T+2}, s{S_RB}, 43")
    a(f"s_add_u32 s{S_T+2}, s{S_T+2}, s{TILE0}")
    a(f"s_lshl_b32 s{S_T+2}, s{S_T+2}, 13")
    a(f"s_lshl_b32 s{S_T+3}, s{S_W}, 11")
    a(f"s_add_u32 s{S_T+2}, s{S_T+2}, s{S_T+3}")
    a(f"s_add_u32 s{S_T+2}, s{S_T+2}, {WS_H}")
    a(f"v_lshlrev_b32 v{V_T}, 4, v0")
    a(f"v_add_u32 v{V_T}, s{S_T+2}, v{V_T}")
    a(f"v_mov_b32 v{V_T+2}, s{S_T}")
    for p in range(3):
        if p == 2:
            a(f"s_cmp_lt_u32 s{S_NP}, 3")
            a(f"s_cbranch_scc1 g_skip")
        G, U = ACC + 16 * p, ACC + 16 * (3 + p)
        for r0 in range(0, 16, 4):
            rr = range(r0, r0 + 4)
            for r in rr:
                a(f"v_mul_f32 v{T + r - r0}, v{G+r}, v{G+r}")
            for r in rr:
                a(f"v_fma_f32 v{T + r - r0}, v{T + r - r0}, s{S_T+1}, v{V_T+2}")
            for r in rr:
                a(f"v_mul_f32 v{T + r - r0}, v{T + r - r0}, v{G+r}")
            for r in rr:
                a(f"v_exp_f32 v{T + r - r0}, v{T + r - r0}")
            for r in rr:
                a(f"v_mul_f32 v{U+r}, v{U+r}, v{G+r}")
            for r in rr:
                a(f"v_add_f32 v{T + r - r0}, 1.0, v{T + r - r0}")
            for r in rr:
                a(f"v_rcp_f32 v{T + r - r0}, v{T + r - r0}")
            a("s_nop 0")
            for r in rr:
                a(f"v_mul_f32 v{U+r}, v{U+r}, v{T + r - r0}")
        for r in range(8):
            a(f"v_cvt_pk_bf16_f32 v{G+r}, v{U+2*r}, v{U+2*r+1}")
        if p:
            a(f"v_add_u32 v{V_T}, 8192, v{V_T}")
        sc = " sc1" if sc1 else ""
        a(f"global_store_dwordx4 v{V_T}, v[{G}:{G+3}], s[{S_WS}:{S_WS+1}]{sc}")
        a(f"global_store_dwordx4 v{V_T}, v[{G+4}:{G+7}], s[{S_WS}:{S_WS+1}] offset:1024{sc}")
    a.label("g_skip")
    pstamp(a, 'g:end')
    return j


def nc1_setup(a, j, idreg, kaW, ws_off, nst):
    P_W = S_P0
    a(f"s_load_dwordx2 s[{P_W}:{P_W+1}], s[0:1], {kaW}")
    decode_rb_cb(a, idreg)
    lane_setup(a, j)
    a(f"s_and_b32 s{S_T}, s{S_W}, 1")
    a(f"s_lshl_b32 s{S_LDW}, s{S_T}, 10")
    a(f"s_lshl_b32 s{S_T}, s{S_T}, 14")
    a(f"s_lshl_b32 s{S_T+1}, s{S_CB}, 6")
    a(f"s_add_u32 s{S_T}, s{S_T}, s{S_T+1}")
    a(f"v_add_u32 v{V_OW}, s{S_T}, v{V_OW}")
    a(f"s_mov_b32 s{S_SOA}, 0")
    a(f"s_mov_b32 s{S_SOW}, 0")
    a(f"s_mul_i32 s{S_T+2}, s{S_RB}, {nst * 8192}")
    a(f"s_add_u32 s{S_T+2}, s{S_T+2}, {ws_off}")
    a("s_waitcnt lgkmcnt(0)")
    a(f"s_add_u32 s{S_T+4}, s{S_WS}, s{S_T+2}")
    a(f"s_addc_u32 s{S_T+5}, s{S_WS+1}, 0")
    srd_from(a, SRD_A, S_T + 4, S_T + 5, nst * 8192)
    srd_from(a, SRD_W, P_W, P_W + 1, nst * 32 * 1024)


def bp_addr(a, dst):
    a(f"s_lshl_b32 s{S_T}, s{S_RB}, 4")
    a(f"s_add_u32 s{S_T}, s{S_T}, s{S_CB}")
    a(f"s_lshl_b32 s{S_T}, s{S_T}, 2")
    a(f"s_add_u32 s{S_T}, s{S_T}, s{S_W}")
    a(f"s_lshl_b32 s{S_T}, s{S_T}, 12")
    a(f"s_add_u32 s{S_T}, s{S_T}, {WS_BP}")
    a(f"v_lshlrev_b32 v{dst}, 4, v0")
    a(f"v_add_u32 v{dst}, s{S_T}, v{dst}")


def g_load(a, dst, tmp):
    a(f"s_lshl_b32 s{S_T}, s{S_RB}, 7")
    a(f"s_lshl_b32 s{S_T+1}, s{S_W}, 5")
    a(f"s_add_u32 s{S_T}, s{S_T}, s{S_T+1}")
    a(f"s_lshl_b32 s{S_T}, s{S_T}, 2")
    a(f"s_add_u32 s{S_T}, s{S_T}, {WS_G}")
    a(f"v_and_b32 v{tmp}, 31, v0")
    a(f"v_lshlrev_b32 v{tmp}, 2, v{tmp}")
    a(f"v_add_u32 v{tmp}, s{S_T}, v{tmp}")
    a(f"global_load_dword v{dst}, v{tmp}, s[{S_WS}:{S_WS+1}]")


def d_job(a, idreg, done, ring=8, lds0=0, a_sc1=False):
    ACC = 40
    j = Job("d", NC=1, nstages=43, ring=ring, nW=1, a_rs=64, a_ss=8192, w_ws=1024,
            chunk='frag', wrow='perm', orient=['FM'], acc=ACC, lds0=lds0, a_sc1=a_sc1)
    nc1_setup(a, j, idreg, KA_WD, WS_H, 43)
    GV = 60
    g_load(a, GV, V_T)
    prologue_dma(a, j)
    zero_acc(a, j)
    main_loop(a, j)
    pstamp(a, j.name + ':loopend')
    a("s_nop 7")
    a("s_nop 7")
    a(f"v_sub_f32 v{GV}, 1.0, v{GV}")
    bp_addr(a, V_T)
    for r in range(16):
        a(f"v_mul_f32 v{ACC+r}, v{ACC+r}, v{GV}")
    for q in range(4):
        off = f" offset:{1024*q}" if q else ""
        a(f"global_store_dwordx4 v{V_T}, v[{ACC+4*q}:{ACC+4*q+3}], s[{S_WS}:{S_WS+1}]{off}")
    pstamp(a, j.name + ':end')
    if done:
        a(f"s_branch {done}")
    return j


def wo_job(a, idreg, done, ring=8, lds0=0):
    ACC = 40
    j = Job("wo", NC=1, nstages=16, ring=ring, nW=1, a_rs=64, a_ss=8192, w_ws=1024,
            chunk='frag', wrow='perm', orient=['FM'], acc=ACC, lds0=lds0)
    P_OUT = S_P0 + 2
    a(f"s_load_dwordx2 s[{P_OUT}:{P_OUT+1}], s[0:1], {KA_OUT}")
    nc1_setup(a, j, idreg, KA_WO, WS_OB, 16)
    GV, BPV = 60, 64
    g_load(a, GV, V_T)
    bp_addr(a, V_T + 1)
    for q in range(4):
        off = f" offset:{1024*q}" if q else ""
        a(f"global_load_dwordx4 v[{BPV+4*q}:{BPV+4*q+3}], v{V_T+1}, s[{S_WS}:{S_WS+1}]{off}")
    prologue_dma(a, j)
    zero_acc(a, j)
    main_loop(a, j)
    pstamp(a, j.name + ':loopend')
    a("s_nop 7")
    a("s_nop 7")
    for r in range(16):
        a(f"v_fma_f32 v{ACC+r}, v{ACC+r}, v{GV}, v{BPV+r}")
    a(f"s_lshl_b32 s{S_T}, s{S_RB}, 7")
    a(f"s_lshl_b32 s{S_T+1}, s{S_W}, 5")
    a(f"s_add_u32 s{S_T}, s{S_T}, s{S_T+1}")
    a(f"s_lshl_b32 s{S_T}, s{S_T}, 10")
    a(f"s_lshl_b32 s{S_T+1}, s{S_CB}, 6")
    a(f"s_add_u32 s{S_T}, s{S_T}, s{S_T+1}")
    a(f"v_and_b32 v{V_T}, 31, v0")
    a(f"v_lshlrev_b32 v{V_T}, 10, v{V_T}")
    a(f"v_lshrrev_b32 v{V_T+1}, 5, v0")
    a(f"v_lshlrev_b32 v{V_T+1}, 4, v{V_T+1}")
    a(f"v_add3_u32 v{V_T}, v{V_T}, v{V_T+1}, s{S_T}")
    T = 80
    for p in range(2):
        t = T + 4 * p
        for r in range(4):
            a(f"v_cvt_pk_bf16_f32 v{t+r}, v{ACC+8*p+2*r}, v{ACC+8*p+2*r+1}")
        a("s_nop 1")
        a(f"v_permlane32_swap_b32 v{t}, v{t+2}")
        a(f"v_permlane32_swap_b32 v{t+1}, v{t+3}")
        off = " offset:32" if p else ""
        a(f"global_store_dwordx4 v{V_T}, v[{t}:{t+3}], s[{P_OUT}:{P_OUT+1}]{off}")
    pstamp(a, j.name + ':end')
    if done:
        a(f"s_branch {done}")
    return j


def qkv_touch(a, idreg):
    P_X, P_W = S_P0, S_P0 + 2
    a(f"s_load_dwordx2 s[{P_X}:{P_X+1}], s[0:1], {KA_AX}")
    a(f"s_load_dwordx2 s[{P_W}:{P_W+1}], s[0:1], {KA_WQKV}")
    decode_qkv(a, idreg)
    a("s_waitcnt lgkmcnt(0)")
    srd_from(a, SRD_A, P_X, P_X + 1, 2048 * 1024)
    srd_from(a, SRD_W, P_W, P_W + 1, 512 * 3072)
    a(f"s_lshl_b32 s{S_T}, s{S_RB}, 6")
    a(f"s_and_b32 s{S_T+1}, s{S_CB}, 3")
    a(f"s_lshl_b32 s{S_T+1}, s{S_T+1}, 4")
    a(f"s_add_u32 s{S_T}, s{S_T}, s{S_T+1}")
    a(f"s_lshl_b32 s{S_T+1}, s{S_W}, 2")
    a(f"s_add_u32 s{S_T}, s{S_T}, s{S_T+1}")
    a(f"s_lshl_b32 s{S_T}, s{S_T}, 10")
    a(f"v_lshrrev_b32 v{V_T}, 3, v0")
    a(f"v_lshlrev_b32 v{V_T}, 10, v{V_T}")
    a(f"v_and_b32 v{V_T+1}, 7, v0")
    a(f"v_lshlrev_b32 v{V_T+1}, 7, v{V_T+1}")
    a(f"v_add_u32 v{V_T}, v{V_T}, v{V_T+1}")
    a(f"s_mov_b32 exec_hi, 0")
    a(f"buffer_load_dword v120, v{V_T}, s[{SRD_A}:{SRD_A+3}], s{S_T} offen")
    a(f"s_mov_b32 exec_hi, -1")
    a(f"s_and_b32 s{S_T}, s{S_RB}, 7")
    a(f"s_lshl_b32 s{S_T}, s{S_T}, 6")
    a(f"s_lshl_b32 s{S_T+1}, s{S_W}, 4")
    a(f"s_add_u32 s{S_T}, s{S_T}, s{S_T+1}")
    a(f"s_mul_i32 s{S_T}, s{S_T}, 3072")
    a(f"s_lshl_b32 s{S_T+1}, s{S_CB}, 7")
    a(f"s_add_u32 s{S_T}, s{S_T}, s{S_T+1}")
    a(f"v_and_b32 v{V_T}, 15, v0")
    a(f"v_mul_u32_u24 v{V_T}, 3072, v{V_T}")
    a(f"v_lshrrev_b32 v{V_T+1}, 4, v0")
    a(f"v_lshlrev_b32 v{V_T+1}, 10, v{V_T+1}")
    a(f"v_add_u32 v{V_T}, v{V_T}, v{V_T+1}")
    a(f"s_mov_b32 exec_hi, 0xffff")
    a(f"buffer_load_dword v121, v{V_T}, s[{SRD_W}:{SRD_W+3}], s{S_T} offen")
    a(f"s_mov_b32 exec_hi, -1")
```

```python
from asmlib import *
from layout import *
from gemm import S_W, S_RB, S_CB, SRD_A, SRD_W, S_SOA, S_SOW, S_LDW, S_T, S_P0, S_WS, V_T

V_OA = 1
V_OW = 2
V_RW = 6
AR = 16
BIAS = 4096


class VmQ:
    def __init__(self):
        self.q = []
    def add(self, tag, n):
        self.q.append((tag, n))
    def wait_for(self, tags):
        last = max(i for i, (t, n) in enumerate(self.q) if t in tags)
        return sum(n for t, n in self.q[last + 1:])


class SK:
    def __init__(self, name, nst, ring, acc, wf, a_sc1):
        self.name, self.NS, self.R, self.acc, self.wf = name, nst, ring, acc, wf
        self.sc = " sc1" if a_sc1 else ""


def decode64(a, idreg):
    a(f"s_and_b32 s{S_RB}, s{idreg}, 3")
    a(f"s_lshl_b32 s{S_RB}, s{S_RB}, 3")
    a(f"s_bfe_u32 s{S_T}, s{idreg}, 0x30003")
    a(f"s_add_u32 s{S_RB}, s{S_RB}, s{S_T}")
    a(f"s_bfe_u32 s{S_CB}, s{idreg}, 0x10002")
    a(f"s_lshl_b32 s{S_CB}, s{S_CB}, 2")
    a(f"s_lshr_b32 s{S_T}, s{idreg}, 6")
    a(f"s_add_u32 s{S_CB}, s{S_CB}, s{S_T}")


def setup_lanes(a):
    T0, T1, T2 = V_T, V_T + 1, V_T + 2
    a(f"v_lshlrev_b32 v{V_OA}, 4, v0")
    a(f"v_lshrrev_b32 v{T0}, 2, v0")
    a(f"v_lshlrev_b32 v{T0}, 10, v{T0}")
    a(f"v_and_b32 v{T1}, 3, v0")
    a(f"v_lshlrev_b32 v{T1}, 4, v{T1}")
    a(f"s_lshl_b32 s{S_T}, s{S_CB}, 7")
    a(f"v_add3_u32 v{T0}, v{T0}, v{T1}, s{S_T}")
    for q in range(4):
        i, c = q >> 1, q & 1
        a(f"v_add_u32 v{V_OW+q}, {16 * 1024 * i + 64 * c - 1024 * q + BIAS}, v{T0}")
    a(f"s_mul_i32 s{S_LDW}, s{S_W}, 20480")
    a(f"v_lshrrev_b32 v{T0}, 5, v0")
    a(f"v_lshlrev_b32 v{T0}, 2, v{T0}")
    a(f"v_bfe_u32 v{T1}, v0, 2, 2")
    a(f"v_add_u32 v{T0}, v{T0}, v{T1}")
    a(f"v_lshlrev_b32 v{T0}, 6, v{T0}")
    a(f"v_bfe_u32 v{T1}, v0, 4, 1")
    a(f"v_lshlrev_b32 v{T1}, 5, v{T1}")
    a(f"v_and_b32 v{T2}, 3, v0")
    a(f"v_lshlrev_b32 v{T2}, 3, v{T2}")
    a(f"v_add3_u32 v{T0}, v{T0}, v{T1}, v{T2}")
    a(f"v_add_u32 v{V_RW}, s{S_LDW}, v{T0}")


def setup_srds(a, j, w_lo, a_ws_off, ntiles, per_wave):
    a(f"s_lshr_b32 s{S_T}, s{S_RB}, 1")
    a(f"s_mul_i32 s{S_T}, s{S_T}, {ntiles * 8192}")
    a(f"s_add_u32 s{S_T}, s{S_T}, {a_ws_off}")
    a(f"s_add_u32 s{SRD_A}, s{S_WS}, s{S_T}")
    a(f"s_addc_u32 s{SRD_A+1}, s{S_WS+1}, 0")
    a(f"s_and_b32 s{SRD_A+1}, s{SRD_A+1}, 0xffff")
    a(f"s_mov_b32 s{SRD_A+2}, {ntiles * 8192}")
    a(f"s_mov_b32 s{SRD_A+3}, 0x20000")
    a(f"s_mul_i32 s{S_SOA}, s{S_W}, {per_wave * 8192}")
    a(f"s_and_b32 s{S_T}, s{S_RB}, 1")
    a(f"s_lshl_b32 s{S_T}, s{S_T}, 12")
    a(f"s_add_u32 s{S_SOA}, s{S_SOA}, s{S_T}")
    a(f"s_sub_u32 s{SRD_W}, s{w_lo}, {BIAS}")
    a(f"s_subb_u32 s{SRD_W+1}, s{w_lo+1}, 0")
    a(f"s_and_b32 s{SRD_W+1}, s{SRD_W+1}, 0xffff")
    a(f"s_mov_b32 s{SRD_W+2}, {ntiles * 32 * 1024 + BIAS}")
    a(f"s_mov_b32 s{SRD_W+3}, 0x20000")
    a(f"s_mul_i32 s{S_SOW}, s{S_W}, {per_wave * 32 * 1024}")


def w_loads(a, j, st):
    a(f"s_add_u32 m0, s{S_LDW}, {(st % j.R) * 4096}")
    a("s_nop 0")
    for q in range(4):
        off = f" offset:{1024 * q}" if q else ""
        a(f"buffer_load_dwordx4 v{V_OW+q}, s[{SRD_W}:{SRD_W+3}], s{S_SOW} offen{off} lds")
    a(f"s_add_u32 s{S_SOW}, s{S_SOW}, 32768")


def a_loads(a, j, st):
    r = AR + (st % j.R) * 16
    for q in range(4):
        off = f" offset:{1024 * q}" if q else ""
        a(f"buffer_load_dwordx4 v[{r+4*q}:{r+4*q+3}], v{V_OA}, s[{SRD_A}:{SRD_A+3}], s{S_SOA} offen{off}{j.sc}")
    a(f"s_add_u32 s{S_SOA}, s{S_SOA}, 8192")


def w_reads(j, st):
    b = st & 1
    out = []
    for s in range(2):
        for c in range(2):
            d = j.wf + b * 16 + (2 * s + c) * 4
            for half in range(2):
                off = (st % j.R) * 4096 + s * 2048 + c * 1024 + half * 512
                out.append(f"ds_read_b64_tr_b16 v[{d+2*half}:{d+2*half+1}], v{V_RW} offset:{off}")
    return out


def mfmas(j, st):
    b = st & 1
    r = AR + (st % j.R) * 16
    out = []
    for s in range(2):
        for aa in range(2):
            for c in range(2):
                acc = j.acc + (2 * aa + c) * 16
                w = j.wf + b * 16 + (2 * s + c) * 4
                f = r + (2 * aa + s) * 4
                out.append(f"v_mfma_f32_32x32x16_bf16 v[{acc}:{acc+15}], v[{w}:{w+3}], v[{f}:{f+3}], v[{acc}:{acc+15}]")
    return out


def loop(a, j, q):
    R, NS = j.R, j.NS
    issued = min(R, NS)
    a(f"s_waitcnt vmcnt({q.wait_for([('W', 0), ('A', 0)])})")
    pstamp(a, j.name + ":first")
    for r in w_reads(j, 0):
        a(r)
    for st in range(NS):
        ms = mfmas(j, st)
        if st + 1 < NS:
            a(f"s_waitcnt vmcnt({q.wait_for([('W', st + 1), ('A', st + 1)])}) lgkmcnt(0)")
            rs = w_reads(j, st + 1)
            for i, m in enumerate(ms):
                a(m)
                a(rs[i])
            if issued < NS:
                w_loads(a, j, issued); q.add(('W', issued), 4)
                a_loads(a, j, issued); q.add(('A', issued), 4)
                issued += 1
        else:
            a("s_waitcnt lgkmcnt(0)")
            for m in ms:
                a(m)


def reduce(a, j, tmp):
    a("s_nop 7")
    a("s_nop 7")
    a("s_barrier")
    a(f"s_lshl_b32 s{S_T}, s{S_W}, 12")
    a(f"v_add_u32 v{V_T}, s{S_T}, v{V_OA}")
    for t in range(4):
        for q in range(4):
            a(f"ds_write_b128 v{V_T}, v[{j.acc+16*t+4*q}:{j.acc+16*t+4*q+3}] offset:{t * 16384 + q * 1024}")
    a("s_waitcnt lgkmcnt(0)")
    a("s_barrier")
    a(f"s_lshl_b32 s{S_T}, s{S_W}, 14")
    a(f"v_add_u32 v{V_T}, s{S_T}, v{V_OA}")
    for w in range(4):
        for q in range(4):
            a(f"ds_read_b128 v[{j.acc+16*w+4*q}:{j.acc+16*w+4*q+3}], v{V_T} offset:{w * 4096 + q * 1024}")
    a("s_waitcnt lgkmcnt(0)")
    for r in range(16):
        a(f"v_add_f32 v{tmp+r}, v{j.acc+r}, v{j.acc+16+r}")
        a(f"v_add_f32 v{j.acc+32+r}, v{j.acc+32+r}, v{j.acc+48+r}")
    for r in range(16):
        a(f"v_add_f32 v{tmp+r}, v{tmp+r}, v{j.acc+32+r}")


def zero_acc(a, j):
    for r in range(64):
        a(f"v_mov_b32 v{j.acc+r}, 0")


ACC, WF, RES_D, RES_W = 96, 160, 192, 208


def g_load(a, dst, tmp):
    a(f"s_lshl_b32 s{S_T}, s{S_RB}, 6")
    a(f"s_lshr_b32 s{S_T+1}, s{S_W}, 1")
    a(f"s_lshl_b32 s{S_T+1}, s{S_T+1}, 5")
    a(f"s_add_u32 s{S_T}, s{S_T}, s{S_T+1}")
    a(f"s_lshl_b32 s{S_T}, s{S_T}, 2")
    a(f"s_add_u32 s{S_T}, s{S_T}, {WS_G}")
    a(f"v_and_b32 v{tmp}, 31, v0")
    a(f"v_lshlrev_b32 v{tmp}, 2, v{tmp}")
    a(f"v_add_u32 v{tmp}, s{S_T}, v{tmp}")
    a(f"global_load_dword v{dst}, v{tmp}, s[{S_WS}:{S_WS+1}] sc1")


def d_job(a, idreg, a_sc1=True, wait=None):
    j = SK("d", 11, 5, ACC, WF, a_sc1)
    P_W = S_P0
    a(f"s_load_dwordx2 s[{P_W}:{P_W+1}], s[0:1], {KA_WD}")
    decode64(a, idreg)
    setup_lanes(a)
    a("s_waitcnt lgkmcnt(0)")
    setup_srds(a, j, P_W, WS_H, 43, 11)
    q = VmQ()
    for st in range(j.R):
        w_loads(a, j, st); q.add(('W', st), 4)
    zero_acc(a, j)
    if wait:
        wait(a)
        pstamp(a, "flag")
    for st in range(j.R):
        a_loads(a, j, st); q.add(('A', st), 4)
    loop(a, j, q)
    pstamp(a, "d:loopend")
    reduce(a, j, RES_D)
    pstamp(a, "d:end")
    return j


def bp_addr(a, dst):
    a(f"s_lshl_b32 s{S_T}, s{S_RB}, 3")
    a(f"s_add_u32 s{S_T}, s{S_T}, s{S_CB}")
    a(f"s_lshl_b32 s{S_T}, s{S_T}, 2")
    a(f"s_add_u32 s{S_T}, s{S_T}, s{S_W}")
    a(f"s_lshl_b32 s{S_T}, s{S_T}, 12")
    a(f"s_add_u32 s{S_T}, s{S_T}, {WS_BP}")
    a(f"v_lshlrev_b32 v{dst}, 4, v0")
    a(f"v_add_u32 v{dst}, s{S_T}, v{dst}")


def store_bp(a):
    bp_addr(a, V_T)
    for q in range(4):
        off = f" offset:{1024*q}" if q else ""
        a(f"global_store_dwordx4 v{V_T}, v[{RES_D+4*q}:{RES_D+4*q+3}], s[{S_WS}:{S_WS+1}]{off}")


def load_bp(a):
    bp_addr(a, V_T)
    for q in range(4):
        off = f" offset:{1024*q}" if q else ""
        a(f"global_load_dwordx4 v[{RES_D+4*q}:{RES_D+4*q+3}], v{V_T}, s[{S_WS}:{S_WS+1}]{off}")


def wo_job(a, idreg, wait=None, pre=None, a_sc1=False):
    j = SK("wo", 4, 5, ACC, WF, a_sc1)
    P_W, P_OUT = S_P0, S_P0 + 2
    GV = 8
    a(f"s_load_dwordx2 s[{P_W}:{P_W+1}], s[0:1], {KA_WO}")
    a(f"s_load_dwordx2 s[{P_OUT}:{P_OUT+1}], s[0:1], {KA_OUT}")
    decode64(a, idreg)
    setup_lanes(a)
    a("s_waitcnt lgkmcnt(0)")
    g_load(a, GV, V_T)
    if pre:
        pre(a)
    setup_srds(a, j, P_W, WS_OB, 16, 4)
    a("s_barrier")
    for st in range(4):
        w_loads(a, j, st)
    zero_acc(a, j)
    a("s_waitcnt vmcnt(0)")
    if wait:
        wait(a)
        pstamp(a, "wo:flag")
    for st in range(4):
        a_loads(a, j, st)
    for r in w_reads(j, 0):
        a(r)
    for st in range(4):
        a(f"s_waitcnt vmcnt({4 * (3 - st)}) lgkmcnt(0)")
        ms = mfmas(j, st)
        if st + 1 < 4:
            rs = w_reads(j, st + 1)
            for i, m in enumerate(ms):
                a(m)
                a(rs[i])
        else:
            for m in ms:
                a(m)
    pstamp(a, "wo:loopend")
    reduce(a, j, RES_W)
    for r in range(16):
        a(f"v_sub_f32 v{RES_W+r}, v{RES_W+r}, v{RES_D+r}")
    for r in range(16):
        a(f"v_fma_f32 v{RES_W+r}, v{RES_W+r}, v{GV}, v{RES_D+r}")
    a(f"s_lshl_b32 s{S_T}, s{S_RB}, 6")
    a(f"s_lshr_b32 s{S_T+1}, s{S_W}, 1")
    a(f"s_lshl_b32 s{S_T+1}, s{S_T+1}, 5")
    a(f"s_add_u32 s{S_T}, s{S_T}, s{S_T+1}")
    a(f"s_lshl_b32 s{S_T}, s{S_T}, 10")
    a(f"s_lshl_b32 s{S_T+1}, s{S_CB}, 7")
    a(f"s_add_u32 s{S_T}, s{S_T}, s{S_T+1}")
    a(f"s_and_b32 s{S_T+1}, s{S_W}, 1")
    a(f"s_lshl_b32 s{S_T+1}, s{S_T+1}, 6")
    a(f"s_add_u32 s{S_T}, s{S_T}, s{S_T+1}")
    a(f"v_and_b32 v{V_T}, 31, v0")
    a(f"v_lshlrev_b32 v{V_T}, 10, v{V_T}")
    a(f"v_lshrrev_b32 v{V_T+1}, 5, v0")
    a(f"v_lshlrev_b32 v{V_T+1}, 4, v{V_T+1}")
    a(f"v_add3_u32 v{V_T}, v{V_T}, v{V_T+1}, s{S_T}")
    T = ACC
    for p in range(2):
        t = T + 4 * p
        for r in range(4):
            a(f"v_cvt_pk_bf16_f32 v{t+r}, v{RES_W+8*p+2*r}, v{RES_W+8*p+2*r+1}")
        a("s_nop 1")
        a(f"v_permlane32_swap_b32 v{t}, v{t+2}")
        a(f"v_permlane32_swap_b32 v{t+1}, v{t+3}")
        off = " offset:32" if p else ""
        a(f"global_store_dwordx4 v{V_T}, v[{t}:{t+3}], s[{P_OUT}:{P_OUT+1}]{off}")
    pstamp(a, "wo:end")
    return j
```

```python
from asmlib import *
from layout import *


def prefetch(a, gw, bufs, per_group_shift, vdst, vtmp, stmp, srd):
    nper = 1 << per_group_shift
    P = stmp
    a(f"s_lshr_b32 s{stmp+4}, s{gw}, {per_group_shift}")
    lab = a.uid("pf")
    for g, (ka, size) in enumerate(bufs):
        blocks = (size + 255) // 256
        lanes = (blocks + nper - 1) // nper
        assert lanes <= 64
        nxt = f"{lab}_{g+1}"
        a(f"s_cmp_lg_u32 s{stmp+4}, {g}")
        a(f"s_cbranch_scc1 {nxt}")
        a(f"s_load_dwordx2 s[{P}:{P+1}], s[0:1], {ka}")
        a(f"s_and_b32 s{stmp+5}, s{gw}, {nper - 1}")
        a(f"s_mul_i32 s{stmp+5}, s{stmp+5}, {lanes * 256}")
        a(f"v_lshlrev_b32 v{vtmp}, 8, v0")
        a(f"v_add_u32 v{vtmp}, s{stmp+5}, v{vtmp}")
        a(f"v_cmp_gt_u32 vcc, {lanes}, v0")
        a(f"s_waitcnt lgkmcnt(0)")
        a(f"s_mov_b32 s{srd}, s{P}")
        a(f"s_and_b32 s{srd+1}, s{P+1}, 0xffff")
        a(f"s_mov_b32 s{srd+2}, {size}")
        a(f"s_mov_b32 s{srd+3}, 0x20000")
        a(f"s_and_saveexec_b64 s[{stmp+2}:{stmp+3}], vcc")
        a(f"buffer_load_dword v{vdst}, v{vtmp}, s[{srd}:{srd+3}], 0 offen")
        a(f"s_mov_b64 exec, s[{stmp+2}:{stmp+3}]")
        a(f"s_branch {lab}_end")
        a.label(nxt)
    a.label(f"{lab}_end")


def signal(a, base_lo, first_sreg, nlanes, wave_sreg, vt, const_off=0, drain=True):
    lab = a.uid("sig")
    if drain:
        a("s_waitcnt vmcnt(0)")
        a("s_barrier")
    a(f"s_cmp_lg_u32 s{wave_sreg}, 0")
    a(f"s_cbranch_scc1 {lab}")
    a(f"v_add_u32 v{vt}, s{first_sreg}, v0")
    a(f"v_lshlrev_b32 v{vt}, 8, v{vt}")
    a(f"v_add_u32 v{vt}, {const_off}, v{vt}")
    a(f"v_mov_b32 v{vt+1}, 1")
    a(f"s_mov_b64 exec, {(1 << nlanes) - 1}")
    a(f"global_atomic_add v{vt}, v{vt+1}, s[{base_lo}:{base_lo+1}] sc1")
    a("s_mov_b64 exec, -1")
    a.label(lab)


def wait_count(a, base_lo, word_sreg, target, wave_sreg, vt, stmp, const_off=0, limit=100000, sleep=4):
    lab = a.uid("wt")
    a(f"s_cmp_lg_u32 s{wave_sreg}, 0")
    a(f"s_cbranch_scc1 {lab}_done")
    a(f"v_mov_b32 v{vt}, s{word_sreg}")
    a(f"v_lshlrev_b32 v{vt}, 8, v{vt}")
    a(f"v_add_u32 v{vt}, {const_off}, v{vt}")
    a(f"s_mov_b32 s{stmp+1}, {limit}")
    a("s_mov_b64 exec, 1")
    a.label(f"{lab}_poll")
    a(f"global_load_dword v{vt+1}, v{vt}, s[{base_lo}:{base_lo+1}] sc1")
    a("s_waitcnt vmcnt(0)")
    a(f"v_readfirstlane_b32 s{stmp}, v{vt+1}")
    a(f"s_sub_u32 s{stmp+1}, s{stmp+1}, 1")
    a(f"s_cmp_eq_u32 s{stmp+1}, 0")
    a(f"s_cbranch_scc1 {lab}_out")
    a(f"s_cmp_ge_u32 s{stmp}, {target}")
    a(f"s_cbranch_scc1 {lab}_out")
    a(f"s_sleep {sleep}")
    a(f"s_branch {lab}_poll")
    a.label(f"{lab}_out")
    a("s_mov_b64 exec, -1")
    a.label(f"{lab}_done")
    a("s_barrier")


def clear_flags(a, ws_lo, wg_sreg, wave_sreg, vt, off, n):
    lab = a.uid("clr")
    a(f"s_or_b32 s{wg_sreg+90-wg_sreg}, s{wg_sreg}, s{wave_sreg}")
    a(f"s_cmp_lg_u32 s90, 0")
    a(f"s_cbranch_scc1 {lab}")
    a(f"v_lshlrev_b32 v{vt}, 8, v0")
    a(f"v_add_u32 v{vt}, {off}, v{vt}")
    a(f"v_mov_b32 v{vt+1}, 0")
    a(f"global_store_dword v{vt}, v{vt+1}, s[{ws_lo}:{ws_lo+1}]")
    a.label(lab)


def init_counters(a, ws_lo, dbg_lo, vt, off):
    a(f"v_lshlrev_b32 v{vt}, 8, v0")
    a(f"v_add_u32 v{vt}, {off}, v{vt}")
    a(f"v_mov_b32 v{vt+1}, 0")
    for i in range(4):
        a(f"global_store_dword v{vt}, v{vt+1}, s[{ws_lo}:{ws_lo+1}] sc1")
        if i < 3:
            a(f"v_add_u32 v{vt}, 16384, v{vt}")
    a("s_waitcnt vmcnt(0)")
    a(f"v_mov_b32 v{vt}, 0")
    a(f"v_mov_b32 v{vt+1}, 1")
    a("s_mov_b64 exec, 1")
    a(f"global_store_dword v{vt}, v{vt+1}, s[{dbg_lo}:{dbg_lo+1}] sc1")
    a("s_mov_b64 exec, -1")


def init_probe(a, dbg_lo, vdst):
    a(f"v_mov_b32 v{vdst}, 0")
    a("s_nop 0")
    a(f"global_load_dword v{vdst}, v{vdst}, s[{dbg_lo}:{dbg_lo+1}] sc1")


def wait_init(a, dbg_lo, wave_sreg, vt, stmp, limit=100000, probe=None):
    lab = a.uid("wi")
    a(f"s_cmp_lg_u32 s{wave_sreg}, 0")
    a(f"s_cbranch_scc1 {lab}_done")
    if probe is not None:
        a("s_waitcnt vmcnt(0)")
        a(f"v_readfirstlane_b32 s{stmp}, v{probe}")
        a(f"s_cmp_lg_u32 s{stmp}, 0")
        a(f"s_cbranch_scc1 {lab}_done")
    a(f"v_mov_b32 v{vt}, 0")
    a(f"s_mov_b32 s{stmp+1}, {limit}")
    a("s_mov_b64 exec, 1")
    a.label(f"{lab}_poll")
    a(f"global_load_dword v{vt+1}, v{vt}, s[{dbg_lo}:{dbg_lo+1}] sc1")
    a("s_waitcnt vmcnt(0)")
    a(f"v_readfirstlane_b32 s{stmp}, v{vt+1}")
    a(f"s_sub_u32 s{stmp+1}, s{stmp+1}, 1")
    a(f"s_cmp_eq_u32 s{stmp+1}, 0")
    a(f"s_cbranch_scc1 {lab}_out")
    a(f"s_cmp_lg_u32 s{stmp}, 0")
    a(f"s_cbranch_scc1 {lab}_out")
    a("s_sleep 8")
    a(f"s_branch {lab}_poll")
    a.label(f"{lab}_out")
    a("s_mov_b64 exec, -1")
    a.label(f"{lab}_done")


def prefetch1(a, ka, size, idx_sreg, nwaves, vdst, vtmp, stmp, srd, wait=True):
    blocks = (size + 255) // 256
    lanes = (blocks + nwaves - 1) // nwaves
    assert lanes <= 64
    a(f"s_load_dwordx2 s[{stmp}:{stmp+1}], s[0:1], {ka}")
    a(f"s_mul_i32 s{stmp+4}, s{idx_sreg}, {lanes * 256}")
    a(f"v_lshlrev_b32 v{vtmp}, 8, v0")
    a(f"v_add_u32 v{vtmp}, s{stmp+4}, v{vtmp}")
    a(f"v_cmp_gt_u32 vcc, {lanes}, v0")
    a("s_waitcnt lgkmcnt(0)")
    a(f"s_mov_b32 s{srd}, s{stmp}")
    a(f"s_and_b32 s{srd+1}, s{stmp+1}, 0xffff")
    a(f"s_mov_b32 s{srd+2}, {size}")
    a(f"s_mov_b32 s{srd+3}, 0x20000")
    a(f"s_and_saveexec_b64 s[{stmp+2}:{stmp+3}], vcc")
    a(f"buffer_load_dword v{vdst}, v{vtmp}, s[{srd}:{srd+3}], 0 offen")
    a(f"s_mov_b64 exec, s[{stmp+2}:{stmp+3}]")
```

```python
import sys, os
sys.path.insert(0, os.path.dirname(os.path.abspath(__file__)))
from asmlib import *
from layout import *
import attn, jobs, splitk
from sync import *
from gemm import S_W, S_WS, S_T, S_RB, S_CB, V_T, SRD_A

NAME = "gated_mix__mha_block__glu_gated_geglu__prompt"
HEADER = open(os.path.join(os.path.dirname(os.path.abspath(__file__)), "header.txt")).read()
ENV = os.environ.get
C_QKV, C_G, C_ATT = 0, 128, 192


def build():
    a = Asm()
    a.raw(HEADER.rstrip("\n"))
    LDS = 81920
    a.raw(f"; @launch grid=(512,1,1) block=(256,1,1) lds={LDS}")
    a.raw('.amdgcn_target "amdgcn-amd-amdhsa--gfx950"')
    a.raw(".text")
    kernel_header(a, f"{NAME}_kernel")
    a("s_cmp_ge_u32 s2, 512")
    a("s_cbranch_scc1 k_done")
    preset(a); pstamp(a, "entry")
    jobs.common_entry(a)
    a("s_cmp_ge_u32 s2, 256")
    a("s_cbranch_scc1 k_ffn")
    a("s_setprio 2")

    def pre_qkv(a):
        a("s_lshl_b32 s52, s2, 2")
        a(f"s_add_u32 s52, s52, s{S_W}")
        prefetch1(a, KA_AX, 2048 * 1024, 52, 2048, 176, 177, 54, 60)
        prefetch1(a, KA_WQKV, 512 * 3072, 52, 2048, 178, 177, 54, 60)
        a("s_waitcnt vmcnt(0)")
        pstamp(a, "pf1")
        init_probe(a, jobs.S_DBG, 179)

    def post_qkv(a):
        wait_init(a, jobs.S_DBG, S_W, V_T, S_T, probe=179)
    def pre_qkv0(a):
        init_probe(a, jobs.S_DBG, 179)
    jobs.qkv_job(a, 2, sc1=True, pre=pre_qkv if ENV("APF") else pre_qkv0, post_loop=post_qkv)
    a(f"s_lshl_b32 s50, s{S_CB}, 4")
    signal(a, S_WS, 50, 16, S_W, V_T, WS_FLAG + 256 * C_QKV)
    pstamp(a, "qkv:sig")
    if ENV("NOF"):
        pflush(a, 2, S_W, S_WS, attn.TMP, 0)
        a("s_branch k_done")

    def wait_qkv(a):
        a(f"s_lshr_b32 s50, s{attn.S_HEAD}, 2")
        a(f"s_lshl_b32 s50, s50, 4")
        a(f"s_add_u32 s50, s50, s{attn.S_QB}")
        wait_count(a, S_WS, 50, 32, S_W, attn.TMP, 60, WS_FLAG + 256 * C_QKV)
        pstamp(a, "qkv:flag")
    attn.OUT_SC1 = True
    attn.IN_SC1 = True
    attn.WAIT_IN = wait_qkv
    a(f"s_setprio {ENV('APRIO', '1')}")
    attn.attn_body(a, 2, None)
    a(f"s_lshl_b32 s50, s{attn.S_QB}, 3")
    signal(a, S_WS, 50, 8, S_W, attn.TMP, WS_FLAG + 256 * C_ATT)
    pstamp(a, "attn:sig")
    pflush(a, 2, S_W, S_WS, attn.TMP, 0)
    a("s_branch k_done")
    a.label("k_ffn")
    if ENV("NOF"):
        a("s_branch k_done")
    preset(a); pstamp(a, "entry")
    a("s_sub_u32 s3, s2, 256")
    a(f"s_or_b32 s50, s3, s{S_W}")
    a("s_cmp_lg_u32 s50, 0")
    a("s_cbranch_scc1 k_noinit")
    a("s_waitcnt lgkmcnt(0)")
    init_counters(a, S_WS, jobs.S_DBG, V_T, WS_FLAG)
    a.label("k_noinit")
    a("s_lshl_b32 s52, s3, 2")
    a(f"s_add_u32 s52, s52, s{S_W}")
    if not ENV("NOPF"):
        if ENV("APF"):
            a("s_add_u32 s53, s52, 1024")
            prefetch1(a, KA_AX, 2048 * 1024, 53, 2048, 140, 141, 54, 60)
            prefetch1(a, KA_WQKV, 512 * 3072, 53, 2048, 142, 141, 54, 60)
        elif not ENV("NOPF1"):
            prefetch1(a, KA_WQKV, 512 * 3072, 52, 1024, 142, 141, 54, 60)
            prefetch1(a, KA_AX, 2048 * 1024, 52, 1024, 140, 141, 54, 60)
        a("s_waitcnt vmcnt(0)")
        pstamp(a, "pf1")
        if ENV("TOUCH"):
            jobs.qkv_touch(a, 3)
        prefetch1(a, KA_WG, 512 * 2752, 52, 1024, 140, 141, 54, 60)
        prefetch1(a, KA_WU, 512 * 2752, 52, 1024, 142, 141, 54, 60)
        prefetch1(a, KA_WD, 1376 * 1024, 52, 1024, 143, 141, 54, 60)
        prefetch1(a, KA_WO, 512 * 1024, 52, 1024, 144, 141, 54, 60)
    wait_init(a, jobs.S_DBG, S_W, V_T, S_T)
    if not ENV("NOHOLD"):
        jobs.decode_qkv(a, 3)
        a(f"s_lshl_b32 s50, s{S_CB}, 4")
        a(f"s_and_b32 s51, s{S_RB}, 7")
        a(f"s_add_u32 s50, s50, s51")
        a(f"s_add_u32 s50, s50, 8")
        wait_count(a, S_WS, 50, int(ENV("HOLDN", "32")), S_W, V_T, S_T, WS_FLAG + 256 * C_QKV)
        pstamp(a, "hold")
    a("s_setprio 3")
    jobs.g_job(a, 3, sc1=True, epi_prio=2, loop_prio=ENV('FPRIO', '0'))
    a(f"s_setprio {ENV('FPRIO', '0')}")
    a(f"s_lshl_b32 s50, s{S_RB}, 2")
    signal(a, S_WS, 50, 4, S_W, V_T, WS_FLAG + 256 * C_G)
    pstamp(a, "sig")

    def wait_g(a):
        a(f"s_lshr_b32 s50, s{S_RB}, 1")
        a(f"s_lshl_b32 s50, s50, 2")
        a(f"s_and_b32 s51, s{S_CB}, 3")
        a(f"s_add_u32 s50, s50, s51")
        wait_count(a, S_WS, 50, 16, S_W, V_T, S_T, WS_FLAG + 256 * C_G)
    splitk.d_job(a, 3, a_sc1=True, wait=wait_g)

    def wait_attn(a):
        a(f"s_lshr_b32 s50, s{S_RB}, 1")
        a(f"s_lshl_b32 s50, s50, 2")
        a(f"s_and_b32 s51, s{S_CB}, 3")
        a(f"s_add_u32 s50, s50, s51")
        wait_count(a, S_WS, 50, 32, S_W, V_T, S_T, WS_FLAG + 256 * C_ATT)
    splitk.wo_job(a, 3, wait=wait_attn, a_sc1=True)
    pflush(a, 2, S_W, S_WS, V_T, 0)
    a.label("k_done")
    a("s_endpgm")
    a.raw('.section .rodata,"a"')
    a.raw(".p2align 6")
    a.raw(kernel_desc(f"{NAME}_kernel", 232))
    return a.text()


if __name__ == "__main__":
    out = sys.argv[1] if len(sys.argv) > 1 else f"cdna_kernels/{NAME}.s"
    open(out, "w").write(build())
    print("wrote", out, os.path.getsize(out), "bytes")
```

```python
from asmlib import *
from layout import *
from gemm import *
from sync import *
import struct

def f2u(x):
    return struct.unpack("<I", struct.pack("<f", x))[0]


S_DBG = 48


def common_entry(a):
    a(f"s_load_dwordx2 s[{S_WS}:{S_WS+1}], s[0:1], {KA_WS}")
    a(f"s_load_dwordx2 s[{S_DBG}:{S_DBG+1}], s[0:1], {KA_DBG}")
    a(f"v_lshrrev_b32 v{V_T}, 6, v0")
    a("v_and_b32 v0, 63, v0")
    a(f"v_readfirstlane_b32 s{S_W}, v{V_T}")


def decode_rb_cb(a, idreg):
    a(f"s_and_b32 s{S_RB}, s{idreg}, 3")
    a(f"s_lshl_b32 s{S_RB}, s{S_RB}, 2")
    a(f"s_bfe_u32 s{S_T}, s{idreg}, 0x20003")
    a(f"s_add_u32 s{S_RB}, s{S_RB}, s{S_T}")
    a(f"s_bfe_u32 s{S_CB}, s{idreg}, 0x10002")
    a(f"s_lshl_b32 s{S_CB}, s{S_CB}, 3")
    a(f"s_lshr_b32 s{S_T}, s{idreg}, 5")
    a(f"s_add_u32 s{S_CB}, s{S_CB}, s{S_T}")


def srd_from(a, dst, lo, hi, size, add=0):
    if add > 0:
        a(f"s_add_u32 s{dst}, s{lo}, {add}")
        a(f"s_addc_u32 s{dst+1}, s{hi}, 0")
    elif add < 0:
        a(f"s_sub_u32 s{dst}, s{lo}, {-add}")
        a(f"s_subb_u32 s{dst+1}, s{hi}, 0")
    else:
        a(f"s_mov_b32 s{dst}, s{lo}")
        a(f"s_mov_b32 s{dst+1}, s{hi}")
    a(f"s_and_b32 s{dst+1}, s{dst+1}, 0xffff")
    a(f"s_mov_b32 s{dst+2}, {size}")
    a(f"s_mov_b32 s{dst+3}, 0x20000")


def store_pk8(a, src, tmp, scale_sreg=None):
    if scale_sreg is not None:
        for r in range(8):
            a(f"v_mul_f32 v{src+r}, s{scale_sreg}, v{src+r}")
    for r in range(4):
        a(f"v_cvt_pk_bf16_f32 v{tmp+r}, v{src+2*r}, v{src+2*r+1}")


def touch_x(a, vdst):
    a(f"s_and_b32 s{S_T}, s{S_CB}, 7")
    a(f"s_lshl_b32 s{S_T}, s{S_T}, 4")
    a(f"s_lshl_b32 s{S_T+1}, s{S_W}, 2")
    a(f"s_add_u32 s{S_T}, s{S_T}, s{S_T+1}")
    a(f"s_lshl_b32 s{S_T}, s{S_T}, 10")
    a(f"s_add_u32 s{S_T}, s{S_T}, s{S_SOA}")
    a(f"v_lshrrev_b32 v{V_T}, 3, v0")
    a(f"v_lshlrev_b32 v{V_T}, 10, v{V_T}")
    a(f"v_and_b32 v{V_T+1}, 7, v0")
    a(f"v_lshlrev_b32 v{V_T+1}, 7, v{V_T+1}")
    a(f"v_add_u32 v{V_T}, v{V_T}, v{V_T+1}")
    a(f"s_mov_b32 exec_hi, 0")
    a(f"buffer_load_dword v{vdst}, v{V_T}, s[{SRD_A}:{SRD_A+3}], s{S_T} offen")
    a(f"s_mov_b32 exec_hi, -1")


def decode_qkv(a, idreg):
    a(f"s_and_b32 s{S_RB}, s{idreg}, 3")
    a(f"s_lshl_b32 s{S_RB}, s{S_RB}, 3")
    a(f"s_bfe_u32 s{S_T}, s{idreg}, 0x30003")
    a(f"s_add_u32 s{S_RB}, s{S_RB}, s{S_T}")
    a(f"s_bfe_u32 s{S_CB}, s{idreg}, 0x10002")
    a(f"s_lshl_b32 s{S_CB}, s{S_CB}, 2")
    a(f"s_lshr_b32 s{S_T}, s{idreg}, 6")
    a(f"s_add_u32 s{S_CB}, s{S_CB}, s{S_T}")


def qkv_job(a, idreg, pre=None, post_loop=None, sc1=False):
    import gemm2 as g2
    SC = ' sc1' if sc1 else ''
    FA2, FW2, ACC = 16, 32, 80
    V_RW2, V_RW2H, RAH = 12 + 4 - 4 + 128, 141, 142
    V_RW2 = 140
    j = g2.J2()
    j.name, j.NS, j.RA, j.RW, j.nA, j.nW = "qkv", 16, 3, 4, 2, 3
    ASLOT, WSLOT, WBASE = 8192, 12288, 3 * 8192
    P_X, P_W, P_GW = S_P0, S_P0 + 2, S_P0 + 4
    a(f"s_load_dwordx2 s[{P_X}:{P_X+1}], s[0:1], {KA_AX}")
    a(f"s_load_dwordx2 s[{P_W}:{P_W+1}], s[0:1], {KA_WQKV}")
    a(f"s_load_dwordx2 s[{P_GW}:{P_GW+1}], s[0:1], {KA_GW}")
    decode_qkv(a, idreg)
    T0, T1, T2 = V_T, V_T + 1, V_T + 2
    a(f"s_lshl_b32 s{S_T}, s{S_W}, 14")
    g2.a_dma_lane(a, g2.V_OA, 0)
    a(f"v_add_u32 v{g2.V_OA}, s{S_T}, v{g2.V_OA}")
    g2.a_dma_lane(a, g2.V_OA + 1, 1)
    a(f"v_add_u32 v{g2.V_OA+1}, s{S_T}, v{g2.V_OA+1}")
    a(f"v_add_u32 v{g2.V_OA+1}, {8 * 1024 - 1024}, v{g2.V_OA+1}")
    a(f"s_lshl_b32 s{S_LDA}, s{S_W}, 11")
    a(f"v_lshrrev_b32 v{T0}, 3, v0")
    a(f"v_mul_u32_u24 v{T0}, 3072, v{T0}")
    a(f"v_bfe_u32 v{T1}, v0, 4, 1")
    a(f"v_lshlrev_b32 v{T1}, 2, v{T1}")
    a(f"v_and_b32 v{T2}, 7, v0")
    a(f"v_xor_b32 v{T1}, v{T1}, v{T2}")
    a(f"v_lshlrev_b32 v{T1}, 4, v{T1}")
    a(f"s_mul_i32 s{S_T}, s{S_W}, {8 * 3072}")
    a(f"s_lshl_b32 s{S_T+1}, s{S_CB}, 7")
    a(f"s_add_u32 s{S_T}, s{S_T}, s{S_T+1}")
    a(f"v_add3_u32 v{g2.V_OW}, v{T0}, v{T1}, s{S_T}")
    a(f"s_mul_i32 s{S_LDW}, s{S_W}, 3072")
    a(f"s_and_b32 s{S_T}, s{S_W}, 1")
    a(f"s_lshl_b32 s{S_T}, s{S_T}, 12")
    g2.a_read_setup(a, S_T, RAH)
    a(f"v_lshrrev_b32 v{T0}, 5, v0")
    a(f"v_mul_u32_u24 v{T0}, 3072, v{T0}")
    a(f"v_bfe_u32 v{T1}, v0, 2, 2")
    a(f"v_lshlrev_b32 v{T1}, 7, v{T1}")
    a(f"v_add_u32 v{T0}, v{T0}, v{T1}")
    a(f"s_lshr_b32 s{S_T}, s{S_W}, 1")
    a(f"v_bfe_u32 v{T1}, v0, 3, 1")
    a(f"v_xor_b32 v{T1}, s{S_T}, v{T1}")
    a(f"v_lshlrev_b32 v{T1}, 6, v{T1}")
    a(f"v_add_u32 v{T0}, v{T0}, v{T1}")
    a(f"v_bfe_u32 v{T1}, v0, 4, 1")
    a(f"v_lshlrev_b32 v{T1}, 5, v{T1}")
    a(f"v_and_b32 v{T2}, 3, v0")
    a(f"v_lshlrev_b32 v{T2}, 3, v{T2}")
    a(f"v_add3_u32 v{V_RW2}, v{T0}, v{T1}, v{T2}")
    a(f"v_add_u32 v{V_RW2H}, {HI}, v{V_RW2}")
    a(f"s_lshl_b32 s{S_SOA}, s{S_RB}, 16")
    a(f"s_mov_b32 s{S_SOW}, 0")
    a("s_waitcnt lgkmcnt(0)")
    srd_from(a, SRD_A, P_X, P_X + 1, 2048 * 1024)
    srd_from(a, SRD_W, P_W, P_W + 1, 512 * 3072)
    GX, GWR = 128, 136
    a(f"s_lshl_b32 s{S_T}, s{S_RB}, 6")
    a(f"s_lshl_b32 s{S_T+1}, s{S_CB}, 3")
    a(f"s_add_u32 s{S_T}, s{S_T}, s{S_T+1}")
    a(f"s_lshl_b32 s{S_T+1}, s{S_W}, 1")
    a(f"s_add_u32 s{S_T+7}, s{S_T}, s{S_T+1}")
    if pre:
        pre(a)
    a(f"s_lshl_b32 s{S_T+3}, s{S_T+7}, 10")
    a(f"v_lshlrev_b32 v{V_T}, 4, v0")
    a(f"v_add_u32 v{V_T+1}, s{S_T+3}, v{V_T}")
    a(f"global_load_dwordx4 v[{GX}:{GX+3}], v{V_T+1}, s[{P_X}:{P_X+1}]")
    a(f"global_load_dwordx4 v[{GX+4}:{GX+7}], v{V_T+1}, s[{P_X}:{P_X+1}] offset:1024")
    a(f"global_load_dwordx4 v[{GWR}:{GWR+3}], v{V_T}, s[{P_GW}:{P_GW+1}]")

    def dmaA(a, S):
        a(f"s_add_u32 m0, s{S_LDA}, {(S % j.RA) * ASLOT}")
        a("s_nop 0")
        a(f"buffer_load_dwordx4 v{g2.V_OA}, s[{SRD_A}:{SRD_A+3}], s{S_SOA} offen lds")
        a(f"buffer_load_dwordx4 v{g2.V_OA+1}, s[{SRD_A}:{SRD_A+3}], s{S_SOA} offen offset:1024 lds")
        a(f"s_add_u32 s{S_SOA}, s{S_SOA}, 128")

    def dmaW(a, s_):
        a(f"s_add_u32 m0, s{S_LDW}, {WBASE + (s_ % j.RW) * WSLOT}")
        a("s_nop 0")
        for t in range(3):
            off = f" offset:{1024 * t}" if t else ""
            a(f"buffer_load_dwordx4 v{g2.V_OW}, s[{SRD_W}:{SRD_W+3}], s{S_SOW} offen{off} lds")
        a(f"s_add_u32 s{S_SOW}, s{S_SOW}, {32 * 3072}")

    def reads(st):
        b = st & 1
        asl = ((st >> 1) % j.RA) * ASLOT
        wsl = WBASE + (st % j.RW) * WSLOT
        out = []
        for s_ in range(2):
            k = 2 * (st & 1) + s_
            out.append(g2.ds_rd("ds_read_b128", FA2 + (2 * b + s_) * 4, 4, g2.V_RA + k, RAH + k, asl))
            for t in range(3):
                d = FW2 + ((2 * b + s_) * 3 + t) * 4
                for half in range(2):
                    out.append(g2.ds_rd("ds_read_b64_tr_b16", d + 2 * half, 2, V_RW2, V_RW2H, wsl + s_ * 6144 + half * 512 + t * 1024))
        return out

    def mfmas(st):
        b = st & 1
        out = []
        for s_ in range(2):
            f = FA2 + (2 * b + s_) * 4
            for t in range(3):
                w = FW2 + ((2 * b + s_) * 3 + t) * 4
                out.append(g2.mfma(ACC + 16 * t, w, f) if t < 2 else g2.mfma(ACC + 16 * t, f, w))
        return out

    def after_prologue(a):
        for r in range(48):
            a(f"v_mov_b32 v{ACC + r}, 0")
    j.dmaA, j.dmaW, j.reads, j.mfmas, j.after_prologue = dmaA, dmaW, reads, mfmas, after_prologue
    g2.engine(a, j)
    pstamp(a, 'qkv:loopend')
    if post_loop:
        post_loop(a)
    G0, G1 = 146, 147
    a(f"v_mov_b32 v{G0}, 0")
    a(f"v_mov_b32 v{G1}, 0")
    for r in range(4):
        a(f"v_dot2_f32_bf16 v{G0}, v{GX+r}, v{GWR+r}, v{G0}")
        a(f"v_dot2_f32_bf16 v{G1}, v{GX+4+r}, v{GWR+r}, v{G1}")
    for rot in (8, 4, 2, 1):
        a("s_nop 1")
        a(f"v_add_f32_dpp v{G0}, v{G0}, v{G0} row_ror:{rot} row_mask:0xf bank_mask:0xf")
        a(f"v_add_f32_dpp v{G1}, v{G1}, v{G1} row_ror:{rot} row_mask:0xf bank_mask:0xf")
    a("s_nop 1")
    for gi, g in enumerate((G0, G1)):
        for q in range(4):
            a(f"v_readlane_b32 s{S_T+q}, v{g}, {16*q}")
        a("s_nop 1")
        a(f"v_mov_b32 v{V_T+gi}, s{S_T}")
        a(f"v_add_f32 v{V_T+gi}, s{S_T+1}, v{V_T+gi}")
        a(f"v_add_f32 v{V_T+gi}, s{S_T+2}, v{V_T+gi}")
        a(f"v_add_f32 v{V_T+gi}, s{S_T+3}, v{V_T+gi}")
    a(f"v_cmp_eq_u32 vcc, 1, v0")
    a("s_nop 1")
    a(f"v_cndmask_b32 v{V_T}, v{V_T}, v{V_T+1}, vcc")
    a(f"v_mul_f32 v{V_T}, {f2u(-1.4426950408889634)}, v{V_T}")
    a(f"v_exp_f32 v{V_T}, v{V_T}")
    a("s_nop 0")
    a(f"v_add_f32 v{V_T}, 1.0, v{V_T}")
    a(f"v_rcp_f32 v{V_T}, v{V_T}")
    a(f"v_lshlrev_b32 v{V_T+1}, 2, v0")
    a(f"s_lshl_b32 s{S_T}, s{S_T+7}, 2")
    a(f"s_add_u32 s{S_T}, s{S_T}, {WS_G}")
    a(f"v_add_u32 v{V_T+1}, s{S_T}, v{V_T+1}")
    a(f"v_cmp_gt_u32 vcc, 2, v0")
    a(f"s_and_saveexec_b64 s[{S_T+2}:{S_T+3}], vcc")
    a(f"global_store_dword v{V_T+1}, v{V_T}, s[{S_WS}:{S_WS+1}]{SC}")
    a(f"s_mov_b64 exec, s[{S_T+2}:{S_T+3}]")
    TMP = 148
    a(f"s_lshl_b32 s{S_T}, s{S_RB}, 1")
    a(f"s_and_b32 s{S_T+1}, s{S_W}, 1")
    a(f"s_add_u32 s{S_T}, s{S_T}, s{S_T+1}")
    a(f"s_lshl_b32 s{S_T+2}, s{S_CB}, 1")
    a(f"s_lshr_b32 s{S_T+1}, s{S_W}, 1")
    a(f"s_add_u32 s{S_T+2}, s{S_T+2}, s{S_T+1}")
    a(f"s_lshl_b32 s{S_T+2}, s{S_T+2}, 17")
    a(f"s_lshl_b32 s{S_T+1}, s{S_T}, 10")
    a(f"s_add_u32 s{S_T+1}, s{S_T+1}, s{S_T+2}")
    a(f"v_lshlrev_b32 v{V_T}, 4, v0")
    a(f"v_add_u32 v{V_T}, s{S_T+1}, v{V_T}")
    a(f"v_add_u32 v{V_T+1}, 0x10000, v{V_T}")
    a(f"s_mov_b32 s{S_T+3}, {f2u(QSCALE)}")
    a(f"s_add_u32 s{S_P0+6}, s{S_WS}, {WS_KF}")
    a(f"s_addc_u32 s{S_P0+7}, s{S_WS+1}, 0")
    store_pk8(a, ACC, TMP, S_T + 3)
    a(f"global_store_dwordx4 v{V_T}, v[{TMP}:{TMP+3}], s[{S_WS}:{S_WS+1}]{SC}")
    store_pk8(a, ACC + 8, TMP + 4, S_T + 3)
    a(f"global_store_dwordx4 v{V_T+1}, v[{TMP+4}:{TMP+7}], s[{S_WS}:{S_WS+1}]{SC}")
    store_pk8(a, ACC + 16, TMP + 8)
    a(f"global_store_dwordx4 v{V_T}, v[{TMP+8}:{TMP+11}], s[{S_P0+6}:{S_P0+7}]{SC}")
    store_pk8(a, ACC + 24, TMP + 12)
    a(f"global_store_dwordx4 v{V_T+1}, v[{TMP+12}:{TMP+15}], s[{S_P0+6}:{S_P0+7}]{SC}")
    a(f"s_lshl_b32 s{S_T+1}, s{S_T}, 10")
    a(f"s_add_u32 s{S_T+1}, s{S_T+1}, s{S_T+2}")
    a(f"s_add_u32 s{S_T+1}, s{S_T+1}, {WS_VF}")
    a(f"v_bfe_u32 v{V_T+2}, v0, 4, 1")
    a(f"v_lshlrev_b32 v{V_T+2}, 16, v{V_T+2}")
    a(f"v_lshrrev_b32 v{V_T+3}, 5, v0")
    a(f"v_lshlrev_b32 v{V_T+3}, 8, v{V_T+3}")
    a(f"v_add3_u32 v{V_T+2}, v{V_T+2}, v{V_T+3}, s{S_T+1}")
    a(f"v_and_b32 v{V_T+3}, 15, v0")
    a(f"v_lshlrev_b32 v{V_T+3}, 4, v{V_T+3}")
    a(f"v_add_u32 v{V_T+2}, v{V_T+2}, v{V_T+3}")
    VT = TMP + 16
    for p in range(2):
        src = ACC + 32 + 8 * p
        t = VT + 4 * p
        for r in range(4):
            a(f"v_cvt_pk_bf16_f32 v{t+r}, v{src+2*r}, v{src+2*r+1}")
        a("s_nop 1")
        a(f"v_permlane32_swap_b32 v{t}, v{t+2}")
        a(f"v_permlane32_swap_b32 v{t+1}, v{t+3}")
        off = f" offset:512" if p else ""
        a(f"global_store_dwordx4 v{V_T+2}, v[{t}:{t+3}], s[{S_WS}:{S_WS+1}]{off}{SC}")
    pstamp(a, 'qkv:end')
    return j


GA = -2.0 * 1.4426950408889634 * 0.7978845608028654
GB = GA * 0.044715

def g_job(a, idreg, done=None, sc1=False, epi_prio=None, loop_prio=None):
    import gemm2 as g2
    FA2, FW2, ACC = 16, 32, 128
    V_RW2, V_RW2H, RAH = 224, 225, 226
    j = g2.J2()
    import os
    j.name, j.NS, j.RA, j.RW, j.nA, j.nW = "g", 16, 2, int(os.environ.get("GRW", "4")), 4, 3
    ASLOT, WSLOT, WBASE = 16384, 12288, 2 * 16384
    P_X, P_WG, P_WU = S_P0, S_P0 + 2, S_P0 + 4
    a(f"s_load_dwordx2 s[{P_X}:{P_X+1}], s[0:1], {KA_AX}")
    a(f"s_load_dwordx2 s[{P_WG}:{P_WG+1}], s[0:1], {KA_WG}")
    a(f"s_load_dwordx2 s[{P_WU}:{P_WU+1}], s[0:1], {KA_WU}")
    decode_rb_cb(a, idreg)
    T0, T1, T2 = V_T, V_T + 1, V_T + 2
    a(f"s_lshl_b32 s{S_T}, s{S_W}, 15")
    g2.a_dma_lane(a, g2.V_OA, 0)
    g2.a_dma_lane(a, g2.V_OA + 1, 1)
    a(f"v_add_u32 v{g2.V_OA}, s{S_T}, v{g2.V_OA}")
    a(f"v_add_u32 v{g2.V_OA+1}, s{S_T}, v{g2.V_OA+1}")
    a(f"v_add_u32 v{g2.V_OA+2}, {2 * 7168}, v{g2.V_OA}")
    a(f"v_add_u32 v{g2.V_OA+3}, {3 * 7168}, v{g2.V_OA+1}")
    a(f"v_add_u32 v{g2.V_OA+1}, 7168, v{g2.V_OA+1}")
    a(f"s_lshl_b32 s{S_LDA}, s{S_W}, 12")
    g2.a_read_setup(a, S_LDA, RAH)
    a(f"v_lshrrev_b32 v{T0}, 2, v0")
    a(f"v_mul_u32_u24 v{T0}, 2752, v{T0}")
    a(f"v_and_b32 v{T1}, 3, v0")
    a(f"v_lshlrev_b32 v{T1}, 4, v{T1}")
    a(f"v_add_u32 v{T0}, v{T0}, v{T1}")
    TILE0 = S_P0 + 6
    a(f"s_mul_i32 s{TILE0}, s{S_CB}, 3")
    a(f"s_lshl_b32 s{S_T}, s{S_CB}, 1")
    a(f"s_add_u32 s{S_T}, s{S_T}, 11")
    a(f"s_cmp_lt_u32 s{S_CB}, 11")
    a(f"s_cselect_b32 s{TILE0}, s{TILE0}, s{S_T}")
    a(f"s_cselect_b32 s{S_NP}, 3, 2")
    BIAS = 2048
    a(f"s_and_b32 s{S_T}, s{S_W}, 1")
    a(f"s_lshr_b32 s{S_T+1}, s{S_W}, 1")
    a(f"s_mul_i32 s{S_LDW}, s{S_T+1}, 6144")
    a(f"s_mul_i32 s{S_T+2}, s{S_T}, 3072")
    a(f"s_add_u32 s{S_LDW}, s{S_LDW}, s{S_T+2}")
    ex = lambda jx: 16 * (jx & 1) * 2752 + (jx >> 1) * 64
    a(f"s_cmp_eq_u32 s{S_T}, 0")
    for q in range(3):
        e0 = ex(q) - 1024 * q + BIAS
        e1 = ex(3 + q) - 1024 * q + BIAS
        a(f"s_mov_b32 s{S_T+3}, {e1}")
        a(f"s_cselect_b32 s{S_T+3}, {e0}, s{S_T+3}")
        a(f"v_add_u32 v{g2.V_OW+q}, s{S_T+3}, v{T0}")
    a(f"v_lshrrev_b32 v{T0}, 5, v0")
    a(f"v_lshlrev_b32 v{T0}, 3, v{T0}")
    a(f"v_bfe_u32 v{T1}, v0, 2, 2")
    a(f"v_add_u32 v{T0}, v{T0}, v{T1}")
    a(f"v_lshlrev_b32 v{T0}, 6, v{T0}")
    a(f"v_bfe_u32 v{T1}, v0, 4, 1")
    a(f"v_lshlrev_b32 v{T1}, 5, v{T1}")
    a(f"v_and_b32 v{T2}, 3, v0")
    a(f"v_lshlrev_b32 v{T2}, 3, v{T2}")
    a(f"v_add3_u32 v{V_RW2}, v{T0}, v{T1}, v{T2}")
    a(f"v_add_u32 v{V_RW2H}, {HI}, v{V_RW2}")
    a(f"s_lshl_b32 s{S_SOA}, s{S_RB}, 17")
    a(f"s_lshl_b32 s{S_SOW}, s{TILE0}, 6")
    a("s_waitcnt lgkmcnt(0)")
    srd_from(a, SRD_A, P_X, P_X + 1, 2048 * 1024)
    a(f"s_cmp_eq_u32 s{S_T+1}, 0")
    a(f"s_cselect_b32 s{S_T+4}, s{P_WG}, s{P_WU}")
    a(f"s_cselect_b32 s{S_T+5}, s{P_WG+1}, s{P_WU+1}")
    srd_from(a, SRD_W, S_T + 4, S_T + 5, 512 * 2752 + BIAS, add=-BIAS)

    def dmaA(a, S):
        a(f"s_add_u32 m0, s{S_LDA}, {(S % j.RA) * ASLOT}")
        a("s_nop 0")
        for i in range(4):
            off = f" offset:{1024 * i}" if i else ""
            a(f"buffer_load_dwordx4 v{g2.V_OA+i}, s[{SRD_A}:{SRD_A+3}], s{S_SOA} offen{off} lds")
        a(f"s_add_u32 s{S_SOA}, s{S_SOA}, 128")

    def dmaW(a, s_):
        a(f"s_add_u32 m0, s{S_LDW}, {WBASE + (s_ % j.RW) * WSLOT}")
        a("s_nop 0")
        for q in range(3):
            off = f" offset:{1024 * q}" if q else ""
            a(f"buffer_load_dwordx4 v{g2.V_OW+q}, s[{SRD_W}:{SRD_W+3}], s{S_SOW} offen{off} lds")
        a(f"s_add_u32 s{S_SOW}, s{S_SOW}, {32 * 2752}")

    cols = {'c': list(range(6))}

    def reads(st):
        b = st & 1
        asl = ((st >> 1) % j.RA) * ASLOT
        wsl = WBASE + (st % j.RW) * WSLOT
        out = []
        for s_ in range(2):
            k = 2 * (st & 1) + s_
            out.append(g2.ds_rd("ds_read_b128", FA2 + (2 * b + s_) * 4, 4, g2.V_RA + k, RAH + k, asl))
            for c in cols['c']:
                d = FW2 + ((2 * b + s_) * 6 + c) * 4
                for half in range(2):
                    out.append(g2.ds_rd("ds_read_b64_tr_b16", d + 2 * half, 2, V_RW2, V_RW2H, wsl + c * 2048 + (16 * s_ + 4 * half) * 64))
        return out

    def mfmas(st):
        b = st & 1
        out = []
        for s_ in range(2):
            f = FA2 + (2 * b + s_) * 4
            for c in cols['c']:
                out.append(g2.mfma(ACC + 16 * c, FW2 + ((2 * b + s_) * 6 + c) * 4, f))
        return out

    def after_prologue(a):
        for r in range(96):
            a(f"v_mov_b32 v{ACC + r}, 0")
        if loop_prio is not None:
            a(f"s_setprio {loop_prio}")
    j.dmaA, j.dmaW, j.reads, j.mfmas, j.after_prologue = dmaA, dmaW, reads, mfmas, after_prologue
    import os
    a(f"s_cmp_lt_u32 s{S_NP}, {0 if os.environ.get('NONP2') else 3}")
    a("s_cbranch_scc1 g_np2")
    g2.engine(a, j)
    a("s_branch g_loop_done")
    a.label("g_np2")
    cols['c'] = [0, 1, 3, 4]
    save = (getattr(a, 'pidx', 0), list(getattr(a, 'pnames', [])))
    if PROF:
        a.pidx -= 1; a.pnames.pop()
    g2.engine(a, j)
    a.label("g_loop_done")
    pstamp(a, 'g:loopend')
    if epi_prio is not None:
        a(f"s_setprio {epi_prio}")
    a("s_nop 7")
    a("s_nop 7")
    T = 32
    a(f"s_mov_b32 s{S_T}, {f2u(GA)}")
    a(f"s_mov_b32 s{S_T+1}, {f2u(GB)}")
    a(f"s_mul_i32 s{S_T+2}, s{S_RB}, 43")
    a(f"s_add_u32 s{S_T+2}, s{S_T+2}, s{TILE0}")
    a(f"s_lshl_b32 s{S_T+2}, s{S_T+2}, 13")
    a(f"s_lshl_b32 s{S_T+3}, s{S_W}, 11")
    a(f"s_add_u32 s{S_T+2}, s{S_T+2}, s{S_T+3}")
    a(f"s_add_u32 s{S_T+2}, s{S_T+2}, {WS_H}")
    a(f"v_lshlrev_b32 v{V_T}, 4, v0")
    a(f"v_add_u32 v{V_T}, s{S_T+2}, v{V_T}")
    a(f"s_mov_b32 s{S_T+4}, {f2u(GB)}")
    a(f"s_mov_b32 s{S_T+5}, {f2u(GB)}")
    a(f"v_mov_b32 v{T+8}, s{S_T}")
    a(f"v_mov_b32 v{T+9}, s{S_T}")
    a(f"v_mov_b32 v{T+10}, 1.0")
    a(f"v_mov_b32 v{T+11}, 1.0")
    for p in range(3):
        if p == 2:
            a(f"s_cmp_lt_u32 s{S_NP}, 3")
            a(f"s_cbranch_scc1 g_skip")
        G, U = ACC + 16 * p, ACC + 16 * (3 + p)
        for r0 in range(0, 16, 8):
            pr = range(r0, r0 + 8, 2)
            t = lambda r: T + (r - r0)
            for r in pr:
                a(f"v_pk_mul_f32 v[{t(r)}:{t(r)+1}], v[{G+r}:{G+r+1}], v[{G+r}:{G+r+1}]")
            for r in pr:
                a(f"v_pk_fma_f32 v[{t(r)}:{t(r)+1}], v[{t(r)}:{t(r)+1}], s[{S_T+4}:{S_T+5}], v[{T+8}:{T+9}]")
            for r in pr:
                a(f"v_pk_mul_f32 v[{t(r)}:{t(r)+1}], v[{t(r)}:{t(r)+1}], v[{G+r}:{G+r+1}]")
            for r in range(r0, r0 + 8):
                a(f"v_exp_f32 v{t(r)}, v{t(r)}")
            for r in pr:
                a(f"v_pk_mul_f32 v[{U+r}:{U+r+1}], v[{U+r}:{U+r+1}], v[{G+r}:{G+r+1}]")
            for r in pr:
                a(f"v_pk_add_f32 v[{t(r)}:{t(r)+1}], v[{t(r)}:{t(r)+1}], v[{T+10}:{T+11}]")
            for r in range(r0, r0 + 8):
                a(f"v_rcp_f32 v{t(r)}, v{t(r)}")
            a("s_nop 0")
            for r in pr:
                a(f"v_pk_mul_f32 v[{U+r}:{U+r+1}], v[{U+r}:{U+r+1}], v[{t(r)}:{t(r)+1}]")
        for r in range(8):
            a(f"v_cvt_pk_bf16_f32 v{G+r}, v{U+2*r}, v{U+2*r+1}")
        if p:
            a(f"v_add_u32 v{V_T}, 8192, v{V_T}")
        sc = " sc1" if sc1 else ""
        a(f"global_store_dwordx4 v{V_T}, v[{G}:{G+3}], s[{S_WS}:{S_WS+1}]{sc}")
        a(f"global_store_dwordx4 v{V_T}, v[{G+4}:{G+7}], s[{S_WS}:{S_WS+1}] offset:1024{sc}")
    a.label("g_skip")
    pstamp(a, 'g:end')
    return j


def nc1_setup(a, j, idreg, kaW, ws_off, nst):
    P_W = S_P0
    a(f"s_load_dwordx2 s[{P_W}:{P_W+1}], s[0:1], {kaW}")
    decode_rb_cb(a, idreg)
    lane_setup(a, j)
    a(f"s_and_b32 s{S_T}, s{S_W}, 1")
    a(f"s_lshl_b32 s{S_LDW}, s{S_T}, 10")
    a(f"s_lshl_b32 s{S_T}, s{S_T}, 14")
    a(f"s_lshl_b32 s{S_T+1}, s{S_CB}, 6")
    a(f"s_add_u32 s{S_T}, s{S_T}, s{S_T+1}")
    a(f"v_add_u32 v{V_OW}, s{S_T}, v{V_OW}")
    a(f"s_mov_b32 s{S_SOA}, 0")
    a(f"s_mov_b32 s{S_SOW}, 0")
    a(f"s_mul_i32 s{S_T+2}, s{S_RB}, {nst * 8192}")
    a(f"s_add_u32 s{S_T+2}, s{S_T+2}, {ws_off}")
    a("s_waitcnt lgkmcnt(0)")
    a(f"s_add_u32 s{S_T+4}, s{S_WS}, s{S_T+2}")
    a(f"s_addc_u32 s{S_T+5}, s{S_WS+1}, 0")
    srd_from(a, SRD_A, S_T + 4, S_T + 5, nst * 8192)
    srd_from(a, SRD_W, P_W, P_W + 1, nst * 32 * 1024)


def bp_addr(a, dst):
    a(f"s_lshl_b32 s{S_T}, s{S_RB}, 4")
    a(f"s_add_u32 s{S_T}, s{S_T}, s{S_CB}")
    a(f"s_lshl_b32 s{S_T}, s{S_T}, 2")
    a(f"s_add_u32 s{S_T}, s{S_T}, s{S_W}")
    a(f"s_lshl_b32 s{S_T}, s{S_T}, 12")
    a(f"s_add_u32 s{S_T}, s{S_T}, {WS_BP}")
    a(f"v_lshlrev_b32 v{dst}, 4, v0")
    a(f"v_add_u32 v{dst}, s{S_T}, v{dst}")


def g_load(a, dst, tmp):
    a(f"s_lshl_b32 s{S_T}, s{S_RB}, 7")
    a(f"s_lshl_b32 s{S_T+1}, s{S_W}, 5")
    a(f"s_add_u32 s{S_T}, s{S_T}, s{S_T+1}")
    a(f"s_lshl_b32 s{S_T}, s{S_T}, 2")
    a(f"s_add_u32 s{S_T}, s{S_T}, {WS_G}")
    a(f"v_and_b32 v{tmp}, 31, v0")
    a(f"v_lshlrev_b32 v{tmp}, 2, v{tmp}")
    a(f"v_add_u32 v{tmp}, s{S_T}, v{tmp}")
    a(f"global_load_dword v{dst}, v{tmp}, s[{S_WS}:{S_WS+1}]")


def d_job(a, idreg, done, ring=8, lds0=0, a_sc1=False):
    ACC = 40
    j = Job("d", NC=1, nstages=43, ring=ring, nW=1, a_rs=64, a_ss=8192, w_ws=1024,
            chunk='frag', wrow='perm', orient=['FM'], acc=ACC, lds0=lds0, a_sc1=a_sc1)
    nc1_setup(a, j, idreg, KA_WD, WS_H, 43)
    GV = 60
    g_load(a, GV, V_T)
    prologue_dma(a, j)
    zero_acc(a, j)
    main_loop(a, j)
    pstamp(a, j.name + ':loopend')
    a("s_nop 7")
    a("s_nop 7")
    a(f"v_sub_f32 v{GV}, 1.0, v{GV}")
    bp_addr(a, V_T)
    for r in range(16):
        a(f"v_mul_f32 v{ACC+r}, v{ACC+r}, v{GV}")
    for q in range(4):
        off = f" offset:{1024*q}" if q else ""
        a(f"global_store_dwordx4 v{V_T}, v[{ACC+4*q}:{ACC+4*q+3}], s[{S_WS}:{S_WS+1}]{off}")
    pstamp(a, j.name + ':end')
    if done:
        a(f"s_branch {done}")
    return j


def wo_job(a, idreg, done, ring=8, lds0=0):
    ACC = 40
    j = Job("wo", NC=1, nstages=16, ring=ring, nW=1, a_rs=64, a_ss=8192, w_ws=1024,
            chunk='frag', wrow='perm', orient=['FM'], acc=ACC, lds0=lds0)
    P_OUT = S_P0 + 2
    a(f"s_load_dwordx2 s[{P_OUT}:{P_OUT+1}], s[0:1], {KA_OUT}")
    nc1_setup(a, j, idreg, KA_WO, WS_OB, 16)
    GV, BPV = 60, 64
    g_load(a, GV, V_T)
    bp_addr(a, V_T + 1)
    for q in range(4):
        off = f" offset:{1024*q}" if q else ""
        a(f"global_load_dwordx4 v[{BPV+4*q}:{BPV+4*q+3}], v{V_T+1}, s[{S_WS}:{S_WS+1}]{off}")
    prologue_dma(a, j)
    zero_acc(a, j)
    main_loop(a, j)
    pstamp(a, j.name + ':loopend')
    a("s_nop 7")
    a("s_nop 7")
    for r in range(16):
        a(f"v_fma_f32 v{ACC+r}, v{ACC+r}, v{GV}, v{BPV+r}")
    a(f"s_lshl_b32 s{S_T}, s{S_RB}, 7")
    a(f"s_lshl_b32 s{S_T+1}, s{S_W}, 5")
    a(f"s_add_u32 s{S_T}, s{S_T}, s{S_T+1}")
    a(f"s_lshl_b32 s{S_T}, s{S_T}, 10")
    a(f"s_lshl_b32 s{S_T+1}, s{S_CB}, 6")
    a(f"s_add_u32 s{S_T}, s{S_T}, s{S_T+1}")
    a(f"v_and_b32 v{V_T}, 31, v0")
    a(f"v_lshlrev_b32 v{V_T}, 10, v{V_T}")
    a(f"v_lshrrev_b32 v{V_T+1}, 5, v0")
    a(f"v_lshlrev_b32 v{V_T+1}, 4, v{V_T+1}")
    a(f"v_add3_u32 v{V_T}, v{V_T}, v{V_T+1}, s{S_T}")
    T = 80
    for p in range(2):
        t = T + 4 * p
        for r in range(4):
            a(f"v_cvt_pk_bf16_f32 v{t+r}, v{ACC+8*p+2*r}, v{ACC+8*p+2*r+1}")
        a("s_nop 1")
        a(f"v_permlane32_swap_b32 v{t}, v{t+2}")
        a(f"v_permlane32_swap_b32 v{t+1}, v{t+3}")
        off = " offset:32" if p else ""
        a(f"global_store_dwordx4 v{V_T}, v[{t}:{t+3}], s[{P_OUT}:{P_OUT+1}]{off}")
    pstamp(a, j.name + ':end')
    if done:
        a(f"s_branch {done}")
    return j


def qkv_touch(a, idreg):
    P_X, P_W = S_P0, S_P0 + 2
    a(f"s_load_dwordx2 s[{P_X}:{P_X+1}], s[0:1], {KA_AX}")
    a(f"s_load_dwordx2 s[{P_W}:{P_W+1}], s[0:1], {KA_WQKV}")
    decode_qkv(a, idreg)
    a("s_waitcnt lgkmcnt(0)")
    srd_from(a, SRD_A, P_X, P_X + 1, 2048 * 1024)
    srd_from(a, SRD_W, P_W, P_W + 1, 512 * 3072)
    a(f"s_lshl_b32 s{S_T}, s{S_RB}, 6")
    a(f"s_and_b32 s{S_T+1}, s{S_CB}, 3")
    a(f"s_lshl_b32 s{S_T+1}, s{S_T+1}, 4")
    a(f"s_add_u32 s{S_T}, s{S_T}, s{S_T+1}")
    a(f"s_lshl_b32 s{S_T+1}, s{S_W}, 2")
    a(f"s_add_u32 s{S_T}, s{S_T}, s{S_T+1}")
    a(f"s_lshl_b32 s{S_T}, s{S_T}, 10")
    a(f"v_lshrrev_b32 v{V_T}, 3, v0")
    a(f"v_lshlrev_b32 v{V_T}, 10, v{V_T}")
    a(f"v_and_b32 v{V_T+1}, 7, v0")
    a(f"v_lshlrev_b32 v{V_T+1}, 7, v{V_T+1}")
    a(f"v_add_u32 v{V_T}, v{V_T}, v{V_T+1}")
    a(f"s_mov_b32 exec_hi, 0")
    a(f"buffer_load_dword v242, v{V_T}, s[{SRD_A}:{SRD_A+3}], s{S_T} offen")
    a(f"s_mov_b32 exec_hi, -1")
    a(f"s_and_b32 s{S_T}, s{S_RB}, 7")
    a(f"s_lshl_b32 s{S_T}, s{S_T}, 6")
    a(f"s_lshl_b32 s{S_T+1}, s{S_W}, 4")
    a(f"s_add_u32 s{S_T}, s{S_T}, s{S_T+1}")
    a(f"s_mul_i32 s{S_T}, s{S_T}, 3072")
    a(f"s_lshl_b32 s{S_T+1}, s{S_CB}, 7")
    a(f"s_add_u32 s{S_T}, s{S_T}, s{S_T+1}")
    a(f"v_and_b32 v{V_T}, 15, v0")
    a(f"v_mul_u32_u24 v{V_T}, 3072, v{V_T}")
    a(f"v_lshrrev_b32 v{V_T+1}, 4, v0")
    a(f"v_lshlrev_b32 v{V_T+1}, 10, v{V_T+1}")
    a(f"v_add_u32 v{V_T}, v{V_T}, v{V_T+1}")
    a(f"s_mov_b32 exec_hi, 0xffff")
    a(f"buffer_load_dword v243, v{V_T}, s[{SRD_W}:{SRD_W+3}], s{S_T} offen")
    a(f"s_mov_b32 exec_hi, -1")
```

```python
from asmlib import *
from layout import *
from gemm import S_W, S_RB, S_CB, SRD_A, SRD_W, S_SOA, S_SOW, S_LDW, S_T, S_P0, S_WS, V_T

V_OA = 1
V_OW = 2
V_RW = 6
AR = 16
BIAS = 4096


class VmQ:
    def __init__(self):
        self.q = []
    def add(self, tag, n):
        self.q.append((tag, n))
    def wait_for(self, tags):
        last = max(i for i, (t, n) in enumerate(self.q) if t in tags)
        return sum(n for t, n in self.q[last + 1:])


class SK:
    def __init__(self, name, nst, ring, acc, wf, a_sc1):
        self.name, self.NS, self.R, self.acc, self.wf = name, nst, ring, acc, wf
        self.sc = " sc1" if a_sc1 else ""


def decode64(a, idreg):
    a(f"s_and_b32 s{S_RB}, s{idreg}, 3")
    a(f"s_lshl_b32 s{S_RB}, s{S_RB}, 3")
    a(f"s_bfe_u32 s{S_T}, s{idreg}, 0x30003")
    a(f"s_add_u32 s{S_RB}, s{S_RB}, s{S_T}")
    a(f"s_bfe_u32 s{S_CB}, s{idreg}, 0x10002")
    a(f"s_lshl_b32 s{S_CB}, s{S_CB}, 2")
    a(f"s_lshr_b32 s{S_T}, s{idreg}, 6")
    a(f"s_add_u32 s{S_CB}, s{S_CB}, s{S_T}")


def setup_lanes(a):
    T0, T1, T2 = V_T, V_T + 1, V_T + 2
    a(f"v_lshlrev_b32 v{V_OA}, 4, v0")
    a(f"v_lshrrev_b32 v{T0}, 2, v0")
    a(f"v_lshlrev_b32 v{T0}, 10, v{T0}")
    a(f"v_and_b32 v{T1}, 3, v0")
    a(f"v_lshlrev_b32 v{T1}, 4, v{T1}")
    a(f"s_lshl_b32 s{S_T}, s{S_CB}, 7")
    a(f"v_add3_u32 v{T0}, v{T0}, v{T1}, s{S_T}")
    for q in range(4):
        i, c = q >> 1, q & 1
        a(f"v_add_u32 v{V_OW+q}, {16 * 1024 * i + 64 * c - 1024 * q + BIAS}, v{T0}")
    a(f"s_mul_i32 s{S_LDW}, s{S_W}, 20480")
    a(f"v_lshrrev_b32 v{T0}, 5, v0")
    a(f"v_lshlrev_b32 v{T0}, 2, v{T0}")
    a(f"v_bfe_u32 v{T1}, v0, 2, 2")
    a(f"v_add_u32 v{T0}, v{T0}, v{T1}")
    a(f"v_lshlrev_b32 v{T0}, 6, v{T0}")
    a(f"v_bfe_u32 v{T1}, v0, 4, 1")
    a(f"v_lshlrev_b32 v{T1}, 5, v{T1}")
    a(f"v_and_b32 v{T2}, 3, v0")
    a(f"v_lshlrev_b32 v{T2}, 3, v{T2}")
    a(f"v_add3_u32 v{T0}, v{T0}, v{T1}, v{T2}")
    a(f"v_add_u32 v{V_RW}, s{S_LDW}, v{T0}")


def setup_srds(a, j, w_lo, a_ws_off, ntiles, per_wave):
    a(f"s_lshr_b32 s{S_T}, s{S_RB}, 1")
    a(f"s_mul_i32 s{S_T}, s{S_T}, {ntiles * 8192}")
    a(f"s_add_u32 s{S_T}, s{S_T}, {a_ws_off}")
    a(f"s_add_u32 s{SRD_A}, s{S_WS}, s{S_T}")
    a(f"s_addc_u32 s{SRD_A+1}, s{S_WS+1}, 0")
    a(f"s_and_b32 s{SRD_A+1}, s{SRD_A+1}, 0xffff")
    a(f"s_mov_b32 s{SRD_A+2}, {ntiles * 8192}")
    a(f"s_mov_b32 s{SRD_A+3}, 0x20000")
    a(f"s_mul_i32 s{S_SOA}, s{S_W}, {per_wave * 8192}")
    a(f"s_and_b32 s{S_T}, s{S_RB}, 1")
    a(f"s_lshl_b32 s{S_T}, s{S_T}, 12")
    a(f"s_add_u32 s{S_SOA}, s{S_SOA}, s{S_T}")
    a(f"s_sub_u32 s{SRD_W}, s{w_lo}, {BIAS}")
    a(f"s_subb_u32 s{SRD_W+1}, s{w_lo+1}, 0")
    a(f"s_and_b32 s{SRD_W+1}, s{SRD_W+1}, 0xffff")
    a(f"s_mov_b32 s{SRD_W+2}, {ntiles * 32 * 1024 + BIAS}")
    a(f"s_mov_b32 s{SRD_W+3}, 0x20000")
    a(f"s_mul_i32 s{S_SOW}, s{S_W}, {per_wave * 32 * 1024}")


def w_loads(a, j, st):
    a(f"s_add_u32 m0, s{S_LDW}, {(st % j.R) * 4096}")
    a("s_nop 0")
    for q in range(4):
        off = f" offset:{1024 * q}" if q else ""
        a(f"buffer_load_dwordx4 v{V_OW+q}, s[{SRD_W}:{SRD_W+3}], s{S_SOW} offen{off} lds")
    a(f"s_add_u32 s{S_SOW}, s{S_SOW}, 32768")


def a_loads(a, j, st):
    r = AR + (st % j.R) * 16
    for q in range(4):
        off = f" offset:{1024 * q}" if q else ""
        a(f"buffer_load_dwordx4 v[{r+4*q}:{r+4*q+3}], v{V_OA}, s[{SRD_A}:{SRD_A+3}], s{S_SOA} offen{off}{j.sc}")
    a(f"s_add_u32 s{S_SOA}, s{S_SOA}, 8192")


def w_reads(j, st):
    b = st & 1
    out = []
    for s in range(2):
        for c in range(2):
            d = j.wf + b * 16 + (2 * s + c) * 4
            for half in range(2):
                off = (st % j.R) * 4096 + s * 2048 + c * 1024 + half * 512
                out.append(f"ds_read_b64_tr_b16 v[{d+2*half}:{d+2*half+1}], v{V_RW} offset:{off}")
    return out


def mfmas(j, st):
    b = st & 1
    r = AR + (st % j.R) * 16
    out = []
    for s in range(2):
        for aa in range(2):
            for c in range(2):
                acc = j.acc + (2 * aa + c) * 16
                w = j.wf + b * 16 + (2 * s + c) * 4
                f = r + (2 * aa + s) * 4
                out.append(f"v_mfma_f32_32x32x16_bf16 v[{acc}:{acc+15}], v[{w}:{w+3}], v[{f}:{f+3}], v[{acc}:{acc+15}]")
    return out


def loop(a, j, q):
    R, NS = j.R, j.NS
    issued = min(R, NS)
    a(f"s_waitcnt vmcnt({q.wait_for([('W', 0), ('A', 0)])})")
    pstamp(a, j.name + ":first")
    for r in w_reads(j, 0):
        a(r)
    for st in range(NS):
        ms = mfmas(j, st)
        if st + 1 < NS:
            a(f"s_waitcnt vmcnt({q.wait_for([('W', st + 1), ('A', st + 1)])}) lgkmcnt(0)")
            rs = w_reads(j, st + 1)
            for i, m in enumerate(ms):
                a(m)
                a(rs[i])
            if issued < NS:
                w_loads(a, j, issued); q.add(('W', issued), 4)
                a_loads(a, j, issued); q.add(('A', issued), 4)
                issued += 1
        else:
            a("s_waitcnt lgkmcnt(0)")
            for m in ms:
                a(m)


def reduce(a, j, tmp):
    a("s_nop 7")
    a("s_nop 7")
    a("s_barrier")
    a(f"s_lshl_b32 s{S_T}, s{S_W}, 12")
    a(f"v_add_u32 v{V_T}, s{S_T}, v{V_OA}")
    for t in range(4):
        for q in range(4):
            a(f"ds_write_b128 v{V_T}, v[{j.acc+16*t+4*q}:{j.acc+16*t+4*q+3}] offset:{t * 16384 + q * 1024}")
    a("s_waitcnt lgkmcnt(0)")
    a("s_barrier")
    a(f"s_lshl_b32 s{S_T}, s{S_W}, 14")
    a(f"v_add_u32 v{V_T}, s{S_T}, v{V_OA}")
    for w in range(4):
        for q in range(4):
            a(f"ds_read_b128 v[{j.acc+16*w+4*q}:{j.acc+16*w+4*q+3}], v{V_T} offset:{w * 4096 + q * 1024}")
    a("s_waitcnt lgkmcnt(0)")
    for r in range(16):
        a(f"v_add_f32 v{tmp+r}, v{j.acc+r}, v{j.acc+16+r}")
        a(f"v_add_f32 v{j.acc+32+r}, v{j.acc+32+r}, v{j.acc+48+r}")
    for r in range(16):
        a(f"v_add_f32 v{tmp+r}, v{tmp+r}, v{j.acc+32+r}")


def zero_acc(a, j):
    for r in range(64):
        a(f"v_mov_b32 v{j.acc+r}, 0")


ACC, WF, RES_D, RES_W = 96, 160, 232, 208


def g_load(a, dst, tmp):
    a(f"s_lshl_b32 s{S_T}, s{S_RB}, 6")
    a(f"s_lshr_b32 s{S_T+1}, s{S_W}, 1")
    a(f"s_lshl_b32 s{S_T+1}, s{S_T+1}, 5")
    a(f"s_add_u32 s{S_T}, s{S_T}, s{S_T+1}")
    a(f"s_lshl_b32 s{S_T}, s{S_T}, 2")
    a(f"s_add_u32 s{S_T}, s{S_T}, {WS_G}")
    a(f"v_and_b32 v{tmp}, 31, v0")
    a(f"v_lshlrev_b32 v{tmp}, 2, v{tmp}")
    a(f"v_add_u32 v{tmp}, s{S_T}, v{tmp}")
    a(f"global_load_dword v{dst}, v{tmp}, s[{S_WS}:{S_WS+1}] sc1")


def d_job(a, idreg, a_sc1=True, wait=None, post_prio=None):
    j = SK("d", 11, 5, ACC, WF, a_sc1)
    P_W = S_P0
    a(f"s_load_dwordx2 s[{P_W}:{P_W+1}], s[0:1], {KA_WD}")
    decode64(a, idreg)
    setup_lanes(a)
    a("s_waitcnt lgkmcnt(0)")
    setup_srds(a, j, P_W, WS_H, 43, 11)
    q = VmQ()
    for st in range(j.R):
        w_loads(a, j, st); q.add(('W', st), 4)
    zero_acc(a, j)
    if wait:
        wait(a)
        pstamp(a, "flag")
    for st in range(j.R):
        a_loads(a, j, st); q.add(('A', st), 4)
    loop(a, j, q)
    pstamp(a, "d:loopend")
    if post_prio is not None:
        a(f"s_setprio {post_prio}")
    reduce(a, j, RES_D)
    pstamp(a, "d:end")
    return j


def bp_addr(a, dst):
    a(f"s_lshl_b32 s{S_T}, s{S_RB}, 3")
    a(f"s_add_u32 s{S_T}, s{S_T}, s{S_CB}")
    a(f"s_lshl_b32 s{S_T}, s{S_T}, 2")
    a(f"s_add_u32 s{S_T}, s{S_T}, s{S_W}")
    a(f"s_lshl_b32 s{S_T}, s{S_T}, 12")
    a(f"s_add_u32 s{S_T}, s{S_T}, {WS_BP}")
    a(f"v_lshlrev_b32 v{dst}, 4, v0")
    a(f"v_add_u32 v{dst}, s{S_T}, v{dst}")


def store_bp(a):
    bp_addr(a, V_T)
    for q in range(4):
        off = f" offset:{1024*q}" if q else ""
        a(f"global_store_dwordx4 v{V_T}, v[{RES_D+4*q}:{RES_D+4*q+3}], s[{S_WS}:{S_WS+1}]{off}")


def load_bp(a):
    bp_addr(a, V_T)
    for q in range(4):
        off = f" offset:{1024*q}" if q else ""
        a(f"global_load_dwordx4 v[{RES_D+4*q}:{RES_D+4*q+3}], v{V_T}, s[{S_WS}:{S_WS+1}]{off}")


def wo_job(a, idreg, wait=None, pre=None, a_sc1=False):
    j = SK("wo", 4, 5, ACC, WF, a_sc1)
    P_W, P_OUT = S_P0, S_P0 + 2
    GV = 8
    a(f"s_load_dwordx2 s[{P_W}:{P_W+1}], s[0:1], {KA_WO}")
    a(f"s_load_dwordx2 s[{P_OUT}:{P_OUT+1}], s[0:1], {KA_OUT}")
    decode64(a, idreg)
    setup_lanes(a)
    a("s_waitcnt lgkmcnt(0)")
    g_load(a, GV, V_T)
    if pre:
        pre(a)
    setup_srds(a, j, P_W, WS_OB, 16, 4)
    a("s_barrier")
    for st in range(4):
        w_loads(a, j, st)
    zero_acc(a, j)
    a("s_waitcnt vmcnt(0)")
    if wait:
        wait(a)
        pstamp(a, "wo:flag")
    for st in range(4):
        a_loads(a, j, st)
    for r in w_reads(j, 0):
        a(r)
    for st in range(4):
        a(f"s_waitcnt vmcnt({4 * (3 - st)}) lgkmcnt(0)")
        ms = mfmas(j, st)
        if st + 1 < 4:
            rs = w_reads(j, st + 1)
            for i, m in enumerate(ms):
                a(m)
                a(rs[i])
        else:
            for m in ms:
                a(m)
    pstamp(a, "wo:loopend")
    reduce(a, j, RES_W)
    for r in range(16):
        a(f"v_sub_f32 v{RES_W+r}, v{RES_W+r}, v{RES_D+r}")
    for r in range(16):
        a(f"v_fma_f32 v{RES_W+r}, v{RES_W+r}, v{GV}, v{RES_D+r}")
    a(f"s_lshl_b32 s{S_T}, s{S_RB}, 6")
    a(f"s_lshr_b32 s{S_T+1}, s{S_W}, 1")
    a(f"s_lshl_b32 s{S_T+1}, s{S_T+1}, 5")
    a(f"s_add_u32 s{S_T}, s{S_T}, s{S_T+1}")
    a(f"s_lshl_b32 s{S_T}, s{S_T}, 10")
    a(f"s_lshl_b32 s{S_T+1}, s{S_CB}, 7")
    a(f"s_add_u32 s{S_T}, s{S_T}, s{S_T+1}")
    a(f"s_and_b32 s{S_T+1}, s{S_W}, 1")
    a(f"s_lshl_b32 s{S_T+1}, s{S_T+1}, 6")
    a(f"s_add_u32 s{S_T}, s{S_T}, s{S_T+1}")
    a(f"v_and_b32 v{V_T}, 31, v0")
    a(f"v_lshlrev_b32 v{V_T}, 10, v{V_T}")
    a(f"v_lshrrev_b32 v{V_T+1}, 5, v0")
    a(f"v_lshlrev_b32 v{V_T+1}, 4, v{V_T+1}")
    a(f"v_add3_u32 v{V_T}, v{V_T}, v{V_T+1}, s{S_T}")
    T = ACC
    for p in range(2):
        t = T + 4 * p
        for r in range(4):
            a(f"v_cvt_pk_bf16_f32 v{t+r}, v{RES_W+8*p+2*r}, v{RES_W+8*p+2*r+1}")
        a("s_nop 1")
        a(f"v_permlane32_swap_b32 v{t}, v{t+2}")
        a(f"v_permlane32_swap_b32 v{t+1}, v{t+3}")
        off = " offset:32" if p else ""
        a(f"global_store_dwordx4 v{V_T}, v[{t}:{t+3}], s[{P_OUT}:{P_OUT+1}]{off}")
    pstamp(a, "wo:end")
    return j


def wo2_job(a, idreg, wait=None):
    WR, AF, AC, GV = 16, 144, 208, 8
    P_W, P_OUT = S_P0, S_P0 + 2
    j = SK("wo", 16, 16, 0, 0, True)
    a(f"s_load_dwordx2 s[{P_W}:{P_W+1}], s[0:1], {KA_WO}")
    a(f"s_load_dwordx2 s[{P_OUT}:{P_OUT+1}], s[0:1], {KA_OUT}")
    decode64(a, idreg)
    setup_lanes(a)
    T0, T1, T2 = V_T, V_T + 1, V_T + 2
    a(f"v_subrev_u32 v{V_RW}, s{S_LDW}, v{V_RW}")
    a(f"s_and_b32 s{S_T}, s{S_W}, 1")
    a(f"s_lshl_b32 s{S_T}, s{S_T}, 10")
    a(f"v_add_u32 v{V_RW}, s{S_T}, v{V_RW}")
    a(f"v_add_u32 v{V_RW+1}, {32768}, v{V_RW}")
    a("s_waitcnt lgkmcnt(0)")
    g_load(a, GV, V_T)
    setup_srds(a, j, P_W, WS_OB, 16, 0)
    a(f"s_lshl_b32 s{S_SOW}, s{S_W}, 17")
    a(f"s_lshl_b32 s{S_LDW}, s{S_W}, 14")
    a("s_barrier")
    for st in range(4):
        a(f"s_add_u32 m0, s{S_LDW}, {st * 4096}")
        a("s_nop 0")
        for q in range(4):
            off = f" offset:{1024 * q}" if q else ""
            a(f"buffer_load_dwordx4 v{V_OW+q}, s[{SRD_W}:{SRD_W+3}], s{S_SOW} offen{off} lds")
        a(f"s_add_u32 s{S_SOW}, s{S_SOW}, 32768")
    for r in range(16):
        a(f"v_mov_b32 v{AC+r}, 0")
    a("s_waitcnt vmcnt(0)")
    a("s_barrier")
    for st in range(16):
        for s_ in range(2):
            d = WR + (2 * st + s_) * 4
            for half in range(2):
                off = st * 4096 + s_ * 2048 + half * 512
                reg = V_RW
                if off >= 32768:
                    reg, off = V_RW + 1, off - 32768
                a(f"ds_read_b64_tr_b16 v[{d+2*half}:{d+2*half+1}], v{reg} offset:{off}")
        if st % 3 == 2:
            a("s_waitcnt lgkmcnt(4)")
    a("s_waitcnt lgkmcnt(0)")
    pstamp(a, "wo:wready")
    a(f"s_lshl_b32 s{S_T}, s{S_W}, 13")
    a(f"s_add_u32 s{S_SOA}, s{S_SOA}, s{S_T}")
    a(f"s_lshl_b32 s{S_LDW}, s{S_W}, 12")
    a(f"s_lshr_b32 s{S_T}, s{S_W}, 1")
    a(f"s_lshl_b32 s{S_T}, s{S_T}, 11")
    a(f"v_add_u32 v{V_OW}, s{S_T}, v{V_OA}")
    a(f"v_add_u32 v{V_OW+1}, 32768, v{V_OW}")
    if wait:
        wait(a)
        pstamp(a, "wo:flag")
    for g in range(4):
        a(f"s_add_u32 m0, s{S_LDW}, {g * 16384}")
        a("s_nop 0")
        for q in range(4):
            off = f" offset:{1024 * q}" if q else ""
            a(f"buffer_load_dwordx4 v{V_OA}, s[{SRD_A}:{SRD_A+3}], s{S_SOA} offen{off} sc1 lds")
        a(f"s_add_u32 s{S_SOA}, s{S_SOA}, 32768")

    def reads(g):
        out = []
        for k in range(4):
            st = 4 * g + k
            for s_ in range(2):
                d = AF + (g & 1) * 32 + (2 * k + s_) * 4
                off = st * 4096 + s_ * 1024
                reg = V_OW
                if off >= 32768:
                    reg, off = V_OW + 1, off - 32768
                out.append(f"ds_read_b128 v[{d}:{d+3}], v{reg} offset:{off}")
        return out

    def mf(g):
        out = []
        for k in range(4):
            st = 4 * g + k
            for s_ in range(2):
                w = WR + (2 * st + s_) * 4
                f = AF + (g & 1) * 32 + (2 * k + s_) * 4
                out.append(f"v_mfma_f32_32x32x16_bf16 v[{AC}:{AC+15}], v[{w}:{w+3}], v[{f}:{f+3}], v[{AC}:{AC+15}]")
        return out
    a("s_waitcnt vmcnt(12)")
    a("s_barrier")
    for r in reads(0):
        a(r)
    for g in range(4):
        if g + 1 < 4:
            a(f"s_waitcnt vmcnt({4 * (2 - g)})")
            a("s_barrier")
            for r in reads(g + 1):
                a(r)
            a("s_waitcnt lgkmcnt(8)")
        else:
            a("s_waitcnt lgkmcnt(0)")
        for m in mf(g):
            a(m)
    pstamp(a, "wo:loopend")
    a(f"s_lshl_b32 s{S_T}, s{S_RB}, 6")
    a(f"s_lshr_b32 s{S_T+1}, s{S_W}, 1")
    a(f"s_lshl_b32 s{S_T+1}, s{S_T+1}, 5")
    a(f"s_add_u32 s{S_T}, s{S_T}, s{S_T+1}")
    a(f"s_lshl_b32 s{S_T}, s{S_T}, 10")
    a(f"s_lshl_b32 s{S_T+1}, s{S_CB}, 7")
    a(f"s_add_u32 s{S_T}, s{S_T}, s{S_T+1}")
    a(f"s_and_b32 s{S_T+1}, s{S_W}, 1")
    a(f"s_lshl_b32 s{S_T+1}, s{S_T+1}, 6")
    a(f"s_add_u32 s{S_T}, s{S_T}, s{S_T+1}")
    a(f"v_and_b32 v{V_T}, 31, v0")
    a(f"v_lshlrev_b32 v{V_T}, 10, v{V_T}")
    a(f"v_lshrrev_b32 v{V_T+1}, 5, v0")
    a(f"v_lshlrev_b32 v{V_T+1}, 4, v{V_T+1}")
    a(f"v_add3_u32 v{V_T}, v{V_T}, v{V_T+1}, s{S_T}")
    a("s_nop 7")
    for r in range(16):
        a(f"v_sub_f32 v{AC+r}, v{AC+r}, v{RES_D+r}")
    for r in range(16):
        a(f"v_fma_f32 v{AC+r}, v{AC+r}, v{GV}, v{RES_D+r}")
    T = AF
    for p in range(2):
        t = T + 4 * p
        for r in range(4):
            a(f"v_cvt_pk_bf16_f32 v{t+r}, v{AC+8*p+2*r}, v{AC+8*p+2*r+1}")
        a("s_nop 1")
        a(f"v_permlane32_swap_b32 v{t}, v{t+2}")
        a(f"v_permlane32_swap_b32 v{t+1}, v{t+3}")
        off = " offset:32" if p else ""
        a(f"global_store_dwordx4 v{V_T}, v[{t}:{t+3}], s[{P_OUT}:{P_OUT+1}]{off}")
    pstamp(a, "wo:end")
```

```python
from asmlib import *
from layout import *


def prefetch(a, gw, bufs, per_group_shift, vdst, vtmp, stmp, srd):
    nper = 1 << per_group_shift
    P = stmp
    a(f"s_lshr_b32 s{stmp+4}, s{gw}, {per_group_shift}")
    lab = a.uid("pf")
    for g, (ka, size) in enumerate(bufs):
        blocks = (size + 255) // 256
        lanes = (blocks + nper - 1) // nper
        assert lanes <= 64
        nxt = f"{lab}_{g+1}"
        a(f"s_cmp_lg_u32 s{stmp+4}, {g}")
        a(f"s_cbranch_scc1 {nxt}")
        a(f"s_load_dwordx2 s[{P}:{P+1}], s[0:1], {ka}")
        a(f"s_and_b32 s{stmp+5}, s{gw}, {nper - 1}")
        a(f"s_mul_i32 s{stmp+5}, s{stmp+5}, {lanes * 256}")
        a(f"v_lshlrev_b32 v{vtmp}, 8, v0")
        a(f"v_add_u32 v{vtmp}, s{stmp+5}, v{vtmp}")
        a(f"v_cmp_gt_u32 vcc, {lanes}, v0")
        a(f"s_waitcnt lgkmcnt(0)")
        a(f"s_mov_b32 s{srd}, s{P}")
        a(f"s_and_b32 s{srd+1}, s{P+1}, 0xffff")
        a(f"s_mov_b32 s{srd+2}, {size}")
        a(f"s_mov_b32 s{srd+3}, 0x20000")
        a(f"s_and_saveexec_b64 s[{stmp+2}:{stmp+3}], vcc")
        a(f"buffer_load_dword v{vdst}, v{vtmp}, s[{srd}:{srd+3}], 0 offen")
        a(f"s_mov_b64 exec, s[{stmp+2}:{stmp+3}]")
        a(f"s_branch {lab}_end")
        a.label(nxt)
    a.label(f"{lab}_end")


def signal(a, base_lo, first_sreg, nlanes, wave_sreg, vt, const_off=0, drain=True):
    lab = a.uid("sig")
    if drain:
        a("s_waitcnt vmcnt(0)")
        a("s_barrier")
    a(f"s_cmp_lg_u32 s{wave_sreg}, 0")
    a(f"s_cbranch_scc1 {lab}")
    a(f"v_add_u32 v{vt}, s{first_sreg}, v0")
    a(f"v_lshlrev_b32 v{vt}, 8, v{vt}")
    a(f"v_add_u32 v{vt}, {const_off}, v{vt}")
    a(f"v_mov_b32 v{vt+1}, 1")
    a(f"s_mov_b64 exec, {(1 << nlanes) - 1}")
    a(f"global_atomic_add v{vt}, v{vt+1}, s[{base_lo}:{base_lo+1}] sc1")
    a("s_mov_b64 exec, -1")
    a.label(lab)


def wait_count(a, base_lo, word_sreg, target, wave_sreg, vt, stmp, const_off=0, limit=100000, sleep=4):
    lab = a.uid("wt")
    a(f"s_cmp_lg_u32 s{wave_sreg}, 0")
    a(f"s_cbranch_scc1 {lab}_done")
    a(f"v_mov_b32 v{vt}, s{word_sreg}")
    a(f"v_lshlrev_b32 v{vt}, 8, v{vt}")
    a(f"v_add_u32 v{vt}, {const_off}, v{vt}")
    a(f"s_mov_b32 s{stmp+1}, {limit}")
    a("s_mov_b64 exec, 1")
    a.label(f"{lab}_poll")
    a(f"global_load_dword v{vt+1}, v{vt}, s[{base_lo}:{base_lo+1}] sc1")
    a("s_waitcnt vmcnt(0)")
    a(f"v_readfirstlane_b32 s{stmp}, v{vt+1}")
    a(f"s_sub_u32 s{stmp+1}, s{stmp+1}, 1")
    a(f"s_cmp_eq_u32 s{stmp+1}, 0")
    a(f"s_cbranch_scc1 {lab}_out")
    a(f"s_cmp_ge_u32 s{stmp}, {target}")
    a(f"s_cbranch_scc1 {lab}_out")
    a(f"s_sleep {sleep}")
    a(f"s_branch {lab}_poll")
    a.label(f"{lab}_out")
    a("s_mov_b64 exec, -1")
    a.label(f"{lab}_done")
    a("s_barrier")


def clear_flags(a, ws_lo, wg_sreg, wave_sreg, vt, off, n):
    lab = a.uid("clr")
    a(f"s_or_b32 s{wg_sreg+90-wg_sreg}, s{wg_sreg}, s{wave_sreg}")
    a(f"s_cmp_lg_u32 s90, 0")
    a(f"s_cbranch_scc1 {lab}")
    a(f"v_lshlrev_b32 v{vt}, 8, v0")
    a(f"v_add_u32 v{vt}, {off}, v{vt}")
    a(f"v_mov_b32 v{vt+1}, 0")
    a(f"global_store_dword v{vt}, v{vt+1}, s[{ws_lo}:{ws_lo+1}]")
    a.label(lab)


def init_counters(a, ws_lo, dbg_lo, vt, off):
    a(f"v_lshlrev_b32 v{vt}, 8, v0")
    a(f"v_add_u32 v{vt}, {off}, v{vt}")
    a(f"v_mov_b32 v{vt+1}, 0")
    for i in range(8):
        a(f"global_store_dword v{vt}, v{vt+1}, s[{ws_lo}:{ws_lo+1}] sc1")
        if i < 7:
            a(f"v_add_u32 v{vt}, 16384, v{vt}")
    a("s_waitcnt vmcnt(0)")
    a(f"v_mov_b32 v{vt}, 0")
    a(f"v_mov_b32 v{vt+1}, 1")
    a("s_mov_b64 exec, 1")
    a(f"global_store_dword v{vt}, v{vt+1}, s[{dbg_lo}:{dbg_lo+1}] sc1")
    a("s_mov_b64 exec, -1")


def init_probe(a, dbg_lo, vdst):
    a(f"v_mov_b32 v{vdst}, 0")
    a("s_nop 0")
    a(f"global_load_dword v{vdst}, v{vdst}, s[{dbg_lo}:{dbg_lo+1}] sc1")


def wait_init(a, dbg_lo, wave_sreg, vt, stmp, limit=100000, probe=None):
    lab = a.uid("wi")
    a(f"s_cmp_lg_u32 s{wave_sreg}, 0")
    a(f"s_cbranch_scc1 {lab}_done")
    if probe is not None:
        a("s_waitcnt vmcnt(0)")
        a(f"v_readfirstlane_b32 s{stmp}, v{probe}")
        a(f"s_cmp_lg_u32 s{stmp}, 0")
        a(f"s_cbranch_scc1 {lab}_done")
    a(f"v_mov_b32 v{vt}, 0")
    a(f"s_mov_b32 s{stmp+1}, {limit}")
    a("s_mov_b64 exec, 1")
    a.label(f"{lab}_poll")
    a(f"global_load_dword v{vt+1}, v{vt}, s[{dbg_lo}:{dbg_lo+1}] sc1")
    a("s_waitcnt vmcnt(0)")
    a(f"v_readfirstlane_b32 s{stmp}, v{vt+1}")
    a(f"s_sub_u32 s{stmp+1}, s{stmp+1}, 1")
    a(f"s_cmp_eq_u32 s{stmp+1}, 0")
    a(f"s_cbranch_scc1 {lab}_out")
    a(f"s_cmp_lg_u32 s{stmp}, 0")
    a(f"s_cbranch_scc1 {lab}_out")
    a("s_sleep 8")
    a(f"s_branch {lab}_poll")
    a.label(f"{lab}_out")
    a("s_mov_b64 exec, -1")
    a.label(f"{lab}_done")


def prefetch1(a, ka, size, idx_sreg, nwaves, vdst, vtmp, stmp, srd, wait=True, step=128):
    blocks = (size + step - 1) // step
    lanes = (blocks + nwaves - 1) // nwaves
    assert lanes <= 64
    sh = step.bit_length() - 1
    a(f"s_load_dwordx2 s[{stmp}:{stmp+1}], s[0:1], {ka}")
    a(f"s_mul_i32 s{stmp+4}, s{idx_sreg}, {lanes * step}")
    a(f"v_lshlrev_b32 v{vtmp}, {sh}, v0")
    a(f"v_add_u32 v{vtmp}, s{stmp+4}, v{vtmp}")
    a(f"v_cmp_gt_u32 vcc, {lanes}, v0")
    a("s_waitcnt lgkmcnt(0)")
    a(f"s_mov_b32 s{srd}, s{stmp}")
    a(f"s_and_b32 s{srd+1}, s{stmp+1}, 0xffff")
    a(f"s_mov_b32 s{srd+2}, {size}")
    a(f"s_mov_b32 s{srd+3}, 0x20000")
    a(f"s_and_saveexec_b64 s[{stmp+2}:{stmp+3}], vcc")
    a(f"buffer_load_dword v{vdst}, v{vtmp}, s[{srd}:{srd+3}], 0 offen")
    a(f"s_mov_b64 exec, s[{stmp+2}:{stmp+3}]")


def wait_count_fast(a, base_lo, word_sreg, target, wave_sreg, vt, stmp, const_off=0, limit=200000):
    lab = a.uid("wf")
    a(f"s_cmp_lg_u32 s{wave_sreg}, 0")
    a(f"s_cbranch_scc1 {lab}_done")
    a(f"v_mov_b32 v{vt}, s{word_sreg}")
    a(f"v_lshlrev_b32 v{vt}, 8, v{vt}")
    a(f"v_add_u32 v{vt}, {const_off}, v{vt}")
    a(f"s_mov_b32 s{stmp+1}, {limit}")
    a("s_mov_b64 exec, 1")
    a(f"global_load_dword v{vt+1}, v{vt}, s[{base_lo}:{base_lo+1}] sc1")
    a.label(f"{lab}_poll")
    a("s_sleep 3")
    a(f"global_load_dword v{vt+2}, v{vt}, s[{base_lo}:{base_lo+1}] sc1")
    a("s_waitcnt vmcnt(1)")
    a(f"v_readfirstlane_b32 s{stmp}, v{vt+1}")
    a(f"s_cmp_ge_u32 s{stmp}, {target}")
    a(f"s_cbranch_scc1 {lab}_out")
    a("s_sleep 3")
    a(f"global_load_dword v{vt+1}, v{vt}, s[{base_lo}:{base_lo+1}] sc1")
    a("s_waitcnt vmcnt(1)")
    a(f"v_readfirstlane_b32 s{stmp}, v{vt+2}")
    a(f"s_cmp_ge_u32 s{stmp}, {target}")
    a(f"s_cbranch_scc1 {lab}_out")
    a(f"s_sub_u32 s{stmp+1}, s{stmp+1}, 1")
    a(f"s_cmp_lg_u32 s{stmp+1}, 0")
    a(f"s_cbranch_scc1 {lab}_poll")
    a.label(f"{lab}_out")
    a("s_waitcnt vmcnt(0)")
    a("s_mov_b64 exec, -1")
    a.label(f"{lab}_done")
    a("s_barrier")
```

```python
import sys, os
sys.path.insert(0, os.path.dirname(os.path.abspath(__file__)))
from asmlib import *
from layout import *
import attn, jobs, splitk
from sync import *
from gemm import S_W, S_WS, S_T, S_RB, S_CB, V_T, SRD_A

NAME = "gated_mix__mha_block__glu_gated_geglu__prompt"
HEADER = open(os.path.join(os.path.dirname(os.path.abspath(__file__)), "header.txt")).read()
ENV = os.environ.get
C_QKV, C_G, C_ATT, C_TWIN = 0, 128, 192, 256


def build():
    a = Asm()
    a.raw(HEADER.rstrip("\n"))
    LDS = 81920
    a.raw(f"; @launch grid=(512,1,1) block=(256,1,1) lds={LDS}")
    a.raw('.amdgcn_target "amdgcn-amd-amdhsa--gfx950"')
    a.raw(".text")
    kernel_header(a, f"{NAME}_kernel")
    a("s_cmp_ge_u32 s2, 512")
    a("s_cbranch_scc1 k_done")
    preset(a); pstamp(a, "entry")
    jobs.common_entry(a)
    a("s_cmp_ge_u32 s2, 256")
    a("s_cbranch_scc1 k_ffn")
    a("s_setprio 2")

    def pre_qkv(a):
        a("s_lshl_b32 s52, s2, 2")
        a(f"s_add_u32 s52, s52, s{S_W}")
        prefetch1(a, KA_AX, 2048 * 1024, 52, 2048, 176, 177, 54, 60)
        prefetch1(a, KA_WQKV, 512 * 3072, 52, 2048, 178, 177, 54, 60)
        a("s_waitcnt vmcnt(0)")
        pstamp(a, "pf1")
        init_probe(a, jobs.S_DBG, 179)

    def post_qkv(a):
        wait_init(a, jobs.S_DBG, S_W, V_T, S_T, probe=179)
        if ENV("TWIN"):
            signal(a, S_WS, 2, 1, S_W, V_T, WS_FLAG + 256 * C_TWIN, drain=False)
    def pre_qkv0(a):
        init_probe(a, jobs.S_DBG, 179)
    jobs.qkv_job(a, 2, sc1=True, pre=pre_qkv if ENV("APF") else pre_qkv0, post_loop=post_qkv)
    a(f"s_lshl_b32 s50, s{S_CB}, 4")
    signal(a, S_WS, 50, 16, S_W, V_T, WS_FLAG + 256 * C_QKV)
    pstamp(a, "qkv:sig")
    if ENV("NOF"):
        pflush(a, 2, S_W, S_WS, attn.TMP, 0)
        a("s_branch k_done")

    def wait_qkv(a):
        a(f"s_lshr_b32 s50, s{attn.S_HEAD}, 2")
        a(f"s_lshl_b32 s50, s50, 4")
        a(f"s_add_u32 s50, s50, s{attn.S_QB}")
        (wait_count_fast if ENV('FAST') else wait_count)(a, S_WS, 50, 32, S_W, attn.TMP, 60, WS_FLAG + 256 * C_QKV)
        pstamp(a, "qkv:flag")
    attn.OUT_SC1 = True
    attn.IN_SC1 = True
    attn.WAIT_IN = wait_qkv
    a(f"s_setprio {ENV('APRIO', '1')}")
    attn.attn_body(a, 2, None)
    a(f"s_lshl_b32 s50, s{attn.S_QB}, 3")
    signal(a, S_WS, 50, 8, S_W, attn.TMP, WS_FLAG + 256 * C_ATT)
    pstamp(a, "attn:sig")
    pflush(a, 2, S_W, S_WS, attn.TMP, 0)
    a("s_branch k_done")
    a.label("k_ffn")
    if ENV("NOF"):
        a("s_branch k_done")
    preset(a); pstamp(a, "entry")
    a("s_sub_u32 s3, s2, 256")
    a(f"s_or_b32 s50, s3, s{S_W}")
    a("s_cmp_lg_u32 s50, 0")
    a("s_cbranch_scc1 k_noinit")
    a("s_waitcnt lgkmcnt(0)")
    init_counters(a, S_WS, jobs.S_DBG, V_T, WS_FLAG)
    a.label("k_noinit")
    a("s_lshl_b32 s52, s3, 2")
    a(f"s_add_u32 s52, s52, s{S_W}")
    if not ENV("NOPF"):
        if ENV("APF"):
            a("s_add_u32 s53, s52, 1024")
            prefetch1(a, KA_AX, 2048 * 1024, 53, 2048, 244, 241, 54, 60)
            prefetch1(a, KA_WQKV, 512 * 3072, 53, 2048, 245, 241, 54, 60)
        elif not ENV("NOPF1"):
            prefetch1(a, KA_WQKV, 512 * 3072, 52, 1024, 245, 241, 54, 60)
            prefetch1(a, KA_AX, 2048 * 1024, 52, 1024, 244, 241, 54, 60)
        a("s_waitcnt vmcnt(0)")
        pstamp(a, "pf1")
        if ENV("TOUCH"):
            jobs.qkv_touch(a, 3)
        prefetch1(a, KA_WG, 512 * 2752, 52, 1024, 244, 241, 54, 60)
        prefetch1(a, KA_WU, 512 * 2752, 52, 1024, 245, 241, 54, 60)
        prefetch1(a, KA_WD, 1376 * 1024, 52, 1024, 246, 241, 54, 60)
        prefetch1(a, KA_WO, 512 * 1024, 52, 1024, 247, 241, 54, 60)
    wait_init(a, jobs.S_DBG, S_W, V_T, S_T)
    if ENV("HOLD"):
        jobs.decode_qkv(a, 3)
        a(f"s_lshl_b32 s50, s{S_CB}, 4")
        a(f"s_and_b32 s51, s{S_RB}, 7")
        a(f"s_add_u32 s50, s50, s51")
        a(f"s_add_u32 s50, s50, 8")
        wait_count(a, S_WS, 50, int(ENV("HOLDN", "32")), S_W, V_T, S_T, WS_FLAG + 256 * C_QKV)
        pstamp(a, "hold")
    if ENV("TWIN"):
        wait_count(a, S_WS, 3, 1, S_W, V_T, S_T, WS_FLAG + 256 * C_TWIN)
        pstamp(a, "twin")
    a("s_setprio 3")
    jobs.g_job(a, 3, sc1=True, epi_prio=2, loop_prio=ENV('FPRIO', '0'))
    a(f"s_setprio {ENV('FPRIO', '0')}")
    a(f"s_lshl_b32 s50, s{S_RB}, 2")
    signal(a, S_WS, 50, 4, S_W, V_T, WS_FLAG + 256 * C_G)
    pstamp(a, "sig")

    def wait_g(a):
        a(f"s_lshr_b32 s50, s{S_RB}, 1")
        a(f"s_lshl_b32 s50, s50, 2")
        a(f"s_and_b32 s51, s{S_CB}, 3")
        a(f"s_add_u32 s50, s50, s51")
        wait_count(a, S_WS, 50, 16, S_W, V_T, S_T, WS_FLAG + 256 * C_G)
    splitk.d_job(a, 3, a_sc1=True, wait=wait_g, post_prio=ENV('DPRIO', '2'))

    def wait_attn(a):
        a(f"s_lshr_b32 s50, s{S_RB}, 1")
        a(f"s_lshl_b32 s50, s50, 2")
        a(f"s_and_b32 s51, s{S_CB}, 3")
        a(f"s_add_u32 s50, s50, s51")
        (wait_count_fast if ENV('FAST') else wait_count)(a, S_WS, 50, 32, S_W, V_T, S_T, WS_FLAG + 256 * C_ATT)
    splitk.wo2_job(a, 3, wait=wait_attn)
    pflush(a, 2, S_W, S_WS, V_T, 0)
    a.label("k_done")
    a("s_endpgm")
    a.raw('.section .rodata,"a"')
    a.raw(".p2align 6")
    a.raw(kernel_desc(f"{NAME}_kernel", 248))
    return a.text()


if __name__ == "__main__":
    out = sys.argv[1] if len(sys.argv) > 1 else f"cdna_kernels/{NAME}.s"
    open(out, "w").write(build())
    print("wrote", out, os.path.getsize(out), "bytes")
```

```python
import sys, os
sys.path.insert(0, os.path.dirname(os.path.abspath(__file__)))
from asmlib import *
from layout import *
import attn, jobs, splitk
from sync import *
from gemm import S_W, S_WS, S_T, S_RB, S_CB, V_T, SRD_A

NAME = "gated_mix__mha_block__glu_gated_geglu__prompt"
HEADER = open(os.path.join(os.path.dirname(os.path.abspath(__file__)), "header.txt")).read()
ENV = os.environ.get
C_QKV, C_G, C_ATT, C_TWIN = 0, 128, 192, 256


def build():
    a = Asm()
    a.raw(HEADER.rstrip("\n"))
    LDS = 81920
    if ENV("ASLIST"):
        a.raw(f"; @launch kernel={NAME}_kernel grid=(512,1,1) block=(256,1,1) lds={LDS}")
    else:
        a.raw(f"; @launch grid=(512,1,1) block=(256,1,1) lds={LDS}")
    a.raw('.amdgcn_target "amdgcn-amd-amdhsa--gfx950"')
    a.raw(".text")
    kernel_header(a, f"{NAME}_kernel")
    a("s_cmp_ge_u32 s2, 512")
    a("s_cbranch_scc1 k_done")
    preset(a); pstamp(a, "entry")
    jobs.common_entry(a)
    a("s_waitcnt lgkmcnt(0)")
    a("s_cmp_ge_u32 s2, 256")
    a("s_cbranch_scc1 k_ffn")
    a("s_setprio 2")

    def pre_qkv(a):
        a("s_lshl_b32 s52, s2, 2")
        a(f"s_add_u32 s52, s52, s{S_W}")
        prefetch1(a, KA_AX, 2048 * 1024, 52, 2048, 176, 177, 54, 60)
        prefetch1(a, KA_WQKV, 512 * 3072, 52, 2048, 178, 177, 54, 60)
        a("s_waitcnt vmcnt(0)")
        pstamp(a, "pf1")
        init_probe(a, jobs.S_DBG, 179)

    def post_qkv(a):
        wait_init(a, jobs.S_DBG, S_W, V_T, S_T, probe=179)
        if ENV("TWIN"):
            signal(a, S_WS, 2, 1, S_W, V_T, WS_FLAG + 256 * C_TWIN, drain=False)
    def pre_qkv0(a):
        init_probe(a, jobs.S_DBG, 179)
    jobs.qkv_job(a, 2, sc1=True, pre=pre_qkv if ENV("APF") else pre_qkv0, post_loop=post_qkv)
    a(f"s_lshl_b32 s50, s{S_CB}, 4")
    signal(a, S_WS, 50, 16, S_W, V_T, WS_FLAG + 256 * C_QKV)
    pstamp(a, "qkv:sig")
    if ENV("NOF"):
        pflush(a, 2, S_W, S_WS, attn.TMP, 0)
        a("s_branch k_done")

    def wait_qkv(a):
        a(f"s_lshr_b32 s50, s{attn.S_HEAD}, 2")
        a(f"s_lshl_b32 s50, s50, 4")
        a(f"s_add_u32 s50, s50, s{attn.S_QB}")
        (wait_count_fast if ENV('FAST') else wait_count)(a, S_WS, 50, 32, S_W, attn.TMP, 60, WS_FLAG + 256 * C_QKV)
        pstamp(a, "qkv:flag")
    attn.OUT_SC1 = True
    attn.IN_SC1 = True
    attn.WAIT_IN = wait_qkv
    a(f"s_setprio {ENV('APRIO', '1')}")
    attn.attn_body(a, 2, None)
    a(f"s_lshl_b32 s50, s{attn.S_QB}, 3")
    signal(a, S_WS, 50, 8, S_W, attn.TMP, WS_FLAG + 256 * C_ATT)
    pstamp(a, "attn:sig")
    pflush(a, 2, S_W, S_WS, attn.TMP, 0)
    a("s_branch k_done")
    a.label("k_ffn")
    if ENV("NOF"):
        a("s_branch k_done")
    preset(a); pstamp(a, "entry")
    a("s_sub_u32 s3, s2, 256")
    a(f"s_or_b32 s50, s3, s{S_W}")
    a("s_cmp_lg_u32 s50, 0")
    a("s_cbranch_scc1 k_noinit")
    a("s_waitcnt lgkmcnt(0)")
    init_counters(a, S_WS, jobs.S_DBG, V_T, WS_FLAG)
    a.label("k_noinit")
    a("s_lshl_b32 s52, s3, 2")
    a(f"s_add_u32 s52, s52, s{S_W}")
    if not ENV("NOPF"):
        if ENV("APF"):
            a("s_add_u32 s53, s52, 1024")
            prefetch1(a, KA_AX, 2048 * 1024, 53, 2048, 244, 241, 54, 60)
            prefetch1(a, KA_WQKV, 512 * 3072, 53, 2048, 245, 241, 54, 60)
        elif not ENV("NOPF1"):
            prefetch1(a, KA_WQKV, 512 * 3072, 52, 1024, 245, 241, 54, 60)
            prefetch1(a, KA_AX, 2048 * 1024, 52, 1024, 244, 241, 54, 60)
        a("s_waitcnt vmcnt(0)")
        pstamp(a, "pf1")
        if ENV("TOUCH"):
            jobs.qkv_touch(a, 3)
        prefetch1(a, KA_WG, 512 * 2752, 52, 1024, 244, 241, 54, 60)
        prefetch1(a, KA_WU, 512 * 2752, 52, 1024, 245, 241, 54, 60)
        prefetch1(a, KA_WD, 1376 * 1024, 52, 1024, 246, 241, 54, 60)
        prefetch1(a, KA_WO, 512 * 1024, 52, 1024, 247, 241, 54, 60)
    wait_init(a, jobs.S_DBG, S_W, V_T, S_T)
    if ENV("HOLD"):
        jobs.decode_qkv(a, 3)
        a(f"s_lshl_b32 s50, s{S_CB}, 4")
        a(f"s_and_b32 s51, s{S_RB}, 7")
        a(f"s_add_u32 s50, s50, s51")
        a(f"s_add_u32 s50, s50, 8")
        wait_count(a, S_WS, 50, int(ENV("HOLDN", "32")), S_W, V_T, S_T, WS_FLAG + 256 * C_QKV)
        pstamp(a, "hold")
    if ENV("TWIN"):
        wait_count(a, S_WS, 3, 1, S_W, V_T, S_T, WS_FLAG + 256 * C_TWIN)
        pstamp(a, "twin")
    a("s_setprio 3")
    jobs.g_job(a, 3, sc1=True, epi_prio=2, loop_prio=ENV('FPRIO', '0'))
    a(f"s_setprio {ENV('FPRIO', '0')}")
    a(f"s_lshl_b32 s50, s{S_RB}, 2")
    signal(a, S_WS, 50, 4, S_W, V_T, WS_FLAG + 256 * C_G)
    pstamp(a, "sig")

    def wait_g(a):
        a(f"s_lshr_b32 s50, s{S_RB}, 1")
        a(f"s_lshl_b32 s50, s50, 2")
        a(f"s_and_b32 s51, s{S_CB}, 3")
        a(f"s_add_u32 s50, s50, s51")
        wait_count(a, S_WS, 50, 16, S_W, V_T, S_T, WS_FLAG + 256 * C_G)
    splitk.d_job(a, 3, a_sc1=True, wait=wait_g, post_prio=ENV('DPRIO', '0'))

    def wait_attn(a):
        a(f"s_lshr_b32 s50, s{S_RB}, 1")
        a(f"s_lshl_b32 s50, s50, 2")
        a(f"s_and_b32 s51, s{S_CB}, 3")
        a(f"s_add_u32 s50, s50, s51")
        (wait_count_fast if ENV('FAST') else wait_count)(a, S_WS, 50, 32, S_W, V_T, S_T, WS_FLAG + 256 * C_ATT)
    splitk.wo2_job(a, 3, wait=wait_attn)
    pflush(a, 2, S_W, S_WS, V_T, 0)
    a.label("k_done")
    a("s_endpgm")
    a.raw('.section .rodata,"a"')
    a.raw(".p2align 6")
    a.raw(kernel_desc(f"{NAME}_kernel", 248))
    return a.text()


if __name__ == "__main__":
    out = sys.argv[1] if len(sys.argv) > 1 else f"cdna_kernels/{NAME}.s"
    open(out, "w").write(build())
    print("wrote", out, os.path.getsize(out), "bytes")
```

```python
from asmlib import *
from layout import *
from gemm import *
from sync import *
import struct

def f2u(x):
    return struct.unpack("<I", struct.pack("<f", x))[0]


S_DBG = 48


def common_entry(a):
    a(f"s_load_dwordx2 s[{S_WS}:{S_WS+1}], s[0:1], {KA_WS}")
    a(f"s_load_dwordx2 s[{S_DBG}:{S_DBG+1}], s[0:1], {KA_DBG}")
    a(f"v_lshrrev_b32 v{V_T}, 6, v0")
    a("v_and_b32 v0, 63, v0")
    a(f"v_readfirstlane_b32 s{S_W}, v{V_T}")
    if WS_BASE:
        a("s_waitcnt lgkmcnt(0)")
        a(f"s_add_u32 s{S_WS}, s{S_WS}, {WS_BASE}")
        a(f"s_addc_u32 s{S_WS+1}, s{S_WS+1}, 0")


def decode_rb_cb(a, idreg):
    a(f"s_and_b32 s{S_RB}, s{idreg}, 3")
    a(f"s_lshl_b32 s{S_RB}, s{S_RB}, 2")
    a(f"s_bfe_u32 s{S_T}, s{idreg}, 0x20003")
    a(f"s_add_u32 s{S_RB}, s{S_RB}, s{S_T}")
    a(f"s_bfe_u32 s{S_CB}, s{idreg}, 0x10002")
    a(f"s_lshl_b32 s{S_CB}, s{S_CB}, 3")
    a(f"s_lshr_b32 s{S_T}, s{idreg}, 5")
    a(f"s_add_u32 s{S_CB}, s{S_CB}, s{S_T}")


def srd_from(a, dst, lo, hi, size, add=0):
    if add > 0:
        a(f"s_add_u32 s{dst}, s{lo}, {add}")
        a(f"s_addc_u32 s{dst+1}, s{hi}, 0")
    elif add < 0:
        a(f"s_sub_u32 s{dst}, s{lo}, {-add}")
        a(f"s_subb_u32 s{dst+1}, s{hi}, 0")
    else:
        a(f"s_mov_b32 s{dst}, s{lo}")
        a(f"s_mov_b32 s{dst+1}, s{hi}")
    a(f"s_and_b32 s{dst+1}, s{dst+1}, 0xffff")
    a(f"s_mov_b32 s{dst+2}, {size}")
    a(f"s_mov_b32 s{dst+3}, 0x20000")


def store_pk8(a, src, tmp, scale_sreg=None):
    if scale_sreg is not None:
        for r in range(8):
            a(f"v_mul_f32 v{src+r}, s{scale_sreg}, v{src+r}")
    for r in range(4):
        a(f"v_cvt_pk_bf16_f32 v{tmp+r}, v{src+2*r}, v{src+2*r+1}")


def touch_x(a, vdst):
    a(f"s_and_b32 s{S_T}, s{S_CB}, 7")
    a(f"s_lshl_b32 s{S_T}, s{S_T}, 4")
    a(f"s_lshl_b32 s{S_T+1}, s{S_W}, 2")
    a(f"s_add_u32 s{S_T}, s{S_T}, s{S_T+1}")
    a(f"s_lshl_b32 s{S_T}, s{S_T}, 10")
    a(f"s_add_u32 s{S_T}, s{S_T}, s{S_SOA}")
    a(f"v_lshrrev_b32 v{V_T}, 3, v0")
    a(f"v_lshlrev_b32 v{V_T}, 10, v{V_T}")
    a(f"v_and_b32 v{V_T+1}, 7, v0")
    a(f"v_lshlrev_b32 v{V_T+1}, 7, v{V_T+1}")
    a(f"v_add_u32 v{V_T}, v{V_T}, v{V_T+1}")
    a(f"s_mov_b32 exec_hi, 0")
    a(f"buffer_load_dword v{vdst}, v{V_T}, s[{SRD_A}:{SRD_A+3}], s{S_T} offen")
    a(f"s_mov_b32 exec_hi, -1")


def decode_qkv(a, idreg):
    a(f"s_and_b32 s{S_RB}, s{idreg}, 3")
    a(f"s_lshl_b32 s{S_RB}, s{S_RB}, 3")
    a(f"s_bfe_u32 s{S_T}, s{idreg}, 0x30003")
    a(f"s_add_u32 s{S_RB}, s{S_RB}, s{S_T}")
    a(f"s_bfe_u32 s{S_CB}, s{idreg}, 0x10002")
    a(f"s_lshl_b32 s{S_CB}, s{S_CB}, 2")
    a(f"s_lshr_b32 s{S_T}, s{idreg}, 6")
    a(f"s_add_u32 s{S_CB}, s{S_CB}, s{S_T}")


def qkv_job(a, idreg, pre=None, post_loop=None, sc1=False):
    import gemm2 as g2
    SC = ' sc1' if sc1 else ''
    FA2, FW2, ACC = 16, 32, 80
    V_RW2, V_RW2H, RAH = 12 + 4 - 4 + 128, 141, 142
    V_RW2 = 140
    j = g2.J2()
    j.name, j.NS, j.RA, j.RW, j.nA, j.nW = "qkv", 16, 3, 4, 2, 3
    ASLOT, WSLOT, WBASE = 8192, 12288, 3 * 8192
    P_X, P_W, P_GW = S_P0, S_P0 + 2, S_P0 + 4
    a(f"s_load_dwordx2 s[{P_X}:{P_X+1}], s[0:1], {KA_AX}")
    a(f"s_load_dwordx2 s[{P_W}:{P_W+1}], s[0:1], {KA_WQKV}")
    a(f"s_load_dwordx2 s[{P_GW}:{P_GW+1}], s[0:1], {KA_GW}")
    decode_qkv(a, idreg)
    T0, T1, T2 = V_T, V_T + 1, V_T + 2
    a(f"s_lshl_b32 s{S_T}, s{S_W}, 14")
    g2.a_dma_lane(a, g2.V_OA, 0)
    a(f"v_add_u32 v{g2.V_OA}, s{S_T}, v{g2.V_OA}")
    g2.a_dma_lane(a, g2.V_OA + 1, 1)
    a(f"v_add_u32 v{g2.V_OA+1}, s{S_T}, v{g2.V_OA+1}")
    a(f"v_add_u32 v{g2.V_OA+1}, {8 * 1024 - 1024}, v{g2.V_OA+1}")
    a(f"s_lshl_b32 s{S_LDA}, s{S_W}, 11")
    a(f"v_lshrrev_b32 v{T0}, 3, v0")
    a(f"v_mul_u32_u24 v{T0}, 3072, v{T0}")
    a(f"v_bfe_u32 v{T1}, v0, 4, 1")
    a(f"v_lshlrev_b32 v{T1}, 2, v{T1}")
    a(f"v_and_b32 v{T2}, 7, v0")
    a(f"v_xor_b32 v{T1}, v{T1}, v{T2}")
    a(f"v_lshlrev_b32 v{T1}, 4, v{T1}")
    a(f"s_mul_i32 s{S_T}, s{S_W}, {8 * 3072}")
    a(f"s_lshl_b32 s{S_T+1}, s{S_CB}, 7")
    a(f"s_add_u32 s{S_T}, s{S_T}, s{S_T+1}")
    a(f"v_add3_u32 v{g2.V_OW}, v{T0}, v{T1}, s{S_T}")
    a(f"s_mul_i32 s{S_LDW}, s{S_W}, 3072")
    a(f"s_and_b32 s{S_T}, s{S_W}, 1")
    a(f"s_lshl_b32 s{S_T}, s{S_T}, 12")
    g2.a_read_setup(a, S_T, RAH)
    a(f"v_lshrrev_b32 v{T0}, 5, v0")
    a(f"v_mul_u32_u24 v{T0}, 3072, v{T0}")
    a(f"v_bfe_u32 v{T1}, v0, 2, 2")
    a(f"v_lshlrev_b32 v{T1}, 7, v{T1}")
    a(f"v_add_u32 v{T0}, v{T0}, v{T1}")
    a(f"s_lshr_b32 s{S_T}, s{S_W}, 1")
    a(f"v_bfe_u32 v{T1}, v0, 3, 1")
    a(f"v_xor_b32 v{T1}, s{S_T}, v{T1}")
    a(f"v_lshlrev_b32 v{T1}, 6, v{T1}")
    a(f"v_add_u32 v{T0}, v{T0}, v{T1}")
    a(f"v_bfe_u32 v{T1}, v0, 4, 1")
    a(f"v_lshlrev_b32 v{T1}, 5, v{T1}")
    a(f"v_and_b32 v{T2}, 3, v0")
    a(f"v_lshlrev_b32 v{T2}, 3, v{T2}")
    a(f"v_add3_u32 v{V_RW2}, v{T0}, v{T1}, v{T2}")
    a(f"v_add_u32 v{V_RW2H}, {HI}, v{V_RW2}")
    a(f"s_lshl_b32 s{S_SOA}, s{S_RB}, 16")
    a(f"s_mov_b32 s{S_SOW}, 0")
    a("s_waitcnt lgkmcnt(0)")
    srd_from(a, SRD_A, P_X, P_X + 1, 2048 * 1024)
    srd_from(a, SRD_W, P_W, P_W + 1, 512 * 3072)
    GX, GWR = 128, 136
    a(f"s_lshl_b32 s{S_T}, s{S_RB}, 6")
    a(f"s_lshl_b32 s{S_T+1}, s{S_CB}, 3")
    a(f"s_add_u32 s{S_T}, s{S_T}, s{S_T+1}")
    a(f"s_lshl_b32 s{S_T+1}, s{S_W}, 1")
    a(f"s_add_u32 s{S_T+7}, s{S_T}, s{S_T+1}")
    if pre:
        pre(a)
    a(f"s_lshl_b32 s{S_T+3}, s{S_T+7}, 10")
    a(f"v_lshlrev_b32 v{V_T}, 4, v0")
    a(f"v_add_u32 v{V_T+1}, s{S_T+3}, v{V_T}")
    a(f"global_load_dwordx4 v[{GX}:{GX+3}], v{V_T+1}, s[{P_X}:{P_X+1}]")
    a(f"global_load_dwordx4 v[{GX+4}:{GX+7}], v{V_T+1}, s[{P_X}:{P_X+1}] offset:1024")
    a(f"global_load_dwordx4 v[{GWR}:{GWR+3}], v{V_T}, s[{P_GW}:{P_GW+1}]")

    def dmaA(a, S):
        a(f"s_add_u32 m0, s{S_LDA}, {(S % j.RA) * ASLOT}")
        a("s_nop 0")
        a(f"buffer_load_dwordx4 v{g2.V_OA}, s[{SRD_A}:{SRD_A+3}], s{S_SOA} offen lds")
        a(f"buffer_load_dwordx4 v{g2.V_OA+1}, s[{SRD_A}:{SRD_A+3}], s{S_SOA} offen offset:1024 lds")
        a(f"s_add_u32 s{S_SOA}, s{S_SOA}, 128")

    def dmaW(a, s_):
        a(f"s_add_u32 m0, s{S_LDW}, {WBASE + (s_ % j.RW) * WSLOT}")
        a("s_nop 0")
        for t in range(3):
            off = f" offset:{1024 * t}" if t else ""
            a(f"buffer_load_dwordx4 v{g2.V_OW}, s[{SRD_W}:{SRD_W+3}], s{S_SOW} offen{off} lds")
        a(f"s_add_u32 s{S_SOW}, s{S_SOW}, {32 * 3072}")

    def reads(st):
        b = st & 1
        asl = ((st >> 1) % j.RA) * ASLOT
        wsl = WBASE + (st % j.RW) * WSLOT
        out = []
        for s_ in range(2):
            k = 2 * (st & 1) + s_
            out.append(g2.ds_rd("ds_read_b128", FA2 + (2 * b + s_) * 4, 4, g2.V_RA + k, RAH + k, asl))
            for t in range(3):
                d = FW2 + ((2 * b + s_) * 3 + t) * 4
                for half in range(2):
                    out.append(g2.ds_rd("ds_read_b64_tr_b16", d + 2 * half, 2, V_RW2, V_RW2H, wsl + s_ * 6144 + half * 512 + t * 1024))
        return out

    def mfmas(st):
        b = st & 1
        out = []
        for s_ in range(2):
            f = FA2 + (2 * b + s_) * 4
            for t in range(3):
                w = FW2 + ((2 * b + s_) * 3 + t) * 4
                out.append(g2.mfma(ACC + 16 * t, w, f) if t < 2 else g2.mfma(ACC + 16 * t, f, w))
        return out

    def after_prologue(a):
        for r in range(48):
            a(f"v_mov_b32 v{ACC + r}, 0")
    j.dmaA, j.dmaW, j.reads, j.mfmas, j.after_prologue = dmaA, dmaW, reads, mfmas, after_prologue
    g2.engine(a, j)
    pstamp(a, 'qkv:loopend')
    if post_loop:
        post_loop(a)
    G0, G1 = 146, 147
    a(f"v_mov_b32 v{G0}, 0")
    a(f"v_mov_b32 v{G1}, 0")
    for r in range(4):
        a(f"v_dot2_f32_bf16 v{G0}, v{GX+r}, v{GWR+r}, v{G0}")
        a(f"v_dot2_f32_bf16 v{G1}, v{GX+4+r}, v{GWR+r}, v{G1}")
    for rot in (8, 4, 2, 1):
        a("s_nop 1")
        a(f"v_add_f32_dpp v{G0}, v{G0}, v{G0} row_ror:{rot} row_mask:0xf bank_mask:0xf")
        a(f"v_add_f32_dpp v{G1}, v{G1}, v{G1} row_ror:{rot} row_mask:0xf bank_mask:0xf")
    a("s_nop 1")
    for gi, g in enumerate((G0, G1)):
        for q in range(4):
            a(f"v_readlane_b32 s{S_T+q}, v{g}, {16*q}")
        a("s_nop 1")
        a(f"v_mov_b32 v{V_T+gi}, s{S_T}")
        a(f"v_add_f32 v{V_T+gi}, s{S_T+1}, v{V_T+gi}")
        a(f"v_add_f32 v{V_T+gi}, s{S_T+2}, v{V_T+gi}")
        a(f"v_add_f32 v{V_T+gi}, s{S_T+3}, v{V_T+gi}")
    a(f"v_cmp_eq_u32 vcc, 1, v0")
    a("s_nop 1")
    a(f"v_cndmask_b32 v{V_T}, v{V_T}, v{V_T+1}, vcc")
    a(f"v_mul_f32 v{V_T}, {f2u(-1.4426950408889634)}, v{V_T}")
    a(f"v_exp_f32 v{V_T}, v{V_T}")
    a("s_nop 0")
    a(f"v_add_f32 v{V_T}, 1.0, v{V_T}")
    a(f"v_rcp_f32 v{V_T}, v{V_T}")
    a(f"v_lshlrev_b32 v{V_T+1}, 2, v0")
    a(f"s_lshl_b32 s{S_T}, s{S_T+7}, 2")
    a(f"s_add_u32 s{S_T}, s{S_T}, {WS_G}")
    a(f"v_add_u32 v{V_T+1}, s{S_T}, v{V_T+1}")
    a(f"v_cmp_gt_u32 vcc, 2, v0")
    a(f"s_and_saveexec_b64 s[{S_T+2}:{S_T+3}], vcc")
    a(f"global_store_dword v{V_T+1}, v{V_T}, s[{S_WS}:{S_WS+1}]{SC}")
    a(f"s_mov_b64 exec, s[{S_T+2}:{S_T+3}]")
    TMP = 148
    a(f"s_lshl_b32 s{S_T}, s{S_RB}, 1")
    a(f"s_and_b32 s{S_T+1}, s{S_W}, 1")
    a(f"s_add_u32 s{S_T}, s{S_T}, s{S_T+1}")
    a(f"s_lshl_b32 s{S_T+2}, s{S_CB}, 1")
    a(f"s_lshr_b32 s{S_T+1}, s{S_W}, 1")
    a(f"s_add_u32 s{S_T+2}, s{S_T+2}, s{S_T+1}")
    a(f"s_lshl_b32 s{S_T+2}, s{S_T+2}, 17")
    a(f"s_lshl_b32 s{S_T+1}, s{S_T}, 10")
    a(f"s_add_u32 s{S_T+1}, s{S_T+1}, s{S_T+2}")
    a(f"v_lshlrev_b32 v{V_T}, 4, v0")
    a(f"v_add_u32 v{V_T}, s{S_T+1}, v{V_T}")
    a(f"v_add_u32 v{V_T+1}, 0x10000, v{V_T}")
    a(f"s_mov_b32 s{S_T+3}, {f2u(QSCALE)}")
    a(f"s_add_u32 s{S_P0+6}, s{S_WS}, {WS_KF}")
    a(f"s_addc_u32 s{S_P0+7}, s{S_WS+1}, 0")
    store_pk8(a, ACC, TMP, S_T + 3)
    a(f"global_store_dwordx4 v{V_T}, v[{TMP}:{TMP+3}], s[{S_WS}:{S_WS+1}]{SC}")
    store_pk8(a, ACC + 8, TMP + 4, S_T + 3)
    a(f"global_store_dwordx4 v{V_T+1}, v[{TMP+4}:{TMP+7}], s[{S_WS}:{S_WS+1}]{SC}")
    store_pk8(a, ACC + 16, TMP + 8)
    a(f"global_store_dwordx4 v{V_T}, v[{TMP+8}:{TMP+11}], s[{S_P0+6}:{S_P0+7}]{SC}")
    store_pk8(a, ACC + 24, TMP + 12)
    a(f"global_store_dwordx4 v{V_T+1}, v[{TMP+12}:{TMP+15}], s[{S_P0+6}:{S_P0+7}]{SC}")
    a(f"s_lshl_b32 s{S_T+1}, s{S_T}, 10")
    a(f"s_add_u32 s{S_T+1}, s{S_T+1}, s{S_T+2}")
    a(f"s_add_u32 s{S_T+1}, s{S_T+1}, {WS_VF}")
    a(f"v_bfe_u32 v{V_T+2}, v0, 4, 1")
    a(f"v_lshlrev_b32 v{V_T+2}, 16, v{V_T+2}")
    a(f"v_lshrrev_b32 v{V_T+3}, 5, v0")
    a(f"v_lshlrev_b32 v{V_T+3}, 8, v{V_T+3}")
    a(f"v_add3_u32 v{V_T+2}, v{V_T+2}, v{V_T+3}, s{S_T+1}")
    a(f"v_and_b32 v{V_T+3}, 15, v0")
    a(f"v_lshlrev_b32 v{V_T+3}, 4, v{V_T+3}")
    a(f"v_add_u32 v{V_T+2}, v{V_T+2}, v{V_T+3}")
    VT = TMP + 16
    for p in range(2):
        src = ACC + 32 + 8 * p
        t = VT + 4 * p
        for r in range(4):
            a(f"v_cvt_pk_bf16_f32 v{t+r}, v{src+2*r}, v{src+2*r+1}")
        a("s_nop 1")
        a(f"v_permlane32_swap_b32 v{t}, v{t+2}")
        a(f"v_permlane32_swap_b32 v{t+1}, v{t+3}")
        off = f" offset:512" if p else ""
        a(f"global_store_dwordx4 v{V_T+2}, v[{t}:{t+3}], s[{S_WS}:{S_WS+1}]{off}{SC}")
    pstamp(a, 'qkv:end')
    return j


GA = -2.0 * 1.4426950408889634 * 0.7978845608028654
GB = GA * 0.044715

def g_job(a, idreg, done=None, sc1=False, epi_prio=None, loop_prio=None):
    import gemm2 as g2
    FA2, FW2, ACC = 16, 32, 128
    V_RW2, V_RW2H, RAH = 224, 225, 226
    j = g2.J2()
    import os
    j.name, j.NS, j.RA, j.RW, j.nA, j.nW = "g", 16, 2, int(os.environ.get("GRW", "4")), 4, 3
    ASLOT, WSLOT, WBASE = 16384, 12288, 2 * 16384
    P_X, P_WG, P_WU = S_P0, S_P0 + 2, S_P0 + 4
    a(f"s_load_dwordx2 s[{P_X}:{P_X+1}], s[0:1], {KA_AX}")
    a(f"s_load_dwordx2 s[{P_WG}:{P_WG+1}], s[0:1], {KA_WG}")
    a(f"s_load_dwordx2 s[{P_WU}:{P_WU+1}], s[0:1], {KA_WU}")
    decode_rb_cb(a, idreg)
    T0, T1, T2 = V_T, V_T + 1, V_T + 2
    a(f"s_lshl_b32 s{S_T}, s{S_W}, 15")
    g2.a_dma_lane(a, g2.V_OA, 0)
    g2.a_dma_lane(a, g2.V_OA + 1, 1)
    a(f"v_add_u32 v{g2.V_OA}, s{S_T}, v{g2.V_OA}")
    a(f"v_add_u32 v{g2.V_OA+1}, s{S_T}, v{g2.V_OA+1}")
    a(f"v_add_u32 v{g2.V_OA+2}, {2 * 7168}, v{g2.V_OA}")
    a(f"v_add_u32 v{g2.V_OA+3}, {3 * 7168}, v{g2.V_OA+1}")
    a(f"v_add_u32 v{g2.V_OA+1}, 7168, v{g2.V_OA+1}")
    a(f"s_lshl_b32 s{S_LDA}, s{S_W}, 12")
    g2.a_read_setup(a, S_LDA, RAH)
    a(f"v_lshrrev_b32 v{T0}, 2, v0")
    a(f"v_mul_u32_u24 v{T0}, 2752, v{T0}")
    a(f"v_and_b32 v{T1}, 3, v0")
    a(f"v_lshlrev_b32 v{T1}, 4, v{T1}")
    a(f"v_add_u32 v{T0}, v{T0}, v{T1}")
    TILE0 = S_P0 + 6
    a(f"s_mul_i32 s{TILE0}, s{S_CB}, 3")
    a(f"s_lshl_b32 s{S_T}, s{S_CB}, 1")
    a(f"s_add_u32 s{S_T}, s{S_T}, 11")
    a(f"s_cmp_lt_u32 s{S_CB}, 11")
    a(f"s_cselect_b32 s{TILE0}, s{TILE0}, s{S_T}")
    a(f"s_cselect_b32 s{S_NP}, 3, 2")
    BIAS = 2048
    a(f"s_and_b32 s{S_T}, s{S_W}, 1")
    a(f"s_lshr_b32 s{S_T+1}, s{S_W}, 1")
    a(f"s_mul_i32 s{S_LDW}, s{S_T+1}, 6144")
    a(f"s_mul_i32 s{S_T+2}, s{S_T}, 3072")
    a(f"s_add_u32 s{S_LDW}, s{S_LDW}, s{S_T+2}")
    ex = lambda jx: 16 * (jx & 1) * 2752 + (jx >> 1) * 64
    a(f"s_cmp_eq_u32 s{S_T}, 0")
    for q in range(3):
        e0 = ex(q) - 1024 * q + BIAS
        e1 = ex(3 + q) - 1024 * q + BIAS
        a(f"s_mov_b32 s{S_T+3}, {e1}")
        a(f"s_cselect_b32 s{S_T+3}, {e0}, s{S_T+3}")
        a(f"v_add_u32 v{g2.V_OW+q}, s{S_T+3}, v{T0}")
    a(f"v_lshrrev_b32 v{T0}, 5, v0")
    a(f"v_lshlrev_b32 v{T0}, 3, v{T0}")
    a(f"v_bfe_u32 v{T1}, v0, 2, 2")
    a(f"v_add_u32 v{T0}, v{T0}, v{T1}")
    a(f"v_lshlrev_b32 v{T0}, 6, v{T0}")
    a(f"v_bfe_u32 v{T1}, v0, 4, 1")
    a(f"v_lshlrev_b32 v{T1}, 5, v{T1}")
    a(f"v_and_b32 v{T2}, 3, v0")
    a(f"v_lshlrev_b32 v{T2}, 3, v{T2}")
    a(f"v_add3_u32 v{V_RW2}, v{T0}, v{T1}, v{T2}")
    a(f"v_add_u32 v{V_RW2H}, {HI}, v{V_RW2}")
    a(f"s_lshl_b32 s{S_SOA}, s{S_RB}, 17")
    a(f"s_lshl_b32 s{S_SOW}, s{TILE0}, 6")
    a("s_waitcnt lgkmcnt(0)")
    srd_from(a, SRD_A, P_X, P_X + 1, 2048 * 1024)
    a(f"s_cmp_eq_u32 s{S_T+1}, 0")
    a(f"s_cselect_b32 s{S_T+4}, s{P_WG}, s{P_WU}")
    a(f"s_cselect_b32 s{S_T+5}, s{P_WG+1}, s{P_WU+1}")
    srd_from(a, SRD_W, S_T + 4, S_T + 5, 512 * 2752 + BIAS, add=-BIAS)

    def dmaA(a, S):
        a(f"s_add_u32 m0, s{S_LDA}, {(S % j.RA) * ASLOT}")
        a("s_nop 0")
        for i in range(4):
            off = f" offset:{1024 * i}" if i else ""
            a(f"buffer_load_dwordx4 v{g2.V_OA+i}, s[{SRD_A}:{SRD_A+3}], s{S_SOA} offen{off} lds")
        a(f"s_add_u32 s{S_SOA}, s{S_SOA}, 128")

    def dmaW(a, s_):
        a(f"s_add_u32 m0, s{S_LDW}, {WBASE + (s_ % j.RW) * WSLOT}")
        a("s_nop 0")
        for q in range(3):
            off = f" offset:{1024 * q}" if q else ""
            a(f"buffer_load_dwordx4 v{g2.V_OW+q}, s[{SRD_W}:{SRD_W+3}], s{S_SOW} offen{off} lds")
        a(f"s_add_u32 s{S_SOW}, s{S_SOW}, {32 * 2752}")

    cols = {'c': list(range(6))}

    def reads(st):
        b = st & 1
        asl = ((st >> 1) % j.RA) * ASLOT
        wsl = WBASE + (st % j.RW) * WSLOT
        out = []
        for s_ in range(2):
            k = 2 * (st & 1) + s_
            out.append(g2.ds_rd("ds_read_b128", FA2 + (2 * b + s_) * 4, 4, g2.V_RA + k, RAH + k, asl))
            for c in cols['c']:
                d = FW2 + ((2 * b + s_) * 6 + c) * 4
                for half in range(2):
                    out.append(g2.ds_rd("ds_read_b64_tr_b16", d + 2 * half, 2, V_RW2, V_RW2H, wsl + c * 2048 + (16 * s_ + 4 * half) * 64))
        return out

    def mfmas(st):
        b = st & 1
        out = []
        for s_ in range(2):
            f = FA2 + (2 * b + s_) * 4
            for c in cols['c']:
                out.append(g2.mfma(ACC + 16 * c, FW2 + ((2 * b + s_) * 6 + c) * 4, f))
        return out

    def after_prologue(a):
        for r in range(96):
            a(f"v_mov_b32 v{ACC + r}, 0")
        if loop_prio is not None:
            a(f"s_setprio {loop_prio}")
    j.dmaA, j.dmaW, j.reads, j.mfmas, j.after_prologue = dmaA, dmaW, reads, mfmas, after_prologue
    import os
    a(f"s_cmp_lt_u32 s{S_NP}, {0 if os.environ.get('NONP2') else 3}")
    a("s_cbranch_scc1 g_np2")
    g2.engine(a, j)
    a("s_branch g_loop_done")
    a.label("g_np2")
    cols['c'] = [0, 1, 3, 4]
    save = (getattr(a, 'pidx', 0), list(getattr(a, 'pnames', [])))
    if PROF:
        a.pidx -= 1; a.pnames.pop()
    g2.engine(a, j)
    a.label("g_loop_done")
    pstamp(a, 'g:loopend')
    if epi_prio is not None:
        a(f"s_setprio {epi_prio}")
    a("s_nop 7")
    a("s_nop 7")
    T = 32
    a(f"s_mov_b32 s{S_T}, {f2u(GA)}")
    a(f"s_mov_b32 s{S_T+1}, {f2u(GB)}")
    a(f"s_mul_i32 s{S_T+2}, s{S_RB}, 43")
    a(f"s_add_u32 s{S_T+2}, s{S_T+2}, s{TILE0}")
    a(f"s_lshl_b32 s{S_T+2}, s{S_T+2}, 13")
    a(f"s_lshl_b32 s{S_T+3}, s{S_W}, 11")
    a(f"s_add_u32 s{S_T+2}, s{S_T+2}, s{S_T+3}")
    a(f"s_add_u32 s{S_T+2}, s{S_T+2}, {WS_H}")
    a(f"v_lshlrev_b32 v{V_T}, 4, v0")
    a(f"v_add_u32 v{V_T}, s{S_T+2}, v{V_T}")
    a(f"s_mov_b32 s{S_T+4}, {f2u(GB)}")
    a(f"s_mov_b32 s{S_T+5}, {f2u(GB)}")
    a(f"v_mov_b32 v{T+8}, s{S_T}")
    a(f"v_mov_b32 v{T+9}, s{S_T}")
    a(f"v_mov_b32 v{T+10}, 1.0")
    a(f"v_mov_b32 v{T+11}, 1.0")
    for p in range(3):
        if p == 2:
            a(f"s_cmp_lt_u32 s{S_NP}, 3")
            a(f"s_cbranch_scc1 g_skip")
        G, U = ACC + 16 * p, ACC + 16 * (3 + p)
        for r0 in range(0, 16, 8):
            pr = range(r0, r0 + 8, 2)
            t = lambda r: T + (r - r0)
            for r in pr:
                a(f"v_pk_mul_f32 v[{t(r)}:{t(r)+1}], v[{G+r}:{G+r+1}], v[{G+r}:{G+r+1}]")
            for r in pr:
                a(f"v_pk_fma_f32 v[{t(r)}:{t(r)+1}], v[{t(r)}:{t(r)+1}], s[{S_T+4}:{S_T+5}], v[{T+8}:{T+9}]")
            for r in pr:
                a(f"v_pk_mul_f32 v[{t(r)}:{t(r)+1}], v[{t(r)}:{t(r)+1}], v[{G+r}:{G+r+1}]")
            for r in range(r0, r0 + 8):
                a(f"v_exp_f32 v{t(r)}, v{t(r)}")
            for r in pr:
                a(f"v_pk_mul_f32 v[{U+r}:{U+r+1}], v[{U+r}:{U+r+1}], v[{G+r}:{G+r+1}]")
            for r in pr:
                a(f"v_pk_add_f32 v[{t(r)}:{t(r)+1}], v[{t(r)}:{t(r)+1}], v[{T+10}:{T+11}]")
            for r in range(r0, r0 + 8):
                a(f"v_rcp_f32 v{t(r)}, v{t(r)}")
            a("s_nop 0")
            for r in pr:
                a(f"v_pk_mul_f32 v[{U+r}:{U+r+1}], v[{U+r}:{U+r+1}], v[{t(r)}:{t(r)+1}]")
        for r in range(8):
            a(f"v_cvt_pk_bf16_f32 v{G+r}, v{U+2*r}, v{U+2*r+1}")
        if p:
            a(f"v_add_u32 v{V_T}, 8192, v{V_T}")
        sc = " sc1" if sc1 else ""
        a(f"global_store_dwordx4 v{V_T}, v[{G}:{G+3}], s[{S_WS}:{S_WS+1}]{sc}")
        a(f"global_store_dwordx4 v{V_T}, v[{G+4}:{G+7}], s[{S_WS}:{S_WS+1}] offset:1024{sc}")
    a.label("g_skip")
    pstamp(a, 'g:end')
    return j


def nc1_setup(a, j, idreg, kaW, ws_off, nst):
    P_W = S_P0
    a(f"s_load_dwordx2 s[{P_W}:{P_W+1}], s[0:1], {kaW}")
    decode_rb_cb(a, idreg)
    lane_setup(a, j)
    a(f"s_and_b32 s{S_T}, s{S_W}, 1")
    a(f"s_lshl_b32 s{S_LDW}, s{S_T}, 10")
    a(f"s_lshl_b32 s{S_T}, s{S_T}, 14")
    a(f"s_lshl_b32 s{S_T+1}, s{S_CB}, 6")
    a(f"s_add_u32 s{S_T}, s{S_T}, s{S_T+1}")
    a(f"v_add_u32 v{V_OW}, s{S_T}, v{V_OW}")
    a(f"s_mov_b32 s{S_SOA}, 0")
    a(f"s_mov_b32 s{S_SOW}, 0")
    a(f"s_mul_i32 s{S_T+2}, s{S_RB}, {nst * 8192}")
    a(f"s_add_u32 s{S_T+2}, s{S_T+2}, {ws_off}")
    a("s_waitcnt lgkmcnt(0)")
    a(f"s_add_u32 s{S_T+4}, s{S_WS}, s{S_T+2}")
    a(f"s_addc_u32 s{S_T+5}, s{S_WS+1}, 0")
    srd_from(a, SRD_A, S_T + 4, S_T + 5, nst * 8192)
    srd_from(a, SRD_W, P_W, P_W + 1, nst * 32 * 1024)


def bp_addr(a, dst):
    a(f"s_lshl_b32 s{S_T}, s{S_RB}, 4")
    a(f"s_add_u32 s{S_T}, s{S_T}, s{S_CB}")
    a(f"s_lshl_b32 s{S_T}, s{S_T}, 2")
    a(f"s_add_u32 s{S_T}, s{S_T}, s{S_W}")
    a(f"s_lshl_b32 s{S_T}, s{S_T}, 12")
    a(f"s_add_u32 s{S_T}, s{S_T}, {WS_BP}")
    a(f"v_lshlrev_b32 v{dst}, 4, v0")
    a(f"v_add_u32 v{dst}, s{S_T}, v{dst}")


def g_load(a, dst, tmp):
    a(f"s_lshl_b32 s{S_T}, s{S_RB}, 7")
    a(f"s_lshl_b32 s{S_T+1}, s{S_W}, 5")
    a(f"s_add_u32 s{S_T}, s{S_T}, s{S_T+1}")
    a(f"s_lshl_b32 s{S_T}, s{S_T}, 2")
    a(f"s_add_u32 s{S_T}, s{S_T}, {WS_G}")
    a(f"v_and_b32 v{tmp}, 31, v0")
    a(f"v_lshlrev_b32 v{tmp}, 2, v{tmp}")
    a(f"v_add_u32 v{tmp}, s{S_T}, v{tmp}")
    a(f"global_load_dword v{dst}, v{tmp}, s[{S_WS}:{S_WS+1}]")


def d_job(a, idreg, done, ring=8, lds0=0, a_sc1=False):
    ACC = 40
    j = Job("d", NC=1, nstages=43, ring=ring, nW=1, a_rs=64, a_ss=8192, w_ws=1024,
            chunk='frag', wrow='perm', orient=['FM'], acc=ACC, lds0=lds0, a_sc1=a_sc1)
    nc1_setup(a, j, idreg, KA_WD, WS_H, 43)
    GV = 60
    g_load(a, GV, V_T)
    prologue_dma(a, j)
    zero_acc(a, j)
    main_loop(a, j)
    pstamp(a, j.name + ':loopend')
    a("s_nop 7")
    a("s_nop 7")
    a(f"v_sub_f32 v{GV}, 1.0, v{GV}")
    bp_addr(a, V_T)
    for r in range(16):
        a(f"v_mul_f32 v{ACC+r}, v{ACC+r}, v{GV}")
    for q in range(4):
        off = f" offset:{1024*q}" if q else ""
        a(f"global_store_dwordx4 v{V_T}, v[{ACC+4*q}:{ACC+4*q+3}], s[{S_WS}:{S_WS+1}]{off}")
    pstamp(a, j.name + ':end')
    if done:
        a(f"s_branch {done}")
    return j


def wo_job(a, idreg, done, ring=8, lds0=0):
    ACC = 40
    j = Job("wo", NC=1, nstages=16, ring=ring, nW=1, a_rs=64, a_ss=8192, w_ws=1024,
            chunk='frag', wrow='perm', orient=['FM'], acc=ACC, lds0=lds0)
    P_OUT = S_P0 + 2
    a(f"s_load_dwordx2 s[{P_OUT}:{P_OUT+1}], s[0:1], {KA_OUT}")
    nc1_setup(a, j, idreg, KA_WO, WS_OB, 16)
    GV, BPV = 60, 64
    g_load(a, GV, V_T)
    bp_addr(a, V_T + 1)
    for q in range(4):
        off = f" offset:{1024*q}" if q else ""
        a(f"global_load_dwordx4 v[{BPV+4*q}:{BPV+4*q+3}], v{V_T+1}, s[{S_WS}:{S_WS+1}]{off}")
    prologue_dma(a, j)
    zero_acc(a, j)
    main_loop(a, j)
    pstamp(a, j.name + ':loopend')
    a("s_nop 7")
    a("s_nop 7")
    for r in range(16):
        a(f"v_fma_f32 v{ACC+r}, v{ACC+r}, v{GV}, v{BPV+r}")
    a(f"s_lshl_b32 s{S_T}, s{S_RB}, 7")
    a(f"s_lshl_b32 s{S_T+1}, s{S_W}, 5")
    a(f"s_add_u32 s{S_T}, s{S_T}, s{S_T+1}")
    a(f"s_lshl_b32 s{S_T}, s{S_T}, 10")
    a(f"s_lshl_b32 s{S_T+1}, s{S_CB}, 6")
    a(f"s_add_u32 s{S_T}, s{S_T}, s{S_T+1}")
    a(f"v_and_b32 v{V_T}, 31, v0")
    a(f"v_lshlrev_b32 v{V_T}, 10, v{V_T}")
    a(f"v_lshrrev_b32 v{V_T+1}, 5, v0")
    a(f"v_lshlrev_b32 v{V_T+1}, 4, v{V_T+1}")
    a(f"v_add3_u32 v{V_T}, v{V_T}, v{V_T+1}, s{S_T}")
    T = 80
    for p in range(2):
        t = T + 4 * p
        for r in range(4):
            a(f"v_cvt_pk_bf16_f32 v{t+r}, v{ACC+8*p+2*r}, v{ACC+8*p+2*r+1}")
        a("s_nop 1")
        a(f"v_permlane32_swap_b32 v{t}, v{t+2}")
        a(f"v_permlane32_swap_b32 v{t+1}, v{t+3}")
        off = " offset:32" if p else ""
        a(f"global_store_dwordx4 v{V_T}, v[{t}:{t+3}], s[{P_OUT}:{P_OUT+1}]{off}")
    pstamp(a, j.name + ':end')
    if done:
        a(f"s_branch {done}")
    return j


def qkv_touch(a, idreg):
    P_X, P_W = S_P0, S_P0 + 2
    a(f"s_load_dwordx2 s[{P_X}:{P_X+1}], s[0:1], {KA_AX}")
    a(f"s_load_dwordx2 s[{P_W}:{P_W+1}], s[0:1], {KA_WQKV}")
    decode_qkv(a, idreg)
    a("s_waitcnt lgkmcnt(0)")
    srd_from(a, SRD_A, P_X, P_X + 1, 2048 * 1024)
    srd_from(a, SRD_W, P_W, P_W + 1, 512 * 3072)
    a(f"s_lshl_b32 s{S_T}, s{S_RB}, 6")
    a(f"s_and_b32 s{S_T+1}, s{S_CB}, 3")
    a(f"s_lshl_b32 s{S_T+1}, s{S_T+1}, 4")
    a(f"s_add_u32 s{S_T}, s{S_T}, s{S_T+1}")
    a(f"s_lshl_b32 s{S_T+1}, s{S_W}, 2")
    a(f"s_add_u32 s{S_T}, s{S_T}, s{S_T+1}")
    a(f"s_lshl_b32 s{S_T}, s{S_T}, 10")
    a(f"v_lshrrev_b32 v{V_T}, 3, v0")
    a(f"v_lshlrev_b32 v{V_T}, 10, v{V_T}")
    a(f"v_and_b32 v{V_T+1}, 7, v0")
    a(f"v_lshlrev_b32 v{V_T+1}, 7, v{V_T+1}")
    a(f"v_add_u32 v{V_T}, v{V_T}, v{V_T+1}")
    a(f"s_mov_b32 exec_hi, 0")
    a(f"buffer_load_dword v242, v{V_T}, s[{SRD_A}:{SRD_A+3}], s{S_T} offen")
    a(f"s_mov_b32 exec_hi, -1")
    a(f"s_and_b32 s{S_T}, s{S_RB}, 7")
    a(f"s_lshl_b32 s{S_T}, s{S_T}, 6")
    a(f"s_lshl_b32 s{S_T+1}, s{S_W}, 4")
    a(f"s_add_u32 s{S_T}, s{S_T}, s{S_T+1}")
    a(f"s_mul_i32 s{S_T}, s{S_T}, 3072")
    a(f"s_lshl_b32 s{S_T+1}, s{S_CB}, 7")
    a(f"s_add_u32 s{S_T}, s{S_T}, s{S_T+1}")
    a(f"v_and_b32 v{V_T}, 15, v0")
    a(f"v_mul_u32_u24 v{V_T}, 3072, v{V_T}")
    a(f"v_lshrrev_b32 v{V_T+1}, 4, v0")
    a(f"v_lshlrev_b32 v{V_T+1}, 10, v{V_T+1}")
    a(f"v_add_u32 v{V_T}, v{V_T}, v{V_T+1}")
    a(f"s_mov_b32 exec_hi, 0xffff")
    a(f"buffer_load_dword v243, v{V_T}, s[{SRD_W}:{SRD_W+3}], s{S_T} offen")
    a(f"s_mov_b32 exec_hi, -1")
```

```python
import sys, os
sys.path.insert(0, os.path.dirname(os.path.abspath(__file__)))
from asmlib import *
from layout import *
import attn, jobs, splitk
from sync import *
from gemm import S_W, S_WS, S_T, S_RB, S_CB, V_T, SRD_A

NAME = "gated_mix__mha_block__glu_gated_geglu__prompt"
HEADER = open(os.path.join(os.path.dirname(os.path.abspath(__file__)), "header.txt")).read()
ENV = os.environ.get
C_QKV, C_G, C_ATT, C_TWIN = 0, 128, 192, 256


def build():
    a = Asm()
    a.raw(HEADER.rstrip("\n"))
    LDS = 81920
    if ENV("ASLIST"):
        a.raw(f"; @launch kernel={NAME}_kernel grid=(512,1,1) block=(256,1,1) lds={LDS}")
    else:
        a.raw(f"; @launch grid=(512,1,1) block=(256,1,1) lds={LDS}")
    a.raw('.amdgcn_target "amdgcn-amd-amdhsa--gfx950"')
    a.raw(".text")
    kernel_header(a, f"{NAME}_kernel")
    a("s_cmp_ge_u32 s2, 512")
    a("s_cbranch_scc1 k_done")
    preset(a); pstamp(a, "entry")
    jobs.common_entry(a)
    a("s_waitcnt lgkmcnt(0)")
    a("s_cmp_ge_u32 s2, 256")
    a("s_cbranch_scc1 k_ffn")
    a("s_setprio 2")

    def pre_qkv(a):
        a("s_lshl_b32 s52, s2, 2")
        a(f"s_add_u32 s52, s52, s{S_W}")
        nw = 1024 if ENV("APF") == "full" else 2048
        prefetch1(a, KA_WQKV, 512 * 3072, 52, nw, 178, 177, 54, 60)
        prefetch1(a, KA_AX, 2048 * 1024, 52, nw, 176, 177, 54, 60)
        if ENV("APF") != "full":
            a("s_waitcnt vmcnt(0)")
        pstamp(a, "pf1")
        init_probe(a, jobs.S_DBG, 179)

    def post_qkv(a):
        wait_init(a, jobs.S_DBG, S_W, V_T, S_T, probe=179)
        if ENV("TWIN"):
            signal(a, S_WS, 2, 1, S_W, V_T, WS_FLAG + 256 * C_TWIN, drain=False)
    def pre_qkv0(a):
        init_probe(a, jobs.S_DBG, 179)
    jobs.qkv_job(a, 2, sc1=True, pre=pre_qkv if ENV("APF") else pre_qkv0, post_loop=post_qkv)
    a(f"s_lshl_b32 s50, s{S_CB}, 4")
    signal(a, S_WS, 50, 16, S_W, V_T, WS_FLAG + 256 * C_QKV)
    pstamp(a, "qkv:sig")
    if ENV("NOF"):
        pflush(a, 2, S_W, S_WS, attn.TMP, 0)
        a("s_branch k_done")

    def wait_qkv(a):
        a(f"s_lshr_b32 s50, s{attn.S_HEAD}, 2")
        a(f"s_lshl_b32 s50, s50, 4")
        a(f"s_add_u32 s50, s50, s{attn.S_QB}")
        (wait_count_fast if ENV('FAST') else wait_count)(a, S_WS, 50, 32, S_W, attn.TMP, 60, WS_FLAG + 256 * C_QKV)
        pstamp(a, "qkv:flag")
    attn.OUT_SC1 = True
    attn.IN_SC1 = True
    attn.WAIT_IN = wait_qkv
    a(f"s_setprio {ENV('APRIO', '1')}")
    attn.attn_body(a, 2, None)
    a(f"s_lshl_b32 s50, s{attn.S_QB}, 3")
    signal(a, S_WS, 50, 8, S_W, attn.TMP, WS_FLAG + 256 * C_ATT)
    pstamp(a, "attn:sig")
    pflush(a, 2, S_W, S_WS, attn.TMP, 0)
    a("s_branch k_done")
    a.label("k_ffn")
    if ENV("NOF"):
        a("s_branch k_done")
    preset(a); pstamp(a, "entry")
    a("s_sub_u32 s3, s2, 256")
    a(f"s_or_b32 s50, s3, s{S_W}")
    a("s_cmp_lg_u32 s50, 0")
    a("s_cbranch_scc1 k_noinit")
    a("s_waitcnt lgkmcnt(0)")
    init_counters(a, S_WS, jobs.S_DBG, V_T, WS_FLAG)
    a.label("k_noinit")
    a("s_lshl_b32 s52, s3, 2")
    a(f"s_add_u32 s52, s52, s{S_W}")
    def f_weights_pf(a):
        prefetch1(a, KA_WG, 512 * 2752, 52, 1024, 244, 241, 54, 60)
        prefetch1(a, KA_WU, 512 * 2752, 52, 1024, 245, 241, 54, 60)
        prefetch1(a, KA_WD, 1376 * 1024, 52, 1024, 246, 241, 54, 60)
        prefetch1(a, KA_WO, 512 * 1024, 52, 1024, 247, 241, 54, 60)
    if not ENV("NOPF"):
        if ENV("APF") == "full":
            pass
        elif ENV("APF"):
            a("s_add_u32 s53, s52, 1024")
            prefetch1(a, KA_AX, 2048 * 1024, 53, 2048, 244, 241, 54, 60)
            prefetch1(a, KA_WQKV, 512 * 3072, 53, 2048, 245, 241, 54, 60)
        elif not ENV("NOPF1"):
            prefetch1(a, KA_WQKV, 512 * 3072, 52, 1024, 245, 241, 54, 60)
            prefetch1(a, KA_AX, 2048 * 1024, 52, 1024, 244, 241, 54, 60)
        a("s_waitcnt vmcnt(0)")
        pstamp(a, "pf1")
        if ENV("TOUCH"):
            jobs.qkv_touch(a, 3)
        if not ENV("FLATE"):
            f_weights_pf(a)
    wait_init(a, jobs.S_DBG, S_W, V_T, S_T)
    if ENV("HOLD"):
        jobs.decode_qkv(a, 3)
        a(f"s_lshl_b32 s50, s{S_CB}, 4")
        a(f"s_and_b32 s51, s{S_RB}, 7")
        a(f"s_add_u32 s50, s50, s51")
        a(f"s_add_u32 s50, s50, 8")
        wait_count(a, S_WS, 50, int(ENV("HOLDN", "32")), S_W, V_T, S_T, WS_FLAG + 256 * C_QKV)
        pstamp(a, "hold")
        if ENV("FLATE"):
            f_weights_pf(a)
    if ENV("TWIN"):
        wait_count(a, S_WS, 3, 1, S_W, V_T, S_T, WS_FLAG + 256 * C_TWIN)
        pstamp(a, "twin")
    a("s_setprio 3")
    jobs.g_job(a, 3, sc1=True, epi_prio=2, loop_prio=ENV('FPRIO', '0'))
    a(f"s_setprio {ENV('FPRIO', '0')}")
    a(f"s_lshl_b32 s50, s{S_RB}, 2")
    signal(a, S_WS, 50, 4, S_W, V_T, WS_FLAG + 256 * C_G)
    pstamp(a, "sig")

    def wait_g(a):
        a(f"s_lshr_b32 s50, s{S_RB}, 1")
        a(f"s_lshl_b32 s50, s50, 2")
        a(f"s_and_b32 s51, s{S_CB}, 3")
        a(f"s_add_u32 s50, s50, s51")
        wait_count(a, S_WS, 50, 16, S_W, V_T, S_T, WS_FLAG + 256 * C_G)
    splitk.d_job(a, 3, a_sc1=True, wait=wait_g, post_prio=ENV('DPRIO', '0'))

    def wait_attn(a):
        a(f"s_lshr_b32 s50, s{S_RB}, 1")
        a(f"s_lshl_b32 s50, s50, 2")
        a(f"s_and_b32 s51, s{S_CB}, 3")
        a(f"s_add_u32 s50, s50, s51")
        (wait_count_fast if ENV('FAST') else wait_count)(a, S_WS, 50, 32, S_W, V_T, S_T, WS_FLAG + 256 * C_ATT)
    splitk.wo2_job(a, 3, wait=wait_attn)
    pflush(a, 2, S_W, S_WS, V_T, 0)
    a.label("k_done")
    a("s_endpgm")
    a.raw('.section .rodata,"a"')
    a.raw(".p2align 6")
    a.raw(kernel_desc(f"{NAME}_kernel", 248))
    return a.text()


if __name__ == "__main__":
    out = sys.argv[1] if len(sys.argv) > 1 else f"cdna_kernels/{NAME}.s"
    open(out, "w").write(build())
    print("wrote", out, os.path.getsize(out), "bytes")
```

```python
import sys, os
sys.path.insert(0, os.path.dirname(os.path.abspath(__file__)))
from asmlib import *
from layout import *
import attn, jobs, splitk
from sync import *
from gemm import S_W, S_WS, S_T, S_RB, S_CB, V_T, SRD_A

NAME = "gated_mix__mha_block__glu_gated_geglu__prompt"
HEADER = open(os.path.join(os.path.dirname(os.path.abspath(__file__)), "header.txt")).read()
ENV = os.environ.get
C_QKV, C_G, C_ATT, C_TWIN = 0, 128, 192, 256


def build():
    a = Asm()
    a.raw(HEADER.rstrip("\n"))
    LDS = 81920
    if ENV("ASLIST"):
        a.raw(f"; @launch kernel={NAME}_kernel grid=(512,1,1) block=(256,1,1) lds={LDS}")
    else:
        a.raw(f"; @launch grid=(512,1,1) block=(256,1,1) lds={LDS}")
    a.raw('.amdgcn_target "amdgcn-amd-amdhsa--gfx950"')
    a.raw(".text")
    kernel_header(a, f"{NAME}_kernel")
    a("s_cmp_ge_u32 s2, 512")
    a("s_cbranch_scc1 k_done")
    preset(a); pstamp(a, "entry")
    jobs.common_entry(a)
    a("s_waitcnt lgkmcnt(0)")
    a("s_cmp_ge_u32 s2, 256")
    a("s_cbranch_scc1 k_ffn")
    a("s_setprio 2")

    def pre_qkv(a):
        a("s_lshl_b32 s52, s2, 2")
        a(f"s_add_u32 s52, s52, s{S_W}")
        nw = 1024 if ENV("APF") == "full" else 2048
        prefetch1(a, KA_WQKV, 512 * 3072, 52, nw, 178, 177, 54, 60)
        prefetch1(a, KA_AX, 2048 * 1024, 52, nw, 176, 177, 54, 60)
        if ENV("APF") != "full":
            a("s_waitcnt vmcnt(0)")
        pstamp(a, "pf1")
        init_probe(a, jobs.S_DBG, 179)

    def post_qkv(a):
        wait_init(a, jobs.S_DBG, S_W, V_T, S_T, probe=179)
        if ENV("TWIN"):
            signal(a, S_WS, 2, 1, S_W, V_T, WS_FLAG + 256 * C_TWIN, drain=False)
    def pre_qkv0(a):
        init_probe(a, jobs.S_DBG, 179)
    jobs.qkv_job(a, 2, sc1=True, pre=pre_qkv if ENV("APF") else pre_qkv0, post_loop=post_qkv)
    a(f"s_lshl_b32 s50, s{S_CB}, 4")
    signal(a, S_WS, 50, 16, S_W, V_T, WS_FLAG + 256 * C_QKV)
    pstamp(a, "qkv:sig")
    if ENV("NOF"):
        pflush(a, 2, S_W, S_WS, attn.TMP, 0)
        a("s_branch k_done")

    def wait_qkv(a):
        a(f"s_lshr_b32 s50, s{attn.S_HEAD}, 2")
        a(f"s_lshl_b32 s50, s50, 4")
        a(f"s_add_u32 s50, s50, s{attn.S_QB}")
        (wait_count_fast if ENV('FAST') else wait_count)(a, S_WS, 50, 32, S_W, attn.TMP, 60, WS_FLAG + 256 * C_QKV)
        pstamp(a, "qkv:flag")
    attn.OUT_SC1 = True
    attn.IN_SC1 = True
    attn.WAIT_IN = wait_qkv
    a(f"s_setprio {ENV('APRIO', '1')}")
    attn.attn_body(a, 2, None)
    a(f"s_lshl_b32 s50, s{attn.S_QB}, 3")
    signal(a, S_WS, 50, 8, S_W, attn.TMP, WS_FLAG + 256 * C_ATT)
    pstamp(a, "attn:sig")
    pflush(a, 2, S_W, S_WS, attn.TMP, 0)
    a("s_branch k_done")
    a.label("k_ffn")
    if ENV("NOF"):
        a("s_branch k_done")
    preset(a); pstamp(a, "entry")
    a("s_sub_u32 s3, s2, 256")
    a(f"s_or_b32 s50, s3, s{S_W}")
    a("s_cmp_lg_u32 s50, 0")
    a("s_cbranch_scc1 k_noinit")
    a("s_waitcnt lgkmcnt(0)")
    init_counters(a, S_WS, jobs.S_DBG, V_T, WS_FLAG)
    a.label("k_noinit")
    a("s_lshl_b32 s52, s3, 2")
    a(f"s_add_u32 s52, s52, s{S_W}")
    def f_weights_pf(a):
        prefetch1(a, KA_WG, 512 * 2752, 52, 1024, 244, 241, 54, 60)
        prefetch1(a, KA_WU, 512 * 2752, 52, 1024, 245, 241, 54, 60)
        prefetch1(a, KA_WD, 1376 * 1024, 52, 1024, 246, 241, 54, 60)
        prefetch1(a, KA_WO, 512 * 1024, 52, 1024, 247, 241, 54, 60)
    if not ENV("NOPF"):
        if ENV("APF") == "full":
            pass
        elif ENV("APF"):
            a("s_add_u32 s53, s52, 1024")
            prefetch1(a, KA_AX, 2048 * 1024, 53, 2048, 244, 241, 54, 60)
            prefetch1(a, KA_WQKV, 512 * 3072, 53, 2048, 245, 241, 54, 60)
        elif not ENV("NOPF1"):
            prefetch1(a, KA_WQKV, 512 * 3072, 52, 1024, 245, 241, 54, 60)
            prefetch1(a, KA_AX, 2048 * 1024, 52, 1024, 244, 241, 54, 60)
        a("s_waitcnt vmcnt(0)")
        pstamp(a, "pf1")
        if ENV("TOUCH"):
            jobs.qkv_touch(a, 3)
        if not ENV("FLATE"):
            f_weights_pf(a)
    wait_init(a, jobs.S_DBG, S_W, V_T, S_T)
    if ENV("HOLD"):
        jobs.decode_qkv(a, 3)
        a(f"s_lshl_b32 s50, s{S_CB}, 4")
        a(f"s_and_b32 s51, s{S_RB}, 7")
        a(f"s_add_u32 s50, s50, s51")
        a(f"s_add_u32 s50, s50, 8")
        wait_count(a, S_WS, 50, int(ENV("HOLDN", "32")), S_W, V_T, S_T, WS_FLAG + 256 * C_QKV)
        pstamp(a, "hold")
        if ENV("FLATE"):
            f_weights_pf(a)
    if ENV("TWIN"):
        wait_count(a, S_WS, 3, 1, S_W, V_T, S_T, WS_FLAG + 256 * C_TWIN)
        pstamp(a, "twin")
    a("s_setprio 3")
    jobs.g_job(a, 3, sc1=True, epi_prio=2, loop_prio=ENV('FPRIO', '0'))
    a(f"s_setprio {ENV('FPRIO', '0')}")
    a(f"s_lshl_b32 s50, s{S_RB}, 2")
    signal(a, S_WS, 50, 4, S_W, V_T, WS_FLAG + 256 * C_G)
    pstamp(a, "sig")

    def wait_g(a):
        a(f"s_lshr_b32 s50, s{S_RB}, 1")
        a(f"s_lshl_b32 s50, s50, 2")
        a(f"s_and_b32 s51, s{S_CB}, 3")
        a(f"s_add_u32 s50, s50, s51")
        wait_count(a, S_WS, 50, 16, S_W, V_T, S_T, WS_FLAG + 256 * C_G)
    splitk.d_job(a, 3, a_sc1=True, wait=wait_g, post_prio=ENV('DPRIO', '0'))

    def wait_attn(a):
        a(f"s_lshr_b32 s50, s{S_RB}, 1")
        a(f"s_lshl_b32 s50, s50, 2")
        a(f"s_and_b32 s51, s{S_CB}, 3")
        a(f"s_add_u32 s50, s50, s51")
        (wait_count_fast if ENV('FAST') else wait_count)(a, S_WS, 50, 32, S_W, V_T, S_T, WS_FLAG + 256 * C_ATT)
    splitk.wo2_job(a, 3, wait=wait_attn)
    pflush(a, 2, S_W, S_WS, V_T, 0)
    a.label("k_done")
    a("s_endpgm")
    a.raw('.section .rodata,"a"')
    a.raw(".p2align 6")
    a.raw(kernel_desc(f"{NAME}_kernel", 248))
    return a.text()


def build2():
    a = Asm()
    a.raw(HEADER.rstrip("\\n"))
    LDS = 81920
    a.raw(f"; @launch kernel=k1_kernel grid=(256,1,1) block=(256,1,1) lds={LDS}")
    a.raw(f"; @launch kernel={NAME}_kernel grid=(512,1,1) block=(256,1,1) lds={LDS}")
    a.raw('.amdgcn_target "amdgcn-amd-amdhsa--gfx950"')
    a.raw(".text")
    kernel_header(a, "k1_kernel")
    a("s_cmp_ge_u32 s2, 256")
    a("s_cbranch_scc1 k1_done")
    preset(a); pstamp(a, "entry")
    jobs.common_entry(a)
    a("s_waitcnt lgkmcnt(0)")

    def pre_qkv(a):
        a("s_lshl_b32 s52, s2, 2")
        a(f"s_add_u32 s52, s52, s{S_W}")
        prefetch1(a, KA_WQKV, 512 * 3072, 52, 1024, 178, 177, 54, 60)
        prefetch1(a, KA_AX, 2048 * 1024, 52, 1024, 176, 177, 54, 60)

    def post_qkv(a):
        prefetch1(a, KA_WG, 512 * 2752, 52, 1024, 180, 177, 54, 60)
        prefetch1(a, KA_WU, 512 * 2752, 52, 1024, 181, 177, 54, 60)
        prefetch1(a, KA_WD, 1376 * 1024, 52, 1024, 182, 177, 54, 60)
        prefetch1(a, KA_WO, 512 * 1024, 52, 1024, 183, 177, 54, 60)
    jobs.qkv_job(a, 2, sc1=False, pre=pre_qkv, post_loop=post_qkv)
    a(f"s_or_b32 s50, s2, s{S_W}")
    a("s_cmp_lg_u32 s50, 0")
    a("s_cbranch_scc1 k1_noinit")
    a(f"v_lshlrev_b32 v{V_T}, 8, v0")
    a(f"v_add_u32 v{V_T}, {WS_FLAG}, v{V_T}")
    a(f"v_mov_b32 v{V_T+1}, 0")
    for i in range(4):
        a(f"global_store_dword v{V_T}, v{V_T+1}, s[{S_WS}:{S_WS+1}]")
        if i < 3:
            a(f"v_add_u32 v{V_T}, 16384, v{V_T}")
    a.label("k1_noinit")
    pflush(a, 2, S_W, S_WS, V_T, 1)
    a.label("k1_done")
    a("s_endpgm")
    kernel_header(a, f"{NAME}_kernel")
    a("s_cmp_ge_u32 s2, 512")
    a("s_cbranch_scc1 k_done")
    preset(a); pstamp(a, "entry")
    jobs.common_entry(a)
    a("s_waitcnt lgkmcnt(0)")
    a("s_cmp_ge_u32 s2, 256")
    a("s_cbranch_scc1 k_ffn")
    attn.OUT_SC1 = True
    attn.IN_SC1 = False
    attn.WAIT_IN = None
    a(f"s_setprio {ENV('APRIO', '1')}")
    attn.attn_body(a, 2, None)
    a(f"s_lshl_b32 s50, s{attn.S_QB}, 3")
    signal(a, S_WS, 50, 8, S_W, attn.TMP, WS_FLAG + 256 * C_ATT)
    pstamp(a, "attn:sig")
    pflush(a, 2, S_W, S_WS, attn.TMP, 0)
    a("s_branch k_done")
    a.label("k_ffn")
    preset(a); pstamp(a, "entry")
    a("s_sub_u32 s3, s2, 256")
    a("s_setprio 3")
    jobs.g_job(a, 3, sc1=True, epi_prio=2, loop_prio=ENV('FPRIO', '0'))
    a(f"s_setprio {ENV('FPRIO', '0')}")
    a(f"s_lshl_b32 s50, s{S_RB}, 2")
    signal(a, S_WS, 50, 4, S_W, V_T, WS_FLAG + 256 * C_G)
    pstamp(a, "sig")

    def wait_g(a):
        a(f"s_lshr_b32 s50, s{S_RB}, 1")
        a(f"s_lshl_b32 s50, s50, 2")
        a(f"s_and_b32 s51, s{S_CB}, 3")
        a(f"s_add_u32 s50, s50, s51")
        wait_count(a, S_WS, 50, 16, S_W, V_T, S_T, WS_FLAG + 256 * C_G)
    splitk.d_job(a, 3, a_sc1=True, wait=wait_g, post_prio=ENV('DPRIO', '0'))

    def wait_attn(a):
        a(f"s_lshr_b32 s50, s{S_RB}, 1")
        a(f"s_lshl_b32 s50, s50, 2")
        a(f"s_and_b32 s51, s{S_CB}, 3")
        a(f"s_add_u32 s50, s50, s51")
        wait_count(a, S_WS, 50, 32, S_W, V_T, S_T, WS_FLAG + 256 * C_ATT)
    splitk.wo2_job(a, 3, wait=wait_attn)
    pflush(a, 2, S_W, S_WS, V_T, 0)
    a.label("k_done")
    a("s_endpgm")
    a.raw('.section .rodata,"a"')
    a.raw(".p2align 6")
    a.raw(kernel_desc("k1_kernel", 192))
    a.raw(".p2align 6")
    a.raw(kernel_desc(f"{NAME}_kernel", 248))
    return a.text()


if __name__ == "__main__":
    out = sys.argv[1] if len(sys.argv) > 1 else f"cdna_kernels/{NAME}.s"
    open(out, "w").write(build2() if ENV("TWO") else build())
    print("wrote", out, os.path.getsize(out), "bytes")
```

```python
from asmlib import *
from layout import *
import os
DBG = os.environ.get('ATTN_DBG', '')
SPACING = os.environ.get('SPACING', '1') != '0'

V_LANE16 = 1
V_VOFF = 2
V_T0 = 3
QA, QB = 4, 8
V_IDX = 12
V_T1, V_T2, V_T3 = 13, 14, 15
V_LANE16H = 152
KB = [16, 20]
V0B = [24, 28]
V1B = [32, 36]
SA, SB = 40, 56
OA, OB_ = 72, 88
CA, CB = 104, 120
TMP = 136
NV_ATTN = 156

SLOT = 16384
LDS_ONES = 3 * SLOT
LDS_FLAG = LDS_ONES + 8192
LDS_ATTN = LDS_FLAG + 64
V_VA = [153, 154, 155]

S_WS = 4
S_HEAD = 6
S_QB = 7
S_W = 8
S_KSRD = 12
S_VSRD = 16
S_MASK = 20
S_T = 22
S_PASS = 32
S_QBASE = 34
S_OBASE = 36
S_KBASE = 38


def dma_chunk(a, c):
    slot = (c % 3) * SLOT
    a(f"s_add_u32 m0, s{S_T}, {slot}")
    a(f"s_add_u32 s{S_T+3}, s{S_T}, {c * 8192}")
    a(f"buffer_load_dwordx4 v{V_LANE16}, s[{S_KSRD}:{S_KSRD+3}], s{S_T+3} offen{' sc1' if IN_SC1 else ''} lds")
    a(f"buffer_load_dwordx4 v{V_LANE16}, s[{S_KSRD}:{S_KSRD+3}], s{S_T+3} offen offset:1024{' sc1' if IN_SC1 else ''} lds")
    a(f"s_add_u32 m0, s{S_T}, {slot + 8192}")
    a("s_nop 0")
    a(f"buffer_load_dwordx4 v{V_LANE16}, s[{S_VSRD}:{S_VSRD+3}], s{S_T+3} offen{' sc1' if IN_SC1 else ''} lds")
    a(f"buffer_load_dwordx4 v{V_LANE16}, s[{S_VSRD}:{S_VSRD+3}], s{S_T+3} offen offset:1024{' sc1' if IN_SC1 else ''} lds")


def k_addr(t):
    c, i = t >> 3, t & 7
    return (c % 3) * SLOT + i * 1024


def ds_rd_k(a, dst, t):
    if 'nods' in DBG:
        return
    a(f"ds_read_b128 v[{dst}:{dst+3}], v{V_LANE16} offset:{k_addr(t)}")


def ds_rd_v(a, dst, t, half):
    if 'nods' in DBG:
        return
    c, i = t >> 3, t & 7
    a(f"ds_read_b128 v[{dst}:{dst+3}], v{V_VA[c % 3]} offset:{(2 * i + half) * 512}")


def qk(a, S, K, Q, C):
    if 'noqk' in DBG:
        return
    a(f"v_mfma_f32_32x32x16_bf16 v[{S}:{S+15}], v[{K}:{K+3}], v[{Q}:{Q+3}], v[{C}:{C+15}]")


def pv(a, O, V, P):
    if 'nopv' in DBG:
        return
    a(f"v_smfmac_f32_32x32x32_bf16 v[{O}:{O+15}], v[{V}:{V+3}], v[{P}:{P+7}], v{V_IDX}")


def exps(a, S, lo, hi):
    for r in range(lo, hi):
        a(f"v_exp_f32 v{S+r}, v{S+r}")


def main_loop(a):
    NT = 64
    ds_rd_k(a, KB[1], 0)
    ds_rd_v(a, V1B[0], 0, 1)
    ds_rd_k(a, KB[0], 1)
    ds_rd_v(a, V0B[0], 0, 0)
    a("s_waitcnt lgkmcnt(3)")
    qk(a, SA, KB[1], QA, CA)
    a("s_nop 7")
    a("s_nop 3")
    for t in range(NT):
        cur, prv = t & 1, (t - 1) & 1
        more = t + 1 < NT
        P1, P2 = (4, 7) if SPACING else (2, 5)
        exps(a, SA, 0, P1)
        if t > 0:
            pv(a, OB_, V1B[prv], SB + 8)
        n = 0
        if more:
            ds_rd_v(a, V1B[prv], t + 1, 1); n += 1
        exps(a, SA, P1, P2)
        qk(a, SB, KB[prv], QB, CB)
        if t + 2 < NT:
            ds_rd_k(a, KB[prv], t + 2); n += 1
        exps(a, SA, P2, 10)
        if 'nowait' not in DBG:
            a(f"s_waitcnt lgkmcnt({n})")
        pv(a, OA, V0B[cur], SA)
        if more:
            ds_rd_v(a, V0B[prv], t + 1, 0)
        exps(a, SA, 10, 16)
        exps(a, SB, 0, P1)
        pv(a, OA, V1B[cur], SA + 8)
        exps(a, SB, P1, P2)
        if more:
            qk(a, SA, KB[cur], QA, CA)
        bnd = (t & 7) == 4 and 'nobar' not in DBG and (t >> 3) + 1 < 8
        if bnd:
            a("s_waitcnt vmcnt(0)")
            a("s_barrier")
        exps(a, SB, P2, 10)
        pv(a, OB_, V0B[cur], SB)
        if bnd and (t >> 3) + 2 < 8:
            dma_chunk(a, (t >> 3) + 2)
        exps(a, SB, 10, 16)
    a("s_nop 1")
    pv(a, OB_, V1B[(NT - 1) & 1], SB + 8)


STAMP = False
IN_SC1 = False
WAIT_IN = None
OUT_SC1 = False
TWICE = False
S_ST = 40

def stamp(a, i):
    if STAMP:
        a(f"s_memtime s[{S_ST+2*i}:{S_ST+2*i+1}]")
        if i in (1, 2):
            a(f"s_memrealtime s[{S_ST+8+2*(i-1)}:{S_ST+8+2*(i-1)+1}]")


def attn_body(a, idreg, done_label):
    stamp(a, 0)
    a(f"s_and_b32 s{S_HEAD}, s{idreg}, 7")
    a(f"s_lshl_b32 s{S_HEAD}, s{S_HEAD}, 2")
    a(f"s_lshr_b32 s{S_T}, s{idreg}, 6")
    a(f"s_add_u32 s{S_HEAD}, s{S_HEAD}, s{S_T}")
    a(f"s_lshr_b32 s{S_QB}, s{idreg}, 3")
    a(f"s_and_b32 s{S_QB}, s{S_QB}, 7")
    a(f"v_lshlrev_b32 v{V_LANE16}, 4, v0")
    a(f"v_lshrrev_b32 v{V_T1}, 5, v0")
    a(f"v_lshlrev_b32 v{V_T1}, 8, v{V_T1}")
    a(f"v_and_b32 v{V_T2}, 15, v0")
    a(f"v_lshlrev_b32 v{V_T2}, 4, v{V_T2}")
    a(f"v_add_u32 v{V_VOFF}, v{V_T1}, v{V_T2}")
    a(f"v_and_b32 v{V_T1}, 16, v0")
    a(f"v_cmp_eq_u32 vcc, 0, v{V_T1}")
    for sl in range(3):
        a(f"v_mov_b32 v{V_T1}, {LDS_ONES}")
        a(f"v_mov_b32 v{V_T2}, {sl * SLOT + 8192}")
        a(f"v_cndmask_b32 v{V_T1}, v{V_T1}, v{V_T2}, vcc")
        a(f"v_add_u32 v{V_VA[sl]}, v{V_T1}, v{V_VOFF}")
    a(f"v_mov_b32 v{V_IDX}, 0xdddddddd")
    a(f"s_mov_b32 s{S_MASK}, 0x0000ffff")
    a(f"s_mov_b32 s{S_MASK+1}, 0x0000ffff")
    a(f"s_lshl_b32 s{S_T+4}, s{S_HEAD}, 16")
    a("s_waitcnt lgkmcnt(0)")
    a(f"s_add_u32 s{S_KBASE}, s{S_WS}, s{S_T+4}")
    a(f"s_addc_u32 s{S_KBASE+1}, s{S_WS+1}, 0")
    a(f"s_add_u32 s{S_QBASE}, s{S_KBASE}, {WS_QF}")
    a(f"s_addc_u32 s{S_QBASE+1}, s{S_KBASE+1}, 0")
    a(f"s_add_u32 s{S_T+5}, s{S_KBASE}, {WS_VF}")
    a(f"s_addc_u32 s{S_T+6}, s{S_KBASE+1}, 0")
    make_srd(a, S_VSRD, S_T + 5, S_T + 6, 65536)
    a(f"s_add_u32 s{S_KBASE}, s{S_KBASE}, {WS_KF}")
    a(f"s_addc_u32 s{S_KBASE+1}, s{S_KBASE+1}, 0")
    make_srd(a, S_KSRD, S_KBASE, S_KBASE + 1, 65536)
    a(f"s_lshl_b32 s{S_T}, s{S_W}, 11")
    a(f"s_lshr_b32 s{S_T+4}, s{S_HEAD}, 1")
    a(f"s_lshl_b32 s{S_T+4}, s{S_T+4}, 13")
    a(f"s_and_b32 s{S_T+5}, s{S_HEAD}, 1")
    a(f"s_lshl_b32 s{S_T+5}, s{S_T+5}, 10")
    a(f"s_add_u32 s{S_T+4}, s{S_T+4}, s{S_T+5}")
    a(f"s_add_u32 s{S_T+4}, s{S_T+4}, {WS_OB}")
    a(f"s_add_u32 s{S_OBASE}, s{S_WS}, s{S_T+4}")
    a(f"s_addc_u32 s{S_OBASE+1}, s{S_WS+1}, 0")
    a(f"s_lshl_b32 s{S_T+4}, s{S_QB}, 13")
    a(f"s_lshl_b32 s{S_T+5}, s{S_W}, 11")
    a(f"s_add_u32 s{S_T+4}, s{S_T+4}, s{S_T+5}")
    a(f"v_add_u32 v{V_T1}, s{S_T+4}, v{V_LANE16}")
    for r in range(32):
        a(f"v_mov_b32 v{CA+r}, 0")
    a(f"s_mov_b32 s{S_PASS}, 0")
    a(f"v_and_b32 v{V_T1}, 11, v0")
    a(f"v_cmp_eq_u32 vcc, 0, v{V_T1}")
    a(f"v_mov_b32 v{V_T2}, 0x3f803f80")
    a("s_nop 1")
    a(f"v_cndmask_b32 v{TMP}, 0, v{V_T2}, vcc")
    for r in range(1, 4):
        a(f"v_mov_b32 v{TMP+r}, v{TMP}")
    a(f"v_add_u32 v{V_T1}, s{S_T}, v{V_LANE16}")
    for i in range(2):
        a(f"ds_write_b128 v{V_T1}, v[{TMP}:{TMP+3}] offset:{LDS_ONES + i * 1024}")
    a(f"v_add_u32 v{V_T1}, s{S_T+4}, v{V_LANE16}")
    if WAIT_IN:
        WAIT_IN(a)
    a(f"global_load_dwordx4 v[{QA}:{QA+3}], v{V_T1}, s[{S_QBASE}:{S_QBASE+1}]{' sc1' if IN_SC1 else ''}")
    a(f"global_load_dwordx4 v[{QB}:{QB+3}], v{V_T1}, s[{S_QBASE}:{S_QBASE+1}] offset:1024{' sc1' if IN_SC1 else ''}")
    dma_chunk(a, 0)
    dma_chunk(a, 1)
    a.label("attn_pass")
    for r in range(32):
        a(f"v_mov_b32 v{OA+r}, 0")
    a("s_waitcnt vmcnt(4) lgkmcnt(0)")
    a("s_barrier")
    stamp(a, 1)
    pstamp(a, 'attn:first')
    main_loop(a)
    stamp(a, 2)
    pstamp(a, 'attn:loopend')
    if TWICE:
        a(f"s_cmp_lg_u32 s{S_PASS}, 0")
        a("s_cbranch_scc1 attn_tw")
        a(f"s_mov_b32 s{S_PASS}, 1")
        a("s_waitcnt lgkmcnt(0)")
        a(f"s_mov_b64 s[{S_ST}:{S_ST+1}], s[{S_ST+4}:{S_ST+5}]")
        a("s_barrier")
        dma_chunk(a, 0)
        dma_chunk(a, 1)
        a("s_branch attn_pass")
        a.label("attn_tw")
    a("s_nop 7")
    a("s_nop 7")
    a(f"v_mov_b32 v{TMP+12}, 0")
    for O in (OA, OB_):
        for r in range(8):
            a(f"v_fma_f32 v{TMP+12}, v{O+r}, 0, v{TMP+12}")
    a(f"s_mov_b32 s{S_T+4}, 0x21800000")
    a(f"s_mov_b32 s{S_T+5}, 0x71800000")
    a(f"v_cmp_eq_f32 vcc, 0, v{TMP+12}")
    a(f"v_cmp_ge_f32 s[{S_T+6}:{S_T+7}], v{OA+8}, s{S_T+4}")
    a(f"s_and_b64 vcc, vcc, s[{S_T+6}:{S_T+7}]")
    a(f"v_cmp_le_f32 s[{S_T+6}:{S_T+7}], v{OA+8}, s{S_T+5}")
    a(f"s_and_b64 vcc, vcc, s[{S_T+6}:{S_T+7}]")
    a(f"v_cmp_ge_f32 s[{S_T+6}:{S_T+7}], v{OB_+8}, s{S_T+4}")
    a(f"s_and_b64 vcc, vcc, s[{S_T+6}:{S_T+7}]")
    a(f"v_cmp_le_f32 s[{S_T+6}:{S_T+7}], v{OB_+8}, s{S_T+5}")
    a(f"s_and_b64 vcc, vcc, s[{S_T+6}:{S_T+7}]")
    a(f"s_cmp_eq_u64 vcc, -1")
    a(f"s_cselect_b32 s{S_T+4}, 0, 1")
    a(f"s_lshl_b32 s{S_T+5}, s{S_W}, 2")
    a(f"s_add_u32 s{S_T+5}, s{S_T+5}, {LDS_FLAG}")
    a(f"v_mov_b32 v{TMP+12}, s{S_T+5}")
    a(f"v_mov_b32 v{TMP+13}, s{S_T+4}")
    a(f"ds_write_b32 v{TMP+12}, v{TMP+13}")
    a(f"s_lshl_b32 s{S_T+4}, s{S_QB}, 1")
    a(f"s_lshr_b32 s{S_T+5}, s{S_W}, 1")
    a(f"s_add_u32 s{S_T+4}, s{S_T+4}, s{S_T+5}")
    a(f"s_lshl_b32 s{S_T+4}, s{S_T+4}, 17")
    a(f"s_and_b32 s{S_T+5}, s{S_W}, 1")
    a(f"s_lshl_b32 s{S_T+5}, s{S_T+5}, 12")
    a(f"s_add_u32 s{S_T+4}, s{S_T+4}, s{S_T+5}")
    a(f"v_add_u32 v{V_T1}, s{S_T+4}, v{V_LANE16}")
    a(f"v_add_u32 v{V_T2}, 2048, v{V_T1}")
    for O, T, A in ((OA, TMP, V_T1), (OB_, TMP + 4, V_T2)):
        a(f"v_rcp_f32 v{V_T3}, v{O+8}")
        a("s_nop 0")
        for r in range(8):
            a(f"v_mul_f32 v{O+r}, v{O+r}, v{V_T3}")
        for r in range(4):
            a(f"v_cvt_pk_bf16_f32 v{T+r}, v{O+2*r}, v{O+2*r+1}")
        a(f"global_store_dwordx4 v{A}, v[{T}:{T+3}], s[{S_OBASE}:{S_OBASE+1}]{' sc1' if OUT_SC1 else ''}")
    a("s_waitcnt vmcnt(0) lgkmcnt(0)")
    a("s_barrier")
    a(f"s_cmp_lg_u32 s{S_PASS}, 0")
    a("s_cbranch_scc1 attn_fin")
    a(f"v_mov_b32 v{TMP}, {LDS_FLAG}")
    a(f"ds_read_b128 v[{TMP+4}:{TMP+7}], v{TMP}")
    a("s_waitcnt lgkmcnt(0)")
    a(f"v_or_b32 v{TMP+4}, v{TMP+4}, v{TMP+5}")
    a(f"v_or3_b32 v{TMP+4}, v{TMP+4}, v{TMP+6}, v{TMP+7}")
    a("s_nop 1")
    a(f"v_readfirstlane_b32 s{S_T+4}, v{TMP+4}")
    a("s_nop 3")
    a(f"s_cmp_eq_u32 s{S_T+4}, 0")
    a("s_cbranch_scc1 attn_fin")
    a(f"s_mov_b32 s{S_PASS}, 1")
    a(f"v_mov_b32 v{TMP+8}, 0xff800000")
    a(f"v_mov_b32 v{TMP+9}, 0xff800000")
    a(f"v_mov_b32 v{V_T1}, v{V_LANE16}")
    a(f"s_mov_b32 s{S_T+4}, 64")
    a.label("attn_maxloop")
    a(f"global_load_dwordx4 v[{KB[0]}:{KB[0]+3}], v{V_T1}, s[{S_KBASE}:{S_KBASE+1}]{' sc1' if IN_SC1 else ''}")
    a(f"v_add_u32 v{V_T1}, 1024, v{V_T1}")
    a("s_waitcnt vmcnt(0)")
    a(f"v_mfma_f32_32x32x16_bf16 v[{SA}:{SA+15}], v[{KB[0]}:{KB[0]+3}], v[{QA}:{QA+3}], 0")
    a(f"v_mfma_f32_32x32x16_bf16 v[{SB}:{SB+15}], v[{KB[0]}:{KB[0]+3}], v[{QB}:{QB+3}], 0")
    a("s_nop 15")
    a("s_nop 7")
    for S, M in ((SA, TMP + 8), (SB, TMP + 9)):
        for r in range(0, 16, 2):
            a(f"v_max3_f32 v{M}, v{S+r}, v{S+r+1}, v{M}")
    a(f"s_sub_u32 s{S_T+4}, s{S_T+4}, 1")
    a(f"s_cmp_lg_u32 s{S_T+4}, 0")
    a("s_cbranch_scc1 attn_maxloop")
    for M in (TMP + 8, TMP + 9):
        a(f"v_mov_b32 v{TMP+10}, v{M}")
        a("s_nop 1")
        a(f"v_permlane32_swap_b32 v{TMP+10}, v{M}")
        a("s_nop 1")
        a(f"v_max_f32 v{M}, v{TMP+10}, v{M}")
    for r in range(16):
        a(f"v_sub_f32 v{CA+r}, 0, v{TMP+8}")
        a(f"v_sub_f32 v{CB+r}, 0, v{TMP+9}")
    a("s_barrier")
    dma_chunk(a, 0)
    dma_chunk(a, 1)
    a("s_branch attn_pass")
    a.label("attn_fin")
    if STAMP:
        stamp(a, 3)
        a("s_waitcnt lgkmcnt(0)")
        a(f"s_load_dwordx2 s[60:61], s[0:1], {KA_DBG}")
        a(f"s_lshl_b32 s62, s{idreg}, 2")
        a(f"s_add_u32 s62, s62, s{S_W}")
        a(f"s_lshl_b32 s62, s62, 4")
        a(f"s_sub_u32 s{S_ST+2}, s{S_ST+2}, s{S_ST}")
        a(f"s_sub_u32 s{S_ST+4}, s{S_ST+4}, s{S_ST}")
        a(f"s_sub_u32 s{S_ST+6}, s{S_ST+6}, s{S_ST}")
        a(f"s_sub_u32 s{S_ST}, s{S_ST+10}, s{S_ST+8}")
        a(f"v_mov_b32 v{TMP}, s{S_ST}")
        a(f"v_mov_b32 v{TMP+1}, s{S_ST+2}")
        a(f"v_mov_b32 v{TMP+2}, s{S_ST+4}")
        a(f"v_mov_b32 v{TMP+3}, s{S_ST+6}")
        a(f"v_mov_b32 v{TMP+4}, s62")
        a("s_waitcnt lgkmcnt(0)")
        a(f"global_store_dwordx4 v{TMP+4}, v[{TMP}:{TMP+3}], s[60:61]")
    pstamp(a, 'attn:end')
    if done_label:
        a(f"s_branch {done_label}")
```

```python
from asmlib import *
from layout import *
from gemm import (S_W, S_RB, S_CB, S_NP, SRD_A, SRD_W, S_SOA, S_SOW, S_LDA, S_LDW, S_T, S_P0, S_WS, V_T, _ds, HI, interleave)
from splitk import VmQ

V_OA = 1
V_OW = 5
V_RA = 8


class J2:
    pass


def ds_rd(op, dst, n, lo, hi, off):
    return _ds(op, dst, n, lo, hi, off)


def engine(a, j):
    NS = j.NS
    q = VmQ()
    issuedW = min(j.RW, NS)
    issuedA = min(j.RA, NS // 2)
    pstamp(a, j.name + ':issue')
    ia = iw = 0
    while ia < issuedA or iw < issuedW:
        if ia < issuedA and 2 * ia <= iw:
            j.dmaA(a, ia); q.add(('A', ia), j.nA); ia += 1
        elif iw < issuedW:
            j.dmaW(a, iw); q.add(('W', iw), j.nW); iw += 1
        else:
            j.dmaA(a, ia); q.add(('A', ia), j.nA); ia += 1
    pstamp(a, j.name + ':issued')
    nx = j.after_prologue(a)
    if nx:
        q.add(('X', 0), nx)
    a(f"s_waitcnt vmcnt({q.wait_for([('A', 0), ('W', 0)])})")
    a("s_barrier")
    pstamp(a, j.name + ':first')
    for r in j.reads(0):
        a(r)
    for st in range(NS):
        ms = j.mfmas(st)
        if st + 1 < NS:
            a(f"s_waitcnt vmcnt({q.wait_for([('A', (st + 1) >> 1), ('W', st + 1)])}) lgkmcnt(0)")
            a("s_barrier")
            rs = j.reads(st + 1)
            a(ms[0])
            for r in rs[:3]:
                a(r)
            a(ms[1])
            if issuedW < NS:
                j.dmaW(a, issuedW); q.add(('W', issuedW), j.nW); issuedW += 1
            if (st & 1) and issuedA < NS // 2:
                j.dmaA(a, issuedA); q.add(('A', issuedA), j.nA); issuedA += 1
            interleave(a, ms[2:], rs[3:])
            if getattr(j, 'mid', None) and st == j.mid[0]:
                j.mid[1](a)
        else:
            a("s_waitcnt lgkmcnt(0)")
            for m in ms:
                a(m)


def mfma(acc, x, y):
    return f"v_mfma_f32_32x32x16_bf16 v[{acc}:{acc+15}], v[{x}:{x+3}], v[{y}:{y+3}], v[{acc}:{acc+15}]"


def a_read_setup(a, rowbase_sreg_or_none, hi0):
    T0, T1, T2 = V_T, V_T + 1, V_T + 2
    a(f"v_and_b32 v{T0}, 31, v0")
    a(f"v_lshrrev_b32 v{T1}, 5, v0")
    a(f"v_bfe_u32 v{T2}, v0, 1, 3")
    a(f"v_xor_b32 v{T1}, v{T1}, v{T2}")
    a(f"v_lshlrev_b32 v{T1}, 4, v{T1}")
    a(f"v_lshlrev_b32 v{T0}, 7, v{T0}")
    a(f"v_add3_u32 v{V_RA}, v{T0}, v{T1}, s{rowbase_sreg_or_none}")
    for k in range(1, 4):
        a(f"v_xor_b32 v{V_RA+k}, {32 * k}, v{V_RA}")
    for k in range(4):
        a(f"v_add_u32 v{hi0+k}, {HI}, v{V_RA+k}")


def a_dma_lane(a, dst, parity):
    T0, T1 = V_T, V_T + 1
    a(f"v_lshrrev_b32 v{T0}, 4, v0")
    if parity:
        a(f"v_add_u32 v{T0}, 4, v{T0}")
    a(f"v_and_b32 v{T1}, 7, v0")
    a(f"v_xor_b32 v{T0}, v{T0}, v{T1}")
    a(f"v_lshlrev_b32 v{T0}, 4, v{T0}")
    a(f"v_lshrrev_b32 v{T1}, 3, v0")
    a(f"v_lshlrev_b32 v{T1}, 10, v{T1}")
    a(f"v_add_u32 v{dst}, v{T0}, v{T1}")
```

```python
from asmlib import *
from layout import *
from gemm import *
from sync import *
import struct

def f2u(x):
    return struct.unpack("<I", struct.pack("<f", x))[0]


S_DBG = 48


def common_entry(a):
    a(f"s_load_dwordx2 s[{S_WS}:{S_WS+1}], s[0:1], {KA_WS}")
    a(f"s_load_dwordx2 s[{S_DBG}:{S_DBG+1}], s[0:1], {KA_DBG}")
    a(f"v_lshrrev_b32 v{V_T}, 6, v0")
    a("v_and_b32 v0, 63, v0")
    a(f"v_readfirstlane_b32 s{S_W}, v{V_T}")
    if WS_BASE:
        a("s_waitcnt lgkmcnt(0)")
        a(f"s_add_u32 s{S_WS}, s{S_WS}, {WS_BASE}")
        a(f"s_addc_u32 s{S_WS+1}, s{S_WS+1}, 0")


def decode_rb_cb(a, idreg):
    a(f"s_and_b32 s{S_RB}, s{idreg}, 3")
    a(f"s_lshl_b32 s{S_RB}, s{S_RB}, 2")
    a(f"s_bfe_u32 s{S_T}, s{idreg}, 0x20003")
    a(f"s_add_u32 s{S_RB}, s{S_RB}, s{S_T}")
    a(f"s_bfe_u32 s{S_CB}, s{idreg}, 0x10002")
    a(f"s_lshl_b32 s{S_CB}, s{S_CB}, 3")
    a(f"s_lshr_b32 s{S_T}, s{idreg}, 5")
    a(f"s_add_u32 s{S_CB}, s{S_CB}, s{S_T}")


def srd_from(a, dst, lo, hi, size, add=0):
    if add > 0:
        a(f"s_add_u32 s{dst}, s{lo}, {add}")
        a(f"s_addc_u32 s{dst+1}, s{hi}, 0")
    elif add < 0:
        a(f"s_sub_u32 s{dst}, s{lo}, {-add}")
        a(f"s_subb_u32 s{dst+1}, s{hi}, 0")
    else:
        a(f"s_mov_b32 s{dst}, s{lo}")
        a(f"s_mov_b32 s{dst+1}, s{hi}")
    a(f"s_and_b32 s{dst+1}, s{dst+1}, 0xffff")
    a(f"s_mov_b32 s{dst+2}, {size}")
    a(f"s_mov_b32 s{dst+3}, 0x20000")


def store_pk8(a, src, tmp, scale_sreg=None):
    if scale_sreg is not None:
        for r in range(8):
            a(f"v_mul_f32 v{src+r}, s{scale_sreg}, v{src+r}")
    for r in range(4):
        a(f"v_cvt_pk_bf16_f32 v{tmp+r}, v{src+2*r}, v{src+2*r+1}")


def touch_x(a, vdst):
    a(f"s_and_b32 s{S_T}, s{S_CB}, 7")
    a(f"s_lshl_b32 s{S_T}, s{S_T}, 4")
    a(f"s_lshl_b32 s{S_T+1}, s{S_W}, 2")
    a(f"s_add_u32 s{S_T}, s{S_T}, s{S_T+1}")
    a(f"s_lshl_b32 s{S_T}, s{S_T}, 10")
    a(f"s_add_u32 s{S_T}, s{S_T}, s{S_SOA}")
    a(f"v_lshrrev_b32 v{V_T}, 3, v0")
    a(f"v_lshlrev_b32 v{V_T}, 10, v{V_T}")
    a(f"v_and_b32 v{V_T+1}, 7, v0")
    a(f"v_lshlrev_b32 v{V_T+1}, 7, v{V_T+1}")
    a(f"v_add_u32 v{V_T}, v{V_T}, v{V_T+1}")
    a(f"s_mov_b32 exec_hi, 0")
    a(f"buffer_load_dword v{vdst}, v{V_T}, s[{SRD_A}:{SRD_A+3}], s{S_T} offen")
    a(f"s_mov_b32 exec_hi, -1")


def decode_qkv(a, idreg):
    a(f"s_and_b32 s{S_RB}, s{idreg}, 3")
    a(f"s_lshl_b32 s{S_RB}, s{S_RB}, 3")
    a(f"s_bfe_u32 s{S_T}, s{idreg}, 0x30003")
    a(f"s_add_u32 s{S_RB}, s{S_RB}, s{S_T}")
    a(f"s_bfe_u32 s{S_CB}, s{idreg}, 0x10002")
    a(f"s_lshl_b32 s{S_CB}, s{S_CB}, 2")
    a(f"s_lshr_b32 s{S_T}, s{idreg}, 6")
    a(f"s_add_u32 s{S_CB}, s{S_CB}, s{S_T}")


def qkv_job(a, idreg, pre=None, post_loop=None, sc1=False):
    import gemm2 as g2
    SC = ' sc1' if sc1 else ''
    FA2, FW2, ACC = 16, 32, 80
    V_RW2, V_RW2H, RAH = 12 + 4 - 4 + 128, 141, 142
    V_RW2 = 140
    j = g2.J2()
    j.name, j.NS, j.RA, j.RW, j.nA, j.nW = "qkv", 16, 3, 4, 2, 3
    ASLOT, WSLOT, WBASE = 8192, 12288, 3 * 8192
    P_X, P_W, P_GW = S_P0, S_P0 + 2, S_P0 + 4
    a(f"s_load_dwordx2 s[{P_X}:{P_X+1}], s[0:1], {KA_AX}")
    a(f"s_load_dwordx2 s[{P_W}:{P_W+1}], s[0:1], {KA_WQKV}")
    a(f"s_load_dwordx2 s[{P_GW}:{P_GW+1}], s[0:1], {KA_GW}")
    decode_qkv(a, idreg)
    T0, T1, T2 = V_T, V_T + 1, V_T + 2
    a(f"s_lshl_b32 s{S_T}, s{S_W}, 14")
    g2.a_dma_lane(a, g2.V_OA, 0)
    a(f"v_add_u32 v{g2.V_OA}, s{S_T}, v{g2.V_OA}")
    g2.a_dma_lane(a, g2.V_OA + 1, 1)
    a(f"v_add_u32 v{g2.V_OA+1}, s{S_T}, v{g2.V_OA+1}")
    a(f"v_add_u32 v{g2.V_OA+1}, {8 * 1024 - 1024}, v{g2.V_OA+1}")
    a(f"s_lshl_b32 s{S_LDA}, s{S_W}, 11")
    a(f"v_lshrrev_b32 v{T0}, 3, v0")
    a(f"v_mul_u32_u24 v{T0}, 3072, v{T0}")
    a(f"v_bfe_u32 v{T1}, v0, 4, 1")
    a(f"v_lshlrev_b32 v{T1}, 2, v{T1}")
    a(f"v_and_b32 v{T2}, 7, v0")
    a(f"v_xor_b32 v{T1}, v{T1}, v{T2}")
    a(f"v_lshlrev_b32 v{T1}, 4, v{T1}")
    a(f"s_mul_i32 s{S_T}, s{S_W}, {8 * 3072}")
    a(f"s_lshl_b32 s{S_T+1}, s{S_CB}, 7")
    a(f"s_add_u32 s{S_T}, s{S_T}, s{S_T+1}")
    a(f"v_add3_u32 v{g2.V_OW}, v{T0}, v{T1}, s{S_T}")
    a(f"s_mul_i32 s{S_LDW}, s{S_W}, 3072")
    a(f"s_and_b32 s{S_T}, s{S_W}, 1")
    a(f"s_lshl_b32 s{S_T}, s{S_T}, 12")
    g2.a_read_setup(a, S_T, RAH)
    a(f"v_lshrrev_b32 v{T0}, 5, v0")
    a(f"v_mul_u32_u24 v{T0}, 3072, v{T0}")
    a(f"v_bfe_u32 v{T1}, v0, 2, 2")
    a(f"v_lshlrev_b32 v{T1}, 7, v{T1}")
    a(f"v_add_u32 v{T0}, v{T0}, v{T1}")
    a(f"s_lshr_b32 s{S_T}, s{S_W}, 1")
    a(f"v_bfe_u32 v{T1}, v0, 3, 1")
    a(f"v_xor_b32 v{T1}, s{S_T}, v{T1}")
    a(f"v_lshlrev_b32 v{T1}, 6, v{T1}")
    a(f"v_add_u32 v{T0}, v{T0}, v{T1}")
    a(f"v_bfe_u32 v{T1}, v0, 4, 1")
    a(f"v_lshlrev_b32 v{T1}, 5, v{T1}")
    a(f"v_and_b32 v{T2}, 3, v0")
    a(f"v_lshlrev_b32 v{T2}, 3, v{T2}")
    a(f"v_add3_u32 v{V_RW2}, v{T0}, v{T1}, v{T2}")
    a(f"v_add_u32 v{V_RW2H}, {HI}, v{V_RW2}")
    a(f"s_lshl_b32 s{S_SOA}, s{S_RB}, 16")
    a(f"s_mov_b32 s{S_SOW}, 0")
    a("s_waitcnt lgkmcnt(0)")
    srd_from(a, SRD_A, P_X, P_X + 1, 2048 * 1024)
    srd_from(a, SRD_W, P_W, P_W + 1, 512 * 3072)
    GX, GWR = 128, 136
    a(f"s_lshl_b32 s{S_T}, s{S_RB}, 6")
    a(f"s_lshl_b32 s{S_T+1}, s{S_CB}, 3")
    a(f"s_add_u32 s{S_T}, s{S_T}, s{S_T+1}")
    a(f"s_lshl_b32 s{S_T+1}, s{S_W}, 1")
    a(f"s_add_u32 s{S_T+7}, s{S_T}, s{S_T+1}")
    if pre:
        pre(a)
    a(f"s_lshl_b32 s{S_T+3}, s{S_T+7}, 10")
    a(f"v_lshlrev_b32 v{V_T}, 4, v0")
    a(f"v_add_u32 v{V_T+1}, s{S_T+3}, v{V_T}")
    a(f"global_load_dwordx4 v[{GX}:{GX+3}], v{V_T+1}, s[{P_X}:{P_X+1}]")
    a(f"global_load_dwordx4 v[{GX+4}:{GX+7}], v{V_T+1}, s[{P_X}:{P_X+1}] offset:1024")
    a(f"global_load_dwordx4 v[{GWR}:{GWR+3}], v{V_T}, s[{P_GW}:{P_GW+1}]")

    def dmaA(a, S):
        a(f"s_add_u32 m0, s{S_LDA}, {(S % j.RA) * ASLOT}")
        a("s_nop 0")
        a(f"buffer_load_dwordx4 v{g2.V_OA}, s[{SRD_A}:{SRD_A+3}], s{S_SOA} offen lds")
        a(f"buffer_load_dwordx4 v{g2.V_OA+1}, s[{SRD_A}:{SRD_A+3}], s{S_SOA} offen offset:1024 lds")
        a(f"s_add_u32 s{S_SOA}, s{S_SOA}, 128")

    def dmaW(a, s_):
        a(f"s_add_u32 m0, s{S_LDW}, {WBASE + (s_ % j.RW) * WSLOT}")
        a("s_nop 0")
        for t in range(3):
            off = f" offset:{1024 * t}" if t else ""
            a(f"buffer_load_dwordx4 v{g2.V_OW}, s[{SRD_W}:{SRD_W+3}], s{S_SOW} offen{off} lds")
        a(f"s_add_u32 s{S_SOW}, s{S_SOW}, {32 * 3072}")

    def reads(st):
        b = st & 1
        asl = ((st >> 1) % j.RA) * ASLOT
        wsl = WBASE + (st % j.RW) * WSLOT
        out = []
        for s_ in range(2):
            k = 2 * (st & 1) + s_
            out.append(g2.ds_rd("ds_read_b128", FA2 + (2 * b + s_) * 4, 4, g2.V_RA + k, RAH + k, asl))
            for t in range(3):
                d = FW2 + ((2 * b + s_) * 3 + t) * 4
                for half in range(2):
                    out.append(g2.ds_rd("ds_read_b64_tr_b16", d + 2 * half, 2, V_RW2, V_RW2H, wsl + s_ * 6144 + half * 512 + t * 1024))
        return out

    def mfmas(st):
        b = st & 1
        out = []
        for s_ in range(2):
            f = FA2 + (2 * b + s_) * 4
            for t in range(3):
                w = FW2 + ((2 * b + s_) * 3 + t) * 4
                out.append(g2.mfma(ACC + 16 * t, w, f) if t < 2 else g2.mfma(ACC + 16 * t, f, w))
        return out

    def after_prologue(a):
        for r in range(48):
            a(f"v_mov_b32 v{ACC + r}, 0")
    def gate(a):
        G0, G1 = 146, 147
        a(f"v_mov_b32 v{G0}, 0")
        a(f"v_mov_b32 v{G1}, 0")
        for r in range(4):
            a(f"v_dot2_f32_bf16 v{G0}, v{GX+r}, v{GWR+r}, v{G0}")
            a(f"v_dot2_f32_bf16 v{G1}, v{GX+4+r}, v{GWR+r}, v{G1}")
        for rot in (8, 4, 2, 1):
            a("s_nop 1")
            a(f"v_add_f32_dpp v{G0}, v{G0}, v{G0} row_ror:{rot} row_mask:0xf bank_mask:0xf")
            a(f"v_add_f32_dpp v{G1}, v{G1}, v{G1} row_ror:{rot} row_mask:0xf bank_mask:0xf")
        a("s_nop 1")
        for gi, g in enumerate((G0, G1)):
            for q in range(4):
                a(f"v_readlane_b32 s{S_T+q}, v{g}, {16*q}")
            a("s_nop 1")
            a(f"v_mov_b32 v{V_T+gi}, s{S_T}")
            a(f"v_add_f32 v{V_T+gi}, s{S_T+1}, v{V_T+gi}")
            a(f"v_add_f32 v{V_T+gi}, s{S_T+2}, v{V_T+gi}")
            a(f"v_add_f32 v{V_T+gi}, s{S_T+3}, v{V_T+gi}")
        a(f"v_cmp_eq_u32 vcc, 1, v0")
        a("s_nop 1")
        a(f"v_cndmask_b32 v{V_T}, v{V_T}, v{V_T+1}, vcc")
        a(f"v_mul_f32 v{V_T}, {f2u(-1.4426950408889634)}, v{V_T}")
        a(f"v_exp_f32 v{V_T}, v{V_T}")
        a("s_nop 0")
        a(f"v_add_f32 v{V_T}, 1.0, v{V_T}")
        a(f"v_rcp_f32 v{V_T}, v{V_T}")
        a(f"v_lshlrev_b32 v{V_T+1}, 2, v0")
        a(f"s_lshl_b32 s{S_T}, s{S_T+7}, 2")
        a(f"s_add_u32 s{S_T}, s{S_T}, {WS_G}")
        a(f"v_add_u32 v{V_T+1}, s{S_T}, v{V_T+1}")
        a(f"v_cmp_gt_u32 vcc, 2, v0")
        a(f"s_and_saveexec_b64 s[{S_T+2}:{S_T+3}], vcc")
        a(f"global_store_dword v{V_T+1}, v{V_T}, s[{S_WS}:{S_WS+1}]{SC}")
        a(f"s_mov_b64 exec, s[{S_T+2}:{S_T+3}]")
    j.mid = (7, gate)
    j.dmaA, j.dmaW, j.reads, j.mfmas, j.after_prologue = dmaA, dmaW, reads, mfmas, after_prologue
    g2.engine(a, j)
    pstamp(a, 'qkv:loopend')
    if post_loop:
        post_loop(a)
    a("s_nop 7")
    TMP = 148
    a(f"s_lshl_b32 s{S_T}, s{S_RB}, 1")
    a(f"s_and_b32 s{S_T+1}, s{S_W}, 1")
    a(f"s_add_u32 s{S_T}, s{S_T}, s{S_T+1}")
    a(f"s_lshl_b32 s{S_T+2}, s{S_CB}, 1")
    a(f"s_lshr_b32 s{S_T+1}, s{S_W}, 1")
    a(f"s_add_u32 s{S_T+2}, s{S_T+2}, s{S_T+1}")
    a(f"s_lshl_b32 s{S_T+2}, s{S_T+2}, 17")
    a(f"s_lshl_b32 s{S_T+1}, s{S_T}, 10")
    a(f"s_add_u32 s{S_T+1}, s{S_T+1}, s{S_T+2}")
    a(f"v_lshlrev_b32 v{V_T}, 4, v0")
    a(f"v_add_u32 v{V_T}, s{S_T+1}, v{V_T}")
    a(f"v_add_u32 v{V_T+1}, 0x10000, v{V_T}")
    a(f"s_mov_b32 s{S_T+3}, {f2u(QSCALE)}")
    a(f"s_add_u32 s{S_P0+6}, s{S_WS}, {WS_KF}")
    a(f"s_addc_u32 s{S_P0+7}, s{S_WS+1}, 0")
    store_pk8(a, ACC, TMP, S_T + 3)
    a(f"global_store_dwordx4 v{V_T}, v[{TMP}:{TMP+3}], s[{S_WS}:{S_WS+1}]{SC}")
    store_pk8(a, ACC + 8, TMP + 4, S_T + 3)
    a(f"global_store_dwordx4 v{V_T+1}, v[{TMP+4}:{TMP+7}], s[{S_WS}:{S_WS+1}]{SC}")
    store_pk8(a, ACC + 16, TMP + 8)
    a(f"global_store_dwordx4 v{V_T}, v[{TMP+8}:{TMP+11}], s[{S_P0+6}:{S_P0+7}]{SC}")
    store_pk8(a, ACC + 24, TMP + 12)
    a(f"global_store_dwordx4 v{V_T+1}, v[{TMP+12}:{TMP+15}], s[{S_P0+6}:{S_P0+7}]{SC}")
    a(f"s_lshl_b32 s{S_T+1}, s{S_T}, 10")
    a(f"s_add_u32 s{S_T+1}, s{S_T+1}, s{S_T+2}")
    a(f"s_add_u32 s{S_T+1}, s{S_T+1}, {WS_VF}")
    a(f"v_bfe_u32 v{V_T+2}, v0, 4, 1")
    a(f"v_lshlrev_b32 v{V_T+2}, 16, v{V_T+2}")
    a(f"v_lshrrev_b32 v{V_T+3}, 5, v0")
    a(f"v_lshlrev_b32 v{V_T+3}, 8, v{V_T+3}")
    a(f"v_add3_u32 v{V_T+2}, v{V_T+2}, v{V_T+3}, s{S_T+1}")
    a(f"v_and_b32 v{V_T+3}, 15, v0")
    a(f"v_lshlrev_b32 v{V_T+3}, 4, v{V_T+3}")
    a(f"v_add_u32 v{V_T+2}, v{V_T+2}, v{V_T+3}")
    VT = TMP + 16
    for p in range(2):
        src = ACC + 32 + 8 * p
        t = VT + 4 * p
        for r in range(4):
            a(f"v_cvt_pk_bf16_f32 v{t+r}, v{src+2*r}, v{src+2*r+1}")
        a("s_nop 1")
        a(f"v_permlane32_swap_b32 v{t}, v{t+2}")
        a(f"v_permlane32_swap_b32 v{t+1}, v{t+3}")
        off = f" offset:512" if p else ""
        a(f"global_store_dwordx4 v{V_T+2}, v[{t}:{t+3}], s[{S_WS}:{S_WS+1}]{off}{SC}")
    pstamp(a, 'qkv:end')
    return j


GA = -2.0 * 1.4426950408889634 * 0.7978845608028654
GB = GA * 0.044715

def g_job(a, idreg, done=None, sc1=False, epi_prio=None, loop_prio=None, post_loop=None):
    import gemm2 as g2
    FA2, FW2, ACC = 16, 32, 128
    V_RW2, V_RW2H, RAH = 224, 225, 226
    j = g2.J2()
    import os
    j.name, j.NS, j.RA, j.RW, j.nA, j.nW = "g", 16, 2, int(os.environ.get("GRW", "4")), 4, 3
    ASLOT, WSLOT, WBASE = 16384, 12288, 2 * 16384
    P_X, P_WG, P_WU = S_P0, S_P0 + 2, S_P0 + 4
    a(f"s_load_dwordx2 s[{P_X}:{P_X+1}], s[0:1], {KA_AX}")
    a(f"s_load_dwordx2 s[{P_WG}:{P_WG+1}], s[0:1], {KA_WG}")
    a(f"s_load_dwordx2 s[{P_WU}:{P_WU+1}], s[0:1], {KA_WU}")
    decode_rb_cb(a, idreg)
    T0, T1, T2 = V_T, V_T + 1, V_T + 2
    a(f"s_lshl_b32 s{S_T}, s{S_W}, 15")
    g2.a_dma_lane(a, g2.V_OA, 0)
    g2.a_dma_lane(a, g2.V_OA + 1, 1)
    a(f"v_add_u32 v{g2.V_OA}, s{S_T}, v{g2.V_OA}")
    a(f"v_add_u32 v{g2.V_OA+1}, s{S_T}, v{g2.V_OA+1}")
    a(f"v_add_u32 v{g2.V_OA+2}, {2 * 7168}, v{g2.V_OA}")
    a(f"v_add_u32 v{g2.V_OA+3}, {3 * 7168}, v{g2.V_OA+1}")
    a(f"v_add_u32 v{g2.V_OA+1}, 7168, v{g2.V_OA+1}")
    a(f"s_lshl_b32 s{S_LDA}, s{S_W}, 12")
    g2.a_read_setup(a, S_LDA, RAH)
    a(f"v_lshrrev_b32 v{T0}, 2, v0")
    a(f"v_mul_u32_u24 v{T0}, 2752, v{T0}")
    a(f"v_and_b32 v{T1}, 3, v0")
    a(f"v_lshlrev_b32 v{T1}, 4, v{T1}")
    a(f"v_add_u32 v{T0}, v{T0}, v{T1}")
    TILE0 = S_P0 + 6
    a(f"s_mul_i32 s{TILE0}, s{S_CB}, 3")
    a(f"s_lshl_b32 s{S_T}, s{S_CB}, 1")
    a(f"s_add_u32 s{S_T}, s{S_T}, 11")
    a(f"s_cmp_lt_u32 s{S_CB}, 11")
    a(f"s_cselect_b32 s{TILE0}, s{TILE0}, s{S_T}")
    a(f"s_cselect_b32 s{S_NP}, 3, 2")
    BIAS = 2048
    a(f"s_and_b32 s{S_T}, s{S_W}, 1")
    a(f"s_lshr_b32 s{S_T+1}, s{S_W}, 1")
    a(f"s_mul_i32 s{S_LDW}, s{S_T+1}, 6144")
    a(f"s_mul_i32 s{S_T+2}, s{S_T}, 3072")
    a(f"s_add_u32 s{S_LDW}, s{S_LDW}, s{S_T+2}")
    ex = lambda jx: 16 * (jx & 1) * 2752 + (jx >> 1) * 64
    a(f"s_cmp_eq_u32 s{S_T}, 0")
    for q in range(3):
        e0 = ex(q) - 1024 * q + BIAS
        e1 = ex(3 + q) - 1024 * q + BIAS
        a(f"s_mov_b32 s{S_T+3}, {e1}")
        a(f"s_cselect_b32 s{S_T+3}, {e0}, s{S_T+3}")
        a(f"v_add_u32 v{g2.V_OW+q}, s{S_T+3}, v{T0}")
    a(f"v_lshrrev_b32 v{T0}, 5, v0")
    a(f"v_lshlrev_b32 v{T0}, 3, v{T0}")
    a(f"v_bfe_u32 v{T1}, v0, 2, 2")
    a(f"v_add_u32 v{T0}, v{T0}, v{T1}")
    a(f"v_lshlrev_b32 v{T0}, 6, v{T0}")
    a(f"v_bfe_u32 v{T1}, v0, 4, 1")
    a(f"v_lshlrev_b32 v{T1}, 5, v{T1}")
    a(f"v_and_b32 v{T2}, 3, v0")
    a(f"v_lshlrev_b32 v{T2}, 3, v{T2}")
    a(f"v_add3_u32 v{V_RW2}, v{T0}, v{T1}, v{T2}")
    a(f"v_add_u32 v{V_RW2H}, {HI}, v{V_RW2}")
    a(f"s_lshl_b32 s{S_SOA}, s{S_RB}, 17")
    a(f"s_lshl_b32 s{S_SOW}, s{TILE0}, 6")
    a("s_waitcnt lgkmcnt(0)")
    srd_from(a, SRD_A, P_X, P_X + 1, 2048 * 1024)
    a(f"s_cmp_eq_u32 s{S_T+1}, 0")
    a(f"s_cselect_b32 s{S_T+4}, s{P_WG}, s{P_WU}")
    a(f"s_cselect_b32 s{S_T+5}, s{P_WG+1}, s{P_WU+1}")
    srd_from(a, SRD_W, S_T + 4, S_T + 5, 512 * 2752 + BIAS, add=-BIAS)

    def dmaA(a, S):
        a(f"s_add_u32 m0, s{S_LDA}, {(S % j.RA) * ASLOT}")
        a("s_nop 0")
        for i in range(4):
            off = f" offset:{1024 * i}" if i else ""
            a(f"buffer_load_dwordx4 v{g2.V_OA+i}, s[{SRD_A}:{SRD_A+3}], s{S_SOA} offen{off} lds")
        a(f"s_add_u32 s{S_SOA}, s{S_SOA}, 128")

    def dmaW(a, s_):
        a(f"s_add_u32 m0, s{S_LDW}, {WBASE + (s_ % j.RW) * WSLOT}")
        a("s_nop 0")
        for q in range(3):
            off = f" offset:{1024 * q}" if q else ""
            a(f"buffer_load_dwordx4 v{g2.V_OW+q}, s[{SRD_W}:{SRD_W+3}], s{S_SOW} offen{off} lds")
        a(f"s_add_u32 s{S_SOW}, s{S_SOW}, {32 * 2752}")

    cols = {'c': list(range(6))}

    def reads(st):
        b = st & 1
        asl = ((st >> 1) % j.RA) * ASLOT
        wsl = WBASE + (st % j.RW) * WSLOT
        out = []
        for s_ in range(2):
            k = 2 * (st & 1) + s_
            out.append(g2.ds_rd("ds_read_b128", FA2 + (2 * b + s_) * 4, 4, g2.V_RA + k, RAH + k, asl))
            for c in cols['c']:
                d = FW2 + ((2 * b + s_) * 6 + c) * 4
                for half in range(2):
                    out.append(g2.ds_rd("ds_read_b64_tr_b16", d + 2 * half, 2, V_RW2, V_RW2H, wsl + c * 2048 + (16 * s_ + 4 * half) * 64))
        return out

    def mfmas(st):
        b = st & 1
        out = []
        for s_ in range(2):
            f = FA2 + (2 * b + s_) * 4
            for c in cols['c']:
                out.append(g2.mfma(ACC + 16 * c, FW2 + ((2 * b + s_) * 6 + c) * 4, f))
        return out

    def after_prologue(a):
        for r in range(96):
            a(f"v_mov_b32 v{ACC + r}, 0")
        if loop_prio is not None:
            a(f"s_setprio {loop_prio}")
    j.dmaA, j.dmaW, j.reads, j.mfmas, j.after_prologue = dmaA, dmaW, reads, mfmas, after_prologue
    import os
    a(f"s_cmp_lt_u32 s{S_NP}, {0 if os.environ.get('NONP2') else 3}")
    a("s_cbranch_scc1 g_np2")
    g2.engine(a, j)
    a("s_branch g_loop_done")
    a.label("g_np2")
    cols['c'] = [0, 1, 3, 4]
    save = (getattr(a, 'pidx', 0), list(getattr(a, 'pnames', [])))
    if PROF:
        a.pidx -= 3; a.pnames.pop(); a.pnames.pop(); a.pnames.pop()
    g2.engine(a, j)
    a.label("g_loop_done")
    pstamp(a, 'g:loopend')
    if post_loop:
        post_loop(a)
    if epi_prio is not None:
        a(f"s_setprio {epi_prio}")
    a("s_nop 7")
    a("s_nop 7")
    T = 32
    a(f"s_mov_b32 s{S_T}, {f2u(GA)}")
    a(f"s_mov_b32 s{S_T+1}, {f2u(GB)}")
    a(f"s_mul_i32 s{S_T+2}, s{S_RB}, 43")
    a(f"s_add_u32 s{S_T+2}, s{S_T+2}, s{TILE0}")
    a(f"s_lshl_b32 s{S_T+2}, s{S_T+2}, 13")
    a(f"s_lshl_b32 s{S_T+3}, s{S_W}, 11")
    a(f"s_add_u32 s{S_T+2}, s{S_T+2}, s{S_T+3}")
    a(f"s_add_u32 s{S_T+2}, s{S_T+2}, {WS_H}")
    a(f"v_lshlrev_b32 v{V_T}, 4, v0")
    a(f"v_add_u32 v{V_T}, s{S_T+2}, v{V_T}")
    a(f"s_mov_b32 s{S_T+4}, {f2u(GB)}")
    a(f"s_mov_b32 s{S_T+5}, {f2u(GB)}")
    a(f"v_mov_b32 v{T+8}, s{S_T}")
    a(f"v_mov_b32 v{T+9}, s{S_T}")
    a(f"v_mov_b32 v{T+10}, 1.0")
    a(f"v_mov_b32 v{T+11}, 1.0")
    for p in range(3):
        if p == 2:
            a(f"s_cmp_lt_u32 s{S_NP}, 3")
            a(f"s_cbranch_scc1 g_skip")
        G, U = ACC + 16 * p, ACC + 16 * (3 + p)
        for r0 in range(0, 16, 8):
            pr = range(r0, r0 + 8, 2)
            t = lambda r: T + (r - r0)
            for r in pr:
                a(f"v_pk_mul_f32 v[{t(r)}:{t(r)+1}], v[{G+r}:{G+r+1}], v[{G+r}:{G+r+1}]")
            for r in pr:
                a(f"v_pk_fma_f32 v[{t(r)}:{t(r)+1}], v[{t(r)}:{t(r)+1}], s[{S_T+4}:{S_T+5}], v[{T+8}:{T+9}]")
            for r in pr:
                a(f"v_pk_mul_f32 v[{t(r)}:{t(r)+1}], v[{t(r)}:{t(r)+1}], v[{G+r}:{G+r+1}]")
            for r in range(r0, r0 + 8):
                a(f"v_exp_f32 v{t(r)}, v{t(r)}")
            for r in pr:
                a(f"v_pk_mul_f32 v[{U+r}:{U+r+1}], v[{U+r}:{U+r+1}], v[{G+r}:{G+r+1}]")
            for r in pr:
                a(f"v_pk_add_f32 v[{t(r)}:{t(r)+1}], v[{t(r)}:{t(r)+1}], v[{T+10}:{T+11}]")
            for r in range(r0, r0 + 8):
                a(f"v_rcp_f32 v{t(r)}, v{t(r)}")
            a("s_nop 0")
            for r in pr:
                a(f"v_pk_mul_f32 v[{U+r}:{U+r+1}], v[{U+r}:{U+r+1}], v[{t(r)}:{t(r)+1}]")
        for r in range(8):
            a(f"v_cvt_pk_bf16_f32 v{G+r}, v{U+2*r}, v{U+2*r+1}")
        if p:
            a(f"v_add_u32 v{V_T}, 8192, v{V_T}")
        sc = " sc1" if sc1 else ""
        a(f"global_store_dwordx4 v{V_T}, v[{G}:{G+3}], s[{S_WS}:{S_WS+1}]{sc}")
        a(f"global_store_dwordx4 v{V_T}, v[{G+4}:{G+7}], s[{S_WS}:{S_WS+1}] offset:1024{sc}")
    a.label("g_skip")
    pstamp(a, 'g:end')
    return j


def nc1_setup(a, j, idreg, kaW, ws_off, nst):
    P_W = S_P0
    a(f"s_load_dwordx2 s[{P_W}:{P_W+1}], s[0:1], {kaW}")
    decode_rb_cb(a, idreg)
    lane_setup(a, j)
    a(f"s_and_b32 s{S_T}, s{S_W}, 1")
    a(f"s_lshl_b32 s{S_LDW}, s{S_T}, 10")
    a(f"s_lshl_b32 s{S_T}, s{S_T}, 14")
    a(f"s_lshl_b32 s{S_T+1}, s{S_CB}, 6")
    a(f"s_add_u32 s{S_T}, s{S_T}, s{S_T+1}")
    a(f"v_add_u32 v{V_OW}, s{S_T}, v{V_OW}")
    a(f"s_mov_b32 s{S_SOA}, 0")
    a(f"s_mov_b32 s{S_SOW}, 0")
    a(f"s_mul_i32 s{S_T+2}, s{S_RB}, {nst * 8192}")
    a(f"s_add_u32 s{S_T+2}, s{S_T+2}, {ws_off}")
    a("s_waitcnt lgkmcnt(0)")
    a(f"s_add_u32 s{S_T+4}, s{S_WS}, s{S_T+2}")
    a(f"s_addc_u32 s{S_T+5}, s{S_WS+1}, 0")
    srd_from(a, SRD_A, S_T + 4, S_T + 5, nst * 8192)
    srd_from(a, SRD_W, P_W, P_W + 1, nst * 32 * 1024)


def bp_addr(a, dst):
    a(f"s_lshl_b32 s{S_T}, s{S_RB}, 4")
    a(f"s_add_u32 s{S_T}, s{S_T}, s{S_CB}")
    a(f"s_lshl_b32 s{S_T}, s{S_T}, 2")
    a(f"s_add_u32 s{S_T}, s{S_T}, s{S_W}")
    a(f"s_lshl_b32 s{S_T}, s{S_T}, 12")
    a(f"s_add_u32 s{S_T}, s{S_T}, {WS_BP}")
    a(f"v_lshlrev_b32 v{dst}, 4, v0")
    a(f"v_add_u32 v{dst}, s{S_T}, v{dst}")


def g_load(a, dst, tmp):
    a(f"s_lshl_b32 s{S_T}, s{S_RB}, 7")
    a(f"s_lshl_b32 s{S_T+1}, s{S_W}, 5")
    a(f"s_add_u32 s{S_T}, s{S_T}, s{S_T+1}")
    a(f"s_lshl_b32 s{S_T}, s{S_T}, 2")
    a(f"s_add_u32 s{S_T}, s{S_T}, {WS_G}")
    a(f"v_and_b32 v{tmp}, 31, v0")
    a(f"v_lshlrev_b32 v{tmp}, 2, v{tmp}")
    a(f"v_add_u32 v{tmp}, s{S_T}, v{tmp}")
    a(f"global_load_dword v{dst}, v{tmp}, s[{S_WS}:{S_WS+1}]")


def d_job(a, idreg, done, ring=8, lds0=0, a_sc1=False):
    ACC = 40
    j = Job("d", NC=1, nstages=43, ring=ring, nW=1, a_rs=64, a_ss=8192, w_ws=1024,
            chunk='frag', wrow='perm', orient=['FM'], acc=ACC, lds0=lds0, a_sc1=a_sc1)
    nc1_setup(a, j, idreg, KA_WD, WS_H, 43)
    GV = 60
    g_load(a, GV, V_T)
    prologue_dma(a, j)
    zero_acc(a, j)
    main_loop(a, j)
    pstamp(a, j.name + ':loopend')
    a("s_nop 7")
    a("s_nop 7")
    a(f"v_sub_f32 v{GV}, 1.0, v{GV}")
    bp_addr(a, V_T)
    for r in range(16):
        a(f"v_mul_f32 v{ACC+r}, v{ACC+r}, v{GV}")
    for q in range(4):
        off = f" offset:{1024*q}" if q else ""
        a(f"global_store_dwordx4 v{V_T}, v[{ACC+4*q}:{ACC+4*q+3}], s[{S_WS}:{S_WS+1}]{off}")
    pstamp(a, j.name + ':end')
    if done:
        a(f"s_branch {done}")
    return j


def wo_job(a, idreg, done, ring=8, lds0=0):
    ACC = 40
    j = Job("wo", NC=1, nstages=16, ring=ring, nW=1, a_rs=64, a_ss=8192, w_ws=1024,
            chunk='frag', wrow='perm', orient=['FM'], acc=ACC, lds0=lds0)
    P_OUT = S_P0 + 2
    a(f"s_load_dwordx2 s[{P_OUT}:{P_OUT+1}], s[0:1], {KA_OUT}")
    nc1_setup(a, j, idreg, KA_WO, WS_OB, 16)
    GV, BPV = 60, 64
    g_load(a, GV, V_T)
    bp_addr(a, V_T + 1)
    for q in range(4):
        off = f" offset:{1024*q}" if q else ""
        a(f"global_load_dwordx4 v[{BPV+4*q}:{BPV+4*q+3}], v{V_T+1}, s[{S_WS}:{S_WS+1}]{off}")
    prologue_dma(a, j)
    zero_acc(a, j)
    main_loop(a, j)
    pstamp(a, j.name + ':loopend')
    a("s_nop 7")
    a("s_nop 7")
    for r in range(16):
        a(f"v_fma_f32 v{ACC+r}, v{ACC+r}, v{GV}, v{BPV+r}")
    a(f"s_lshl_b32 s{S_T}, s{S_RB}, 7")
    a(f"s_lshl_b32 s{S_T+1}, s{S_W}, 5")
    a(f"s_add_u32 s{S_T}, s{S_T}, s{S_T+1}")
    a(f"s_lshl_b32 s{S_T}, s{S_T}, 10")
    a(f"s_lshl_b32 s{S_T+1}, s{S_CB}, 6")
    a(f"s_add_u32 s{S_T}, s{S_T}, s{S_T+1}")
    a(f"v_and_b32 v{V_T}, 31, v0")
    a(f"v_lshlrev_b32 v{V_T}, 10, v{V_T}")
    a(f"v_lshrrev_b32 v{V_T+1}, 5, v0")
    a(f"v_lshlrev_b32 v{V_T+1}, 4, v{V_T+1}")
    a(f"v_add3_u32 v{V_T}, v{V_T}, v{V_T+1}, s{S_T}")
    T = 80
    for p in range(2):
        t = T + 4 * p
        for r in range(4):
            a(f"v_cvt_pk_bf16_f32 v{t+r}, v{ACC+8*p+2*r}, v{ACC+8*p+2*r+1}")
        a("s_nop 1")
        a(f"v_permlane32_swap_b32 v{t}, v{t+2}")
        a(f"v_permlane32_swap_b32 v{t+1}, v{t+3}")
        off = " offset:32" if p else ""
        a(f"global_store_dwordx4 v{V_T}, v[{t}:{t+3}], s[{P_OUT}:{P_OUT+1}]{off}")
    pstamp(a, j.name + ':end')
    if done:
        a(f"s_branch {done}")
    return j


def qkv_touch(a, idreg):
    P_X, P_W = S_P0, S_P0 + 2
    a(f"s_load_dwordx2 s[{P_X}:{P_X+1}], s[0:1], {KA_AX}")
    a(f"s_load_dwordx2 s[{P_W}:{P_W+1}], s[0:1], {KA_WQKV}")
    decode_qkv(a, idreg)
    a("s_waitcnt lgkmcnt(0)")
    srd_from(a, SRD_A, P_X, P_X + 1, 2048 * 1024)
    srd_from(a, SRD_W, P_W, P_W + 1, 512 * 3072)
    a(f"s_lshl_b32 s{S_T}, s{S_RB}, 6")
    a(f"s_and_b32 s{S_T+1}, s{S_CB}, 3")
    a(f"s_lshl_b32 s{S_T+1}, s{S_T+1}, 4")
    a(f"s_add_u32 s{S_T}, s{S_T}, s{S_T+1}")
    a(f"s_lshl_b32 s{S_T+1}, s{S_W}, 2")
    a(f"s_add_u32 s{S_T}, s{S_T}, s{S_T+1}")
    a(f"s_lshl_b32 s{S_T}, s{S_T}, 10")
    a(f"v_lshrrev_b32 v{V_T}, 3, v0")
    a(f"v_lshlrev_b32 v{V_T}, 10, v{V_T}")
    a(f"v_and_b32 v{V_T+1}, 7, v0")
    a(f"v_lshlrev_b32 v{V_T+1}, 7, v{V_T+1}")
    a(f"v_add_u32 v{V_T}, v{V_T}, v{V_T+1}")
    a(f"s_mov_b32 exec_hi, 0")
    a(f"buffer_load_dword v242, v{V_T}, s[{SRD_A}:{SRD_A+3}], s{S_T} offen")
    a(f"s_mov_b32 exec_hi, -1")
    a(f"s_and_b32 s{S_T}, s{S_RB}, 7")
    a(f"s_lshl_b32 s{S_T}, s{S_T}, 6")
    a(f"s_lshl_b32 s{S_T+1}, s{S_W}, 4")
    a(f"s_add_u32 s{S_T}, s{S_T}, s{S_T+1}")
    a(f"s_mul_i32 s{S_T}, s{S_T}, 3072")
    a(f"s_lshl_b32 s{S_T+1}, s{S_CB}, 7")
    a(f"s_add_u32 s{S_T}, s{S_T}, s{S_T+1}")
    a(f"v_and_b32 v{V_T}, 15, v0")
    a(f"v_mul_u32_u24 v{V_T}, 3072, v{V_T}")
    a(f"v_lshrrev_b32 v{V_T+1}, 4, v0")
    a(f"v_lshlrev_b32 v{V_T+1}, 10, v{V_T+1}")
    a(f"v_add_u32 v{V_T}, v{V_T}, v{V_T+1}")
    a(f"s_mov_b32 exec_hi, 0xffff")
    a(f"buffer_load_dword v243, v{V_T}, s[{SRD_W}:{SRD_W+3}], s{S_T} offen")
    a(f"s_mov_b32 exec_hi, -1")
```

```python
from asmlib import *
from layout import *


def prefetch(a, gw, bufs, per_group_shift, vdst, vtmp, stmp, srd):
    nper = 1 << per_group_shift
    P = stmp
    a(f"s_lshr_b32 s{stmp+4}, s{gw}, {per_group_shift}")
    lab = a.uid("pf")
    for g, (ka, size) in enumerate(bufs):
        blocks = (size + 255) // 256
        lanes = (blocks + nper - 1) // nper
        assert lanes <= 64
        nxt = f"{lab}_{g+1}"
        a(f"s_cmp_lg_u32 s{stmp+4}, {g}")
        a(f"s_cbranch_scc1 {nxt}")
        a(f"s_load_dwordx2 s[{P}:{P+1}], s[0:1], {ka}")
        a(f"s_and_b32 s{stmp+5}, s{gw}, {nper - 1}")
        a(f"s_mul_i32 s{stmp+5}, s{stmp+5}, {lanes * 256}")
        a(f"v_lshlrev_b32 v{vtmp}, 8, v0")
        a(f"v_add_u32 v{vtmp}, s{stmp+5}, v{vtmp}")
        a(f"v_cmp_gt_u32 vcc, {lanes}, v0")
        a(f"s_waitcnt lgkmcnt(0)")
        a(f"s_mov_b32 s{srd}, s{P}")
        a(f"s_and_b32 s{srd+1}, s{P+1}, 0xffff")
        a(f"s_mov_b32 s{srd+2}, {size}")
        a(f"s_mov_b32 s{srd+3}, 0x20000")
        a(f"s_and_saveexec_b64 s[{stmp+2}:{stmp+3}], vcc")
        a(f"buffer_load_dword v{vdst}, v{vtmp}, s[{srd}:{srd+3}], 0 offen")
        a(f"s_mov_b64 exec, s[{stmp+2}:{stmp+3}]")
        a(f"s_branch {lab}_end")
        a.label(nxt)
    a.label(f"{lab}_end")


def signal(a, base_lo, first_sreg, nlanes, wave_sreg, vt, const_off=0, drain=True):
    lab = a.uid("sig")
    if drain:
        a("s_waitcnt vmcnt(0)")
        a("s_barrier")
    a(f"s_cmp_lg_u32 s{wave_sreg}, 0")
    a(f"s_cbranch_scc1 {lab}")
    a(f"v_add_u32 v{vt}, s{first_sreg}, v0")
    a(f"v_lshlrev_b32 v{vt}, 8, v{vt}")
    a(f"v_add_u32 v{vt}, {const_off}, v{vt}")
    a(f"v_mov_b32 v{vt+1}, 1")
    a(f"s_mov_b64 exec, {(1 << nlanes) - 1}")
    a(f"global_atomic_add v{vt}, v{vt+1}, s[{base_lo}:{base_lo+1}] sc1")
    a("s_mov_b64 exec, -1")
    a.label(lab)


def wait_count(a, base_lo, word_sreg, target, wave_sreg, vt, stmp, const_off=0, limit=100000, sleep=4):
    lab = a.uid("wt")
    a(f"s_cmp_lg_u32 s{wave_sreg}, 0")
    a(f"s_cbranch_scc1 {lab}_done")
    a(f"v_mov_b32 v{vt}, s{word_sreg}")
    a(f"v_lshlrev_b32 v{vt}, 8, v{vt}")
    a(f"v_add_u32 v{vt}, {const_off}, v{vt}")
    a(f"s_mov_b32 s{stmp+1}, {limit}")
    a("s_mov_b64 exec, 1")
    a.label(f"{lab}_poll")
    a(f"global_load_dword v{vt+1}, v{vt}, s[{base_lo}:{base_lo+1}] sc1")
    a("s_waitcnt vmcnt(0)")
    a(f"v_readfirstlane_b32 s{stmp}, v{vt+1}")
    a(f"s_sub_u32 s{stmp+1}, s{stmp+1}, 1")
    a(f"s_cmp_eq_u32 s{stmp+1}, 0")
    a(f"s_cbranch_scc1 {lab}_out")
    a(f"s_cmp_ge_u32 s{stmp}, {target}")
    a(f"s_cbranch_scc1 {lab}_out")
    a(f"s_sleep {sleep}")
    a(f"s_branch {lab}_poll")
    a.label(f"{lab}_out")
    a("s_mov_b64 exec, -1")
    a.label(f"{lab}_done")
    a("s_barrier")


def clear_flags(a, ws_lo, wg_sreg, wave_sreg, vt, off, n):
    lab = a.uid("clr")
    a(f"s_or_b32 s{wg_sreg+90-wg_sreg}, s{wg_sreg}, s{wave_sreg}")
    a(f"s_cmp_lg_u32 s90, 0")
    a(f"s_cbranch_scc1 {lab}")
    a(f"v_lshlrev_b32 v{vt}, 8, v0")
    a(f"v_add_u32 v{vt}, {off}, v{vt}")
    a(f"v_mov_b32 v{vt+1}, 0")
    a(f"global_store_dword v{vt}, v{vt+1}, s[{ws_lo}:{ws_lo+1}]")
    a.label(lab)


def init_counters(a, ws_lo, dbg_lo, vt, off):
    a(f"v_lshlrev_b32 v{vt}, 8, v0")
    a(f"v_add_u32 v{vt}, {off}, v{vt}")
    a(f"v_mov_b32 v{vt+1}, 0")
    for i in range(8):
        a(f"global_store_dword v{vt}, v{vt+1}, s[{ws_lo}:{ws_lo+1}] sc1")
        if i < 7:
            a(f"v_add_u32 v{vt}, 16384, v{vt}")
    a("s_waitcnt vmcnt(0)")
    a(f"v_mov_b32 v{vt}, 0")
    a(f"v_mov_b32 v{vt+1}, 1")
    a("s_mov_b64 exec, 1")
    a(f"global_store_dword v{vt}, v{vt+1}, s[{dbg_lo}:{dbg_lo+1}] sc1")
    a("s_mov_b64 exec, -1")


def init_probe(a, dbg_lo, vdst):
    a(f"v_mov_b32 v{vdst}, 0")
    a("s_nop 0")
    a(f"global_load_dword v{vdst}, v{vdst}, s[{dbg_lo}:{dbg_lo+1}] sc1")


def wait_init(a, dbg_lo, wave_sreg, vt, stmp, limit=100000, probe=None):
    lab = a.uid("wi")
    a(f"s_cmp_lg_u32 s{wave_sreg}, 0")
    a(f"s_cbranch_scc1 {lab}_done")
    if probe is not None:
        a("s_waitcnt vmcnt(0)")
        a(f"v_readfirstlane_b32 s{stmp}, v{probe}")
        a(f"s_cmp_lg_u32 s{stmp}, 0")
        a(f"s_cbranch_scc1 {lab}_done")
    a(f"v_mov_b32 v{vt}, 0")
    a(f"s_mov_b32 s{stmp+1}, {limit}")
    a("s_mov_b64 exec, 1")
    a.label(f"{lab}_poll")
    a(f"global_load_dword v{vt+1}, v{vt}, s[{dbg_lo}:{dbg_lo+1}] sc1")
    a("s_waitcnt vmcnt(0)")
    a(f"v_readfirstlane_b32 s{stmp}, v{vt+1}")
    a(f"s_sub_u32 s{stmp+1}, s{stmp+1}, 1")
    a(f"s_cmp_eq_u32 s{stmp+1}, 0")
    a(f"s_cbranch_scc1 {lab}_out")
    a(f"s_cmp_lg_u32 s{stmp}, 0")
    a(f"s_cbranch_scc1 {lab}_out")
    a("s_sleep 8")
    a(f"s_branch {lab}_poll")
    a.label(f"{lab}_out")
    a("s_mov_b64 exec, -1")
    a.label(f"{lab}_done")


def prefetch1(a, ka, size, idx_sreg, nwaves, vdst, vtmp, stmp, srd, wait=True, step=128):
    blocks = (size + step - 1) // step
    lanes = (blocks + nwaves - 1) // nwaves
    assert lanes <= 64
    sh = step.bit_length() - 1
    a(f"s_load_dwordx2 s[{stmp}:{stmp+1}], s[0:1], {ka}")
    a(f"s_mul_i32 s{stmp+4}, s{idx_sreg}, {lanes * step}")
    a(f"v_lshlrev_b32 v{vtmp}, {sh}, v0")
    a(f"v_add_u32 v{vtmp}, s{stmp+4}, v{vtmp}")
    a(f"v_cmp_gt_u32 vcc, {lanes}, v0")
    a("s_waitcnt lgkmcnt(0)")
    a(f"s_mov_b32 s{srd}, s{stmp}")
    a(f"s_and_b32 s{srd+1}, s{stmp+1}, 0xffff")
    a(f"s_mov_b32 s{srd+2}, {size}")
    a(f"s_mov_b32 s{srd+3}, 0x20000")
    a(f"s_and_saveexec_b64 s[{stmp+2}:{stmp+3}], vcc")
    a(f"buffer_load_dword v{vdst}, v{vtmp}, s[{srd}:{srd+3}], 0 offen")
    a(f"s_mov_b64 exec, s[{stmp+2}:{stmp+3}]")


def wait_count_fast(a, base_lo, word_sreg, target, wave_sreg, vt, stmp, const_off=0, limit=200000):
    lab = a.uid("wf")
    a(f"s_cmp_lg_u32 s{wave_sreg}, 0")
    a(f"s_cbranch_scc1 {lab}_done")
    a(f"v_mov_b32 v{vt}, s{word_sreg}")
    a(f"v_lshlrev_b32 v{vt}, 8, v{vt}")
    a(f"v_add_u32 v{vt}, {const_off}, v{vt}")
    a(f"s_mov_b32 s{stmp+1}, {limit}")
    a("s_mov_b64 exec, 1")
    a(f"global_load_dword v{vt+1}, v{vt}, s[{base_lo}:{base_lo+1}] sc1")
    a.label(f"{lab}_poll")
    a("s_sleep 3")
    a(f"global_load_dword v{vt+2}, v{vt}, s[{base_lo}:{base_lo+1}] sc1")
    a("s_waitcnt vmcnt(1)")
    a(f"v_readfirstlane_b32 s{stmp}, v{vt+1}")
    a(f"s_cmp_ge_u32 s{stmp}, {target}")
    a(f"s_cbranch_scc1 {lab}_out")
    a("s_sleep 3")
    a(f"global_load_dword v{vt+1}, v{vt}, s[{base_lo}:{base_lo+1}] sc1")
    a("s_waitcnt vmcnt(1)")
    a(f"v_readfirstlane_b32 s{stmp}, v{vt+2}")
    a(f"s_cmp_ge_u32 s{stmp}, {target}")
    a(f"s_cbranch_scc1 {lab}_out")
    a(f"s_sub_u32 s{stmp+1}, s{stmp+1}, 1")
    a(f"s_cmp_lg_u32 s{stmp+1}, 0")
    a(f"s_cbranch_scc1 {lab}_poll")
    a.label(f"{lab}_out")
    a("s_waitcnt vmcnt(0)")
    a("s_mov_b64 exec, -1")
    a.label(f"{lab}_done")
    a("s_barrier")


def prefetch_ws(a, ws_lo, off, size, idx_sreg, nwaves, vdst, vtmp, stmp, srd, step=128):
    blocks = (size + step - 1) // step
    lanes = (blocks + nwaves - 1) // nwaves
    assert lanes <= 64, lanes
    sh = step.bit_length() - 1
    a(f"s_mul_i32 s{stmp+4}, s{idx_sreg}, {lanes * step}")
    a(f"v_lshlrev_b32 v{vtmp}, {sh}, v0")
    a(f"v_add_u32 v{vtmp}, s{stmp+4}, v{vtmp}")
    a(f"v_cmp_gt_u32 vcc, {lanes}, v0")
    a(f"s_add_u32 s{srd}, s{ws_lo}, {off}")
    a(f"s_addc_u32 s{srd+1}, s{ws_lo+1}, 0")
    a(f"s_and_b32 s{srd+1}, s{srd+1}, 0xffff")
    a(f"s_mov_b32 s{srd+2}, {size}")
    a(f"s_mov_b32 s{srd+3}, 0x20000")
    a(f"s_and_saveexec_b64 s[{stmp+2}:{stmp+3}], vcc")
    a(f"buffer_load_dword v{vdst}, v{vtmp}, s[{srd}:{srd+3}], 0 offen sc1")
    a(f"s_mov_b64 exec, s[{stmp+2}:{stmp+3}]")
```

```python
import sys, os
sys.path.insert(0, os.path.dirname(os.path.abspath(__file__)))
from asmlib import *
from layout import *
import attn, jobs, splitk
from sync import *
from gemm import S_W, S_WS, S_T, S_RB, S_CB, V_T, SRD_A

NAME = "gated_mix__mha_block__glu_gated_geglu__prompt"
HEADER = open(os.path.join(os.path.dirname(os.path.abspath(__file__)), "header.txt")).read()
ENV = os.environ.get
C_QKV, C_G, C_ATT, C_TWIN = 0, 128, 192, 256


def tlb_warm(a):
    a("s_load_dwordx16 s[32:47], s[0:1], 0")
    a("s_load_dwordx2 s[50:51], s[0:1], 64")
    a("v_mov_b32 v250, 0")
    a(f"v_lshlrev_b32 v251, 21, v0")
    a(f"v_cmp_gt_u32 vcc, 10, v0")
    a("s_and_saveexec_b64 s[52:53], vcc")
    a(f"global_load_dword v252, v251, s[{S_WS}:{S_WS+1}]")
    a("s_mov_b64 exec, s[52:53]")
    a("s_waitcnt lgkmcnt(0)")
    a("s_mov_b64 exec, 1")
    for i in (0, 1, 2, 4, 5, 6, 7):
        a(f"global_load_dword v253, v250, s[{32+2*i}:{33+2*i}]")
    a("global_load_dword v253, v250, s[50:51]")
    a("s_mov_b64 exec, -1")


def build():
    a = Asm()
    a.raw(HEADER.rstrip("\n"))
    LDS = 81920
    if ENV("ASLIST"):
        a.raw(f"; @launch kernel={NAME}_kernel grid=(512,1,1) block=(256,1,1) lds={LDS}")
    else:
        a.raw(f"; @launch grid=(512,1,1) block=(256,1,1) lds={LDS}")
    a.raw('.amdgcn_target "amdgcn-amd-amdhsa--gfx950"')
    a.raw(".text")
    kernel_header(a, f"{NAME}_kernel")
    a("s_cmp_ge_u32 s2, 512")
    a("s_cbranch_scc1 k_done")
    preset(a); pstamp(a, "entry")
    jobs.common_entry(a)
    a("s_waitcnt lgkmcnt(0)")
    pstamp(a, "karg")
    if ENV("TLBW"):
        tlb_warm(a)
    a("s_cmp_ge_u32 s2, 256")
    a("s_cbranch_scc1 k_ffn")
    a("s_setprio 2")

    def pre_qkv(a):
        a("s_lshl_b32 s52, s2, 2")
        a(f"s_add_u32 s52, s52, s{S_W}")
        nw = 1024 if ENV("APF") == "full" else 2048
        prefetch1(a, KA_WQKV, 512 * 3072, 52, nw, 178, 177, 54, 60)
        prefetch1(a, KA_AX, 2048 * 1024, 52, nw, 176, 177, 54, 60)
        if ENV("APF") != "full":
            a("s_waitcnt vmcnt(0)")
        pstamp(a, "pf1")
        init_probe(a, jobs.S_DBG, 179)

    def post_qkv(a):
        wait_init(a, jobs.S_DBG, S_W, V_T, S_T, probe=179)
        if ENV("TWIN"):
            signal(a, S_WS, 2, 1, S_W, V_T, WS_FLAG + 256 * C_TWIN, drain=False)
    def pre_qkv0(a):
        init_probe(a, jobs.S_DBG, 179)
    jobs.qkv_job(a, 2, sc1=True, pre=pre_qkv if ENV("APF") else pre_qkv0, post_loop=post_qkv)
    a(f"s_lshl_b32 s50, s{S_CB}, 4")
    signal(a, S_WS, 50, 16, S_W, V_T, WS_FLAG + 256 * C_QKV)
    pstamp(a, "qkv:sig")
    if ENV("NOF"):
        pflush(a, 2, S_W, S_WS, attn.TMP, 0)
        a("s_branch k_done")

    def wait_qkv(a):
        a(f"s_lshr_b32 s50, s{attn.S_HEAD}, 2")
        a(f"s_lshl_b32 s50, s50, 4")
        a(f"s_add_u32 s50, s50, s{attn.S_QB}")
        (wait_count_fast if ENV('FAST') else wait_count)(a, S_WS, 50, 32, S_W, attn.TMP, 60, WS_FLAG + 256 * C_QKV)
        pstamp(a, "qkv:flag")
    attn.OUT_SC1 = True
    attn.IN_SC1 = True
    attn.WAIT_IN = wait_qkv
    a(f"s_setprio {ENV('APRIO', '1')}")
    attn.attn_body(a, 2, None)
    a(f"s_lshl_b32 s50, s{attn.S_QB}, 3")
    signal(a, S_WS, 50, 8, S_W, attn.TMP, WS_FLAG + 256 * C_ATT, drain=False)
    pstamp(a, "attn:sig")
    pflush(a, 2, S_W, S_WS, attn.TMP, 0)
    a("s_branch k_done")
    a.label("k_ffn")
    if ENV("NOF"):
        a("s_branch k_done")
    preset(a); pstamp(a, "entry")
    a("s_sub_u32 s3, s2, 256")
    a(f"s_or_b32 s50, s3, s{S_W}")
    a("s_cmp_lg_u32 s50, 0")
    a("s_cbranch_scc1 k_noinit")
    a("s_waitcnt lgkmcnt(0)")
    init_counters(a, S_WS, jobs.S_DBG, V_T, WS_FLAG)
    a.label("k_noinit")
    a("s_lshl_b32 s52, s3, 2")
    a(f"s_add_u32 s52, s52, s{S_W}")
    def f_weights_pf(a):
        m = ENV("FW", "gudo")
        if "g" in m:
            prefetch1(a, KA_WG, 512 * 2752, 52, 1024, 244, 241, 54, 60)
        if "u" in m:
            prefetch1(a, KA_WU, 512 * 2752, 52, 1024, 245, 241, 54, 60)
        if "d" in m:
            prefetch1(a, KA_WD, 1376 * 1024, 52, 1024, 246, 241, 54, 60)
        if "o" in m:
            prefetch1(a, KA_WO, 512 * 1024, 52, 1024, 247, 241, 54, 60)

    def late_pf(a):
        prefetch1(a, KA_WD, 1376 * 1024, 52, 1024, 246, 241, 54, 60)
        prefetch1(a, KA_WO, 512 * 1024, 52, 1024, 247, 241, 54, 60)
    if not ENV("NOPF"):
        if ENV("APF") == "full":
            pass
        elif ENV("APF"):
            a("s_add_u32 s53, s52, 1024")
            prefetch1(a, KA_AX, 2048 * 1024, 53, 2048, 244, 241, 54, 60)
            prefetch1(a, KA_WQKV, 512 * 3072, 53, 2048, 245, 241, 54, 60)
        elif not ENV("NOPF1"):
            prefetch1(a, KA_WQKV, 512 * 3072, 52, 1024, 245, 241, 54, 60)
            prefetch1(a, KA_AX, 2048 * 1024, 52, 1024, 244, 241, 54, 60)
        a("s_waitcnt vmcnt(0)")
        pstamp(a, "pf1")
        if ENV("TOUCH"):
            jobs.qkv_touch(a, 3)
        if ENV("WSPF"):
            prefetch_ws(a, S_WS, WS_QF, 0x600000, 52, 1024, 243, 241, 54, 60)
        if not ENV("FLATE"):
            f_weights_pf(a)
        if ENV("WSPF") == "2":
            prefetch_ws(a, S_WS, WS_H, 16 * 43 * 8192, 52, 1024, 242, 241, 54, 60)
    wait_init(a, jobs.S_DBG, S_W, V_T, S_T)
    if ENV("HOLD"):
        jobs.decode_qkv(a, 3)
        a(f"s_lshl_b32 s50, s{S_CB}, 4")
        a(f"s_and_b32 s51, s{S_RB}, 7")
        a(f"s_add_u32 s50, s50, s51")
        a(f"s_add_u32 s50, s50, 8")
        wait_count(a, S_WS, 50, int(ENV("HOLDN", "32")), S_W, V_T, S_T, WS_FLAG + 256 * C_QKV)
        pstamp(a, "hold")
        if ENV("FLATE"):
            f_weights_pf(a)
    if ENV("TWIN"):
        wait_count(a, S_WS, 3, 1, S_W, V_T, S_T, WS_FLAG + 256 * C_TWIN)
        pstamp(a, "twin")
    a("s_setprio 3")
    jobs.g_job(a, 3, sc1=True, epi_prio=2, loop_prio=ENV('FPRIO', '0'), post_loop=late_pf if ENV("LATEPF") else None)
    a(f"s_setprio {ENV('FPRIO', '0')}")
    a(f"s_lshl_b32 s50, s{S_RB}, 2")
    signal(a, S_WS, 50, 4, S_W, V_T, WS_FLAG + 256 * C_G)
    pstamp(a, "sig")

    def wait_g(a):
        a(f"s_lshr_b32 s50, s{S_RB}, 1")
        a(f"s_lshl_b32 s50, s50, 2")
        a(f"s_and_b32 s51, s{S_CB}, 3")
        a(f"s_add_u32 s50, s50, s51")
        wait_count(a, S_WS, 50, 16, S_W, V_T, S_T, WS_FLAG + 256 * C_G)
    splitk.d_job(a, 3, a_sc1=True, wait=wait_g, post_prio=ENV('DPRIO', '0'))

    def wait_attn(a):
        a(f"s_lshr_b32 s50, s{S_RB}, 1")
        a(f"s_lshl_b32 s50, s50, 2")
        a(f"s_and_b32 s51, s{S_CB}, 3")
        a(f"s_add_u32 s50, s50, s51")
        (wait_count_fast if ENV('FAST') else wait_count)(a, S_WS, 50, 32, S_W, V_T, S_T, WS_FLAG + 256 * C_ATT)
    splitk.wo2_job(a, 3, wait=wait_attn)
    pflush(a, 2, S_W, S_WS, V_T, 0)
    a.label("k_done")
    a("s_endpgm")
    a.raw('.section .rodata,"a"')
    a.raw(".p2align 6")
    a.raw(kernel_desc(f"{NAME}_kernel", 256))
    return a.text()


def build2():
    a = Asm()
    a.raw(HEADER.rstrip("\\n"))
    LDS = 81920
    a.raw(f"; @launch kernel=k1_kernel grid=(256,1,1) block=(256,1,1) lds={LDS}")
    a.raw(f"; @launch kernel={NAME}_kernel grid=(512,1,1) block=(256,1,1) lds={LDS}")
    a.raw('.amdgcn_target "amdgcn-amd-amdhsa--gfx950"')
    a.raw(".text")
    kernel_header(a, "k1_kernel")
    a("s_cmp_ge_u32 s2, 256")
    a("s_cbranch_scc1 k1_done")
    preset(a); pstamp(a, "entry")
    jobs.common_entry(a)
    a("s_waitcnt lgkmcnt(0)")

    def pre_qkv(a):
        a("s_lshl_b32 s52, s2, 2")
        a(f"s_add_u32 s52, s52, s{S_W}")
        prefetch1(a, KA_WQKV, 512 * 3072, 52, 1024, 178, 177, 54, 60)
        prefetch1(a, KA_AX, 2048 * 1024, 52, 1024, 176, 177, 54, 60)

    def post_qkv(a):
        prefetch1(a, KA_WG, 512 * 2752, 52, 1024, 180, 177, 54, 60)
        prefetch1(a, KA_WU, 512 * 2752, 52, 1024, 181, 177, 54, 60)
        prefetch1(a, KA_WD, 1376 * 1024, 52, 1024, 182, 177, 54, 60)
        prefetch1(a, KA_WO, 512 * 1024, 52, 1024, 183, 177, 54, 60)
    jobs.qkv_job(a, 2, sc1=False, pre=pre_qkv, post_loop=post_qkv)
    a(f"s_or_b32 s50, s2, s{S_W}")
    a("s_cmp_lg_u32 s50, 0")
    a("s_cbranch_scc1 k1_noinit")
    a(f"v_lshlrev_b32 v{V_T}, 8, v0")
    a(f"v_add_u32 v{V_T}, {WS_FLAG}, v{V_T}")
    a(f"v_mov_b32 v{V_T+1}, 0")
    for i in range(4):
        a(f"global_store_dword v{V_T}, v{V_T+1}, s[{S_WS}:{S_WS+1}]")
        if i < 3:
            a(f"v_add_u32 v{V_T}, 16384, v{V_T}")
    a.label("k1_noinit")
    pflush(a, 2, S_W, S_WS, V_T, 1)
    a.label("k1_done")
    a("s_endpgm")
    kernel_header(a, f"{NAME}_kernel")
    a("s_cmp_ge_u32 s2, 512")
    a("s_cbranch_scc1 k_done")
    preset(a); pstamp(a, "entry")
    jobs.common_entry(a)
    a("s_waitcnt lgkmcnt(0)")
    a("s_cmp_ge_u32 s2, 256")
    a("s_cbranch_scc1 k_ffn")
    attn.OUT_SC1 = True
    attn.IN_SC1 = False
    attn.WAIT_IN = None
    a(f"s_setprio {ENV('APRIO', '1')}")
    attn.attn_body(a, 2, None)
    a(f"s_lshl_b32 s50, s{attn.S_QB}, 3")
    signal(a, S_WS, 50, 8, S_W, attn.TMP, WS_FLAG + 256 * C_ATT, drain=False)
    pstamp(a, "attn:sig")
    pflush(a, 2, S_W, S_WS, attn.TMP, 0)
    a("s_branch k_done")
    a.label("k_ffn")
    preset(a); pstamp(a, "entry")
    a("s_sub_u32 s3, s2, 256")
    a("s_setprio 3")
    jobs.g_job(a, 3, sc1=True, epi_prio=2, loop_prio=ENV('FPRIO', '0'))
    a(f"s_setprio {ENV('FPRIO', '0')}")
    a(f"s_lshl_b32 s50, s{S_RB}, 2")
    signal(a, S_WS, 50, 4, S_W, V_T, WS_FLAG + 256 * C_G)
    pstamp(a, "sig")

    def wait_g(a):
        a(f"s_lshr_b32 s50, s{S_RB}, 1")
        a(f"s_lshl_b32 s50, s50, 2")
        a(f"s_and_b32 s51, s{S_CB}, 3")
        a(f"s_add_u32 s50, s50, s51")
        wait_count(a, S_WS, 50, 16, S_W, V_T, S_T, WS_FLAG + 256 * C_G)
    splitk.d_job(a, 3, a_sc1=True, wait=wait_g, post_prio=ENV('DPRIO', '0'))

    def wait_attn(a):
        a(f"s_lshr_b32 s50, s{S_RB}, 1")
        a(f"s_lshl_b32 s50, s50, 2")
        a(f"s_and_b32 s51, s{S_CB}, 3")
        a(f"s_add_u32 s50, s50, s51")
        wait_count(a, S_WS, 50, 32, S_W, V_T, S_T, WS_FLAG + 256 * C_ATT)
    splitk.wo2_job(a, 3, wait=wait_attn)
    pflush(a, 2, S_W, S_WS, V_T, 0)
    a.label("k_done")
    a("s_endpgm")
    a.raw('.section .rodata,"a"')
    a.raw(".p2align 6")
    a.raw(kernel_desc("k1_kernel", 192))
    a.raw(".p2align 6")
    a.raw(kernel_desc(f"{NAME}_kernel", 256))
    return a.text()


def build3():
    a = Asm()
    a.raw(HEADER.rstrip("\\n"))
    LDS = 81920
    a.raw(f"; @launch kernel=k1_kernel grid=(512,1,1) block=(256,1,1) lds={LDS}")
    a.raw(f"; @launch kernel={NAME}_kernel grid=(512,1,1) block=(256,1,1) lds={LDS}")
    a.raw('.amdgcn_target "amdgcn-amd-amdhsa--gfx950"')
    a.raw(".text")
    kernel_header(a, "k1_kernel")
    a("s_cmp_ge_u32 s2, 512")
    a("s_cbranch_scc1 k1_done")
    preset(a); pstamp(a, "entry")
    jobs.common_entry(a)
    a("s_waitcnt lgkmcnt(0)")
    a("s_cmp_ge_u32 s2, 256")
    a("s_cbranch_scc1 k1_g")
    a("s_setprio 1")

    def post_qkv(a):
        a("s_lshl_b32 s52, s2, 2")
        a(f"s_add_u32 s52, s52, s{S_W}")
        prefetch1(a, KA_WD, 1376 * 1024, 52, 1024, 182, 177, 54, 60)
        prefetch1(a, KA_WO, 512 * 1024, 52, 1024, 183, 177, 54, 60)
    jobs.qkv_job(a, 2, sc1=False, post_loop=post_qkv)
    a(f"s_or_b32 s50, s2, s{S_W}")
    a("s_cmp_lg_u32 s50, 0")
    a("s_cbranch_scc1 k1_noinit")
    a(f"v_lshlrev_b32 v{V_T}, 8, v0")
    a(f"v_add_u32 v{V_T}, {WS_FLAG}, v{V_T}")
    a(f"v_mov_b32 v{V_T+1}, 0")
    for i in range(4):
        a(f"global_store_dword v{V_T}, v{V_T+1}, s[{S_WS}:{S_WS+1}]")
        if i < 3:
            a(f"v_add_u32 v{V_T}, 16384, v{V_T}")
    a.label("k1_noinit")
    pflush(a, 2, S_W, S_WS, V_T, 1)
    a("s_branch k1_done")
    a.label("k1_g")
    preset(a); pstamp(a, "entry")
    a("s_sub_u32 s3, s2, 256")
    jobs.g_job(a, 3, sc1=False)
    pflush(a, 2, S_W, S_WS, V_T, 1)
    a.label("k1_done")
    a("s_endpgm")
    kernel_header(a, f"{NAME}_kernel")
    a("s_cmp_ge_u32 s2, 512")
    a("s_cbranch_scc1 k_done")
    preset(a); pstamp(a, "entry")
    jobs.common_entry(a)
    a("s_waitcnt lgkmcnt(0)")
    a("s_cmp_ge_u32 s2, 256")
    a("s_cbranch_scc1 k_ffn")
    attn.OUT_SC1 = True
    attn.IN_SC1 = False
    attn.WAIT_IN = None
    a(f"s_setprio {ENV('APRIO', '1')}")
    attn.attn_body(a, 2, None)
    a(f"s_lshl_b32 s50, s{attn.S_QB}, 3")
    signal(a, S_WS, 50, 8, S_W, attn.TMP, WS_FLAG + 256 * C_ATT, drain=False)
    pstamp(a, "attn:sig")
    pflush(a, 2, S_W, S_WS, attn.TMP, 0)
    a("s_branch k_done")
    a.label("k_ffn")
    preset(a); pstamp(a, "entry")
    a("s_sub_u32 s3, s2, 256")
    splitk.d_job(a, 3, a_sc1=False, wait=None, post_prio=ENV('DPRIO', '0'))

    def wait_attn(a):
        a(f"s_lshr_b32 s50, s{S_RB}, 1")
        a(f"s_lshl_b32 s50, s50, 2")
        a(f"s_and_b32 s51, s{S_CB}, 3")
        a(f"s_add_u32 s50, s50, s51")
        wait_count(a, S_WS, 50, 32, S_W, V_T, S_T, WS_FLAG + 256 * C_ATT)
    splitk.wo2_job(a, 3, wait=wait_attn)
    pflush(a, 2, S_W, S_WS, V_T, 0)
    a.label("k_done")
    a("s_endpgm")
    a.raw('.section .rodata,"a"')
    a.raw(".p2align 6")
    a.raw(kernel_desc("k1_kernel", 256))
    a.raw(".p2align 6")
    a.raw(kernel_desc(f"{NAME}_kernel", 256))
    return a.text()


if __name__ == "__main__":
    out = sys.argv[1] if len(sys.argv) > 1 else f"cdna_kernels/{NAME}.s"
    open(out, "w").write(build3() if ENV("TWO") == "y" else build2() if ENV("TWO") else build())
    print("wrote", out, os.path.getsize(out), "bytes")
```

```python
from asmlib import *
from layout import *
from gemm import *
from sync import *
import struct, os
NTQ = ' nt' if os.environ.get('NTQ') else ''
NTG = ' nt' if os.environ.get('NTG') else ''

def f2u(x):
    return struct.unpack("<I", struct.pack("<f", x))[0]


S_DBG = 48


def common_entry(a):
    a(f"s_load_dwordx16 s[{S_P0}:{S_P0+15}], s[0:1], 0")
    a(f"s_load_dwordx2 s[{S_WS}:{S_WS+1}], s[0:1], {KA_WS}")
    a(f"s_load_dwordx2 s[{S_DBG}:{S_DBG+1}], s[0:1], {KA_DBG}")
    a(f"v_lshrrev_b32 v{V_T}, 6, v0")
    a("v_and_b32 v0, 63, v0")
    a(f"v_readfirstlane_b32 s{S_W}, v{V_T}")
    if WS_BASE:
        a("s_waitcnt lgkmcnt(0)")
        a(f"s_add_u32 s{S_WS}, s{S_WS}, {WS_BASE}")
        a(f"s_addc_u32 s{S_WS+1}, s{S_WS+1}, 0")


def decode_rb_cb(a, idreg):
    a(f"s_and_b32 s{S_RB}, s{idreg}, 3")
    a(f"s_lshl_b32 s{S_RB}, s{S_RB}, 2")
    a(f"s_bfe_u32 s{S_T}, s{idreg}, 0x20003")
    a(f"s_add_u32 s{S_RB}, s{S_RB}, s{S_T}")
    a(f"s_bfe_u32 s{S_CB}, s{idreg}, 0x10002")
    a(f"s_lshl_b32 s{S_CB}, s{S_CB}, 3")
    a(f"s_lshr_b32 s{S_T}, s{idreg}, 5")
    a(f"s_add_u32 s{S_CB}, s{S_CB}, s{S_T}")


def srd_from(a, dst, lo, hi, size, add=0):
    if add > 0:
        a(f"s_add_u32 s{dst}, s{lo}, {add}")
        a(f"s_addc_u32 s{dst+1}, s{hi}, 0")
    elif add < 0:
        a(f"s_sub_u32 s{dst}, s{lo}, {-add}")
        a(f"s_subb_u32 s{dst+1}, s{hi}, 0")
    else:
        a(f"s_mov_b32 s{dst}, s{lo}")
        a(f"s_mov_b32 s{dst+1}, s{hi}")
    a(f"s_and_b32 s{dst+1}, s{dst+1}, 0xffff")
    a(f"s_mov_b32 s{dst+2}, {size}")
    a(f"s_mov_b32 s{dst+3}, 0x20000")


def store_pk8(a, src, tmp, scale_sreg=None):
    if scale_sreg is not None:
        for r in range(8):
            a(f"v_mul_f32 v{src+r}, s{scale_sreg}, v{src+r}")
    for r in range(4):
        a(f"v_cvt_pk_bf16_f32 v{tmp+r}, v{src+2*r}, v{src+2*r+1}")


def touch_x(a, vdst):
    a(f"s_and_b32 s{S_T}, s{S_CB}, 7")
    a(f"s_lshl_b32 s{S_T}, s{S_T}, 4")
    a(f"s_lshl_b32 s{S_T+1}, s{S_W}, 2")
    a(f"s_add_u32 s{S_T}, s{S_T}, s{S_T+1}")
    a(f"s_lshl_b32 s{S_T}, s{S_T}, 10")
    a(f"s_add_u32 s{S_T}, s{S_T}, s{S_SOA}")
    a(f"v_lshrrev_b32 v{V_T}, 3, v0")
    a(f"v_lshlrev_b32 v{V_T}, 10, v{V_T}")
    a(f"v_and_b32 v{V_T+1}, 7, v0")
    a(f"v_lshlrev_b32 v{V_T+1}, 7, v{V_T+1}")
    a(f"v_add_u32 v{V_T}, v{V_T}, v{V_T+1}")
    a(f"s_mov_b32 exec_hi, 0")
    a(f"buffer_load_dword v{vdst}, v{V_T}, s[{SRD_A}:{SRD_A+3}], s{S_T} offen")
    a(f"s_mov_b32 exec_hi, -1")


def decode_qkv(a, idreg):
    a(f"s_and_b32 s{S_RB}, s{idreg}, 3")
    a(f"s_lshl_b32 s{S_RB}, s{S_RB}, 3")
    a(f"s_bfe_u32 s{S_T}, s{idreg}, 0x30003")
    a(f"s_add_u32 s{S_RB}, s{S_RB}, s{S_T}")
    a(f"s_bfe_u32 s{S_CB}, s{idreg}, 0x10002")
    a(f"s_lshl_b32 s{S_CB}, s{S_CB}, 2")
    a(f"s_lshr_b32 s{S_T}, s{idreg}, 6")
    a(f"s_add_u32 s{S_CB}, s{S_CB}, s{S_T}")


def qkv_ltouch(a, vx, vw):
    a(f"s_lshl_b32 s{S_T}, s{S_RB}, 6")
    a(f"s_and_b32 s{S_T+1}, s{S_CB}, 3")
    a(f"s_lshl_b32 s{S_T+1}, s{S_T+1}, 4")
    a(f"s_add_u32 s{S_T}, s{S_T}, s{S_T+1}")
    a(f"s_lshl_b32 s{S_T+1}, s{S_W}, 2")
    a(f"s_add_u32 s{S_T}, s{S_T}, s{S_T+1}")
    a(f"s_lshl_b32 s{S_T}, s{S_T}, 10")
    a(f"s_and_b32 s{S_T+2}, s{S_RB}, 7")
    a(f"s_lshl_b32 s{S_T+2}, s{S_T+2}, 6")
    a(f"s_lshl_b32 s{S_T+1}, s{S_W}, 4")
    a(f"s_add_u32 s{S_T+2}, s{S_T+2}, s{S_T+1}")
    a(f"s_mul_i32 s{S_T+2}, s{S_T+2}, 3072")
    a(f"s_lshl_b32 s{S_T+1}, s{S_CB}, 7")
    a(f"s_add_u32 s{S_T+2}, s{S_T+2}, s{S_T+1}")
    a(f"v_and_b32 v{V_T}, 15, v0")
    a(f"v_mul_u32_u24 v{V_T}, 3072, v{V_T}")
    a(f"v_lshrrev_b32 v{V_T+1}, 4, v0")
    a(f"v_lshlrev_b32 v{V_T+1}, 10, v{V_T+1}")
    a(f"v_add_u32 v{V_T}, v{V_T}, v{V_T+1}")
    a(f"s_mov_b32 exec_hi, 0xffff")
    a(f"buffer_load_dword v{vw}, v{V_T}, s[{SRD_W}:{SRD_W+3}], s{S_T+2} offen")
    a(f"v_lshrrev_b32 v{V_T}, 3, v0")
    a(f"v_lshlrev_b32 v{V_T}, 10, v{V_T}")
    a(f"v_and_b32 v{V_T+1}, 7, v0")
    a(f"v_lshlrev_b32 v{V_T+1}, 7, v{V_T+1}")
    a(f"v_add_u32 v{V_T}, v{V_T}, v{V_T+1}")
    a(f"s_mov_b32 exec_hi, 0")
    a(f"buffer_load_dword v{vx}, v{V_T}, s[{SRD_A}:{SRD_A+3}], s{S_T} offen")
    a(f"s_mov_b32 exec_hi, -1")


def qkv_job(a, idreg, pre=None, post_loop=None, sc1=False, ltouch=False):
    import gemm2 as g2
    SC = ' sc1' if sc1 else ''
    FA2, FW2, ACC = 16, 32, 80
    V_RW2, V_RW2H, RAH = 12 + 4 - 4 + 128, 141, 142
    V_RW2 = 140
    j = g2.J2()
    j.name, j.NS, j.RA, j.RW, j.nA, j.nW = "qkv", 16, 3, 4, 2, 3
    ASLOT, WSLOT, WBASE = 8192, 12288, 3 * 8192
    P_X, P_W, P_GW = S_P0, S_P0 + 2, S_P0 + 14
    decode_qkv(a, idreg)
    T0, T1, T2 = V_T, V_T + 1, V_T + 2
    srd_from(a, SRD_A, P_X, P_X + 1, 2048 * 1024)
    srd_from(a, SRD_W, P_W, P_W + 1, 512 * 3072)
    a(f"s_lshl_b32 s{S_SOA}, s{S_RB}, 16")
    a(f"s_mov_b32 s{S_SOW}, 0")
    if ltouch:
        qkv_ltouch(a, 180, 181)
    a(f"s_lshl_b32 s{S_T}, s{S_W}, 14")
    g2.a_dma_lane(a, g2.V_OA, 0)
    a(f"v_add_u32 v{g2.V_OA}, s{S_T}, v{g2.V_OA}")
    g2.a_dma_lane(a, g2.V_OA + 1, 1)
    a(f"v_add_u32 v{g2.V_OA+1}, s{S_T}, v{g2.V_OA+1}")
    a(f"v_add_u32 v{g2.V_OA+1}, {8 * 1024 - 1024}, v{g2.V_OA+1}")
    a(f"s_lshl_b32 s{S_LDA}, s{S_W}, 11")
    a(f"v_lshrrev_b32 v{T0}, 3, v0")
    a(f"v_mul_u32_u24 v{T0}, 3072, v{T0}")
    a(f"v_bfe_u32 v{T1}, v0, 4, 1")
    a(f"v_lshlrev_b32 v{T1}, 2, v{T1}")
    a(f"v_and_b32 v{T2}, 7, v0")
    a(f"v_xor_b32 v{T1}, v{T1}, v{T2}")
    a(f"v_lshlrev_b32 v{T1}, 4, v{T1}")
    a(f"s_mul_i32 s{S_T}, s{S_W}, {8 * 3072}")
    a(f"s_lshl_b32 s{S_T+1}, s{S_CB}, 7")
    a(f"s_add_u32 s{S_T}, s{S_T}, s{S_T+1}")
    a(f"v_add3_u32 v{g2.V_OW}, v{T0}, v{T1}, s{S_T}")
    a(f"s_mul_i32 s{S_LDW}, s{S_W}, 3072")
    GX, GWR = 128, 136

    def late_setup(a):
        n = 0
        if pre:
            n += pre(a) or 0
        a(f"s_and_b32 s{S_T}, s{S_W}, 1")
        a(f"s_lshl_b32 s{S_T}, s{S_T}, 12")
        g2.a_read_setup(a, S_T, RAH)
        a(f"v_lshrrev_b32 v{T0}, 5, v0")
        a(f"v_mul_u32_u24 v{T0}, 3072, v{T0}")
        a(f"v_bfe_u32 v{T1}, v0, 2, 2")
        a(f"v_lshlrev_b32 v{T1}, 7, v{T1}")
        a(f"v_add_u32 v{T0}, v{T0}, v{T1}")
        a(f"s_lshr_b32 s{S_T}, s{S_W}, 1")
        a(f"v_bfe_u32 v{T1}, v0, 3, 1")
        a(f"v_xor_b32 v{T1}, s{S_T}, v{T1}")
        a(f"v_lshlrev_b32 v{T1}, 6, v{T1}")
        a(f"v_add_u32 v{T0}, v{T0}, v{T1}")
        a(f"v_bfe_u32 v{T1}, v0, 4, 1")
        a(f"v_lshlrev_b32 v{T1}, 5, v{T1}")
        a(f"v_and_b32 v{T2}, 3, v0")
        a(f"v_lshlrev_b32 v{T2}, 3, v{T2}")
        a(f"v_add3_u32 v{V_RW2}, v{T0}, v{T1}, v{T2}")
        a(f"v_add_u32 v{V_RW2H}, {HI}, v{V_RW2}")
        a(f"s_lshl_b32 s{S_T}, s{S_RB}, 6")
        a(f"s_lshl_b32 s{S_T+1}, s{S_CB}, 3")
        a(f"s_add_u32 s{S_T}, s{S_T}, s{S_T+1}")
        a(f"s_lshl_b32 s{S_T+1}, s{S_W}, 1")
        a(f"s_add_u32 s{S_T+7}, s{S_T}, s{S_T+1}")
        a(f"s_lshl_b32 s{S_T+3}, s{S_T+7}, 10")
        a(f"v_lshlrev_b32 v{V_T}, 4, v0")
        a(f"v_add_u32 v{V_T+1}, s{S_T+3}, v{V_T}")
        a(f"global_load_dwordx4 v[{GX}:{GX+3}], v{V_T+1}, s[{P_X}:{P_X+1}]")
        a(f"global_load_dwordx4 v[{GX+4}:{GX+7}], v{V_T+1}, s[{P_X}:{P_X+1}] offset:1024")
        a(f"global_load_dwordx4 v[{GWR}:{GWR+3}], v{V_T}, s[{P_GW}:{P_GW+1}]")
        return n + 3

    def dmaA(a, S):
        a(f"s_add_u32 m0, s{S_LDA}, {(S % j.RA) * ASLOT}")
        a("s_nop 0")
        a(f"buffer_load_dwordx4 v{g2.V_OA}, s[{SRD_A}:{SRD_A+3}], s{S_SOA} offen{NTQ} lds")
        a(f"buffer_load_dwordx4 v{g2.V_OA+1}, s[{SRD_A}:{SRD_A+3}], s{S_SOA} offen offset:1024{NTQ} lds")
        a(f"s_add_u32 s{S_SOA}, s{S_SOA}, 128")

    def dmaW(a, s_):
        a(f"s_add_u32 m0, s{S_LDW}, {WBASE + (s_ % j.RW) * WSLOT}")
        a("s_nop 0")
        for t in range(3):
            off = f" offset:{1024 * t}" if t else ""
            a(f"buffer_load_dwordx4 v{g2.V_OW}, s[{SRD_W}:{SRD_W+3}], s{S_SOW} offen{off}{NTQ} lds")
        a(f"s_add_u32 s{S_SOW}, s{S_SOW}, {32 * 3072}")

    def reads(st):
        b = st & 1
        asl = ((st >> 1) % j.RA) * ASLOT
        wsl = WBASE + (st % j.RW) * WSLOT
        out = []
        for s_ in range(2):
            k = 2 * (st & 1) + s_
            out.append(g2.ds_rd("ds_read_b128", FA2 + (2 * b + s_) * 4, 4, g2.V_RA + k, RAH + k, asl))
            for t in range(3):
                d = FW2 + ((2 * b + s_) * 3 + t) * 4
                for half in range(2):
                    out.append(g2.ds_rd("ds_read_b64_tr_b16", d + 2 * half, 2, V_RW2, V_RW2H, wsl + s_ * 6144 + half * 512 + t * 1024))
        return out

    def mfmas(st):
        b = st & 1
        out = []
        for s_ in range(2):
            f = FA2 + (2 * b + s_) * 4
            for t in range(3):
                w = FW2 + ((2 * b + s_) * 3 + t) * 4
                out.append(g2.mfma(ACC + 16 * t, w, f) if t < 2 else g2.mfma(ACC + 16 * t, f, w))
        return out

    def after_prologue(a):
        n = late_setup(a)
        for r in range(48):
            a(f"v_mov_b32 v{ACC + r}, 0")
        return n
    def gate(a):
        G0, G1 = 146, 147
        a(f"v_mov_b32 v{G0}, 0")
        a(f"v_mov_b32 v{G1}, 0")
        for r in range(4):
            a(f"v_dot2_f32_bf16 v{G0}, v{GX+r}, v{GWR+r}, v{G0}")
            a(f"v_dot2_f32_bf16 v{G1}, v{GX+4+r}, v{GWR+r}, v{G1}")
        for rot in (8, 4, 2, 1):
            a("s_nop 1")
            a(f"v_add_f32_dpp v{G0}, v{G0}, v{G0} row_ror:{rot} row_mask:0xf bank_mask:0xf")
            a(f"v_add_f32_dpp v{G1}, v{G1}, v{G1} row_ror:{rot} row_mask:0xf bank_mask:0xf")
        a("s_nop 1")
        for gi, g in enumerate((G0, G1)):
            for q in range(4):
                a(f"v_readlane_b32 s{S_T+q}, v{g}, {16*q}")
            a("s_nop 1")
            a(f"v_mov_b32 v{V_T+gi}, s{S_T}")
            a(f"v_add_f32 v{V_T+gi}, s{S_T+1}, v{V_T+gi}")
            a(f"v_add_f32 v{V_T+gi}, s{S_T+2}, v{V_T+gi}")
            a(f"v_add_f32 v{V_T+gi}, s{S_T+3}, v{V_T+gi}")
        a(f"v_cmp_eq_u32 vcc, 1, v0")
        a("s_nop 1")
        a(f"v_cndmask_b32 v{V_T}, v{V_T}, v{V_T+1}, vcc")
        a(f"v_mul_f32 v{V_T}, {f2u(-1.4426950408889634)}, v{V_T}")
        a(f"v_exp_f32 v{V_T}, v{V_T}")
        a("s_nop 0")
        a(f"v_add_f32 v{V_T}, 1.0, v{V_T}")
        a(f"v_rcp_f32 v{V_T}, v{V_T}")
        a(f"v_lshlrev_b32 v{V_T+1}, 2, v0")
        a(f"s_lshl_b32 s{S_T}, s{S_T+7}, 2")
        a(f"s_add_u32 s{S_T}, s{S_T}, {WS_G}")
        a(f"v_add_u32 v{V_T+1}, s{S_T}, v{V_T+1}")
        a(f"v_cmp_gt_u32 vcc, 2, v0")
        a(f"s_and_saveexec_b64 s[{S_T+2}:{S_T+3}], vcc")
        a(f"global_store_dword v{V_T+1}, v{V_T}, s[{S_WS}:{S_WS+1}]{SC}")
        a(f"s_mov_b64 exec, s[{S_T+2}:{S_T+3}]")
    j.mid = (7, gate)
    j.dmaA, j.dmaW, j.reads, j.mfmas, j.after_prologue = dmaA, dmaW, reads, mfmas, after_prologue
    g2.engine(a, j)
    pstamp(a, 'qkv:loopend')
    if post_loop:
        post_loop(a)
    a("s_nop 7")
    TMP = 148
    a(f"s_lshl_b32 s{S_T}, s{S_RB}, 1")
    a(f"s_and_b32 s{S_T+1}, s{S_W}, 1")
    a(f"s_add_u32 s{S_T}, s{S_T}, s{S_T+1}")
    a(f"s_lshl_b32 s{S_T+2}, s{S_CB}, 1")
    a(f"s_lshr_b32 s{S_T+1}, s{S_W}, 1")
    a(f"s_add_u32 s{S_T+2}, s{S_T+2}, s{S_T+1}")
    a(f"s_lshl_b32 s{S_T+2}, s{S_T+2}, 17")
    a(f"s_lshl_b32 s{S_T+1}, s{S_T}, 10")
    a(f"s_add_u32 s{S_T+1}, s{S_T+1}, s{S_T+2}")
    a(f"v_lshlrev_b32 v{V_T}, 4, v0")
    a(f"v_add_u32 v{V_T}, s{S_T+1}, v{V_T}")
    a(f"v_add_u32 v{V_T+1}, 0x10000, v{V_T}")
    a(f"s_mov_b32 s{S_T+3}, {f2u(QSCALE)}")
    a(f"s_add_u32 s{S_P0+6}, s{S_WS}, {WS_KF}")
    a(f"s_addc_u32 s{S_P0+7}, s{S_WS+1}, 0")
    store_pk8(a, ACC, TMP, S_T + 3)
    a(f"global_store_dwordx4 v{V_T}, v[{TMP}:{TMP+3}], s[{S_WS}:{S_WS+1}]{SC}")
    store_pk8(a, ACC + 8, TMP + 4, S_T + 3)
    a(f"global_store_dwordx4 v{V_T+1}, v[{TMP+4}:{TMP+7}], s[{S_WS}:{S_WS+1}]{SC}")
    store_pk8(a, ACC + 16, TMP + 8)
    a(f"global_store_dwordx4 v{V_T}, v[{TMP+8}:{TMP+11}], s[{S_P0+6}:{S_P0+7}]{SC}")
    store_pk8(a, ACC + 24, TMP + 12)
    a(f"global_store_dwordx4 v{V_T+1}, v[{TMP+12}:{TMP+15}], s[{S_P0+6}:{S_P0+7}]{SC}")
    a(f"s_lshl_b32 s{S_T+1}, s{S_T}, 10")
    a(f"s_add_u32 s{S_T+1}, s{S_T+1}, s{S_T+2}")
    a(f"s_add_u32 s{S_T+1}, s{S_T+1}, {WS_VF}")
    a(f"v_bfe_u32 v{V_T+2}, v0, 4, 1")
    a(f"v_lshlrev_b32 v{V_T+2}, 16, v{V_T+2}")
    a(f"v_lshrrev_b32 v{V_T+3}, 5, v0")
    a(f"v_lshlrev_b32 v{V_T+3}, 8, v{V_T+3}")
    a(f"v_add3_u32 v{V_T+2}, v{V_T+2}, v{V_T+3}, s{S_T+1}")
    a(f"v_and_b32 v{V_T+3}, 15, v0")
    a(f"v_lshlrev_b32 v{V_T+3}, 4, v{V_T+3}")
    a(f"v_add_u32 v{V_T+2}, v{V_T+2}, v{V_T+3}")
    VT = TMP + 16
    for p in range(2):
        src = ACC + 32 + 8 * p
        t = VT + 4 * p
        for r in range(4):
            a(f"v_cvt_pk_bf16_f32 v{t+r}, v{src+2*r}, v{src+2*r+1}")
        a("s_nop 1")
        a(f"v_permlane32_swap_b32 v{t}, v{t+2}")
        a(f"v_permlane32_swap_b32 v{t+1}, v{t+3}")
        off = f" offset:512" if p else ""
        a(f"global_store_dwordx4 v{V_T+2}, v[{t}:{t+3}], s[{S_WS}:{S_WS+1}]{off}{SC}")
    pstamp(a, 'qkv:end')
    return j


GA = -2.0 * 1.4426950408889634 * 0.7978845608028654
GB = GA * 0.044715

def g_job(a, idreg, done=None, sc1=False, epi_prio=None, loop_prio=None, post_loop=None, ltouch=False):
    import gemm2 as g2
    FA2, FW2, ACC = 16, 32, 128
    V_RW2, V_RW2H, RAH = 224, 225, 226
    j = g2.J2()
    import os
    j.name, j.NS, j.RA, j.RW, j.nA, j.nW = "g", 16, 2, int(os.environ.get("GRW", "4")), 4, 3
    ASLOT, WSLOT, WBASE = 16384, 12288, 2 * 16384
    P_X, P_WG, P_WU = S_P0, S_P0 + 8, S_P0 + 10
    decode_rb_cb(a, idreg)
    T0, T1, T2 = V_T, V_T + 1, V_T + 2
    a(f"s_lshl_b32 s{S_T}, s{S_W}, 15")
    g2.a_dma_lane(a, g2.V_OA, 0)
    g2.a_dma_lane(a, g2.V_OA + 1, 1)
    a(f"v_add_u32 v{g2.V_OA}, s{S_T}, v{g2.V_OA}")
    a(f"v_add_u32 v{g2.V_OA+1}, s{S_T}, v{g2.V_OA+1}")
    a(f"v_add_u32 v{g2.V_OA+2}, {2 * 7168}, v{g2.V_OA}")
    a(f"v_add_u32 v{g2.V_OA+3}, {3 * 7168}, v{g2.V_OA+1}")
    a(f"v_add_u32 v{g2.V_OA+1}, 7168, v{g2.V_OA+1}")
    a(f"s_lshl_b32 s{S_LDA}, s{S_W}, 12")
    g2.a_read_setup(a, S_LDA, RAH)
    a(f"v_lshrrev_b32 v{T0}, 2, v0")
    a(f"v_mul_u32_u24 v{T0}, 2752, v{T0}")
    a(f"v_and_b32 v{T1}, 3, v0")
    a(f"v_lshlrev_b32 v{T1}, 4, v{T1}")
    a(f"v_add_u32 v{T0}, v{T0}, v{T1}")
    TILE0 = S_P0 + 6
    a(f"s_mul_i32 s{TILE0}, s{S_CB}, 3")
    a(f"s_lshl_b32 s{S_T}, s{S_CB}, 1")
    a(f"s_add_u32 s{S_T}, s{S_T}, 11")
    a(f"s_cmp_lt_u32 s{S_CB}, 11")
    a(f"s_cselect_b32 s{TILE0}, s{TILE0}, s{S_T}")
    a(f"s_cselect_b32 s{S_NP}, 3, 2")
    BIAS = 2048
    a(f"s_and_b32 s{S_T}, s{S_W}, 1")
    a(f"s_lshr_b32 s{S_T+1}, s{S_W}, 1")
    a(f"s_mul_i32 s{S_LDW}, s{S_T+1}, 6144")
    a(f"s_mul_i32 s{S_T+2}, s{S_T}, 3072")
    a(f"s_add_u32 s{S_LDW}, s{S_LDW}, s{S_T+2}")
    ex = lambda jx: 16 * (jx & 1) * 2752 + (jx >> 1) * 64
    a(f"s_cmp_eq_u32 s{S_T}, 0")
    for q in range(3):
        e0 = ex(q) - 1024 * q + BIAS
        e1 = ex(3 + q) - 1024 * q + BIAS
        a(f"s_mov_b32 s{S_T+3}, {e1}")
        a(f"s_cselect_b32 s{S_T+3}, {e0}, s{S_T+3}")
        a(f"v_add_u32 v{g2.V_OW+q}, s{S_T+3}, v{T0}")
    a(f"v_lshrrev_b32 v{T0}, 5, v0")
    a(f"v_lshlrev_b32 v{T0}, 3, v{T0}")
    a(f"v_bfe_u32 v{T1}, v0, 2, 2")
    a(f"v_add_u32 v{T0}, v{T0}, v{T1}")
    a(f"v_lshlrev_b32 v{T0}, 6, v{T0}")
    a(f"v_bfe_u32 v{T1}, v0, 4, 1")
    a(f"v_lshlrev_b32 v{T1}, 5, v{T1}")
    a(f"v_and_b32 v{T2}, 3, v0")
    a(f"v_lshlrev_b32 v{T2}, 3, v{T2}")
    a(f"v_add3_u32 v{V_RW2}, v{T0}, v{T1}, v{T2}")
    a(f"v_add_u32 v{V_RW2H}, {HI}, v{V_RW2}")
    a(f"s_lshl_b32 s{S_SOA}, s{S_RB}, 17")
    a(f"s_lshl_b32 s{S_SOW}, s{TILE0}, 6")
    a("s_waitcnt lgkmcnt(0)")
    srd_from(a, SRD_A, P_X, P_X + 1, 2048 * 1024)
    a(f"s_cmp_eq_u32 s{S_T+1}, 0")
    a(f"s_cselect_b32 s{S_T+4}, s{P_WG}, s{P_WU}")
    a(f"s_cselect_b32 s{S_T+5}, s{P_WG+1}, s{P_WU+1}")
    srd_from(a, SRD_W, S_T + 4, S_T + 5, 512 * 2752 + BIAS, add=-BIAS)
    if ltouch:
        touch_x(a, 242)
        a(f"s_and_b32 s{S_T}, s{S_RB}, 3")
        a(f"s_lshl_b32 s{S_T}, s{S_T}, 7")
        a(f"s_and_b32 s{S_T+1}, s{S_W}, 1")
        a(f"s_lshl_b32 s{S_T+1}, s{S_T+1}, 6")
        a(f"s_add_u32 s{S_T}, s{S_T}, s{S_T+1}")
        a(f"s_mul_i32 s{S_T}, s{S_T}, 2752")
        a(f"s_add_u32 s{S_T}, s{S_T}, s{S_SOW}")
        a(f"s_add_u32 s{S_T}, s{S_T}, {BIAS}")
        a(f"v_mul_u32_u24 v{V_T}, 2752, v0")
        for q, off in enumerate((0, 128, 188)):
            a(f"buffer_load_dword v{243+q}, v{V_T}, s[{SRD_W}:{SRD_W+3}], s{S_T} offen offset:{off}")

    def dmaA(a, S):
        a(f"s_add_u32 m0, s{S_LDA}, {(S % j.RA) * ASLOT}")
        a("s_nop 0")
        for i in range(4):
            off = f" offset:{1024 * i}" if i else ""
            a(f"buffer_load_dwordx4 v{g2.V_OA+i}, s[{SRD_A}:{SRD_A+3}], s{S_SOA} offen{off}{NTG} lds")
        a(f"s_add_u32 s{S_SOA}, s{S_SOA}, 128")

    def dmaW(a, s_):
        a(f"s_add_u32 m0, s{S_LDW}, {WBASE + (s_ % j.RW) * WSLOT}")
        a("s_nop 0")
        for q in range(3):
            off = f" offset:{1024 * q}" if q else ""
            a(f"buffer_load_dwordx4 v{g2.V_OW+q}, s[{SRD_W}:{SRD_W+3}], s{S_SOW} offen{off}{NTG} lds")
        a(f"s_add_u32 s{S_SOW}, s{S_SOW}, {32 * 2752}")

    cols = {'c': list(range(6))}

    def reads(st):
        b = st & 1
        asl = ((st >> 1) % j.RA) * ASLOT
        wsl = WBASE + (st % j.RW) * WSLOT
        out = []
        for s_ in range(2):
            k = 2 * (st & 1) + s_
            out.append(g2.ds_rd("ds_read_b128", FA2 + (2 * b + s_) * 4, 4, g2.V_RA + k, RAH + k, asl))
            for c in cols['c']:
                d = FW2 + ((2 * b + s_) * 6 + c) * 4
                for half in range(2):
                    out.append(g2.ds_rd("ds_read_b64_tr_b16", d + 2 * half, 2, V_RW2, V_RW2H, wsl + c * 2048 + (16 * s_ + 4 * half) * 64))
        return out

    def mfmas(st):
        b = st & 1
        out = []
        for s_ in range(2):
            f = FA2 + (2 * b + s_) * 4
            for c in cols['c']:
                out.append(g2.mfma(ACC + 16 * c, FW2 + ((2 * b + s_) * 6 + c) * 4, f))
        return out

    def after_prologue(a):
        for r in range(96):
            a(f"v_mov_b32 v{ACC + r}, 0")
        if loop_prio is not None:
            a(f"s_setprio {loop_prio}")
    j.dmaA, j.dmaW, j.reads, j.mfmas, j.after_prologue = dmaA, dmaW, reads, mfmas, after_prologue
    import os
    a(f"s_cmp_lt_u32 s{S_NP}, {0 if os.environ.get('NONP2') else 3}")
    a("s_cbranch_scc1 g_np2")
    g2.engine(a, j)
    a("s_branch g_loop_done")
    a.label("g_np2")
    cols['c'] = [0, 1, 3, 4]
    save = (getattr(a, 'pidx', 0), list(getattr(a, 'pnames', [])))
    if PROF:
        a.pidx -= 3; a.pnames.pop(); a.pnames.pop(); a.pnames.pop()
    g2.engine(a, j)
    a.label("g_loop_done")
    pstamp(a, 'g:loopend')
    if post_loop:
        post_loop(a)
    if epi_prio is not None:
        a(f"s_setprio {epi_prio}")
    a("s_nop 7")
    a("s_nop 7")
    T = 32
    a(f"s_mov_b32 s{S_T}, {f2u(GA)}")
    a(f"s_mov_b32 s{S_T+1}, {f2u(GB)}")
    a(f"s_mul_i32 s{S_T+2}, s{S_RB}, 43")
    a(f"s_add_u32 s{S_T+2}, s{S_T+2}, s{TILE0}")
    a(f"s_lshl_b32 s{S_T+2}, s{S_T+2}, 13")
    a(f"s_lshl_b32 s{S_T+3}, s{S_W}, 11")
    a(f"s_add_u32 s{S_T+2}, s{S_T+2}, s{S_T+3}")
    a(f"s_add_u32 s{S_T+2}, s{S_T+2}, {WS_H}")
    a(f"v_lshlrev_b32 v{V_T}, 4, v0")
    a(f"v_add_u32 v{V_T}, s{S_T+2}, v{V_T}")
    a(f"s_mov_b32 s{S_T+4}, {f2u(GB)}")
    a(f"s_mov_b32 s{S_T+5}, {f2u(GB)}")
    a(f"v_mov_b32 v{T+8}, s{S_T}")
    a(f"v_mov_b32 v{T+9}, s{S_T}")
    a(f"v_mov_b32 v{T+10}, 1.0")
    a(f"v_mov_b32 v{T+11}, 1.0")
    for p in range(3):
        if p == 2:
            a(f"s_cmp_lt_u32 s{S_NP}, 3")
            a(f"s_cbranch_scc1 g_skip")
        G, U = ACC + 16 * p, ACC + 16 * (3 + p)
        for r0 in range(0, 16, 8):
            pr = range(r0, r0 + 8, 2)
            t = lambda r: T + (r - r0)
            for r in pr:
                a(f"v_pk_mul_f32 v[{t(r)}:{t(r)+1}], v[{G+r}:{G+r+1}], v[{G+r}:{G+r+1}]")
            for r in pr:
                a(f"v_pk_fma_f32 v[{t(r)}:{t(r)+1}], v[{t(r)}:{t(r)+1}], s[{S_T+4}:{S_T+5}], v[{T+8}:{T+9}]")
            for r in pr:
                a(f"v_pk_mul_f32 v[{t(r)}:{t(r)+1}], v[{t(r)}:{t(r)+1}], v[{G+r}:{G+r+1}]")
            for r in range(r0, r0 + 8):
                a(f"v_exp_f32 v{t(r)}, v{t(r)}")
            for r in pr:
                a(f"v_pk_mul_f32 v[{U+r}:{U+r+1}], v[{U+r}:{U+r+1}], v[{G+r}:{G+r+1}]")
            for r in pr:
                a(f"v_pk_add_f32 v[{t(r)}:{t(r)+1}], v[{t(r)}:{t(r)+1}], v[{T+10}:{T+11}]")
            for r in range(r0, r0 + 8):
                a(f"v_rcp_f32 v{t(r)}, v{t(r)}")
            a("s_nop 0")
            for r in pr:
                a(f"v_pk_mul_f32 v[{U+r}:{U+r+1}], v[{U+r}:{U+r+1}], v[{t(r)}:{t(r)+1}]")
        for r in range(8):
            a(f"v_cvt_pk_bf16_f32 v{G+r}, v{U+2*r}, v{U+2*r+1}")
        if p:
            a(f"v_add_u32 v{V_T}, 8192, v{V_T}")
        sc = " sc1" if sc1 else ""
        a(f"global_store_dwordx4 v{V_T}, v[{G}:{G+3}], s[{S_WS}:{S_WS+1}]{sc}")
        a(f"global_store_dwordx4 v{V_T}, v[{G+4}:{G+7}], s[{S_WS}:{S_WS+1}] offset:1024{sc}")
    a.label("g_skip")
    pstamp(a, 'g:end')
    return j


def nc1_setup(a, j, idreg, kaW, ws_off, nst):
    P_W = S_P0
    a(f"s_load_dwordx2 s[{P_W}:{P_W+1}], s[0:1], {kaW}")
    decode_rb_cb(a, idreg)
    lane_setup(a, j)
    a(f"s_and_b32 s{S_T}, s{S_W}, 1")
    a(f"s_lshl_b32 s{S_LDW}, s{S_T}, 10")
    a(f"s_lshl_b32 s{S_T}, s{S_T}, 14")
    a(f"s_lshl_b32 s{S_T+1}, s{S_CB}, 6")
    a(f"s_add_u32 s{S_T}, s{S_T}, s{S_T+1}")
    a(f"v_add_u32 v{V_OW}, s{S_T}, v{V_OW}")
    a(f"s_mov_b32 s{S_SOA}, 0")
    a(f"s_mov_b32 s{S_SOW}, 0")
    a(f"s_mul_i32 s{S_T+2}, s{S_RB}, {nst * 8192}")
    a(f"s_add_u32 s{S_T+2}, s{S_T+2}, {ws_off}")
    a("s_waitcnt lgkmcnt(0)")
    a(f"s_add_u32 s{S_T+4}, s{S_WS}, s{S_T+2}")
    a(f"s_addc_u32 s{S_T+5}, s{S_WS+1}, 0")
    srd_from(a, SRD_A, S_T + 4, S_T + 5, nst * 8192)
    srd_from(a, SRD_W, P_W, P_W + 1, nst * 32 * 1024)


def bp_addr(a, dst):
    a(f"s_lshl_b32 s{S_T}, s{S_RB}, 4")
    a(f"s_add_u32 s{S_T}, s{S_T}, s{S_CB}")
    a(f"s_lshl_b32 s{S_T}, s{S_T}, 2")
    a(f"s_add_u32 s{S_T}, s{S_T}, s{S_W}")
    a(f"s_lshl_b32 s{S_T}, s{S_T}, 12")
    a(f"s_add_u32 s{S_T}, s{S_T}, {WS_BP}")
    a(f"v_lshlrev_b32 v{dst}, 4, v0")
    a(f"v_add_u32 v{dst}, s{S_T}, v{dst}")


def g_load(a, dst, tmp):
    a(f"s_lshl_b32 s{S_T}, s{S_RB}, 7")
    a(f"s_lshl_b32 s{S_T+1}, s{S_W}, 5")
    a(f"s_add_u32 s{S_T}, s{S_T}, s{S_T+1}")
    a(f"s_lshl_b32 s{S_T}, s{S_T}, 2")
    a(f"s_add_u32 s{S_T}, s{S_T}, {WS_G}")
    a(f"v_and_b32 v{tmp}, 31, v0")
    a(f"v_lshlrev_b32 v{tmp}, 2, v{tmp}")
    a(f"v_add_u32 v{tmp}, s{S_T}, v{tmp}")
    a(f"global_load_dword v{dst}, v{tmp}, s[{S_WS}:{S_WS+1}]")


def d_job(a, idreg, done, ring=8, lds0=0, a_sc1=False):
    ACC = 40
    j = Job("d", NC=1, nstages=43, ring=ring, nW=1, a_rs=64, a_ss=8192, w_ws=1024,
            chunk='frag', wrow='perm', orient=['FM'], acc=ACC, lds0=lds0, a_sc1=a_sc1)
    nc1_setup(a, j, idreg, KA_WD, WS_H, 43)
    GV = 60
    g_load(a, GV, V_T)
    prologue_dma(a, j)
    zero_acc(a, j)
    main_loop(a, j)
    pstamp(a, j.name + ':loopend')
    a("s_nop 7")
    a("s_nop 7")
    a(f"v_sub_f32 v{GV}, 1.0, v{GV}")
    bp_addr(a, V_T)
    for r in range(16):
        a(f"v_mul_f32 v{ACC+r}, v{ACC+r}, v{GV}")
    for q in range(4):
        off = f" offset:{1024*q}" if q else ""
        a(f"global_store_dwordx4 v{V_T}, v[{ACC+4*q}:{ACC+4*q+3}], s[{S_WS}:{S_WS+1}]{off}")
    pstamp(a, j.name + ':end')
    if done:
        a(f"s_branch {done}")
    return j


def wo_job(a, idreg, done, ring=8, lds0=0):
    ACC = 40
    j = Job("wo", NC=1, nstages=16, ring=ring, nW=1, a_rs=64, a_ss=8192, w_ws=1024,
            chunk='frag', wrow='perm', orient=['FM'], acc=ACC, lds0=lds0)
    P_OUT = S_P0 + 2
    a(f"s_load_dwordx2 s[{P_OUT}:{P_OUT+1}], s[0:1], {KA_OUT}")
    nc1_setup(a, j, idreg, KA_WO, WS_OB, 16)
    GV, BPV = 60, 64
    g_load(a, GV, V_T)
    bp_addr(a, V_T + 1)
    for q in range(4):
        off = f" offset:{1024*q}" if q else ""
        a(f"global_load_dwordx4 v[{BPV+4*q}:{BPV+4*q+3}], v{V_T+1}, s[{S_WS}:{S_WS+1}]{off}")
    prologue_dma(a, j)
    zero_acc(a, j)
    main_loop(a, j)
    pstamp(a, j.name + ':loopend')
    a("s_nop 7")
    a("s_nop 7")
    for r in range(16):
        a(f"v_fma_f32 v{ACC+r}, v{ACC+r}, v{GV}, v{BPV+r}")
    a(f"s_lshl_b32 s{S_T}, s{S_RB}, 7")
    a(f"s_lshl_b32 s{S_T+1}, s{S_W}, 5")
    a(f"s_add_u32 s{S_T}, s{S_T}, s{S_T+1}")
    a(f"s_lshl_b32 s{S_T}, s{S_T}, 10")
    a(f"s_lshl_b32 s{S_T+1}, s{S_CB}, 6")
    a(f"s_add_u32 s{S_T}, s{S_T}, s{S_T+1}")
    a(f"v_and_b32 v{V_T}, 31, v0")
    a(f"v_lshlrev_b32 v{V_T}, 10, v{V_T}")
    a(f"v_lshrrev_b32 v{V_T+1}, 5, v0")
    a(f"v_lshlrev_b32 v{V_T+1}, 4, v{V_T+1}")
    a(f"v_add3_u32 v{V_T}, v{V_T}, v{V_T+1}, s{S_T}")
    T = 80
    for p in range(2):
        t = T + 4 * p
        for r in range(4):
            a(f"v_cvt_pk_bf16_f32 v{t+r}, v{ACC+8*p+2*r}, v{ACC+8*p+2*r+1}")
        a("s_nop 1")
        a(f"v_permlane32_swap_b32 v{t}, v{t+2}")
        a(f"v_permlane32_swap_b32 v{t+1}, v{t+3}")
        off = " offset:32" if p else ""
        a(f"global_store_dwordx4 v{V_T}, v[{t}:{t+3}], s[{P_OUT}:{P_OUT+1}]{off}")
    pstamp(a, j.name + ':end')
    if done:
        a(f"s_branch {done}")
    return j


def qkv_touch(a, idreg):
    P_X, P_W = S_P0, S_P0 + 2
    a(f"s_load_dwordx2 s[{P_X}:{P_X+1}], s[0:1], {KA_AX}")
    a(f"s_load_dwordx2 s[{P_W}:{P_W+1}], s[0:1], {KA_WQKV}")
    decode_qkv(a, idreg)
    a("s_waitcnt lgkmcnt(0)")
    srd_from(a, SRD_A, P_X, P_X + 1, 2048 * 1024)
    srd_from(a, SRD_W, P_W, P_W + 1, 512 * 3072)
    a(f"s_lshl_b32 s{S_T}, s{S_RB}, 6")
    a(f"s_and_b32 s{S_T+1}, s{S_CB}, 3")
    a(f"s_lshl_b32 s{S_T+1}, s{S_T+1}, 4")
    a(f"s_add_u32 s{S_T}, s{S_T}, s{S_T+1}")
    a(f"s_lshl_b32 s{S_T+1}, s{S_W}, 2")
    a(f"s_add_u32 s{S_T}, s{S_T}, s{S_T+1}")
    a(f"s_lshl_b32 s{S_T}, s{S_T}, 10")
    a(f"v_lshrrev_b32 v{V_T}, 3, v0")
    a(f"v_lshlrev_b32 v{V_T}, 10, v{V_T}")
    a(f"v_and_b32 v{V_T+1}, 7, v0")
    a(f"v_lshlrev_b32 v{V_T+1}, 7, v{V_T+1}")
    a(f"v_add_u32 v{V_T}, v{V_T}, v{V_T+1}")
    a(f"s_mov_b32 exec_hi, 0")
    a(f"buffer_load_dword v242, v{V_T}, s[{SRD_A}:{SRD_A+3}], s{S_T} offen")
    a(f"s_mov_b32 exec_hi, -1")
    a(f"s_and_b32 s{S_T}, s{S_RB}, 7")
    a(f"s_lshl_b32 s{S_T}, s{S_T}, 6")
    a(f"s_lshl_b32 s{S_T+1}, s{S_W}, 4")
    a(f"s_add_u32 s{S_T}, s{S_T}, s{S_T+1}")
    a(f"s_mul_i32 s{S_T}, s{S_T}, 3072")
    a(f"s_lshl_b32 s{S_T+1}, s{S_CB}, 7")
    a(f"s_add_u32 s{S_T}, s{S_T}, s{S_T+1}")
    a(f"v_and_b32 v{V_T}, 15, v0")
    a(f"v_mul_u32_u24 v{V_T}, 3072, v{V_T}")
    a(f"v_lshrrev_b32 v{V_T+1}, 4, v0")
    a(f"v_lshlrev_b32 v{V_T+1}, 10, v{V_T+1}")
    a(f"v_add_u32 v{V_T}, v{V_T}, v{V_T+1}")
    a(f"s_mov_b32 exec_hi, 0xffff")
    a(f"buffer_load_dword v243, v{V_T}, s[{SRD_W}:{SRD_W+3}], s{S_T} offen")
    a(f"s_mov_b32 exec_hi, -1")
```

```python
from asmlib import *
from layout import *
from gemm import S_W, S_RB, S_CB, SRD_A, SRD_W, S_SOA, S_SOW, S_LDW, S_T, S_P0, S_WS, V_T

V_OA = 1
V_OW = 2
V_RW = 6
AR = 16
BIAS = 4096


class VmQ:
    def __init__(self):
        self.q = []
    def add(self, tag, n):
        self.q.append((tag, n))
    def wait_for(self, tags):
        last = max(i for i, (t, n) in enumerate(self.q) if t in tags)
        return sum(n for t, n in self.q[last + 1:])


class SK:
    def __init__(self, name, nst, ring, acc, wf, a_sc1):
        self.name, self.NS, self.R, self.acc, self.wf = name, nst, ring, acc, wf
        self.sc = " sc1" if a_sc1 else ""


def decode64(a, idreg):
    a(f"s_and_b32 s{S_RB}, s{idreg}, 3")
    a(f"s_lshl_b32 s{S_RB}, s{S_RB}, 3")
    a(f"s_bfe_u32 s{S_T}, s{idreg}, 0x30003")
    a(f"s_add_u32 s{S_RB}, s{S_RB}, s{S_T}")
    a(f"s_bfe_u32 s{S_CB}, s{idreg}, 0x10002")
    a(f"s_lshl_b32 s{S_CB}, s{S_CB}, 2")
    a(f"s_lshr_b32 s{S_T}, s{idreg}, 6")
    a(f"s_add_u32 s{S_CB}, s{S_CB}, s{S_T}")


def setup_lanes(a):
    T0, T1, T2 = V_T, V_T + 1, V_T + 2
    a(f"v_lshlrev_b32 v{V_OA}, 4, v0")
    a(f"v_lshrrev_b32 v{T0}, 2, v0")
    a(f"v_lshlrev_b32 v{T0}, 10, v{T0}")
    a(f"v_and_b32 v{T1}, 3, v0")
    a(f"v_lshlrev_b32 v{T1}, 4, v{T1}")
    a(f"s_lshl_b32 s{S_T}, s{S_CB}, 7")
    a(f"v_add3_u32 v{T0}, v{T0}, v{T1}, s{S_T}")
    for q in range(4):
        i, c = q >> 1, q & 1
        a(f"v_add_u32 v{V_OW+q}, {16 * 1024 * i + 64 * c - 1024 * q + BIAS}, v{T0}")
    a(f"s_mul_i32 s{S_LDW}, s{S_W}, 20480")
    a(f"v_lshrrev_b32 v{T0}, 5, v0")
    a(f"v_lshlrev_b32 v{T0}, 2, v{T0}")
    a(f"v_bfe_u32 v{T1}, v0, 2, 2")
    a(f"v_add_u32 v{T0}, v{T0}, v{T1}")
    a(f"v_lshlrev_b32 v{T0}, 6, v{T0}")
    a(f"v_bfe_u32 v{T1}, v0, 4, 1")
    a(f"v_lshlrev_b32 v{T1}, 5, v{T1}")
    a(f"v_and_b32 v{T2}, 3, v0")
    a(f"v_lshlrev_b32 v{T2}, 3, v{T2}")
    a(f"v_add3_u32 v{T0}, v{T0}, v{T1}, v{T2}")
    a(f"v_add_u32 v{V_RW}, s{S_LDW}, v{T0}")


def setup_srds(a, j, w_lo, a_ws_off, ntiles, per_wave):
    a(f"s_lshr_b32 s{S_T}, s{S_RB}, 1")
    a(f"s_mul_i32 s{S_T}, s{S_T}, {ntiles * 8192}")
    a(f"s_add_u32 s{S_T}, s{S_T}, {a_ws_off}")
    a(f"s_add_u32 s{SRD_A}, s{S_WS}, s{S_T}")
    a(f"s_addc_u32 s{SRD_A+1}, s{S_WS+1}, 0")
    a(f"s_and_b32 s{SRD_A+1}, s{SRD_A+1}, 0xffff")
    a(f"s_mov_b32 s{SRD_A+2}, {ntiles * 8192}")
    a(f"s_mov_b32 s{SRD_A+3}, 0x20000")
    a(f"s_mul_i32 s{S_SOA}, s{S_W}, {per_wave * 8192}")
    a(f"s_and_b32 s{S_T}, s{S_RB}, 1")
    a(f"s_lshl_b32 s{S_T}, s{S_T}, 12")
    a(f"s_add_u32 s{S_SOA}, s{S_SOA}, s{S_T}")
    a(f"s_sub_u32 s{SRD_W}, s{w_lo}, {BIAS}")
    a(f"s_subb_u32 s{SRD_W+1}, s{w_lo+1}, 0")
    a(f"s_and_b32 s{SRD_W+1}, s{SRD_W+1}, 0xffff")
    a(f"s_mov_b32 s{SRD_W+2}, {ntiles * 32 * 1024 + BIAS}")
    a(f"s_mov_b32 s{SRD_W+3}, 0x20000")
    a(f"s_mul_i32 s{S_SOW}, s{S_W}, {per_wave * 32 * 1024}")


def w_loads(a, j, st):
    a(f"s_add_u32 m0, s{S_LDW}, {(st % j.R) * 4096}")
    a("s_nop 0")
    for q in range(4):
        off = f" offset:{1024 * q}" if q else ""
        a(f"buffer_load_dwordx4 v{V_OW+q}, s[{SRD_W}:{SRD_W+3}], s{S_SOW} offen{off} lds")
    a(f"s_add_u32 s{S_SOW}, s{S_SOW}, 32768")


def a_loads(a, j, st):
    r = AR + (st % j.R) * 16
    for q in range(4):
        off = f" offset:{1024 * q}" if q else ""
        a(f"buffer_load_dwordx4 v[{r+4*q}:{r+4*q+3}], v{V_OA}, s[{SRD_A}:{SRD_A+3}], s{S_SOA} offen{off}{j.sc}")
    a(f"s_add_u32 s{S_SOA}, s{S_SOA}, 8192")


def w_reads(j, st):
    b = st & 1
    out = []
    for s in range(2):
        for c in range(2):
            d = j.wf + b * 16 + (2 * s + c) * 4
            for half in range(2):
                off = (st % j.R) * 4096 + s * 2048 + c * 1024 + half * 512
                out.append(f"ds_read_b64_tr_b16 v[{d+2*half}:{d+2*half+1}], v{V_RW} offset:{off}")
    return out


def mfmas(j, st):
    b = st & 1
    r = AR + (st % j.R) * 16
    out = []
    for s in range(2):
        for aa in range(2):
            for c in range(2):
                acc = j.acc + (2 * aa + c) * 16
                w = j.wf + b * 16 + (2 * s + c) * 4
                f = r + (2 * aa + s) * 4
                out.append(f"v_mfma_f32_32x32x16_bf16 v[{acc}:{acc+15}], v[{w}:{w+3}], v[{f}:{f+3}], v[{acc}:{acc+15}]")
    return out


def loop(a, j, q):
    R, NS = j.R, j.NS
    issued = min(R, NS)
    a(f"s_waitcnt vmcnt({q.wait_for([('W', 0), ('A', 0)])})")
    pstamp(a, j.name + ":first")
    for r in w_reads(j, 0):
        a(r)
    for st in range(NS):
        ms = mfmas(j, st)
        if st + 1 < NS:
            a(f"s_waitcnt vmcnt({q.wait_for([('W', st + 1), ('A', st + 1)])}) lgkmcnt(0)")
            rs = w_reads(j, st + 1)
            for i, m in enumerate(ms):
                a(m)
                a(rs[i])
            if issued < NS:
                w_loads(a, j, issued); q.add(('W', issued), 4)
                a_loads(a, j, issued); q.add(('A', issued), 4)
                issued += 1
        else:
            a("s_waitcnt lgkmcnt(0)")
            for m in ms:
                a(m)


def reduce(a, j, tmp):
    a("s_nop 7")
    a("s_nop 7")
    a("s_barrier")
    a(f"s_lshl_b32 s{S_T}, s{S_W}, 12")
    a(f"v_add_u32 v{V_T}, s{S_T}, v{V_OA}")
    for t in range(4):
        for q in range(4):
            a(f"ds_write_b128 v{V_T}, v[{j.acc+16*t+4*q}:{j.acc+16*t+4*q+3}] offset:{t * 16384 + q * 1024}")
    a("s_waitcnt lgkmcnt(0)")
    a("s_barrier")
    a(f"s_lshl_b32 s{S_T}, s{S_W}, 14")
    a(f"v_add_u32 v{V_T}, s{S_T}, v{V_OA}")
    for w in range(4):
        for q in range(4):
            a(f"ds_read_b128 v[{j.acc+16*w+4*q}:{j.acc+16*w+4*q+3}], v{V_T} offset:{w * 4096 + q * 1024}")
    a("s_waitcnt lgkmcnt(0)")
    for r in range(16):
        a(f"v_add_f32 v{tmp+r}, v{j.acc+r}, v{j.acc+16+r}")
        a(f"v_add_f32 v{j.acc+32+r}, v{j.acc+32+r}, v{j.acc+48+r}")
    for r in range(16):
        a(f"v_add_f32 v{tmp+r}, v{tmp+r}, v{j.acc+32+r}")


def zero_acc(a, j):
    for r in range(64):
        a(f"v_mov_b32 v{j.acc+r}, 0")


ACC, WF, RES_D, RES_W = 96, 160, 232, 208


def g_load(a, dst, tmp):
    a(f"s_lshl_b32 s{S_T}, s{S_RB}, 6")
    a(f"s_lshr_b32 s{S_T+1}, s{S_W}, 1")
    a(f"s_lshl_b32 s{S_T+1}, s{S_T+1}, 5")
    a(f"s_add_u32 s{S_T}, s{S_T}, s{S_T+1}")
    a(f"s_lshl_b32 s{S_T}, s{S_T}, 2")
    a(f"s_add_u32 s{S_T}, s{S_T}, {WS_G}")
    a(f"v_and_b32 v{tmp}, 31, v0")
    a(f"v_lshlrev_b32 v{tmp}, 2, v{tmp}")
    a(f"v_add_u32 v{tmp}, s{S_T}, v{tmp}")
    a(f"global_load_dword v{dst}, v{tmp}, s[{S_WS}:{S_WS+1}] sc1")


def d_job(a, idreg, a_sc1=True, wait=None, post_prio=None):
    j = SK("d", 11, 5, ACC, WF, a_sc1)
    P_W = S_P0
    a(f"s_load_dwordx2 s[{P_W}:{P_W+1}], s[0:1], {KA_WD}")
    decode64(a, idreg)
    setup_lanes(a)
    a("s_waitcnt lgkmcnt(0)")
    setup_srds(a, j, P_W, WS_H, 43, 11)
    q = VmQ()
    for st in range(j.R):
        w_loads(a, j, st); q.add(('W', st), 4)
    zero_acc(a, j)
    if wait:
        wait(a)
        pstamp(a, "flag")
    for st in range(j.R):
        a_loads(a, j, st); q.add(('A', st), 4)
    loop(a, j, q)
    pstamp(a, "d:loopend")
    if post_prio is not None:
        a(f"s_setprio {post_prio}")
    reduce(a, j, RES_D)
    pstamp(a, "d:end")
    return j


def bp_addr(a, dst):
    a(f"s_lshl_b32 s{S_T}, s{S_RB}, 3")
    a(f"s_add_u32 s{S_T}, s{S_T}, s{S_CB}")
    a(f"s_lshl_b32 s{S_T}, s{S_T}, 2")
    a(f"s_add_u32 s{S_T}, s{S_T}, s{S_W}")
    a(f"s_lshl_b32 s{S_T}, s{S_T}, 12")
    a(f"s_add_u32 s{S_T}, s{S_T}, {WS_BP}")
    a(f"v_lshlrev_b32 v{dst}, 4, v0")
    a(f"v_add_u32 v{dst}, s{S_T}, v{dst}")


def store_bp(a):
    bp_addr(a, V_T)
    for q in range(4):
        off = f" offset:{1024*q}" if q else ""
        a(f"global_store_dwordx4 v{V_T}, v[{RES_D+4*q}:{RES_D+4*q+3}], s[{S_WS}:{S_WS+1}]{off}")


def load_bp(a):
    bp_addr(a, V_T)
    for q in range(4):
        off = f" offset:{1024*q}" if q else ""
        a(f"global_load_dwordx4 v[{RES_D+4*q}:{RES_D+4*q+3}], v{V_T}, s[{S_WS}:{S_WS+1}]{off}")


def wo_job(a, idreg, wait=None, pre=None, a_sc1=False):
    j = SK("wo", 4, 5, ACC, WF, a_sc1)
    P_W, P_OUT = S_P0, S_P0 + 2
    GV = 8
    a(f"s_load_dwordx2 s[{P_W}:{P_W+1}], s[0:1], {KA_WO}")
    a(f"s_load_dwordx2 s[{P_OUT}:{P_OUT+1}], s[0:1], {KA_OUT}")
    decode64(a, idreg)
    setup_lanes(a)
    a("s_waitcnt lgkmcnt(0)")
    g_load(a, GV, V_T)
    if pre:
        pre(a)
    setup_srds(a, j, P_W, WS_OB, 16, 4)
    a("s_barrier")
    for st in range(4):
        w_loads(a, j, st)
    zero_acc(a, j)
    a("s_waitcnt vmcnt(0)")
    if wait:
        wait(a)
        pstamp(a, "wo:flag")
    for st in range(4):
        a_loads(a, j, st)
    for r in w_reads(j, 0):
        a(r)
    for st in range(4):
        a(f"s_waitcnt vmcnt({4 * (3 - st)}) lgkmcnt(0)")
        ms = mfmas(j, st)
        if st + 1 < 4:
            rs = w_reads(j, st + 1)
            for i, m in enumerate(ms):
                a(m)
                a(rs[i])
        else:
            for m in ms:
                a(m)
    pstamp(a, "wo:loopend")
    reduce(a, j, RES_W)
    for r in range(16):
        a(f"v_sub_f32 v{RES_W+r}, v{RES_W+r}, v{RES_D+r}")
    for r in range(16):
        a(f"v_fma_f32 v{RES_W+r}, v{RES_W+r}, v{GV}, v{RES_D+r}")
    a(f"s_lshl_b32 s{S_T}, s{S_RB}, 6")
    a(f"s_lshr_b32 s{S_T+1}, s{S_W}, 1")
    a(f"s_lshl_b32 s{S_T+1}, s{S_T+1}, 5")
    a(f"s_add_u32 s{S_T}, s{S_T}, s{S_T+1}")
    a(f"s_lshl_b32 s{S_T}, s{S_T}, 10")
    a(f"s_lshl_b32 s{S_T+1}, s{S_CB}, 7")
    a(f"s_add_u32 s{S_T}, s{S_T}, s{S_T+1}")
    a(f"s_and_b32 s{S_T+1}, s{S_W}, 1")
    a(f"s_lshl_b32 s{S_T+1}, s{S_T+1}, 6")
    a(f"s_add_u32 s{S_T}, s{S_T}, s{S_T+1}")
    a(f"v_and_b32 v{V_T}, 31, v0")
    a(f"v_lshlrev_b32 v{V_T}, 10, v{V_T}")
    a(f"v_lshrrev_b32 v{V_T+1}, 5, v0")
    a(f"v_lshlrev_b32 v{V_T+1}, 4, v{V_T+1}")
    a(f"v_add3_u32 v{V_T}, v{V_T}, v{V_T+1}, s{S_T}")
    T = ACC
    for p in range(2):
        t = T + 4 * p
        for r in range(4):
            a(f"v_cvt_pk_bf16_f32 v{t+r}, v{RES_W+8*p+2*r}, v{RES_W+8*p+2*r+1}")
        a("s_nop 1")
        a(f"v_permlane32_swap_b32 v{t}, v{t+2}")
        a(f"v_permlane32_swap_b32 v{t+1}, v{t+3}")
        off = " offset:32" if p else ""
        import os
        a(f"global_store_dwordx4 v{V_T}, v[{t}:{t+3}], s[{P_OUT}:{P_OUT+1}]{off}{' ' + os.environ['OUTF'] if os.environ.get('OUTF') else ''}")
    pstamp(a, "wo:end")
    return j


def wo2_job(a, idreg, wait=None):
    WR, AF, AC, GV = 16, 144, 208, 8
    P_W, P_OUT = S_P0, S_P0 + 2
    j = SK("wo", 16, 16, 0, 0, True)
    a(f"s_load_dwordx2 s[{P_W}:{P_W+1}], s[0:1], {KA_WO}")
    a(f"s_load_dwordx2 s[{P_OUT}:{P_OUT+1}], s[0:1], {KA_OUT}")
    decode64(a, idreg)
    setup_lanes(a)
    T0, T1, T2 = V_T, V_T + 1, V_T + 2
    a(f"v_subrev_u32 v{V_RW}, s{S_LDW}, v{V_RW}")
    a(f"s_and_b32 s{S_T}, s{S_W}, 1")
    a(f"s_lshl_b32 s{S_T}, s{S_T}, 10")
    a(f"v_add_u32 v{V_RW}, s{S_T}, v{V_RW}")
    a(f"v_add_u32 v{V_RW+1}, {32768}, v{V_RW}")
    a("s_waitcnt lgkmcnt(0)")
    g_load(a, GV, V_T)
    setup_srds(a, j, P_W, WS_OB, 16, 0)
    a(f"s_lshl_b32 s{S_SOW}, s{S_W}, 17")
    a(f"s_lshl_b32 s{S_LDW}, s{S_W}, 14")
    a("s_barrier")
    for st in range(4):
        a(f"s_add_u32 m0, s{S_LDW}, {st * 4096}")
        a("s_nop 0")
        for q in range(4):
            off = f" offset:{1024 * q}" if q else ""
            a(f"buffer_load_dwordx4 v{V_OW+q}, s[{SRD_W}:{SRD_W+3}], s{S_SOW} offen{off} lds")
        a(f"s_add_u32 s{S_SOW}, s{S_SOW}, 32768")
    for r in range(16):
        a(f"v_mov_b32 v{AC+r}, 0")
    a("s_waitcnt vmcnt(0)")
    a("s_barrier")
    for st in range(16):
        for s_ in range(2):
            d = WR + (2 * st + s_) * 4
            for half in range(2):
                off = st * 4096 + s_ * 2048 + half * 512
                reg = V_RW
                if off >= 32768:
                    reg, off = V_RW + 1, off - 32768
                a(f"ds_read_b64_tr_b16 v[{d+2*half}:{d+2*half+1}], v{reg} offset:{off}")
        if st % 3 == 2:
            a("s_waitcnt lgkmcnt(4)")
    a("s_waitcnt lgkmcnt(0)")
    pstamp(a, "wo:wready")
    a(f"s_lshl_b32 s{S_T}, s{S_W}, 13")
    a(f"s_add_u32 s{S_SOA}, s{S_SOA}, s{S_T}")
    a(f"s_lshl_b32 s{S_LDW}, s{S_W}, 12")
    a(f"s_lshr_b32 s{S_T}, s{S_W}, 1")
    a(f"s_lshl_b32 s{S_T}, s{S_T}, 11")
    a(f"v_add_u32 v{V_OW}, s{S_T}, v{V_OA}")
    a(f"v_add_u32 v{V_OW+1}, 32768, v{V_OW}")
    if wait:
        wait(a)
        pstamp(a, "wo:flag")
    for g in range(4):
        a(f"s_add_u32 m0, s{S_LDW}, {g * 16384}")
        a("s_nop 0")
        for q in range(4):
            off = f" offset:{1024 * q}" if q else ""
            a(f"buffer_load_dwordx4 v{V_OA}, s[{SRD_A}:{SRD_A+3}], s{S_SOA} offen{off} sc1 lds")
        a(f"s_add_u32 s{S_SOA}, s{S_SOA}, 32768")

    def reads(g):
        out = []
        for k in range(4):
            st = 4 * g + k
            for s_ in range(2):
                d = AF + (g & 1) * 32 + (2 * k + s_) * 4
                off = st * 4096 + s_ * 1024
                reg = V_OW
                if off >= 32768:
                    reg, off = V_OW + 1, off - 32768
                out.append(f"ds_read_b128 v[{d}:{d+3}], v{reg} offset:{off}")
        return out

    def mf(g):
        out = []
        for k in range(4):
            st = 4 * g + k
            for s_ in range(2):
                w = WR + (2 * st + s_) * 4
                f = AF + (g & 1) * 32 + (2 * k + s_) * 4
                out.append(f"v_mfma_f32_32x32x16_bf16 v[{AC}:{AC+15}], v[{w}:{w+3}], v[{f}:{f+3}], v[{AC}:{AC+15}]")
        return out
    a("s_waitcnt vmcnt(12)")
    a("s_barrier")
    for r in reads(0):
        a(r)
    for g in range(4):
        if g + 1 < 4:
            a(f"s_waitcnt vmcnt({4 * (2 - g)})")
            a("s_barrier")
            for r in reads(g + 1):
                a(r)
            a("s_waitcnt lgkmcnt(8)")
        else:
            a("s_waitcnt lgkmcnt(0)")
        for m in mf(g):
            a(m)
    pstamp(a, "wo:loopend")
    a(f"s_lshl_b32 s{S_T}, s{S_RB}, 6")
    a(f"s_lshr_b32 s{S_T+1}, s{S_W}, 1")
    a(f"s_lshl_b32 s{S_T+1}, s{S_T+1}, 5")
    a(f"s_add_u32 s{S_T}, s{S_T}, s{S_T+1}")
    a(f"s_lshl_b32 s{S_T}, s{S_T}, 10")
    a(f"s_lshl_b32 s{S_T+1}, s{S_CB}, 7")
    a(f"s_add_u32 s{S_T}, s{S_T}, s{S_T+1}")
    a(f"s_and_b32 s{S_T+1}, s{S_W}, 1")
    a(f"s_lshl_b32 s{S_T+1}, s{S_T+1}, 6")
    a(f"s_add_u32 s{S_T}, s{S_T}, s{S_T+1}")
    a(f"v_and_b32 v{V_T}, 31, v0")
    a(f"v_lshlrev_b32 v{V_T}, 10, v{V_T}")
    a(f"v_lshrrev_b32 v{V_T+1}, 5, v0")
    a(f"v_lshlrev_b32 v{V_T+1}, 4, v{V_T+1}")
    a(f"v_add3_u32 v{V_T}, v{V_T}, v{V_T+1}, s{S_T}")
    a("s_nop 7")
    for r in range(16):
        a(f"v_sub_f32 v{AC+r}, v{AC+r}, v{RES_D+r}")
    for r in range(16):
        a(f"v_fma_f32 v{AC+r}, v{AC+r}, v{GV}, v{RES_D+r}")
    T = AF
    for p in range(2):
        t = T + 4 * p
        for r in range(4):
            a(f"v_cvt_pk_bf16_f32 v{t+r}, v{AC+8*p+2*r}, v{AC+8*p+2*r+1}")
        a("s_nop 1")
        a(f"v_permlane32_swap_b32 v{t}, v{t+2}")
        a(f"v_permlane32_swap_b32 v{t+1}, v{t+3}")
        off = " offset:32" if p else ""
        import os
        a(f"global_store_dwordx4 v{V_T}, v[{t}:{t+3}], s[{P_OUT}:{P_OUT+1}]{off}{' ' + os.environ['OUTF'] if os.environ.get('OUTF') else ''}")
    pstamp(a, "wo:end")
```

```python
from asmlib import *
from layout import *


def prefetch(a, gw, bufs, per_group_shift, vdst, vtmp, stmp, srd):
    nper = 1 << per_group_shift
    P = stmp
    a(f"s_lshr_b32 s{stmp+4}, s{gw}, {per_group_shift}")
    lab = a.uid("pf")
    for g, (ka, size) in enumerate(bufs):
        blocks = (size + 255) // 256
        lanes = (blocks + nper - 1) // nper
        assert lanes <= 64
        nxt = f"{lab}_{g+1}"
        a(f"s_cmp_lg_u32 s{stmp+4}, {g}")
        a(f"s_cbranch_scc1 {nxt}")
        a(f"s_load_dwordx2 s[{P}:{P+1}], s[0:1], {ka}")
        a(f"s_and_b32 s{stmp+5}, s{gw}, {nper - 1}")
        a(f"s_mul_i32 s{stmp+5}, s{stmp+5}, {lanes * 256}")
        a(f"v_lshlrev_b32 v{vtmp}, 8, v0")
        a(f"v_add_u32 v{vtmp}, s{stmp+5}, v{vtmp}")
        a(f"v_cmp_gt_u32 vcc, {lanes}, v0")
        a(f"s_waitcnt lgkmcnt(0)")
        a(f"s_mov_b32 s{srd}, s{P}")
        a(f"s_and_b32 s{srd+1}, s{P+1}, 0xffff")
        a(f"s_mov_b32 s{srd+2}, {size}")
        a(f"s_mov_b32 s{srd+3}, 0x20000")
        a(f"s_and_saveexec_b64 s[{stmp+2}:{stmp+3}], vcc")
        a(f"buffer_load_dword v{vdst}, v{vtmp}, s[{srd}:{srd+3}], 0 offen")
        a(f"s_mov_b64 exec, s[{stmp+2}:{stmp+3}]")
        a(f"s_branch {lab}_end")
        a.label(nxt)
    a.label(f"{lab}_end")


def signal(a, base_lo, first_sreg, nlanes, wave_sreg, vt, const_off=0, drain=True):
    lab = a.uid("sig")
    if drain:
        a("s_waitcnt vmcnt(0)")
        a("s_barrier")
    a(f"s_cmp_lg_u32 s{wave_sreg}, 0")
    a(f"s_cbranch_scc1 {lab}")
    a(f"v_add_u32 v{vt}, s{first_sreg}, v0")
    a(f"v_lshlrev_b32 v{vt}, 8, v{vt}")
    a(f"v_add_u32 v{vt}, {const_off}, v{vt}")
    a(f"v_mov_b32 v{vt+1}, 1")
    a(f"s_mov_b64 exec, {(1 << nlanes) - 1}")
    a(f"global_atomic_add v{vt}, v{vt+1}, s[{base_lo}:{base_lo+1}] sc1")
    a("s_mov_b64 exec, -1")
    a.label(lab)


def wait_count(a, base_lo, word_sreg, target, wave_sreg, vt, stmp, const_off=0, limit=100000, sleep=4):
    lab = a.uid("wt")
    a(f"s_cmp_lg_u32 s{wave_sreg}, 0")
    a(f"s_cbranch_scc1 {lab}_done")
    a(f"v_mov_b32 v{vt}, s{word_sreg}")
    a(f"v_lshlrev_b32 v{vt}, 8, v{vt}")
    a(f"v_add_u32 v{vt}, {const_off}, v{vt}")
    a(f"s_mov_b32 s{stmp+1}, {limit}")
    a("s_mov_b64 exec, 1")
    a.label(f"{lab}_poll")
    a(f"global_load_dword v{vt+1}, v{vt}, s[{base_lo}:{base_lo+1}] sc1")
    a("s_waitcnt vmcnt(0)")
    a(f"v_readfirstlane_b32 s{stmp}, v{vt+1}")
    a(f"s_sub_u32 s{stmp+1}, s{stmp+1}, 1")
    a(f"s_cmp_eq_u32 s{stmp+1}, 0")
    a(f"s_cbranch_scc1 {lab}_out")
    a(f"s_cmp_ge_u32 s{stmp}, {target}")
    a(f"s_cbranch_scc1 {lab}_out")
    a(f"s_sleep {sleep}")
    a(f"s_branch {lab}_poll")
    a.label(f"{lab}_out")
    a("s_mov_b64 exec, -1")
    a.label(f"{lab}_done")
    a("s_barrier")


def clear_flags(a, ws_lo, wg_sreg, wave_sreg, vt, off, n):
    lab = a.uid("clr")
    a(f"s_or_b32 s{wg_sreg+90-wg_sreg}, s{wg_sreg}, s{wave_sreg}")
    a(f"s_cmp_lg_u32 s90, 0")
    a(f"s_cbranch_scc1 {lab}")
    a(f"v_lshlrev_b32 v{vt}, 8, v0")
    a(f"v_add_u32 v{vt}, {off}, v{vt}")
    a(f"v_mov_b32 v{vt+1}, 0")
    a(f"global_store_dword v{vt}, v{vt+1}, s[{ws_lo}:{ws_lo+1}]")
    a.label(lab)


def init_counters(a, ws_lo, dbg_lo, vt, off):
    a(f"v_lshlrev_b32 v{vt}, 8, v0")
    a(f"v_add_u32 v{vt}, {off}, v{vt}")
    a(f"v_mov_b32 v{vt+1}, 0")
    for i in range(8):
        a(f"global_store_dword v{vt}, v{vt+1}, s[{ws_lo}:{ws_lo+1}] sc1")
        if i < 7:
            a(f"v_add_u32 v{vt}, 16384, v{vt}")
    a("s_waitcnt vmcnt(0)")
    a(f"v_mov_b32 v{vt}, 0")
    a(f"v_mov_b32 v{vt+1}, 1")
    a("s_mov_b64 exec, 1")
    a(f"global_store_dword v{vt}, v{vt+1}, s[{dbg_lo}:{dbg_lo+1}] sc1")
    a("s_mov_b64 exec, -1")


def init_probe(a, dbg_lo, vdst):
    a(f"v_mov_b32 v{vdst}, 0")
    a("s_nop 0")
    a(f"global_load_dword v{vdst}, v{vdst}, s[{dbg_lo}:{dbg_lo+1}] sc1")


def wait_init(a, dbg_lo, wave_sreg, vt, stmp, limit=100000, probe=None):
    lab = a.uid("wi")
    a(f"s_cmp_lg_u32 s{wave_sreg}, 0")
    a(f"s_cbranch_scc1 {lab}_done")
    if probe is not None:
        a("s_waitcnt vmcnt(0)")
        a(f"v_readfirstlane_b32 s{stmp}, v{probe}")
        a(f"s_cmp_lg_u32 s{stmp}, 0")
        a(f"s_cbranch_scc1 {lab}_done")
    a(f"v_mov_b32 v{vt}, 0")
    a(f"s_mov_b32 s{stmp+1}, {limit}")
    a("s_mov_b64 exec, 1")
    a.label(f"{lab}_poll")
    a(f"global_load_dword v{vt+1}, v{vt}, s[{dbg_lo}:{dbg_lo+1}] sc1")
    a("s_waitcnt vmcnt(0)")
    a(f"v_readfirstlane_b32 s{stmp}, v{vt+1}")
    a(f"s_sub_u32 s{stmp+1}, s{stmp+1}, 1")
    a(f"s_cmp_eq_u32 s{stmp+1}, 0")
    a(f"s_cbranch_scc1 {lab}_out")
    a(f"s_cmp_lg_u32 s{stmp}, 0")
    a(f"s_cbranch_scc1 {lab}_out")
    a("s_sleep 8")
    a(f"s_branch {lab}_poll")
    a.label(f"{lab}_out")
    a("s_mov_b64 exec, -1")
    a.label(f"{lab}_done")


def prefetch1(a, ka, size, idx_sreg, nwaves, vdst, vtmp, stmp, srd, wait=True, step=128):
    blocks = (size + step - 1) // step
    lanes = (blocks + nwaves - 1) // nwaves
    assert lanes <= 64
    sh = step.bit_length() - 1
    a(f"s_load_dwordx2 s[{stmp}:{stmp+1}], s[0:1], {ka}")
    a(f"s_mul_i32 s{stmp+4}, s{idx_sreg}, {lanes * step}")
    a(f"v_lshlrev_b32 v{vtmp}, {sh}, v0")
    a(f"v_add_u32 v{vtmp}, s{stmp+4}, v{vtmp}")
    a(f"v_cmp_gt_u32 vcc, {lanes}, v0")
    a("s_waitcnt lgkmcnt(0)")
    a(f"s_mov_b32 s{srd}, s{stmp}")
    a(f"s_and_b32 s{srd+1}, s{stmp+1}, 0xffff")
    a(f"s_mov_b32 s{srd+2}, {size}")
    a(f"s_mov_b32 s{srd+3}, 0x20000")
    a(f"s_and_saveexec_b64 s[{stmp+2}:{stmp+3}], vcc")
    a(f"buffer_load_dword v{vdst}, v{vtmp}, s[{srd}:{srd+3}], 0 offen")
    a(f"s_mov_b64 exec, s[{stmp+2}:{stmp+3}]")


def wait_count_fast(a, base_lo, word_sreg, target, wave_sreg, vt, stmp, const_off=0, limit=200000):
    lab = a.uid("wf")
    a(f"s_cmp_lg_u32 s{wave_sreg}, 0")
    a(f"s_cbranch_scc1 {lab}_done")
    a(f"v_mov_b32 v{vt}, s{word_sreg}")
    a(f"v_lshlrev_b32 v{vt}, 8, v{vt}")
    a(f"v_add_u32 v{vt}, {const_off}, v{vt}")
    a(f"s_mov_b32 s{stmp+1}, {limit}")
    a("s_mov_b64 exec, 1")
    a(f"global_load_dword v{vt+1}, v{vt}, s[{base_lo}:{base_lo+1}] sc1")
    a.label(f"{lab}_poll")
    a("s_sleep 3")
    a(f"global_load_dword v{vt+2}, v{vt}, s[{base_lo}:{base_lo+1}] sc1")
    a("s_waitcnt vmcnt(1)")
    a(f"v_readfirstlane_b32 s{stmp}, v{vt+1}")
    a(f"s_cmp_ge_u32 s{stmp}, {target}")
    a(f"s_cbranch_scc1 {lab}_out")
    a("s_sleep 3")
    a(f"global_load_dword v{vt+1}, v{vt}, s[{base_lo}:{base_lo+1}] sc1")
    a("s_waitcnt vmcnt(1)")
    a(f"v_readfirstlane_b32 s{stmp}, v{vt+2}")
    a(f"s_cmp_ge_u32 s{stmp}, {target}")
    a(f"s_cbranch_scc1 {lab}_out")
    a(f"s_sub_u32 s{stmp+1}, s{stmp+1}, 1")
    a(f"s_cmp_lg_u32 s{stmp+1}, 0")
    a(f"s_cbranch_scc1 {lab}_poll")
    a.label(f"{lab}_out")
    a("s_waitcnt vmcnt(0)")
    a("s_mov_b64 exec, -1")
    a.label(f"{lab}_done")
    a("s_barrier")


def prefetch_ws(a, ws_lo, off, size, idx_sreg, nwaves, vdst, vtmp, stmp, srd, step=128):
    blocks = (size + step - 1) // step
    lanes = (blocks + nwaves - 1) // nwaves
    assert lanes <= 64, lanes
    sh = step.bit_length() - 1
    a(f"s_mul_i32 s{stmp+4}, s{idx_sreg}, {lanes * step}")
    a(f"v_lshlrev_b32 v{vtmp}, {sh}, v0")
    a(f"v_add_u32 v{vtmp}, s{stmp+4}, v{vtmp}")
    a(f"v_cmp_gt_u32 vcc, {lanes}, v0")
    a(f"s_add_u32 s{srd}, s{ws_lo}, {off}")
    a(f"s_addc_u32 s{srd+1}, s{ws_lo+1}, 0")
    a(f"s_and_b32 s{srd+1}, s{srd+1}, 0xffff")
    a(f"s_mov_b32 s{srd+2}, {size}")
    a(f"s_mov_b32 s{srd+3}, 0x20000")
    a(f"s_and_saveexec_b64 s[{stmp+2}:{stmp+3}], vcc")
    a(f"buffer_load_dword v{vdst}, v{vtmp}, s[{srd}:{srd+3}], 0 offen sc1")
    a(f"s_mov_b64 exec, s[{stmp+2}:{stmp+3}]")


def light_prefetch(a, items, idx_sreg, nidx, wave_sreg, vdst, vtmp, stmp, srd, lanes=30):
    lab = a.uid("lpf")
    a(f"s_cmp_lg_u32 s{wave_sreg}, 0")
    a(f"s_cbranch_scc1 {lab}")
    for ka, size in items:
        lines = (size + 127) // 128
        per = (lines + nidx - 1) // nidx
        a(f"s_load_dwordx2 s[{stmp}:{stmp+1}], s[0:1], {ka}")
        a(f"s_mul_i32 s{stmp+4}, s{idx_sreg}, {per * 128}")
        a(f"v_lshlrev_b32 v{vtmp}, 7, v0")
        a(f"v_add_u32 v{vtmp}, s{stmp+4}, v{vtmp}")
        a("s_waitcnt lgkmcnt(0)")
        a(f"s_mov_b32 s{srd}, s{stmp}")
        a(f"s_and_b32 s{srd+1}, s{stmp+1}, 0xffff")
        a(f"s_mov_b32 s{srd+2}, {size}")
        a(f"s_mov_b32 s{srd+3}, 0x20000")
        done = 0
        while done < per:
            n = min(lanes, per - done)
            a(f"s_mov_b64 exec, {hex((1 << n) - 1)}")
            a(f"buffer_load_dword v{vdst}, v{vtmp}, s[{srd}:{srd+3}], 0 offen offset:0")
            a("s_mov_b64 exec, -1")
            a(f"v_add_u32 v{vtmp}, {n * 128}, v{vtmp}")
            a("s_waitcnt vmcnt(0)")
            done += n
    a.label(lab)
```

```python
import sys, os
sys.path.insert(0, os.path.dirname(os.path.abspath(__file__)))
from asmlib import *
from layout import *
import attn, jobs, splitk
from sync import *
from gemm import S_W, S_WS, S_T, S_RB, S_CB, V_T, SRD_A

NAME = "gated_mix__mha_block__glu_gated_geglu__prompt"
HEADER = open(os.path.join(os.path.dirname(os.path.abspath(__file__)), "header.txt")).read()
ENV = os.environ.get
C_QKV, C_G, C_ATT, C_TWIN = 0, 128, 192, 256


def tlb_warm(a):
    a("s_load_dwordx16 s[32:47], s[0:1], 0")
    a("s_load_dwordx2 s[50:51], s[0:1], 64")
    a("v_mov_b32 v250, 0")
    a(f"v_lshlrev_b32 v251, 21, v0")
    a(f"v_cmp_gt_u32 vcc, 10, v0")
    a("s_and_saveexec_b64 s[52:53], vcc")
    a(f"global_load_dword v252, v251, s[{S_WS}:{S_WS+1}]")
    a("s_mov_b64 exec, s[52:53]")
    a("s_waitcnt lgkmcnt(0)")
    a("s_mov_b64 exec, 1")
    for i in (0, 1, 2, 4, 5, 6, 7):
        a(f"global_load_dword v253, v250, s[{32+2*i}:{33+2*i}]")
    a("global_load_dword v253, v250, s[50:51]")
    a("s_mov_b64 exec, -1")


def code_touch(a, idx_sreg, nidx, start_label, nbytes, vdst, vtmp, stmp):
    lines = (nbytes + 127) // 128
    per = (lines + nidx - 1) // nidx
    assert per <= 64
    lab = a.uid("ct")
    a(f"s_getpc_b64 s[{stmp}:{stmp+1}]")
    a.label(lab)
    a(f"s_sub_u32 s{stmp}, s{stmp}, {lab}-{start_label}")
    a(f"s_subb_u32 s{stmp+1}, s{stmp+1}, 0")
    a(f"s_mul_i32 s{stmp+2}, s{idx_sreg}, {per * 128}")
    a(f"v_lshlrev_b32 v{vtmp}, 7, v0")
    a(f"v_add_u32 v{vtmp}, s{stmp+2}, v{vtmp}")
    a(f"v_min_u32 v{vtmp}, {(lines - 1) * 128}, v{vtmp}")
    a(f"s_mov_b64 exec, {hex((1 << per) - 1)}")
    a(f"global_load_dword v{vdst}, v{vtmp}, s[{stmp}:{stmp+1}]")
    a("s_mov_b64 exec, -1")


def build():
    a = Asm()
    a.raw(HEADER.rstrip("\n"))
    LDS = 81920
    if ENV("ASLIST"):
        a.raw(f"; @launch kernel={NAME}_kernel grid=(512,1,1) block=(256,1,1) lds={LDS}")
    else:
        a.raw(f"; @launch grid=(512,1,1) block=(256,1,1) lds={LDS}")
    a.raw('.amdgcn_target "amdgcn-amd-amdhsa--gfx950"')
    a.raw(".text")
    kernel_header(a, f"{NAME}_kernel")
    a("s_cmp_ge_u32 s2, 512")
    a("s_cbranch_scc1 k_done")
    preset(a); pstamp(a, "entry")
    jobs.common_entry(a)
    a("s_waitcnt lgkmcnt(0)")
    pstamp(a, "karg")
    if ENV("TLBW"):
        tlb_warm(a)
    a("s_cmp_ge_u32 s2, 256")
    a("s_cbranch_scc1 k_ffn")
    a("s_setprio 2")

    def pre_qkv(a):
        a("s_lshl_b32 s52, s2, 2")
        a(f"s_add_u32 s52, s52, s{S_W}")
        nw = 1024 if ENV("APF") == "full" else 2048
        prefetch1(a, KA_WQKV, 512 * 3072, 52, nw, 178, 177, 54, 60)
        prefetch1(a, KA_AX, 2048 * 1024, 52, nw, 176, 177, 54, 60)
        if ENV("APF") != "full":
            a("s_waitcnt vmcnt(0)")
        pstamp(a, "pf1")
        init_probe(a, jobs.S_DBG, 179)

    def post_qkv(a):
        wait_init(a, jobs.S_DBG, S_W, V_T, S_T, probe=179)
        if ENV("TWIN") == "1":
            signal(a, S_WS, 2, 1, S_W, V_T, WS_FLAG + 256 * C_TWIN, drain=False)
    def pre_qkv0(a):
        init_probe(a, jobs.S_DBG, 179)
        return 1
    jobs.qkv_job(a, 2, sc1=True, pre=pre_qkv if ENV("APF") else pre_qkv0, post_loop=post_qkv, ltouch=bool(ENV("QLT")))
    a(f"s_lshl_b32 s50, s{S_CB}, 4")
    signal(a, S_WS, 50, 16, S_W, V_T, WS_FLAG + 256 * C_QKV)
    if ENV("TWIN") == "2":
        signal(a, S_WS, 2, 1, S_W, V_T, WS_FLAG + 256 * C_TWIN, drain=False)
    pstamp(a, "qkv:sig")
    if ENV("NOF"):
        pflush(a, 2, S_W, S_WS, attn.TMP, 0)
        a("s_branch k_done")

    def wait_qkv(a):
        a(f"s_lshr_b32 s50, s{attn.S_HEAD}, 2")
        a(f"s_lshl_b32 s50, s50, 4")
        a(f"s_add_u32 s50, s50, s{attn.S_QB}")
        (wait_count_fast if ENV('FAST') else wait_count)(a, S_WS, 50, 32, S_W, attn.TMP, 60, WS_FLAG + 256 * C_QKV)
        pstamp(a, "qkv:flag")
    attn.OUT_SC1 = True
    attn.IN_SC1 = True
    attn.WAIT_IN = wait_qkv
    a(f"s_setprio {ENV('APRIO', '1')}")
    attn.attn_body(a, 2, None)
    a(f"s_lshl_b32 s50, s{attn.S_QB}, 3")
    signal(a, S_WS, 50, 8, S_W, attn.TMP, WS_FLAG + 256 * C_ATT, drain=False)
    pstamp(a, "attn:sig")
    pflush(a, 2, S_W, S_WS, attn.TMP, 0)
    a("s_branch k_done")
    a.label("k_ffn")
    if ENV("NOF"):
        a("s_branch k_done")
    preset(a); pstamp(a, "entry")
    a("s_sub_u32 s3, s2, 256")
    if ENV("CTOUCH"):
        a("s_lshr_b32 s53, s3, 3")
        a("s_lshl_b32 s53, s53, 2")
        a(f"s_add_u32 s53, s53, s{S_W}")
        code_touch(a, 53, 128, f"{NAME}_kernel", int(ENV("CTOUCH")), 250, 251, 54)
    a(f"s_or_b32 s50, s3, s{S_W}")
    a("s_cmp_lg_u32 s50, 0")
    a("s_cbranch_scc1 k_noinit")
    a("s_waitcnt lgkmcnt(0)")
    init_counters(a, S_WS, jobs.S_DBG, V_T, WS_FLAG)
    a.label("k_noinit")
    a("s_lshl_b32 s52, s3, 2")
    a(f"s_add_u32 s52, s52, s{S_W}")
    def f_weights_pf(a):
        m = ENV("FW", "gudo")
        if "g" in m:
            prefetch1(a, KA_WG, 512 * 2752, 52, 1024, 244, 241, 54, 60)
        if "u" in m:
            prefetch1(a, KA_WU, 512 * 2752, 52, 1024, 245, 241, 54, 60)
        if "d" in m:
            prefetch1(a, KA_WD, 1376 * 1024, 52, 1024, 246, 241, 54, 60)
        if "o" in m:
            prefetch1(a, KA_WO, 512 * 1024, 52, 1024, 247, 241, 54, 60)

    def late_pf(a):
        prefetch1(a, KA_WD, 1376 * 1024, 52, 1024, 246, 241, 54, 60)
        prefetch1(a, KA_WO, 512 * 1024, 52, 1024, 247, 241, 54, 60)
    if not ENV("NOPF"):
        if ENV("APF") == "full":
            pass
        elif ENV("APF"):
            a("s_add_u32 s53, s52, 1024")
            prefetch1(a, KA_AX, 2048 * 1024, 53, 2048, 244, 241, 54, 60)
            prefetch1(a, KA_WQKV, 512 * 3072, 53, 2048, 245, 241, 54, 60)
        elif not ENV("NOPF1"):
            prefetch1(a, KA_WQKV, 512 * 3072, 52, 1024, 245, 241, 54, 60)
            prefetch1(a, KA_AX, 2048 * 1024, 52, 1024, 244, 241, 54, 60)
        a("s_waitcnt vmcnt(0)")
        pstamp(a, "pf1")
        if ENV("TOUCH"):
            jobs.qkv_touch(a, 3)
        if ENV("WSPF"):
            prefetch_ws(a, S_WS, WS_QF, 0x600000, 52, 1024, 243, 241, 54, 60)
        if not ENV("FLATE"):
            f_weights_pf(a)
        if ENV("WSPF") == "2":
            prefetch_ws(a, S_WS, WS_H, 16 * 43 * 8192, 52, 1024, 242, 241, 54, 60)
    if ENV("LIGHT"):
        light_prefetch(a, [(KA_WG, 512 * 2752), (KA_WU, 512 * 2752), (KA_WD, 1376 * 1024), (KA_WO, 512 * 1024)], 3, 256, S_W, 244, 241, 54, 60, lanes=int(ENV("LIGHT")))
    wait_init(a, jobs.S_DBG, S_W, V_T, S_T)
    if ENV("HOLD"):
        jobs.decode_qkv(a, 3)
        a(f"s_lshl_b32 s50, s{S_CB}, 4")
        a(f"s_and_b32 s51, s{S_RB}, 7")
        a(f"s_add_u32 s50, s50, s51")
        a(f"s_add_u32 s50, s50, 8")
        wait_count(a, S_WS, 50, int(ENV("HOLDN", "32")), S_W, V_T, S_T, WS_FLAG + 256 * C_QKV)
        pstamp(a, "hold")
        if ENV("FLATE"):
            f_weights_pf(a)
    if ENV("TWIN"):
        wait_count(a, S_WS, 3, 1, S_W, V_T, S_T, WS_FLAG + 256 * C_TWIN)
        pstamp(a, "twin")
    a("s_setprio 3")
    jobs.g_job(a, 3, sc1=True, epi_prio=2, loop_prio=ENV('FPRIO', '0'), post_loop=late_pf if ENV("LATEPF") else None, ltouch=bool(ENV("GLT")))
    a(f"s_setprio {ENV('FPRIO', '0')}")
    a(f"s_lshl_b32 s50, s{S_RB}, 2")
    signal(a, S_WS, 50, 4, S_W, V_T, WS_FLAG + 256 * C_G)
    pstamp(a, "sig")

    def wait_g(a):
        a(f"s_lshr_b32 s50, s{S_RB}, 1")
        a(f"s_lshl_b32 s50, s50, 2")
        a(f"s_and_b32 s51, s{S_CB}, 3")
        a(f"s_add_u32 s50, s50, s51")
        wait_count(a, S_WS, 50, 16, S_W, V_T, S_T, WS_FLAG + 256 * C_G)
    splitk.d_job(a, 3, a_sc1=True, wait=wait_g, post_prio=ENV('DPRIO', '0'))

    def wait_attn(a):
        a(f"s_lshr_b32 s50, s{S_RB}, 1")
        a(f"s_lshl_b32 s50, s50, 2")
        a(f"s_and_b32 s51, s{S_CB}, 3")
        a(f"s_add_u32 s50, s50, s51")
        (wait_count_fast if ENV('FAST') else wait_count)(a, S_WS, 50, 32, S_W, V_T, S_T, WS_FLAG + 256 * C_ATT)
    splitk.wo2_job(a, 3, wait=wait_attn)
    pflush(a, 2, S_W, S_WS, V_T, 0)
    a.label("k_done")
    a("s_endpgm")
    a.label("k_code_end")
    a.raw('.section .rodata,"a"')
    a.raw(".p2align 6")
    a.raw(kernel_desc(f"{NAME}_kernel", 256))
    return a.text()


def build2():
    a = Asm()
    a.raw(HEADER.rstrip("\\n"))
    LDS = 81920
    a.raw(f"; @launch kernel=k1_kernel grid=(256,1,1) block=(256,1,1) lds={LDS}")
    a.raw(f"; @launch kernel={NAME}_kernel grid=(512,1,1) block=(256,1,1) lds={LDS}")
    a.raw('.amdgcn_target "amdgcn-amd-amdhsa--gfx950"')
    a.raw(".text")
    kernel_header(a, "k1_kernel")
    a("s_cmp_ge_u32 s2, 256")
    a("s_cbranch_scc1 k1_done")
    preset(a); pstamp(a, "entry")
    jobs.common_entry(a)
    a("s_waitcnt lgkmcnt(0)")

    def pre_qkv(a):
        a("s_lshl_b32 s52, s2, 2")
        a(f"s_add_u32 s52, s52, s{S_W}")
        prefetch1(a, KA_WQKV, 512 * 3072, 52, 1024, 178, 177, 54, 60)
        prefetch1(a, KA_AX, 2048 * 1024, 52, 1024, 176, 177, 54, 60)

    def post_qkv(a):
        prefetch1(a, KA_WG, 512 * 2752, 52, 1024, 180, 177, 54, 60)
        prefetch1(a, KA_WU, 512 * 2752, 52, 1024, 181, 177, 54, 60)
        prefetch1(a, KA_WD, 1376 * 1024, 52, 1024, 182, 177, 54, 60)
        prefetch1(a, KA_WO, 512 * 1024, 52, 1024, 183, 177, 54, 60)
    jobs.qkv_job(a, 2, sc1=False, pre=pre_qkv, post_loop=post_qkv)
    a(f"s_or_b32 s50, s2, s{S_W}")
    a("s_cmp_lg_u32 s50, 0")
    a("s_cbranch_scc1 k1_noinit")
    a(f"v_lshlrev_b32 v{V_T}, 8, v0")
    a(f"v_add_u32 v{V_T}, {WS_FLAG}, v{V_T}")
    a(f"v_mov_b32 v{V_T+1}, 0")
    for i in range(4):
        a(f"global_store_dword v{V_T}, v{V_T+1}, s[{S_WS}:{S_WS+1}]")
        if i < 3:
            a(f"v_add_u32 v{V_T}, 16384, v{V_T}")
    a.label("k1_noinit")
    pflush(a, 2, S_W, S_WS, V_T, 1)
    a.label("k1_done")
    a("s_endpgm")
    kernel_header(a, f"{NAME}_kernel")
    a("s_cmp_ge_u32 s2, 512")
    a("s_cbranch_scc1 k_done")
    preset(a); pstamp(a, "entry")
    jobs.common_entry(a)
    a("s_waitcnt lgkmcnt(0)")
    a("s_cmp_ge_u32 s2, 256")
    a("s_cbranch_scc1 k_ffn")
    attn.OUT_SC1 = True
    attn.IN_SC1 = False
    attn.WAIT_IN = None
    a(f"s_setprio {ENV('APRIO', '1')}")
    attn.attn_body(a, 2, None)
    a(f"s_lshl_b32 s50, s{attn.S_QB}, 3")
    signal(a, S_WS, 50, 8, S_W, attn.TMP, WS_FLAG + 256 * C_ATT, drain=False)
    pstamp(a, "attn:sig")
    pflush(a, 2, S_W, S_WS, attn.TMP, 0)
    a("s_branch k_done")
    a.label("k_ffn")
    preset(a); pstamp(a, "entry")
    a("s_sub_u32 s3, s2, 256")
    a("s_setprio 3")
    jobs.g_job(a, 3, sc1=True, epi_prio=2, loop_prio=ENV('FPRIO', '0'))
    a(f"s_setprio {ENV('FPRIO', '0')}")
    a(f"s_lshl_b32 s50, s{S_RB}, 2")
    signal(a, S_WS, 50, 4, S_W, V_T, WS_FLAG + 256 * C_G)
    pstamp(a, "sig")

    def wait_g(a):
        a(f"s_lshr_b32 s50, s{S_RB}, 1")
        a(f"s_lshl_b32 s50, s50, 2")
        a(f"s_and_b32 s51, s{S_CB}, 3")
        a(f"s_add_u32 s50, s50, s51")
        wait_count(a, S_WS, 50, 16, S_W, V_T, S_T, WS_FLAG + 256 * C_G)
    splitk.d_job(a, 3, a_sc1=True, wait=wait_g, post_prio=ENV('DPRIO', '0'))

    def wait_attn(a):
        a(f"s_lshr_b32 s50, s{S_RB}, 1")
        a(f"s_lshl_b32 s50, s50, 2")
        a(f"s_and_b32 s51, s{S_CB}, 3")
        a(f"s_add_u32 s50, s50, s51")
        wait_count(a, S_WS, 50, 32, S_W, V_T, S_T, WS_FLAG + 256 * C_ATT)
    splitk.wo2_job(a, 3, wait=wait_attn)
    pflush(a, 2, S_W, S_WS, V_T, 0)
    a.label("k_done")
    a("s_endpgm")
    a.raw('.section .rodata,"a"')
    a.raw(".p2align 6")
    a.raw(kernel_desc("k1_kernel", 192))
    a.raw(".p2align 6")
    a.raw(kernel_desc(f"{NAME}_kernel", 256))
    return a.text()


def build3():
    a = Asm()
    a.raw(HEADER.rstrip("\\n"))
    LDS = 81920
    a.raw(f"; @launch kernel=k1_kernel grid=(512,1,1) block=(256,1,1) lds={LDS}")
    a.raw(f"; @launch kernel={NAME}_kernel grid=(512,1,1) block=(256,1,1) lds={LDS}")
    a.raw('.amdgcn_target "amdgcn-amd-amdhsa--gfx950"')
    a.raw(".text")
    kernel_header(a, "k1_kernel")
    a("s_cmp_ge_u32 s2, 512")
    a("s_cbranch_scc1 k1_done")
    preset(a); pstamp(a, "entry")
    jobs.common_entry(a)
    a("s_waitcnt lgkmcnt(0)")
    a("s_cmp_ge_u32 s2, 256")
    a("s_cbranch_scc1 k1_g")
    a("s_setprio 1")

    def post_qkv(a):
        a("s_lshl_b32 s52, s2, 2")
        a(f"s_add_u32 s52, s52, s{S_W}")
        prefetch1(a, KA_WD, 1376 * 1024, 52, 1024, 182, 177, 54, 60)
        prefetch1(a, KA_WO, 512 * 1024, 52, 1024, 183, 177, 54, 60)
    jobs.qkv_job(a, 2, sc1=False, post_loop=post_qkv)
    a(f"s_or_b32 s50, s2, s{S_W}")
    a("s_cmp_lg_u32 s50, 0")
    a("s_cbranch_scc1 k1_noinit")
    a(f"v_lshlrev_b32 v{V_T}, 8, v0")
    a(f"v_add_u32 v{V_T}, {WS_FLAG}, v{V_T}")
    a(f"v_mov_b32 v{V_T+1}, 0")
    for i in range(4):
        a(f"global_store_dword v{V_T}, v{V_T+1}, s[{S_WS}:{S_WS+1}]")
        if i < 3:
            a(f"v_add_u32 v{V_T}, 16384, v{V_T}")
    a.label("k1_noinit")
    pflush(a, 2, S_W, S_WS, V_T, 1)
    a("s_branch k1_done")
    a.label("k1_g")
    preset(a); pstamp(a, "entry")
    a("s_sub_u32 s3, s2, 256")
    jobs.g_job(a, 3, sc1=False)
    pflush(a, 2, S_W, S_WS, V_T, 1)
    a.label("k1_done")
    a("s_endpgm")
    kernel_header(a, f"{NAME}_kernel")
    a("s_cmp_ge_u32 s2, 512")
    a("s_cbranch_scc1 k_done")
    preset(a); pstamp(a, "entry")
    jobs.common_entry(a)
    a("s_waitcnt lgkmcnt(0)")
    a("s_cmp_ge_u32 s2, 256")
    a("s_cbranch_scc1 k_ffn")
    attn.OUT_SC1 = True
    attn.IN_SC1 = False
    attn.WAIT_IN = None
    a(f"s_setprio {ENV('APRIO', '1')}")
    attn.attn_body(a, 2, None)
    a(f"s_lshl_b32 s50, s{attn.S_QB}, 3")
    signal(a, S_WS, 50, 8, S_W, attn.TMP, WS_FLAG + 256 * C_ATT, drain=False)
    pstamp(a, "attn:sig")
    pflush(a, 2, S_W, S_WS, attn.TMP, 0)
    a("s_branch k_done")
    a.label("k_ffn")
    preset(a); pstamp(a, "entry")
    a("s_sub_u32 s3, s2, 256")
    splitk.d_job(a, 3, a_sc1=False, wait=None, post_prio=ENV('DPRIO', '0'))

    def wait_attn(a):
        a(f"s_lshr_b32 s50, s{S_RB}, 1")
        a(f"s_lshl_b32 s50, s50, 2")
        a(f"s_and_b32 s51, s{S_CB}, 3")
        a(f"s_add_u32 s50, s50, s51")
        wait_count(a, S_WS, 50, 32, S_W, V_T, S_T, WS_FLAG + 256 * C_ATT)
    splitk.wo2_job(a, 3, wait=wait_attn)
    pflush(a, 2, S_W, S_WS, V_T, 0)
    a.label("k_done")
    a("s_endpgm")
    a.raw('.section .rodata,"a"')
    a.raw(".p2align 6")
    a.raw(kernel_desc("k1_kernel", 256))
    a.raw(".p2align 6")
    a.raw(kernel_desc(f"{NAME}_kernel", 256))
    return a.text()


if __name__ == "__main__":
    out = sys.argv[1] if len(sys.argv) > 1 else f"cdna_kernels/{NAME}.s"
    open(out, "w").write(build3() if ENV("TWO") == "y" else build2() if ENV("TWO") else build())
    print("wrote", out, os.path.getsize(out), "bytes")
```

```python
from asmlib import *
from layout import *
from gemm import (S_W, S_RB, S_CB, S_NP, SRD_A, SRD_W, S_SOA, S_SOW, S_LDA, S_LDW, S_T, S_P0, S_WS, V_T, _ds, HI, interleave)
from splitk import VmQ

V_OA = 1
V_OW = 5
V_RA = 8


class J2:
    pass


def ds_rd(op, dst, n, lo, hi, off):
    return _ds(op, dst, n, lo, hi, off)


def engine(a, j):
    NS = j.NS
    q = VmQ()
    issuedW = min(j.RW, NS)
    issuedA = min(j.RA, NS // 2)
    pstamp(a, j.name + ':issue')
    ia = iw = 0
    while ia < issuedA or iw < issuedW:
        if ia < issuedA and 2 * ia <= iw:
            j.dmaA(a, ia); q.add(('A', ia), j.nA); ia += 1
        elif iw < issuedW:
            j.dmaW(a, iw); q.add(('W', iw), j.nW); iw += 1
        else:
            j.dmaA(a, ia); q.add(('A', ia), j.nA); ia += 1
    pstamp(a, j.name + ':issued')
    nx = j.after_prologue(a)
    if nx:
        q.add(('X', 0), nx)
    a(f"s_waitcnt vmcnt({q.wait_for([('A', 0), ('W', 0)])})")
    a("s_barrier")
    pstamp(a, j.name + ':first')
    for r in j.reads(0):
        a(r)
    for st in range(NS):
        ms = j.mfmas(st)
        if st + 1 < NS:
            a(f"s_waitcnt vmcnt({q.wait_for([('A', (st + 1) >> 1), ('W', st + 1)])}) lgkmcnt(0)")
            a("s_barrier")
            rs = j.reads(st + 1)
            a(ms[0])
            for r in rs[:3]:
                a(r)
            a(ms[1])
            import os
            dbg = os.environ.get("GDBG", "") if j.name == "g" else ""
            late = os.environ.get("DMALATE")
            def dmas():
                nonlocal issuedW, issuedA
                if issuedW < NS:
                    if 'nodma' in dbg:
                        q.add(('W', issuedW), 0)
                    else:
                        j.dmaW(a, issuedW); q.add(('W', issuedW), j.nW)
                    issuedW += 1
                if (st & 1) and issuedA < NS // 2:
                    if 'nodma' in dbg:
                        q.add(('A', issuedA), 0)
                    else:
                        j.dmaA(a, issuedA); q.add(('A', issuedA), j.nA)
                    issuedA += 1
            if not late:
                dmas()
            interleave(a, ms[2:], [] if 'nords' in dbg else rs[3:])
            if late:
                dmas()
            if getattr(j, 'mid', None) and st == j.mid[0]:
                j.mid[1](a)
        else:
            a("s_waitcnt lgkmcnt(0)")
            for m in ms:
                a(m)


def mfma(acc, x, y):
    return f"v_mfma_f32_32x32x16_bf16 v[{acc}:{acc+15}], v[{x}:{x+3}], v[{y}:{y+3}], v[{acc}:{acc+15}]"


def a_read_setup(a, rowbase_sreg_or_none, hi0):
    T0, T1, T2 = V_T, V_T + 1, V_T + 2
    a(f"v_and_b32 v{T0}, 31, v0")
    a(f"v_lshrrev_b32 v{T1}, 5, v0")
    a(f"v_bfe_u32 v{T2}, v0, 1, 3")
    a(f"v_xor_b32 v{T1}, v{T1}, v{T2}")
    a(f"v_lshlrev_b32 v{T1}, 4, v{T1}")
    a(f"v_lshlrev_b32 v{T0}, 7, v{T0}")
    a(f"v_add3_u32 v{V_RA}, v{T0}, v{T1}, s{rowbase_sreg_or_none}")
    for k in range(1, 4):
        a(f"v_xor_b32 v{V_RA+k}, {32 * k}, v{V_RA}")
    for k in range(4):
        a(f"v_add_u32 v{hi0+k}, {HI}, v{V_RA+k}")


def a_dma_lane(a, dst, parity):
    T0, T1 = V_T, V_T + 1
    a(f"v_lshrrev_b32 v{T0}, 4, v0")
    if parity:
        a(f"v_add_u32 v{T0}, 4, v{T0}")
    a(f"v_and_b32 v{T1}, 7, v0")
    a(f"v_xor_b32 v{T0}, v{T0}, v{T1}")
    a(f"v_lshlrev_b32 v{T0}, 4, v{T0}")
    a(f"v_lshrrev_b32 v{T1}, 3, v0")
    a(f"v_lshlrev_b32 v{T1}, 10, v{T1}")
    a(f"v_add_u32 v{dst}, v{T0}, v{T1}")
```

```python
from asmlib import *
from layout import *
from gemm import *
from sync import *
import struct, os
NTQ = ' nt' if os.environ.get('NTQ') else ''
NTG = ' nt' if os.environ.get('NTG') else ''

def f2u(x):
    return struct.unpack("<I", struct.pack("<f", x))[0]


S_DBG = 48


def common_entry(a):
    a(f"s_load_dwordx16 s[{S_P0}:{S_P0+15}], s[0:1], 0")
    a(f"s_load_dwordx2 s[{S_WS}:{S_WS+1}], s[0:1], {KA_WS}")
    a(f"s_load_dwordx2 s[{S_DBG}:{S_DBG+1}], s[0:1], {KA_DBG}")
    a(f"v_lshrrev_b32 v{V_T}, 6, v0")
    a("v_and_b32 v0, 63, v0")
    a(f"v_readfirstlane_b32 s{S_W}, v{V_T}")
    if WS_BASE:
        a("s_waitcnt lgkmcnt(0)")
        a(f"s_add_u32 s{S_WS}, s{S_WS}, {WS_BASE}")
        a(f"s_addc_u32 s{S_WS+1}, s{S_WS+1}, 0")


def decode_rb_cb(a, idreg):
    a(f"s_and_b32 s{S_RB}, s{idreg}, 3")
    a(f"s_lshl_b32 s{S_RB}, s{S_RB}, 2")
    a(f"s_bfe_u32 s{S_T}, s{idreg}, 0x20003")
    a(f"s_add_u32 s{S_RB}, s{S_RB}, s{S_T}")
    a(f"s_bfe_u32 s{S_CB}, s{idreg}, 0x10002")
    a(f"s_lshl_b32 s{S_CB}, s{S_CB}, 3")
    a(f"s_lshr_b32 s{S_T}, s{idreg}, 5")
    a(f"s_add_u32 s{S_CB}, s{S_CB}, s{S_T}")


def srd_from(a, dst, lo, hi, size, add=0):
    if add > 0:
        a(f"s_add_u32 s{dst}, s{lo}, {add}")
        a(f"s_addc_u32 s{dst+1}, s{hi}, 0")
    elif add < 0:
        a(f"s_sub_u32 s{dst}, s{lo}, {-add}")
        a(f"s_subb_u32 s{dst+1}, s{hi}, 0")
    else:
        a(f"s_mov_b32 s{dst}, s{lo}")
        a(f"s_mov_b32 s{dst+1}, s{hi}")
    a(f"s_and_b32 s{dst+1}, s{dst+1}, 0xffff")
    a(f"s_mov_b32 s{dst+2}, {size}")
    a(f"s_mov_b32 s{dst+3}, 0x20000")


def store_pk8(a, src, tmp, scale_sreg=None):
    if scale_sreg is not None:
        for r in range(8):
            a(f"v_mul_f32 v{src+r}, s{scale_sreg}, v{src+r}")
    for r in range(4):
        a(f"v_cvt_pk_bf16_f32 v{tmp+r}, v{src+2*r}, v{src+2*r+1}")


def touch_x(a, vdst):
    a(f"s_and_b32 s{S_T}, s{S_CB}, 7")
    a(f"s_lshl_b32 s{S_T}, s{S_T}, 4")
    a(f"s_lshl_b32 s{S_T+1}, s{S_W}, 2")
    a(f"s_add_u32 s{S_T}, s{S_T}, s{S_T+1}")
    a(f"s_lshl_b32 s{S_T}, s{S_T}, 10")
    a(f"s_add_u32 s{S_T}, s{S_T}, s{S_SOA}")
    a(f"v_lshrrev_b32 v{V_T}, 3, v0")
    a(f"v_lshlrev_b32 v{V_T}, 10, v{V_T}")
    a(f"v_and_b32 v{V_T+1}, 7, v0")
    a(f"v_lshlrev_b32 v{V_T+1}, 7, v{V_T+1}")
    a(f"v_add_u32 v{V_T}, v{V_T}, v{V_T+1}")
    a(f"s_mov_b32 exec_hi, 0")
    a(f"buffer_load_dword v{vdst}, v{V_T}, s[{SRD_A}:{SRD_A+3}], s{S_T} offen")
    a(f"s_mov_b32 exec_hi, -1")


def decode_qkv(a, idreg):
    a(f"s_and_b32 s{S_RB}, s{idreg}, 3")
    a(f"s_lshl_b32 s{S_RB}, s{S_RB}, 3")
    a(f"s_bfe_u32 s{S_T}, s{idreg}, 0x30003")
    a(f"s_add_u32 s{S_RB}, s{S_RB}, s{S_T}")
    a(f"s_bfe_u32 s{S_CB}, s{idreg}, 0x10002")
    a(f"s_lshl_b32 s{S_CB}, s{S_CB}, 2")
    a(f"s_lshr_b32 s{S_T}, s{idreg}, 6")
    a(f"s_add_u32 s{S_CB}, s{S_CB}, s{S_T}")


def qkv_ltouch(a, vx, vw):
    a(f"s_lshl_b32 s{S_T}, s{S_RB}, 6")
    a(f"s_and_b32 s{S_T+1}, s{S_CB}, 3")
    a(f"s_lshl_b32 s{S_T+1}, s{S_T+1}, 4")
    a(f"s_add_u32 s{S_T}, s{S_T}, s{S_T+1}")
    a(f"s_lshl_b32 s{S_T+1}, s{S_W}, 2")
    a(f"s_add_u32 s{S_T}, s{S_T}, s{S_T+1}")
    a(f"s_lshl_b32 s{S_T}, s{S_T}, 10")
    a(f"s_and_b32 s{S_T+2}, s{S_RB}, 7")
    a(f"s_lshl_b32 s{S_T+2}, s{S_T+2}, 6")
    a(f"s_lshl_b32 s{S_T+1}, s{S_W}, 4")
    a(f"s_add_u32 s{S_T+2}, s{S_T+2}, s{S_T+1}")
    a(f"s_mul_i32 s{S_T+2}, s{S_T+2}, 3072")
    a(f"s_lshl_b32 s{S_T+1}, s{S_CB}, 7")
    a(f"s_add_u32 s{S_T+2}, s{S_T+2}, s{S_T+1}")
    a(f"v_and_b32 v{V_T}, 15, v0")
    a(f"v_mul_u32_u24 v{V_T}, 3072, v{V_T}")
    a(f"v_lshrrev_b32 v{V_T+1}, 4, v0")
    a(f"v_lshlrev_b32 v{V_T+1}, 10, v{V_T+1}")
    a(f"v_add_u32 v{V_T}, v{V_T}, v{V_T+1}")
    a(f"s_mov_b32 exec_hi, 0xffff")
    a(f"buffer_load_dword v{vw}, v{V_T}, s[{SRD_W}:{SRD_W+3}], s{S_T+2} offen")
    a(f"v_lshrrev_b32 v{V_T}, 3, v0")
    a(f"v_lshlrev_b32 v{V_T}, 10, v{V_T}")
    a(f"v_and_b32 v{V_T+1}, 7, v0")
    a(f"v_lshlrev_b32 v{V_T+1}, 7, v{V_T+1}")
    a(f"v_add_u32 v{V_T}, v{V_T}, v{V_T+1}")
    a(f"s_mov_b32 exec_hi, 0")
    a(f"buffer_load_dword v{vx}, v{V_T}, s[{SRD_A}:{SRD_A+3}], s{S_T} offen")
    a(f"s_mov_b32 exec_hi, -1")


def qkv_job(a, idreg, pre=None, post_loop=None, sc1=False, ltouch=False):
    import gemm2 as g2
    SC = ' sc1' if sc1 else ''
    FA2, FW2, ACC = 16, 32, 80
    V_RW2, V_RW2H, RAH = 12 + 4 - 4 + 128, 141, 142
    V_RW2 = 140
    j = g2.J2()
    j.name, j.NS, j.RA, j.RW, j.nA, j.nW = "qkv", 16, int(os.environ.get("QRA", "3")), int(os.environ.get("QRW", "4")), 2, 3
    ASLOT, WSLOT, WBASE = 8192, 12288, 3 * 8192
    P_X, P_W, P_GW = S_P0, S_P0 + 2, S_P0 + 14
    decode_qkv(a, idreg)
    T0, T1, T2 = V_T, V_T + 1, V_T + 2
    srd_from(a, SRD_A, P_X, P_X + 1, 2048 * 1024)
    srd_from(a, SRD_W, P_W, P_W + 1, 512 * 3072)
    a(f"s_lshl_b32 s{S_SOA}, s{S_RB}, 16")
    a(f"s_mov_b32 s{S_SOW}, 0")
    if ltouch:
        qkv_ltouch(a, 180, 181)
    a(f"s_lshl_b32 s{S_T}, s{S_W}, 14")
    g2.a_dma_lane(a, g2.V_OA, 0)
    a(f"v_add_u32 v{g2.V_OA}, s{S_T}, v{g2.V_OA}")
    g2.a_dma_lane(a, g2.V_OA + 1, 1)
    a(f"v_add_u32 v{g2.V_OA+1}, s{S_T}, v{g2.V_OA+1}")
    a(f"v_add_u32 v{g2.V_OA+1}, {8 * 1024 - 1024}, v{g2.V_OA+1}")
    a(f"s_lshl_b32 s{S_LDA}, s{S_W}, 11")
    a(f"v_lshrrev_b32 v{T0}, 3, v0")
    a(f"v_mul_u32_u24 v{T0}, 3072, v{T0}")
    a(f"v_bfe_u32 v{T1}, v0, 4, 1")
    a(f"v_lshlrev_b32 v{T1}, 2, v{T1}")
    a(f"v_and_b32 v{T2}, 7, v0")
    a(f"v_xor_b32 v{T1}, v{T1}, v{T2}")
    a(f"v_lshlrev_b32 v{T1}, 4, v{T1}")
    a(f"s_mul_i32 s{S_T}, s{S_W}, {8 * 3072}")
    a(f"s_lshl_b32 s{S_T+1}, s{S_CB}, 7")
    a(f"s_add_u32 s{S_T}, s{S_T}, s{S_T+1}")
    a(f"v_add3_u32 v{g2.V_OW}, v{T0}, v{T1}, s{S_T}")
    a(f"s_mul_i32 s{S_LDW}, s{S_W}, 3072")
    GX, GWR = 128, 136

    def late_setup(a):
        n = 0
        if pre:
            n += pre(a) or 0
        a(f"s_and_b32 s{S_T}, s{S_W}, 1")
        a(f"s_lshl_b32 s{S_T}, s{S_T}, 12")
        g2.a_read_setup(a, S_T, RAH)
        a(f"v_lshrrev_b32 v{T0}, 5, v0")
        a(f"v_mul_u32_u24 v{T0}, 3072, v{T0}")
        a(f"v_bfe_u32 v{T1}, v0, 2, 2")
        a(f"v_lshlrev_b32 v{T1}, 7, v{T1}")
        a(f"v_add_u32 v{T0}, v{T0}, v{T1}")
        a(f"s_lshr_b32 s{S_T}, s{S_W}, 1")
        a(f"v_bfe_u32 v{T1}, v0, 3, 1")
        a(f"v_xor_b32 v{T1}, s{S_T}, v{T1}")
        a(f"v_lshlrev_b32 v{T1}, 6, v{T1}")
        a(f"v_add_u32 v{T0}, v{T0}, v{T1}")
        a(f"v_bfe_u32 v{T1}, v0, 4, 1")
        a(f"v_lshlrev_b32 v{T1}, 5, v{T1}")
        a(f"v_and_b32 v{T2}, 3, v0")
        a(f"v_lshlrev_b32 v{T2}, 3, v{T2}")
        a(f"v_add3_u32 v{V_RW2}, v{T0}, v{T1}, v{T2}")
        a(f"v_add_u32 v{V_RW2H}, {HI}, v{V_RW2}")
        a(f"s_lshl_b32 s{S_T}, s{S_RB}, 6")
        a(f"s_lshl_b32 s{S_T+1}, s{S_CB}, 3")
        a(f"s_add_u32 s{S_T}, s{S_T}, s{S_T+1}")
        a(f"s_lshl_b32 s{S_T+1}, s{S_W}, 1")
        a(f"s_add_u32 s{S_T+7}, s{S_T}, s{S_T+1}")
        a(f"s_lshl_b32 s{S_T+3}, s{S_T+7}, 10")
        a(f"v_lshlrev_b32 v{V_T}, 4, v0")
        a(f"v_add_u32 v{V_T+1}, s{S_T+3}, v{V_T}")
        a(f"global_load_dwordx4 v[{GX}:{GX+3}], v{V_T+1}, s[{P_X}:{P_X+1}]")
        a(f"global_load_dwordx4 v[{GX+4}:{GX+7}], v{V_T+1}, s[{P_X}:{P_X+1}] offset:1024")
        a(f"global_load_dwordx4 v[{GWR}:{GWR+3}], v{V_T}, s[{P_GW}:{P_GW+1}]")
        return n + 3

    def dmaA(a, S):
        a(f"s_add_u32 m0, s{S_LDA}, {(S % j.RA) * ASLOT}")
        a("s_nop 0")
        a(f"buffer_load_dwordx4 v{g2.V_OA}, s[{SRD_A}:{SRD_A+3}], s{S_SOA} offen{NTQ} lds")
        a(f"buffer_load_dwordx4 v{g2.V_OA+1}, s[{SRD_A}:{SRD_A+3}], s{S_SOA} offen offset:1024{NTQ} lds")
        a(f"s_add_u32 s{S_SOA}, s{S_SOA}, 128")

    def dmaW(a, s_):
        a(f"s_add_u32 m0, s{S_LDW}, {WBASE + (s_ % j.RW) * WSLOT}")
        a("s_nop 0")
        for t in range(3):
            off = f" offset:{1024 * t}" if t else ""
            a(f"buffer_load_dwordx4 v{g2.V_OW}, s[{SRD_W}:{SRD_W+3}], s{S_SOW} offen{off}{NTQ} lds")
        a(f"s_add_u32 s{S_SOW}, s{S_SOW}, {32 * 3072}")

    def reads(st):
        b = st & 1
        asl = ((st >> 1) % j.RA) * ASLOT
        wsl = WBASE + (st % j.RW) * WSLOT
        out = []
        for s_ in range(2):
            k = 2 * (st & 1) + s_
            out.append(g2.ds_rd("ds_read_b128", FA2 + (2 * b + s_) * 4, 4, g2.V_RA + k, RAH + k, asl))
            for t in range(3):
                d = FW2 + ((2 * b + s_) * 3 + t) * 4
                for half in range(2):
                    out.append(g2.ds_rd("ds_read_b64_tr_b16", d + 2 * half, 2, V_RW2, V_RW2H, wsl + s_ * 6144 + half * 512 + t * 1024))
        return out

    def mfmas(st):
        b = st & 1
        out = []
        for s_ in range(2):
            f = FA2 + (2 * b + s_) * 4
            for t in range(3):
                w = FW2 + ((2 * b + s_) * 3 + t) * 4
                out.append(g2.mfma(ACC + 16 * t, w, f) if t < 2 else g2.mfma(ACC + 16 * t, f, w))
        return out

    def after_prologue(a):
        n = late_setup(a)
        for r in range(48):
            a(f"v_mov_b32 v{ACC + r}, 0")
        return n
    def gate(a):
        G0, G1 = 146, 147
        a(f"v_mov_b32 v{G0}, 0")
        a(f"v_mov_b32 v{G1}, 0")
        for r in range(4):
            a(f"v_dot2_f32_bf16 v{G0}, v{GX+r}, v{GWR+r}, v{G0}")
            a(f"v_dot2_f32_bf16 v{G1}, v{GX+4+r}, v{GWR+r}, v{G1}")
        for rot in (8, 4, 2, 1):
            a("s_nop 1")
            a(f"v_add_f32_dpp v{G0}, v{G0}, v{G0} row_ror:{rot} row_mask:0xf bank_mask:0xf")
            a(f"v_add_f32_dpp v{G1}, v{G1}, v{G1} row_ror:{rot} row_mask:0xf bank_mask:0xf")
        a("s_nop 1")
        for gi, g in enumerate((G0, G1)):
            for q in range(4):
                a(f"v_readlane_b32 s{S_T+q}, v{g}, {16*q}")
            a("s_nop 1")
            a(f"v_mov_b32 v{V_T+gi}, s{S_T}")
            a(f"v_add_f32 v{V_T+gi}, s{S_T+1}, v{V_T+gi}")
            a(f"v_add_f32 v{V_T+gi}, s{S_T+2}, v{V_T+gi}")
            a(f"v_add_f32 v{V_T+gi}, s{S_T+3}, v{V_T+gi}")
        a(f"v_and_b32 v{V_T+2}, 1, v0")
        a(f"v_cmp_eq_u32 vcc, 1, v{V_T+2}")
        a("s_nop 1")
        a(f"v_cndmask_b32 v{V_T}, v{V_T}, v{V_T+1}, vcc")
        a(f"v_mul_f32 v{V_T}, {f2u(-1.4426950408889634)}, v{V_T}")
        a(f"v_exp_f32 v{V_T}, v{V_T}")
        a("s_nop 0")
        a(f"v_add_f32 v{V_T}, 1.0, v{V_T}")
        a(f"v_rcp_f32 v{V_T}, v{V_T}")
        a(f"v_lshlrev_b32 v{V_T+1}, 2, v0")
        a(f"s_lshl_b32 s{S_T}, s{S_T+7}, 6")
        a(f"s_add_u32 s{S_T}, s{S_T}, {WS_G}")
        a(f"v_add_u32 v{V_T+1}, s{S_T}, v{V_T+1}")
        a(f"s_mov_b32 exec_hi, 0")
        a(f"global_store_dword v{V_T+1}, v{V_T}, s[{S_WS}:{S_WS+1}]{SC}")
        a(f"s_mov_b32 exec_hi, -1")
    j.mid = (7, gate)
    j.dmaA, j.dmaW, j.reads, j.mfmas, j.after_prologue = dmaA, dmaW, reads, mfmas, after_prologue
    g2.engine(a, j)
    pstamp(a, 'qkv:loopend')
    if post_loop:
        post_loop(a)
    a("s_nop 7")
    TMP = 148
    a(f"s_lshl_b32 s{S_T}, s{S_RB}, 1")
    a(f"s_and_b32 s{S_T+1}, s{S_W}, 1")
    a(f"s_add_u32 s{S_T}, s{S_T}, s{S_T+1}")
    a(f"s_lshl_b32 s{S_T+2}, s{S_CB}, 1")
    a(f"s_lshr_b32 s{S_T+1}, s{S_W}, 1")
    a(f"s_add_u32 s{S_T+2}, s{S_T+2}, s{S_T+1}")
    a(f"s_lshl_b32 s{S_T+2}, s{S_T+2}, 17")
    a(f"s_lshl_b32 s{S_T+1}, s{S_T}, 10")
    a(f"s_add_u32 s{S_T+1}, s{S_T+1}, s{S_T+2}")
    a(f"v_lshlrev_b32 v{V_T}, 4, v0")
    a(f"v_add_u32 v{V_T}, s{S_T+1}, v{V_T}")
    a(f"v_add_u32 v{V_T+1}, 0x10000, v{V_T}")
    a(f"s_mov_b32 s{S_T+3}, {f2u(QSCALE)}")
    a(f"s_add_u32 s{S_P0+6}, s{S_WS}, {WS_KF}")
    a(f"s_addc_u32 s{S_P0+7}, s{S_WS+1}, 0")
    store_pk8(a, ACC, TMP, S_T + 3)
    a(f"global_store_dwordx4 v{V_T}, v[{TMP}:{TMP+3}], s[{S_WS}:{S_WS+1}]{SC}")
    store_pk8(a, ACC + 8, TMP + 4, S_T + 3)
    a(f"global_store_dwordx4 v{V_T+1}, v[{TMP+4}:{TMP+7}], s[{S_WS}:{S_WS+1}]{SC}")
    store_pk8(a, ACC + 16, TMP + 8)
    a(f"global_store_dwordx4 v{V_T}, v[{TMP+8}:{TMP+11}], s[{S_P0+6}:{S_P0+7}]{SC}")
    store_pk8(a, ACC + 24, TMP + 12)
    a(f"global_store_dwordx4 v{V_T+1}, v[{TMP+12}:{TMP+15}], s[{S_P0+6}:{S_P0+7}]{SC}")
    a(f"s_lshl_b32 s{S_T+1}, s{S_T}, 10")
    a(f"s_add_u32 s{S_T+1}, s{S_T+1}, s{S_T+2}")
    a(f"s_add_u32 s{S_T+1}, s{S_T+1}, {WS_VF}")
    a(f"v_bfe_u32 v{V_T+2}, v0, 4, 1")
    a(f"v_lshlrev_b32 v{V_T+2}, 16, v{V_T+2}")
    a(f"v_lshrrev_b32 v{V_T+3}, 5, v0")
    a(f"v_lshlrev_b32 v{V_T+3}, 8, v{V_T+3}")
    a(f"v_add3_u32 v{V_T+2}, v{V_T+2}, v{V_T+3}, s{S_T+1}")
    a(f"v_and_b32 v{V_T+3}, 15, v0")
    a(f"v_lshlrev_b32 v{V_T+3}, 4, v{V_T+3}")
    a(f"v_add_u32 v{V_T+2}, v{V_T+2}, v{V_T+3}")
    VT = TMP + 16
    for p in range(2):
        src = ACC + 32 + 8 * p
        t = VT + 4 * p
        for r in range(4):
            a(f"v_cvt_pk_bf16_f32 v{t+r}, v{src+2*r}, v{src+2*r+1}")
        a("s_nop 1")
        a(f"v_permlane32_swap_b32 v{t}, v{t+2}")
        a(f"v_permlane32_swap_b32 v{t+1}, v{t+3}")
        off = f" offset:512" if p else ""
        a(f"global_store_dwordx4 v{V_T+2}, v[{t}:{t+3}], s[{S_WS}:{S_WS+1}]{off}{SC}")
    pstamp(a, 'qkv:end')
    return j


GA = -2.0 * 1.4426950408889634 * 0.7978845608028654
GB = GA * 0.044715

def g_job(a, idreg, done=None, sc1=False, epi_prio=None, loop_prio=None, post_loop=None, ltouch=False):
    import gemm2 as g2
    FA2, FW2, ACC = 16, 32, 128
    V_RW2, V_RW2H, RAH = 224, 225, 226
    j = g2.J2()
    import os
    j.name, j.NS, j.RA, j.RW, j.nA, j.nW = "g", 16, 2, int(os.environ.get("GRW", "4")), 4, 3
    ASLOT, WSLOT, WBASE = 16384, 12288, 2 * 16384
    P_X, P_WG, P_WU = S_P0, S_P0 + 8, S_P0 + 10
    decode_rb_cb(a, idreg)
    T0, T1, T2 = V_T, V_T + 1, V_T + 2
    a(f"s_lshl_b32 s{S_T}, s{S_W}, 15")
    g2.a_dma_lane(a, g2.V_OA, 0)
    g2.a_dma_lane(a, g2.V_OA + 1, 1)
    a(f"v_add_u32 v{g2.V_OA}, s{S_T}, v{g2.V_OA}")
    a(f"v_add_u32 v{g2.V_OA+1}, s{S_T}, v{g2.V_OA+1}")
    a(f"v_add_u32 v{g2.V_OA+2}, {2 * 7168}, v{g2.V_OA}")
    a(f"v_add_u32 v{g2.V_OA+3}, {3 * 7168}, v{g2.V_OA+1}")
    a(f"v_add_u32 v{g2.V_OA+1}, 7168, v{g2.V_OA+1}")
    a(f"s_lshl_b32 s{S_LDA}, s{S_W}, 12")
    g2.a_read_setup(a, S_LDA, RAH)
    TILE0 = S_P0 + 6
    a(f"s_mul_i32 s{TILE0}, s{S_CB}, 3")
    a(f"s_lshl_b32 s{S_T}, s{S_CB}, 1")
    a(f"s_add_u32 s{S_T}, s{S_T}, 11")
    a(f"s_cmp_lt_u32 s{S_CB}, 11")
    a(f"s_cselect_b32 s{TILE0}, s{TILE0}, s{S_T}")
    a(f"s_cselect_b32 s{S_NP}, 3, 2")
    BIAS = 2048
    a(f"s_and_b32 s{S_T}, s{S_W}, 1")
    a(f"s_lshr_b32 s{S_T+1}, s{S_W}, 1")
    a(f"s_mul_i32 s{S_LDW}, s{S_T+1}, 6144")
    a(f"s_mul_i32 s{S_T+2}, s{S_T}, 3072")
    a(f"s_add_u32 s{S_LDW}, s{S_LDW}, s{S_T+2}")
    a(f"s_mul_i32 s{S_T+3}, s{S_T}, 192")
    for q in range(3):
        a(f"v_add_u32 v{T0}, s{S_T+3}, v0")
        if q:
            a(f"v_add_u32 v{T0}, {64 * q}, v{T0}")
        a(f"v_mul_u32_u24 v{T1}, 43691, v{T0}")
        a(f"v_lshrrev_b32 v{T1}, 19, v{T1}")
        a(f"v_mul_u32_u24 v{T2}, 12, v{T1}")
        a(f"v_sub_u32 v{T0}, v{T0}, v{T2}")
        a(f"v_lshlrev_b32 v{T0}, 4, v{T0}")
        a(f"v_mul_u32_u24 v{T1}, 2752, v{T1}")
        a(f"v_add_u32 v{T0}, v{T0}, v{T1}")
        a(f"v_add_u32 v{g2.V_OW+q}, {BIAS - 1024 * q}, v{T0}")
    a(f"v_lshrrev_b32 v{T0}, 5, v0")
    a(f"v_lshlrev_b32 v{T0}, 3, v{T0}")
    a(f"v_bfe_u32 v{T1}, v0, 2, 2")
    a(f"v_add_u32 v{T0}, v{T0}, v{T1}")
    a(f"v_mul_u32_u24 v{T0}, 192, v{T0}")
    a(f"v_bfe_u32 v{T1}, v0, 4, 1")
    a(f"v_lshlrev_b32 v{T1}, 5, v{T1}")
    a(f"v_and_b32 v{T2}, 3, v0")
    a(f"v_lshlrev_b32 v{T2}, 3, v{T2}")
    a(f"v_add3_u32 v{V_RW2}, v{T0}, v{T1}, v{T2}")
    a(f"v_add_u32 v{V_RW2H}, {HI}, v{V_RW2}")
    a(f"s_lshl_b32 s{S_SOA}, s{S_RB}, 17")
    a(f"s_lshl_b32 s{S_SOW}, s{TILE0}, 6")
    a("s_waitcnt lgkmcnt(0)")
    srd_from(a, SRD_A, P_X, P_X + 1, 2048 * 1024)
    a(f"s_cmp_eq_u32 s{S_T+1}, 0")
    a(f"s_cselect_b32 s{S_T+4}, s{P_WG}, s{P_WU}")
    a(f"s_cselect_b32 s{S_T+5}, s{P_WG+1}, s{P_WU+1}")
    srd_from(a, SRD_W, S_T + 4, S_T + 5, 512 * 2752 + BIAS, add=-BIAS)
    if ltouch:
        touch_x(a, 242)
        a(f"s_and_b32 s{S_T}, s{S_RB}, 3")
        a(f"s_lshl_b32 s{S_T}, s{S_T}, 7")
        a(f"s_and_b32 s{S_T+1}, s{S_W}, 1")
        a(f"s_lshl_b32 s{S_T+1}, s{S_T+1}, 6")
        a(f"s_add_u32 s{S_T}, s{S_T}, s{S_T+1}")
        a(f"s_mul_i32 s{S_T}, s{S_T}, 2752")
        a(f"s_add_u32 s{S_T}, s{S_T}, s{S_SOW}")
        a(f"s_add_u32 s{S_T}, s{S_T}, {BIAS}")
        a(f"v_mul_u32_u24 v{V_T}, 2752, v0")
        for q, off in enumerate((0, 128, 188)):
            a(f"buffer_load_dword v{243+q}, v{V_T}, s[{SRD_W}:{SRD_W+3}], s{S_T} offen offset:{off}")

    def dmaA(a, S):
        a(f"s_add_u32 m0, s{S_LDA}, {(S % j.RA) * ASLOT}")
        a("s_nop 0")
        for i in range(4):
            off = f" offset:{1024 * i}" if i else ""
            a(f"buffer_load_dwordx4 v{g2.V_OA+i}, s[{SRD_A}:{SRD_A+3}], s{S_SOA} offen{off}{NTG} lds")
        a(f"s_add_u32 s{S_SOA}, s{S_SOA}, 128")

    def dmaW(a, s_):
        a(f"s_add_u32 m0, s{S_LDW}, {WBASE + (s_ % j.RW) * WSLOT}")
        a("s_nop 0")
        for q in range(3):
            off = f" offset:{1024 * q}" if q else ""
            a(f"buffer_load_dwordx4 v{g2.V_OW+q}, s[{SRD_W}:{SRD_W+3}], s{S_SOW} offen{off}{NTG} lds")
        a(f"s_add_u32 s{S_SOW}, s{S_SOW}, {32 * 2752}")

    cols = {'c': list(range(6))}

    def reads(st):
        b = st & 1
        asl = ((st >> 1) % j.RA) * ASLOT
        wsl = WBASE + (st % j.RW) * WSLOT
        out = []
        for s_ in range(2):
            k = 2 * (st & 1) + s_
            out.append(g2.ds_rd("ds_read_b128", FA2 + (2 * b + s_) * 4, 4, g2.V_RA + k, RAH + k, asl))
            for c in cols['c']:
                d = FW2 + ((2 * b + s_) * 6 + c) * 4
                for half in range(2):
                    out.append(g2.ds_rd("ds_read_b64_tr_b16", d + 2 * half, 2, V_RW2, V_RW2H, wsl + (c // 3) * 6144 + (c % 3) * 64 + (16 * s_ + 4 * half) * 192))
        return out

    def mfmas(st):
        b = st & 1
        out = []
        for s_ in range(2):
            f = FA2 + (2 * b + s_) * 4
            for c in cols['c']:
                out.append(g2.mfma(ACC + 16 * c, FW2 + ((2 * b + s_) * 6 + c) * 4, f))
        return out

    def after_prologue(a):
        for r in range(96):
            a(f"v_mov_b32 v{ACC + r}, 0")
        if loop_prio is not None:
            a(f"s_setprio {loop_prio}")
    j.dmaA, j.dmaW, j.reads, j.mfmas, j.after_prologue = dmaA, dmaW, reads, mfmas, after_prologue
    import os
    a(f"s_cmp_lt_u32 s{S_NP}, {0 if os.environ.get('NONP2') else 3}")
    a("s_cbranch_scc1 g_np2")
    g2.engine(a, j)
    a("s_branch g_loop_done")
    a.label("g_np2")
    cols['c'] = [0, 1, 3, 4]
    save = (getattr(a, 'pidx', 0), list(getattr(a, 'pnames', [])))
    if PROF:
        a.pidx -= 3; a.pnames.pop(); a.pnames.pop(); a.pnames.pop()
    g2.engine(a, j)
    a.label("g_loop_done")
    pstamp(a, 'g:loopend')
    if post_loop:
        post_loop(a)
    if epi_prio is not None:
        a(f"s_setprio {epi_prio}")
    a("s_nop 7")
    a("s_nop 7")
    T = 32
    a(f"s_mov_b32 s{S_T}, {f2u(GA)}")
    a(f"s_mov_b32 s{S_T+1}, {f2u(GB)}")
    a(f"s_mul_i32 s{S_T+2}, s{S_RB}, 43")
    a(f"s_add_u32 s{S_T+2}, s{S_T+2}, s{TILE0}")
    a(f"s_lshl_b32 s{S_T+2}, s{S_T+2}, 13")
    a(f"s_lshl_b32 s{S_T+3}, s{S_W}, 11")
    a(f"s_add_u32 s{S_T+2}, s{S_T+2}, s{S_T+3}")
    a(f"s_add_u32 s{S_T+2}, s{S_T+2}, {WS_H}")
    a(f"v_lshlrev_b32 v{V_T}, 4, v0")
    a(f"v_add_u32 v{V_T}, s{S_T+2}, v{V_T}")
    a(f"s_mov_b32 s{S_T+4}, {f2u(GB)}")
    a(f"s_mov_b32 s{S_T+5}, {f2u(GB)}")
    a(f"v_mov_b32 v{T+8}, s{S_T}")
    a(f"v_mov_b32 v{T+9}, s{S_T}")
    a(f"v_mov_b32 v{T+10}, 1.0")
    a(f"v_mov_b32 v{T+11}, 1.0")
    for p in range(3):
        if p == 2:
            a(f"s_cmp_lt_u32 s{S_NP}, 3")
            a(f"s_cbranch_scc1 g_skip")
        G, U = ACC + 16 * p, ACC + 16 * (3 + p)
        for r0 in range(0, 16, 8):
            pr = range(r0, r0 + 8, 2)
            t = lambda r: T + (r - r0)
            for r in pr:
                a(f"v_pk_mul_f32 v[{t(r)}:{t(r)+1}], v[{G+r}:{G+r+1}], v[{G+r}:{G+r+1}]")
            for r in pr:
                a(f"v_pk_fma_f32 v[{t(r)}:{t(r)+1}], v[{t(r)}:{t(r)+1}], s[{S_T+4}:{S_T+5}], v[{T+8}:{T+9}]")
            for r in pr:
                a(f"v_pk_mul_f32 v[{t(r)}:{t(r)+1}], v[{t(r)}:{t(r)+1}], v[{G+r}:{G+r+1}]")
            for r in range(r0, r0 + 8):
                a(f"v_exp_f32 v{t(r)}, v{t(r)}")
            for r in pr:
                a(f"v_pk_mul_f32 v[{U+r}:{U+r+1}], v[{U+r}:{U+r+1}], v[{G+r}:{G+r+1}]")
            for r in pr:
                a(f"v_pk_add_f32 v[{t(r)}:{t(r)+1}], v[{t(r)}:{t(r)+1}], v[{T+10}:{T+11}]")
            for r in range(r0, r0 + 8):
                a(f"v_rcp_f32 v{t(r)}, v{t(r)}")
            a("s_nop 0")
            for r in pr:
                a(f"v_pk_mul_f32 v[{U+r}:{U+r+1}], v[{U+r}:{U+r+1}], v[{t(r)}:{t(r)+1}]")
        for r in range(8):
            a(f"v_cvt_pk_bf16_f32 v{G+r}, v{U+2*r}, v{U+2*r+1}")
        if p:
            a(f"v_add_u32 v{V_T}, 8192, v{V_T}")
        sc = " sc1" if sc1 else ""
        a(f"global_store_dwordx4 v{V_T}, v[{G}:{G+3}], s[{S_WS}:{S_WS+1}]{sc}")
        a(f"global_store_dwordx4 v{V_T}, v[{G+4}:{G+7}], s[{S_WS}:{S_WS+1}] offset:1024{sc}")
    a.label("g_skip")
    pstamp(a, 'g:end')
    return j


def nc1_setup(a, j, idreg, kaW, ws_off, nst):
    P_W = S_P0
    a(f"s_load_dwordx2 s[{P_W}:{P_W+1}], s[0:1], {kaW}")
    decode_rb_cb(a, idreg)
    lane_setup(a, j)
    a(f"s_and_b32 s{S_T}, s{S_W}, 1")
    a(f"s_lshl_b32 s{S_LDW}, s{S_T}, 10")
    a(f"s_lshl_b32 s{S_T}, s{S_T}, 14")
    a(f"s_lshl_b32 s{S_T+1}, s{S_CB}, 6")
    a(f"s_add_u32 s{S_T}, s{S_T}, s{S_T+1}")
    a(f"v_add_u32 v{V_OW}, s{S_T}, v{V_OW}")
    a(f"s_mov_b32 s{S_SOA}, 0")
    a(f"s_mov_b32 s{S_SOW}, 0")
    a(f"s_mul_i32 s{S_T+2}, s{S_RB}, {nst * 8192}")
    a(f"s_add_u32 s{S_T+2}, s{S_T+2}, {ws_off}")
    a("s_waitcnt lgkmcnt(0)")
    a(f"s_add_u32 s{S_T+4}, s{S_WS}, s{S_T+2}")
    a(f"s_addc_u32 s{S_T+5}, s{S_WS+1}, 0")
    srd_from(a, SRD_A, S_T + 4, S_T + 5, nst * 8192)
    srd_from(a, SRD_W, P_W, P_W + 1, nst * 32 * 1024)


def bp_addr(a, dst):
    a(f"s_lshl_b32 s{S_T}, s{S_RB}, 4")
    a(f"s_add_u32 s{S_T}, s{S_T}, s{S_CB}")
    a(f"s_lshl_b32 s{S_T}, s{S_T}, 2")
    a(f"s_add_u32 s{S_T}, s{S_T}, s{S_W}")
    a(f"s_lshl_b32 s{S_T}, s{S_T}, 12")
    a(f"s_add_u32 s{S_T}, s{S_T}, {WS_BP}")
    a(f"v_lshlrev_b32 v{dst}, 4, v0")
    a(f"v_add_u32 v{dst}, s{S_T}, v{dst}")


def g_load(a, dst, tmp):
    a(f"s_lshl_b32 s{S_T}, s{S_RB}, 7")
    a(f"s_lshl_b32 s{S_T+1}, s{S_W}, 5")
    a(f"s_add_u32 s{S_T}, s{S_T}, s{S_T+1}")
    a(f"s_lshl_b32 s{S_T}, s{S_T}, 2")
    a(f"s_add_u32 s{S_T}, s{S_T}, {WS_G}")
    a(f"v_and_b32 v{tmp}, 31, v0")
    a(f"v_lshlrev_b32 v{tmp}, 2, v{tmp}")
    a(f"v_add_u32 v{tmp}, s{S_T}, v{tmp}")
    a(f"global_load_dword v{dst}, v{tmp}, s[{S_WS}:{S_WS+1}]")


def d_job(a, idreg, done, ring=8, lds0=0, a_sc1=False):
    ACC = 40
    j = Job("d", NC=1, nstages=43, ring=ring, nW=1, a_rs=64, a_ss=8192, w_ws=1024,
            chunk='frag', wrow='perm', orient=['FM'], acc=ACC, lds0=lds0, a_sc1=a_sc1)
    nc1_setup(a, j, idreg, KA_WD, WS_H, 43)
    GV = 60
    g_load(a, GV, V_T)
    prologue_dma(a, j)
    zero_acc(a, j)
    main_loop(a, j)
    pstamp(a, j.name + ':loopend')
    a("s_nop 7")
    a("s_nop 7")
    a(f"v_sub_f32 v{GV}, 1.0, v{GV}")
    bp_addr(a, V_T)
    for r in range(16):
        a(f"v_mul_f32 v{ACC+r}, v{ACC+r}, v{GV}")
    for q in range(4):
        off = f" offset:{1024*q}" if q else ""
        a(f"global_store_dwordx4 v{V_T}, v[{ACC+4*q}:{ACC+4*q+3}], s[{S_WS}:{S_WS+1}]{off}")
    pstamp(a, j.name + ':end')
    if done:
        a(f"s_branch {done}")
    return j


def wo_job(a, idreg, done, ring=8, lds0=0):
    ACC = 40
    j = Job("wo", NC=1, nstages=16, ring=ring, nW=1, a_rs=64, a_ss=8192, w_ws=1024,
            chunk='frag', wrow='perm', orient=['FM'], acc=ACC, lds0=lds0)
    P_OUT = S_P0 + 2
    a(f"s_load_dwordx2 s[{P_OUT}:{P_OUT+1}], s[0:1], {KA_OUT}")
    nc1_setup(a, j, idreg, KA_WO, WS_OB, 16)
    GV, BPV = 60, 64
    g_load(a, GV, V_T)
    bp_addr(a, V_T + 1)
    for q in range(4):
        off = f" offset:{1024*q}" if q else ""
        a(f"global_load_dwordx4 v[{BPV+4*q}:{BPV+4*q+3}], v{V_T+1}, s[{S_WS}:{S_WS+1}]{off}")
    prologue_dma(a, j)
    zero_acc(a, j)
    main_loop(a, j)
    pstamp(a, j.name + ':loopend')
    a("s_nop 7")
    a("s_nop 7")
    for r in range(16):
        a(f"v_fma_f32 v{ACC+r}, v{ACC+r}, v{GV}, v{BPV+r}")
    a(f"s_lshl_b32 s{S_T}, s{S_RB}, 7")
    a(f"s_lshl_b32 s{S_T+1}, s{S_W}, 5")
    a(f"s_add_u32 s{S_T}, s{S_T}, s{S_T+1}")
    a(f"s_lshl_b32 s{S_T}, s{S_T}, 10")
    a(f"s_lshl_b32 s{S_T+1}, s{S_CB}, 6")
    a(f"s_add_u32 s{S_T}, s{S_T}, s{S_T+1}")
    a(f"v_and_b32 v{V_T}, 31, v0")
    a(f"v_lshlrev_b32 v{V_T}, 10, v{V_T}")
    a(f"v_lshrrev_b32 v{V_T+1}, 5, v0")
    a(f"v_lshlrev_b32 v{V_T+1}, 4, v{V_T+1}")
    a(f"v_add3_u32 v{V_T}, v{V_T}, v{V_T+1}, s{S_T}")
    T = 80
    for p in range(2):
        t = T + 4 * p
        for r in range(4):
            a(f"v_cvt_pk_bf16_f32 v{t+r}, v{ACC+8*p+2*r}, v{ACC+8*p+2*r+1}")
        a("s_nop 1")
        a(f"v_permlane32_swap_b32 v{t}, v{t+2}")
        a(f"v_permlane32_swap_b32 v{t+1}, v{t+3}")
        off = " offset:32" if p else ""
        a(f"global_store_dwordx4 v{V_T}, v[{t}:{t+3}], s[{P_OUT}:{P_OUT+1}]{off}")
    pstamp(a, j.name + ':end')
    if done:
        a(f"s_branch {done}")
    return j


def qkv_touch(a, idreg):
    P_X, P_W = S_P0, S_P0 + 2
    a(f"s_load_dwordx2 s[{P_X}:{P_X+1}], s[0:1], {KA_AX}")
    a(f"s_load_dwordx2 s[{P_W}:{P_W+1}], s[0:1], {KA_WQKV}")
    decode_qkv(a, idreg)
    a("s_waitcnt lgkmcnt(0)")
    srd_from(a, SRD_A, P_X, P_X + 1, 2048 * 1024)
    srd_from(a, SRD_W, P_W, P_W + 1, 512 * 3072)
    a(f"s_lshl_b32 s{S_T}, s{S_RB}, 6")
    a(f"s_and_b32 s{S_T+1}, s{S_CB}, 3")
    a(f"s_lshl_b32 s{S_T+1}, s{S_T+1}, 4")
    a(f"s_add_u32 s{S_T}, s{S_T}, s{S_T+1}")
    a(f"s_lshl_b32 s{S_T+1}, s{S_W}, 2")
    a(f"s_add_u32 s{S_T}, s{S_T}, s{S_T+1}")
    a(f"s_lshl_b32 s{S_T}, s{S_T}, 10")
    a(f"v_lshrrev_b32 v{V_T}, 3, v0")
    a(f"v_lshlrev_b32 v{V_T}, 10, v{V_T}")
    a(f"v_and_b32 v{V_T+1}, 7, v0")
    a(f"v_lshlrev_b32 v{V_T+1}, 7, v{V_T+1}")
    a(f"v_add_u32 v{V_T}, v{V_T}, v{V_T+1}")
    a(f"s_mov_b32 exec_hi, 0")
    a(f"buffer_load_dword v242, v{V_T}, s[{SRD_A}:{SRD_A+3}], s{S_T} offen")
    a(f"s_mov_b32 exec_hi, -1")
    a(f"s_and_b32 s{S_T}, s{S_RB}, 7")
    a(f"s_lshl_b32 s{S_T}, s{S_T}, 6")
    a(f"s_lshl_b32 s{S_T+1}, s{S_W}, 4")
    a(f"s_add_u32 s{S_T}, s{S_T}, s{S_T+1}")
    a(f"s_mul_i32 s{S_T}, s{S_T}, 3072")
    a(f"s_lshl_b32 s{S_T+1}, s{S_CB}, 7")
    a(f"s_add_u32 s{S_T}, s{S_T}, s{S_T+1}")
    a(f"v_and_b32 v{V_T}, 15, v0")
    a(f"v_mul_u32_u24 v{V_T}, 3072, v{V_T}")
    a(f"v_lshrrev_b32 v{V_T+1}, 4, v0")
    a(f"v_lshlrev_b32 v{V_T+1}, 10, v{V_T+1}")
    a(f"v_add_u32 v{V_T}, v{V_T}, v{V_T+1}")
    a(f"s_mov_b32 exec_hi, 0xffff")
    a(f"buffer_load_dword v243, v{V_T}, s[{SRD_W}:{SRD_W+3}], s{S_T} offen")
    a(f"s_mov_b32 exec_hi, -1")
```

```python
from asmlib import *
from layout import *
from gemm import S_W, S_RB, S_CB, SRD_A, SRD_W, S_SOA, S_SOW, S_LDW, S_T, S_P0, S_WS, V_T

V_OA = 1
V_OW = 2
V_RW = 6
AR = 16
BIAS = 4096


class VmQ:
    def __init__(self):
        self.q = []
    def add(self, tag, n):
        self.q.append((tag, n))
    def wait_for(self, tags):
        last = max(i for i, (t, n) in enumerate(self.q) if t in tags)
        return sum(n for t, n in self.q[last + 1:])


class SK:
    def __init__(self, name, nst, ring, acc, wf, a_sc1):
        self.name, self.NS, self.R, self.acc, self.wf = name, nst, ring, acc, wf
        self.sc = " sc1" if a_sc1 else ""


def decode64(a, idreg):
    a(f"s_and_b32 s{S_RB}, s{idreg}, 3")
    a(f"s_lshl_b32 s{S_RB}, s{S_RB}, 3")
    a(f"s_bfe_u32 s{S_T}, s{idreg}, 0x30003")
    a(f"s_add_u32 s{S_RB}, s{S_RB}, s{S_T}")
    a(f"s_bfe_u32 s{S_CB}, s{idreg}, 0x10002")
    a(f"s_lshl_b32 s{S_CB}, s{S_CB}, 2")
    a(f"s_lshr_b32 s{S_T}, s{idreg}, 6")
    a(f"s_add_u32 s{S_CB}, s{S_CB}, s{S_T}")


def setup_lanes(a):
    T0, T1, T2 = V_T, V_T + 1, V_T + 2
    a(f"v_lshlrev_b32 v{V_OA}, 4, v0")
    a(f"v_lshrrev_b32 v{T0}, 2, v0")
    a(f"v_lshlrev_b32 v{T0}, 10, v{T0}")
    a(f"v_and_b32 v{T1}, 3, v0")
    a(f"v_lshlrev_b32 v{T1}, 4, v{T1}")
    a(f"s_lshl_b32 s{S_T}, s{S_CB}, 7")
    a(f"v_add3_u32 v{T0}, v{T0}, v{T1}, s{S_T}")
    for q in range(4):
        i, c = q >> 1, q & 1
        a(f"v_add_u32 v{V_OW+q}, {16 * 1024 * i + 64 * c - 1024 * q + BIAS}, v{T0}")
    a(f"s_mul_i32 s{S_LDW}, s{S_W}, 20480")
    a(f"v_lshrrev_b32 v{T0}, 5, v0")
    a(f"v_lshlrev_b32 v{T0}, 2, v{T0}")
    a(f"v_bfe_u32 v{T1}, v0, 2, 2")
    a(f"v_add_u32 v{T0}, v{T0}, v{T1}")
    a(f"v_lshlrev_b32 v{T0}, 6, v{T0}")
    a(f"v_bfe_u32 v{T1}, v0, 4, 1")
    a(f"v_lshlrev_b32 v{T1}, 5, v{T1}")
    a(f"v_and_b32 v{T2}, 3, v0")
    a(f"v_lshlrev_b32 v{T2}, 3, v{T2}")
    a(f"v_add3_u32 v{T0}, v{T0}, v{T1}, v{T2}")
    a(f"v_add_u32 v{V_RW}, s{S_LDW}, v{T0}")


def setup_srds(a, j, w_lo, a_ws_off, ntiles, per_wave):
    a(f"s_lshr_b32 s{S_T}, s{S_RB}, 1")
    a(f"s_mul_i32 s{S_T}, s{S_T}, {ntiles * 8192}")
    a(f"s_add_u32 s{S_T}, s{S_T}, {a_ws_off}")
    a(f"s_add_u32 s{SRD_A}, s{S_WS}, s{S_T}")
    a(f"s_addc_u32 s{SRD_A+1}, s{S_WS+1}, 0")
    a(f"s_and_b32 s{SRD_A+1}, s{SRD_A+1}, 0xffff")
    a(f"s_mov_b32 s{SRD_A+2}, {ntiles * 8192}")
    a(f"s_mov_b32 s{SRD_A+3}, 0x20000")
    a(f"s_mul_i32 s{S_SOA}, s{S_W}, {per_wave * 8192}")
    a(f"s_and_b32 s{S_T}, s{S_RB}, 1")
    a(f"s_lshl_b32 s{S_T}, s{S_T}, 12")
    a(f"s_add_u32 s{S_SOA}, s{S_SOA}, s{S_T}")
    a(f"s_sub_u32 s{SRD_W}, s{w_lo}, {BIAS}")
    a(f"s_subb_u32 s{SRD_W+1}, s{w_lo+1}, 0")
    a(f"s_and_b32 s{SRD_W+1}, s{SRD_W+1}, 0xffff")
    a(f"s_mov_b32 s{SRD_W+2}, {ntiles * 32 * 1024 + BIAS}")
    a(f"s_mov_b32 s{SRD_W+3}, 0x20000")
    a(f"s_mul_i32 s{S_SOW}, s{S_W}, {per_wave * 32 * 1024}")


def w_loads(a, j, st):
    a(f"s_add_u32 m0, s{S_LDW}, {(st % j.R) * 4096}")
    a("s_nop 0")
    for q in range(4):
        off = f" offset:{1024 * q}" if q else ""
        a(f"buffer_load_dwordx4 v{V_OW+q}, s[{SRD_W}:{SRD_W+3}], s{S_SOW} offen{off} lds")
    a(f"s_add_u32 s{S_SOW}, s{S_SOW}, 32768")


def a_loads(a, j, st):
    r = AR + (st % j.R) * 16
    for q in range(4):
        off = f" offset:{1024 * q}" if q else ""
        a(f"buffer_load_dwordx4 v[{r+4*q}:{r+4*q+3}], v{V_OA}, s[{SRD_A}:{SRD_A+3}], s{S_SOA} offen{off}{j.sc}")
    a(f"s_add_u32 s{S_SOA}, s{S_SOA}, 8192")


def w_reads(j, st):
    b = st & 1
    out = []
    for s in range(2):
        for c in range(2):
            d = j.wf + b * 16 + (2 * s + c) * 4
            for half in range(2):
                off = (st % j.R) * 4096 + s * 2048 + c * 1024 + half * 512
                out.append(f"ds_read_b64_tr_b16 v[{d+2*half}:{d+2*half+1}], v{V_RW} offset:{off}")
    return out


def mfmas(j, st):
    b = st & 1
    r = AR + (st % j.R) * 16
    out = []
    for s in range(2):
        for aa in range(2):
            for c in range(2):
                acc = j.acc + (2 * aa + c) * 16
                w = j.wf + b * 16 + (2 * s + c) * 4
                f = r + (2 * aa + s) * 4
                out.append(f"v_mfma_f32_32x32x16_bf16 v[{acc}:{acc+15}], v[{w}:{w+3}], v[{f}:{f+3}], v[{acc}:{acc+15}]")
    return out


def loop(a, j, q):
    R, NS = j.R, j.NS
    issued = min(R, NS)
    a(f"s_waitcnt vmcnt({q.wait_for([('W', 0), ('A', 0)])})")
    pstamp(a, j.name + ":first")
    for r in w_reads(j, 0):
        a(r)
    for st in range(NS):
        ms = mfmas(j, st)
        if st + 1 < NS:
            a(f"s_waitcnt vmcnt({q.wait_for([('W', st + 1), ('A', st + 1)])}) lgkmcnt(0)")
            rs = w_reads(j, st + 1)
            for i, m in enumerate(ms):
                a(m)
                a(rs[i])
            if issued < NS:
                w_loads(a, j, issued); q.add(('W', issued), 4)
                a_loads(a, j, issued); q.add(('A', issued), 4)
                issued += 1
        else:
            a("s_waitcnt lgkmcnt(0)")
            for m in ms:
                a(m)


def reduce(a, j, tmp):
    a("s_nop 7")
    a("s_nop 7")
    a("s_barrier")
    a(f"s_lshl_b32 s{S_T}, s{S_W}, 12")
    a(f"v_add_u32 v{V_T}, s{S_T}, v{V_OA}")
    for t in range(4):
        for q in range(4):
            a(f"ds_write_b128 v{V_T}, v[{j.acc+16*t+4*q}:{j.acc+16*t+4*q+3}] offset:{t * 16384 + q * 1024}")
    a("s_waitcnt lgkmcnt(0)")
    a("s_barrier")
    a(f"s_lshl_b32 s{S_T}, s{S_W}, 14")
    a(f"v_add_u32 v{V_T}, s{S_T}, v{V_OA}")
    for w in range(4):
        for q in range(4):
            a(f"ds_read_b128 v[{j.acc+16*w+4*q}:{j.acc+16*w+4*q+3}], v{V_T} offset:{w * 4096 + q * 1024}")
    a("s_waitcnt lgkmcnt(0)")
    for r in range(16):
        a(f"v_add_f32 v{tmp+r}, v{j.acc+r}, v{j.acc+16+r}")
        a(f"v_add_f32 v{j.acc+32+r}, v{j.acc+32+r}, v{j.acc+48+r}")
    for r in range(16):
        a(f"v_add_f32 v{tmp+r}, v{tmp+r}, v{j.acc+32+r}")


def zero_acc(a, j):
    for r in range(64):
        a(f"v_mov_b32 v{j.acc+r}, 0")


ACC, WF, RES_D, RES_W = 96, 160, 232, 208


def g_load(a, dst, tmp):
    a(f"s_lshl_b32 s{S_T}, s{S_RB}, 6")
    a(f"s_lshr_b32 s{S_T+1}, s{S_W}, 1")
    a(f"s_lshl_b32 s{S_T+1}, s{S_T+1}, 5")
    a(f"s_add_u32 s{S_T}, s{S_T}, s{S_T+1}")
    a(f"s_lshl_b32 s{S_T}, s{S_T}, 6")
    a(f"s_add_u32 s{S_T}, s{S_T}, {WS_G}")
    a(f"v_bfe_u32 v{tmp}, v0, 1, 4")
    a(f"v_lshlrev_b32 v{tmp}, 7, v{tmp}")
    a(f"v_and_b32 v{dst}, 1, v0")
    a(f"v_lshlrev_b32 v{dst}, 2, v{dst}")
    a(f"v_add3_u32 v{tmp}, v{tmp}, v{dst}, s{S_T}")
    a(f"global_load_dword v{dst}, v{tmp}, s[{S_WS}:{S_WS+1}] sc1")


def d_job(a, idreg, a_sc1=True, wait=None, post_prio=None, loop_prio=None):
    j = SK("d", 11, 5, ACC, WF, a_sc1)
    P_W = S_P0
    a(f"s_load_dwordx2 s[{P_W}:{P_W+1}], s[0:1], {KA_WD}")
    decode64(a, idreg)
    setup_lanes(a)
    a("s_waitcnt lgkmcnt(0)")
    setup_srds(a, j, P_W, WS_H, 43, 11)
    q = VmQ()
    for st in range(j.R):
        w_loads(a, j, st); q.add(('W', st), 4)
    zero_acc(a, j)
    if wait:
        wait(a)
        pstamp(a, "flag")
    if loop_prio is not None:
        a(f"s_setprio {loop_prio}")
    for st in range(j.R):
        a_loads(a, j, st); q.add(('A', st), 4)
    loop(a, j, q)
    pstamp(a, "d:loopend")
    if post_prio is not None:
        a(f"s_setprio {post_prio}")
    reduce(a, j, RES_D)
    pstamp(a, "d:end")
    return j


def bp_addr(a, dst):
    a(f"s_lshl_b32 s{S_T}, s{S_RB}, 3")
    a(f"s_add_u32 s{S_T}, s{S_T}, s{S_CB}")
    a(f"s_lshl_b32 s{S_T}, s{S_T}, 2")
    a(f"s_add_u32 s{S_T}, s{S_T}, s{S_W}")
    a(f"s_lshl_b32 s{S_T}, s{S_T}, 12")
    a(f"s_add_u32 s{S_T}, s{S_T}, {WS_BP}")
    a(f"v_lshlrev_b32 v{dst}, 4, v0")
    a(f"v_add_u32 v{dst}, s{S_T}, v{dst}")


def store_bp(a):
    bp_addr(a, V_T)
    for q in range(4):
        off = f" offset:{1024*q}" if q else ""
        a(f"global_store_dwordx4 v{V_T}, v[{RES_D+4*q}:{RES_D+4*q+3}], s[{S_WS}:{S_WS+1}]{off}")


def load_bp(a):
    bp_addr(a, V_T)
    for q in range(4):
        off = f" offset:{1024*q}" if q else ""
        a(f"global_load_dwordx4 v[{RES_D+4*q}:{RES_D+4*q+3}], v{V_T}, s[{S_WS}:{S_WS+1}]{off}")


def wo_job(a, idreg, wait=None, pre=None, a_sc1=False):
    j = SK("wo", 4, 5, ACC, WF, a_sc1)
    P_W, P_OUT = S_P0, S_P0 + 2
    GV = 8
    a(f"s_load_dwordx2 s[{P_W}:{P_W+1}], s[0:1], {KA_WO}")
    a(f"s_load_dwordx2 s[{P_OUT}:{P_OUT+1}], s[0:1], {KA_OUT}")
    decode64(a, idreg)
    setup_lanes(a)
    a("s_waitcnt lgkmcnt(0)")
    g_load(a, GV, V_T)
    if pre:
        pre(a)
    setup_srds(a, j, P_W, WS_OB, 16, 4)
    a("s_barrier")
    for st in range(4):
        w_loads(a, j, st)
    zero_acc(a, j)
    a("s_waitcnt vmcnt(0)")
    if wait:
        wait(a)
        pstamp(a, "wo:flag")
    for st in range(4):
        a_loads(a, j, st)
    for r in w_reads(j, 0):
        a(r)
    for st in range(4):
        a(f"s_waitcnt vmcnt({4 * (3 - st)}) lgkmcnt(0)")
        ms = mfmas(j, st)
        if st + 1 < 4:
            rs = w_reads(j, st + 1)
            for i, m in enumerate(ms):
                a(m)
                a(rs[i])
        else:
            for m in ms:
                a(m)
    pstamp(a, "wo:loopend")
    reduce(a, j, RES_W)
    for r in range(16):
        a(f"v_sub_f32 v{RES_W+r}, v{RES_W+r}, v{RES_D+r}")
    for r in range(16):
        a(f"v_fma_f32 v{RES_W+r}, v{RES_W+r}, v{GV}, v{RES_D+r}")
    a(f"s_lshl_b32 s{S_T}, s{S_RB}, 6")
    a(f"s_lshr_b32 s{S_T+1}, s{S_W}, 1")
    a(f"s_lshl_b32 s{S_T+1}, s{S_T+1}, 5")
    a(f"s_add_u32 s{S_T}, s{S_T}, s{S_T+1}")
    a(f"s_lshl_b32 s{S_T}, s{S_T}, 10")
    a(f"s_lshl_b32 s{S_T+1}, s{S_CB}, 7")
    a(f"s_add_u32 s{S_T}, s{S_T}, s{S_T+1}")
    a(f"s_and_b32 s{S_T+1}, s{S_W}, 1")
    a(f"s_lshl_b32 s{S_T+1}, s{S_T+1}, 6")
    a(f"s_add_u32 s{S_T}, s{S_T}, s{S_T+1}")
    a(f"v_and_b32 v{V_T}, 31, v0")
    a(f"v_lshlrev_b32 v{V_T}, 10, v{V_T}")
    a(f"v_lshrrev_b32 v{V_T+1}, 5, v0")
    a(f"v_lshlrev_b32 v{V_T+1}, 4, v{V_T+1}")
    a(f"v_add3_u32 v{V_T}, v{V_T}, v{V_T+1}, s{S_T}")
    T = ACC
    for p in range(2):
        t = T + 4 * p
        for r in range(4):
            a(f"v_cvt_pk_bf16_f32 v{t+r}, v{RES_W+8*p+2*r}, v{RES_W+8*p+2*r+1}")
        a("s_nop 1")
        a(f"v_permlane32_swap_b32 v{t}, v{t+2}")
        a(f"v_permlane32_swap_b32 v{t+1}, v{t+3}")
        off = " offset:32" if p else ""
        import os
        a(f"global_store_dwordx4 v{V_T}, v[{t}:{t+3}], s[{P_OUT}:{P_OUT+1}]{off}{' ' + os.environ['OUTF'] if os.environ.get('OUTF') else ''}")
    pstamp(a, "wo:end")
    return j


def wo2_job(a, idreg, wait=None):
    WR, AF, AC, GV = 16, 144, 208, 8
    P_W, P_OUT = S_P0, S_P0 + 2
    j = SK("wo", 16, 16, 0, 0, True)
    a(f"s_load_dwordx2 s[{P_W}:{P_W+1}], s[0:1], {KA_WO}")
    a(f"s_load_dwordx2 s[{P_OUT}:{P_OUT+1}], s[0:1], {KA_OUT}")
    decode64(a, idreg)
    setup_lanes(a)
    T0, T1, T2 = V_T, V_T + 1, V_T + 2
    a(f"v_subrev_u32 v{V_RW}, s{S_LDW}, v{V_RW}")
    a(f"s_and_b32 s{S_T}, s{S_W}, 1")
    a(f"s_lshl_b32 s{S_T}, s{S_T}, 10")
    a(f"v_add_u32 v{V_RW}, s{S_T}, v{V_RW}")
    a(f"v_add_u32 v{V_RW+1}, {32768}, v{V_RW}")
    a("s_waitcnt lgkmcnt(0)")
    setup_srds(a, j, P_W, WS_OB, 16, 0)
    a(f"s_lshl_b32 s{S_SOW}, s{S_W}, 17")
    a(f"s_lshl_b32 s{S_LDW}, s{S_W}, 14")
    a("s_barrier")
    for st in range(4):
        a(f"s_add_u32 m0, s{S_LDW}, {st * 4096}")
        a("s_nop 0")
        for q in range(4):
            off = f" offset:{1024 * q}" if q else ""
            a(f"buffer_load_dwordx4 v{V_OW+q}, s[{SRD_W}:{SRD_W+3}], s{S_SOW} offen{off} lds")
        a(f"s_add_u32 s{S_SOW}, s{S_SOW}, 32768")
    for r in range(16):
        a(f"v_mov_b32 v{AC+r}, 0")
    a("s_waitcnt vmcnt(0)")
    a("s_barrier")
    for st in range(16):
        for s_ in range(2):
            d = WR + (2 * st + s_) * 4
            for half in range(2):
                off = st * 4096 + s_ * 2048 + half * 512
                reg = V_RW
                if off >= 32768:
                    reg, off = V_RW + 1, off - 32768
                a(f"ds_read_b64_tr_b16 v[{d+2*half}:{d+2*half+1}], v{reg} offset:{off}")
        if st % 3 == 2:
            a("s_waitcnt lgkmcnt(4)")
    a("s_waitcnt lgkmcnt(0)")
    pstamp(a, "wo:wready")
    a(f"s_lshl_b32 s{S_T}, s{S_W}, 13")
    a(f"s_add_u32 s{S_SOA}, s{S_SOA}, s{S_T}")
    a(f"s_lshl_b32 s{S_LDW}, s{S_W}, 12")
    a(f"s_lshr_b32 s{S_T}, s{S_W}, 1")
    a(f"s_lshl_b32 s{S_T}, s{S_T}, 11")
    a(f"v_add_u32 v{V_OW}, s{S_T}, v{V_OA}")
    a(f"v_add_u32 v{V_OW+1}, 32768, v{V_OW}")
    if wait:
        wait(a)
        pstamp(a, "wo:flag")
    g_load(a, GV, V_T)
    for g in range(4):
        a(f"s_add_u32 m0, s{S_LDW}, {g * 16384}")
        a("s_nop 0")
        for q in range(4):
            off = f" offset:{1024 * q}" if q else ""
            a(f"buffer_load_dwordx4 v{V_OA}, s[{SRD_A}:{SRD_A+3}], s{S_SOA} offen{off} sc1 lds")
        a(f"s_add_u32 s{S_SOA}, s{S_SOA}, 32768")

    def reads(g):
        out = []
        for k in range(4):
            st = 4 * g + k
            for s_ in range(2):
                d = AF + (g & 1) * 32 + (2 * k + s_) * 4
                off = st * 4096 + s_ * 1024
                reg = V_OW
                if off >= 32768:
                    reg, off = V_OW + 1, off - 32768
                out.append(f"ds_read_b128 v[{d}:{d+3}], v{reg} offset:{off}")
        return out

    def mf(g):
        out = []
        for k in range(4):
            st = 4 * g + k
            for s_ in range(2):
                w = WR + (2 * st + s_) * 4
                f = AF + (g & 1) * 32 + (2 * k + s_) * 4
                out.append(f"v_mfma_f32_32x32x16_bf16 v[{AC}:{AC+15}], v[{w}:{w+3}], v[{f}:{f+3}], v[{AC}:{AC+15}]")
        return out
    a("s_waitcnt vmcnt(12)")
    a("s_barrier")
    for r in reads(0):
        a(r)
    for g in range(4):
        if g + 1 < 4:
            a(f"s_waitcnt vmcnt({4 * (2 - g)})")
            a("s_barrier")
            for r in reads(g + 1):
                a(r)
            a("s_waitcnt lgkmcnt(8)")
        else:
            a("s_waitcnt lgkmcnt(0)")
        for m in mf(g):
            a(m)
    pstamp(a, "wo:loopend")
    a(f"s_lshl_b32 s{S_T}, s{S_RB}, 6")
    a(f"s_lshr_b32 s{S_T+1}, s{S_W}, 1")
    a(f"s_lshl_b32 s{S_T+1}, s{S_T+1}, 5")
    a(f"s_add_u32 s{S_T}, s{S_T}, s{S_T+1}")
    a(f"s_lshl_b32 s{S_T}, s{S_T}, 10")
    a(f"s_lshl_b32 s{S_T+1}, s{S_CB}, 7")
    a(f"s_add_u32 s{S_T}, s{S_T}, s{S_T+1}")
    a(f"s_and_b32 s{S_T+1}, s{S_W}, 1")
    a(f"s_lshl_b32 s{S_T+1}, s{S_T+1}, 6")
    a(f"s_add_u32 s{S_T}, s{S_T}, s{S_T+1}")
    a(f"v_and_b32 v{V_T}, 31, v0")
    a(f"v_lshlrev_b32 v{V_T}, 10, v{V_T}")
    a(f"v_lshrrev_b32 v{V_T+1}, 5, v0")
    a(f"v_lshlrev_b32 v{V_T+1}, 4, v{V_T+1}")
    a(f"v_add3_u32 v{V_T}, v{V_T}, v{V_T+1}, s{S_T}")
    a("s_nop 7")
    for r in range(16):
        a(f"v_sub_f32 v{AC+r}, v{AC+r}, v{RES_D+r}")
    for r in range(16):
        a(f"v_fma_f32 v{AC+r}, v{AC+r}, v{GV}, v{RES_D+r}")
    T = AF
    for p in range(2):
        t = T + 4 * p
        for r in range(4):
            a(f"v_cvt_pk_bf16_f32 v{t+r}, v{AC+8*p+2*r}, v{AC+8*p+2*r+1}")
        a("s_nop 1")
        a(f"v_permlane32_swap_b32 v{t}, v{t+2}")
        a(f"v_permlane32_swap_b32 v{t+1}, v{t+3}")
        off = " offset:32" if p else ""
        import os
        a(f"global_store_dwordx4 v{V_T}, v[{t}:{t+3}], s[{P_OUT}:{P_OUT+1}]{off}{' ' + os.environ['OUTF'] if os.environ.get('OUTF') else ''}")
    pstamp(a, "wo:end")
```

```python
import sys, os
sys.path.insert(0, os.path.dirname(os.path.abspath(__file__)))
from asmlib import *
from layout import *
import attn, jobs, splitk
from sync import *
from gemm import S_W, S_WS, S_T, S_RB, S_CB, V_T, SRD_A

NAME = "gated_mix__mha_block__glu_gated_geglu__prompt"
HEADER = open(os.path.join(os.path.dirname(os.path.abspath(__file__)), "header.txt")).read()
ENV = os.environ.get
C_QKV, C_G, C_ATT, C_TWIN = 0, 128, 192, 256


def tlb_warm(a):
    a("s_load_dwordx16 s[32:47], s[0:1], 0")
    a("s_load_dwordx2 s[50:51], s[0:1], 64")
    a("v_mov_b32 v250, 0")
    a(f"v_lshlrev_b32 v251, 21, v0")
    a(f"v_cmp_gt_u32 vcc, 10, v0")
    a("s_and_saveexec_b64 s[52:53], vcc")
    a(f"global_load_dword v252, v251, s[{S_WS}:{S_WS+1}]")
    a("s_mov_b64 exec, s[52:53]")
    a("s_waitcnt lgkmcnt(0)")
    a("s_mov_b64 exec, 1")
    for i in (0, 1, 2, 4, 5, 6, 7):
        a(f"global_load_dword v253, v250, s[{32+2*i}:{33+2*i}]")
    a("global_load_dword v253, v250, s[50:51]")
    a("s_mov_b64 exec, -1")


def code_touch(a, idx_sreg, nidx, start_label, nbytes, vdst, vtmp, stmp):
    lines = (nbytes + 127) // 128
    per = (lines + nidx - 1) // nidx
    assert per <= 64
    lab = a.uid("ct")
    a(f"s_getpc_b64 s[{stmp}:{stmp+1}]")
    a.label(lab)
    a(f"s_sub_u32 s{stmp}, s{stmp}, {lab}-{start_label}")
    a(f"s_subb_u32 s{stmp+1}, s{stmp+1}, 0")
    a(f"s_mul_i32 s{stmp+2}, s{idx_sreg}, {per * 128}")
    a(f"v_lshlrev_b32 v{vtmp}, 7, v0")
    a(f"v_add_u32 v{vtmp}, s{stmp+2}, v{vtmp}")
    a(f"v_min_u32 v{vtmp}, {(lines - 1) * 128}, v{vtmp}")
    a(f"s_mov_b64 exec, {hex((1 << per) - 1)}")
    a(f"global_load_dword v{vdst}, v{vtmp}, s[{stmp}:{stmp+1}]")
    a("s_mov_b64 exec, -1")


def build():
    a = Asm()
    a.raw(HEADER.rstrip("\n"))
    LDS = 81920
    if ENV("ASLIST"):
        a.raw(f"; @launch kernel={NAME}_kernel grid=(512,1,1) block=(256,1,1) lds={LDS}")
    else:
        a.raw(f"; @launch grid=(512,1,1) block=(256,1,1) lds={LDS}")
    a.raw('.amdgcn_target "amdgcn-amd-amdhsa--gfx950"')
    a.raw(".text")
    kernel_header(a, f"{NAME}_kernel")
    a("s_cmp_ge_u32 s2, 512")
    a("s_cbranch_scc1 k_done")
    preset(a); pstamp(a, "entry")
    jobs.common_entry(a)
    a("s_waitcnt lgkmcnt(0)")
    pstamp(a, "karg")
    if ENV("TLBW"):
        tlb_warm(a)
    a("s_cmp_ge_u32 s2, 256")
    a("s_cbranch_scc1 k_ffn")
    if ENV("NOA"):
        a("s_branch k_done")
    a("s_setprio 2")

    def pre_qkv(a):
        a("s_lshl_b32 s52, s2, 2")
        a(f"s_add_u32 s52, s52, s{S_W}")
        nw = 1024 if ENV("APF") == "full" else 2048
        prefetch1(a, KA_WQKV, 512 * 3072, 52, nw, 178, 177, 54, 60)
        prefetch1(a, KA_AX, 2048 * 1024, 52, nw, 176, 177, 54, 60)
        if ENV("APF") != "full":
            a("s_waitcnt vmcnt(0)")
        pstamp(a, "pf1")
        init_probe(a, jobs.S_DBG, 179)

    def post_qkv(a):
        wait_init(a, jobs.S_DBG, S_W, V_T, S_T, probe=179)
        if ENV("TWIN") == "1":
            signal(a, S_WS, 2, 1, S_W, V_T, WS_FLAG + 256 * C_TWIN, drain=False)
    def pre_qkv0(a):
        init_probe(a, jobs.S_DBG, 179)
        return 1
    jobs.qkv_job(a, 2, sc1=True, pre=pre_qkv if ENV("APF") else pre_qkv0, post_loop=post_qkv, ltouch=bool(ENV("QLT")))
    a(f"s_lshl_b32 s50, s{S_CB}, 4")
    signal(a, S_WS, 50, 16, S_W, V_T, WS_FLAG + 256 * C_QKV)
    if ENV("TWIN") == "2":
        signal(a, S_WS, 2, 1, S_W, V_T, WS_FLAG + 256 * C_TWIN, drain=False)
    pstamp(a, "qkv:sig")
    if ENV("NOF"):
        pflush(a, 2, S_W, S_WS, attn.TMP, 0)
        a("s_branch k_done")

    def wait_qkv(a):
        a(f"s_lshr_b32 s50, s{attn.S_HEAD}, 2")
        a(f"s_lshl_b32 s50, s50, 4")
        a(f"s_add_u32 s50, s50, s{attn.S_QB}")
        (wait_count_fast if ENV('FAST') else wait_count)(a, S_WS, 50, 32, S_W, attn.TMP, 60, WS_FLAG + 256 * C_QKV)
        pstamp(a, "qkv:flag")
    attn.OUT_SC1 = True
    attn.IN_SC1 = True
    attn.WAIT_IN = wait_qkv
    a(f"s_setprio {ENV('APRIO', '1')}")
    attn.attn_body(a, 2, None)
    a(f"s_lshl_b32 s50, s{attn.S_QB}, 3")
    signal(a, S_WS, 50, 8, S_W, attn.TMP, WS_FLAG + 256 * C_ATT, drain=False)
    pstamp(a, "attn:sig")
    pflush(a, 2, S_W, S_WS, attn.TMP, 0)
    a("s_branch k_done")
    a.label("k_ffn")
    if ENV("NOF"):
        a("s_branch k_done")
    preset(a); pstamp(a, "entry")
    a("s_sub_u32 s3, s2, 256")
    if ENV("CTOUCH"):
        a("s_lshr_b32 s53, s3, 3")
        a("s_lshl_b32 s53, s53, 2")
        a(f"s_add_u32 s53, s53, s{S_W}")
        code_touch(a, 53, 128, f"{NAME}_kernel", int(ENV("CTOUCH")), 250, 251, 54)
    a(f"s_or_b32 s50, s3, s{S_W}")
    a("s_cmp_lg_u32 s50, 0")
    a("s_cbranch_scc1 k_noinit")
    a("s_waitcnt lgkmcnt(0)")
    init_counters(a, S_WS, jobs.S_DBG, V_T, WS_FLAG)
    a.label("k_noinit")
    a("s_lshl_b32 s52, s3, 2")
    a(f"s_add_u32 s52, s52, s{S_W}")
    def f_weights_pf(a):
        m = ENV("FW", "gudo")
        if "g" in m:
            prefetch1(a, KA_WG, 512 * 2752, 52, 1024, 244, 241, 54, 60)
        if "u" in m:
            prefetch1(a, KA_WU, 512 * 2752, 52, 1024, 245, 241, 54, 60)
        if "d" in m:
            prefetch1(a, KA_WD, 1376 * 1024, 52, 1024, 246, 241, 54, 60)
        if "o" in m:
            prefetch1(a, KA_WO, 512 * 1024, 52, 1024, 247, 241, 54, 60)

    def late_pf(a):
        prefetch1(a, KA_WD, 1376 * 1024, 52, 1024, 246, 241, 54, 60)
        prefetch1(a, KA_WO, 512 * 1024, 52, 1024, 247, 241, 54, 60)
    if not ENV("NOPF"):
        if ENV("APF") == "full":
            pass
        elif ENV("APF"):
            a("s_add_u32 s53, s52, 1024")
            prefetch1(a, KA_AX, 2048 * 1024, 53, 2048, 244, 241, 54, 60)
            prefetch1(a, KA_WQKV, 512 * 3072, 53, 2048, 245, 241, 54, 60)
        elif not ENV("NOPF1"):
            prefetch1(a, KA_WQKV, 512 * 3072, 52, 1024, 245, 241, 54, 60)
            prefetch1(a, KA_AX, 2048 * 1024, 52, 1024, 244, 241, 54, 60)
        a("s_waitcnt vmcnt(0)")
        pstamp(a, "pf1")
        if ENV("TOUCH"):
            jobs.qkv_touch(a, 3)
        if ENV("WSPF"):
            prefetch_ws(a, S_WS, WS_QF, 0x600000, 52, 1024, 243, 241, 54, 60)
        if not ENV("FLATE"):
            f_weights_pf(a)
        if ENV("WSPF") == "2":
            prefetch_ws(a, S_WS, WS_H, 16 * 43 * 8192, 52, 1024, 242, 241, 54, 60)
    if ENV("LIGHT"):
        light_prefetch(a, [(KA_WG, 512 * 2752), (KA_WU, 512 * 2752), (KA_WD, 1376 * 1024), (KA_WO, 512 * 1024)], 3, 256, S_W, 244, 241, 54, 60, lanes=int(ENV("LIGHT")))
    wait_init(a, jobs.S_DBG, S_W, V_T, S_T)
    if ENV("HOLD"):
        jobs.decode_qkv(a, 3)
        a(f"s_lshl_b32 s50, s{S_CB}, 4")
        a(f"s_and_b32 s51, s{S_RB}, 7")
        a(f"s_add_u32 s50, s50, s51")
        a(f"s_add_u32 s50, s50, 8")
        wait_count(a, S_WS, 50, int(ENV("HOLDN", "32")), S_W, V_T, S_T, WS_FLAG + 256 * C_QKV)
        pstamp(a, "hold")
        if ENV("FLATE"):
            f_weights_pf(a)
    if ENV("TWIN"):
        wait_count(a, S_WS, 3, 1, S_W, V_T, S_T, WS_FLAG + 256 * C_TWIN)
        pstamp(a, "twin")
    a("s_setprio 3")
    jobs.g_job(a, 3, sc1=True, epi_prio=ENV('EPRIO', '2'), loop_prio=ENV('FPRIO', '0'), post_loop=late_pf if ENV("LATEPF") else None, ltouch=bool(ENV("GLT")))
    a(f"s_setprio {ENV('FPRIO', '0')}")
    a(f"s_lshl_b32 s50, s{S_RB}, 2")
    signal(a, S_WS, 50, 4, S_W, V_T, WS_FLAG + 256 * C_G)
    pstamp(a, "sig")
    if ENV("NOA"):
        pflush(a, 2, S_W, S_WS, V_T, 0)
        a("s_branch k_done")

    def wait_g(a):
        a(f"s_lshr_b32 s50, s{S_RB}, 1")
        a(f"s_lshl_b32 s50, s50, 2")
        a(f"s_and_b32 s51, s{S_CB}, 3")
        a(f"s_add_u32 s50, s50, s51")
        wait_count(a, S_WS, 50, 16, S_W, V_T, S_T, WS_FLAG + 256 * C_G)
    splitk.d_job(a, 3, a_sc1=True, wait=wait_g, post_prio=ENV('DPRIO', '0'), loop_prio=ENV('DLPRIO'))

    def wait_attn(a):
        a(f"s_lshr_b32 s50, s{S_RB}, 1")
        a(f"s_lshl_b32 s50, s50, 2")
        a(f"s_and_b32 s51, s{S_CB}, 3")
        a(f"s_add_u32 s50, s50, s51")
        (wait_count_fast if ENV('FAST') else wait_count)(a, S_WS, 50, 32, S_W, V_T, S_T, WS_FLAG + 256 * C_ATT)
    splitk.wo2_job(a, 3, wait=wait_attn)
    pflush(a, 2, S_W, S_WS, V_T, 0)
    a.label("k_done")
    a("s_endpgm")
    a.label("k_code_end")
    a.raw('.section .rodata,"a"')
    a.raw(".p2align 6")
    a.raw(kernel_desc(f"{NAME}_kernel", 256))
    return a.text()


def build2():
    a = Asm()
    a.raw(HEADER.rstrip("\\n"))
    LDS = 81920
    a.raw(f"; @launch kernel=k1_kernel grid=(256,1,1) block=(256,1,1) lds={LDS}")
    a.raw(f"; @launch kernel={NAME}_kernel grid=(512,1,1) block=(256,1,1) lds={LDS}")
    a.raw('.amdgcn_target "amdgcn-amd-amdhsa--gfx950"')
    a.raw(".text")
    kernel_header(a, "k1_kernel")
    a("s_cmp_ge_u32 s2, 256")
    a("s_cbranch_scc1 k1_done")
    preset(a); pstamp(a, "entry")
    jobs.common_entry(a)
    a("s_waitcnt lgkmcnt(0)")

    def pre_qkv(a):
        a("s_lshl_b32 s52, s2, 2")
        a(f"s_add_u32 s52, s52, s{S_W}")
        prefetch1(a, KA_WQKV, 512 * 3072, 52, 1024, 178, 177, 54, 60)
        prefetch1(a, KA_AX, 2048 * 1024, 52, 1024, 176, 177, 54, 60)

    def post_qkv(a):
        prefetch1(a, KA_WG, 512 * 2752, 52, 1024, 180, 177, 54, 60)
        prefetch1(a, KA_WU, 512 * 2752, 52, 1024, 181, 177, 54, 60)
        prefetch1(a, KA_WD, 1376 * 1024, 52, 1024, 182, 177, 54, 60)
        prefetch1(a, KA_WO, 512 * 1024, 52, 1024, 183, 177, 54, 60)
    jobs.qkv_job(a, 2, sc1=False, pre=pre_qkv, post_loop=post_qkv)
    a(f"s_or_b32 s50, s2, s{S_W}")
    a("s_cmp_lg_u32 s50, 0")
    a("s_cbranch_scc1 k1_noinit")
    a(f"v_lshlrev_b32 v{V_T}, 8, v0")
    a(f"v_add_u32 v{V_T}, {WS_FLAG}, v{V_T}")
    a(f"v_mov_b32 v{V_T+1}, 0")
    for i in range(4):
        a(f"global_store_dword v{V_T}, v{V_T+1}, s[{S_WS}:{S_WS+1}]")
        if i < 3:
            a(f"v_add_u32 v{V_T}, 16384, v{V_T}")
    a.label("k1_noinit")
    pflush(a, 2, S_W, S_WS, V_T, 1)
    a.label("k1_done")
    a("s_endpgm")
    kernel_header(a, f"{NAME}_kernel")
    a("s_cmp_ge_u32 s2, 512")
    a("s_cbranch_scc1 k_done")
    preset(a); pstamp(a, "entry")
    jobs.common_entry(a)
    a("s_waitcnt lgkmcnt(0)")
    a("s_cmp_ge_u32 s2, 256")
    a("s_cbranch_scc1 k_ffn")
    attn.OUT_SC1 = True
    attn.IN_SC1 = False
    attn.WAIT_IN = None
    a(f"s_setprio {ENV('APRIO', '1')}")
    attn.attn_body(a, 2, None)
    a(f"s_lshl_b32 s50, s{attn.S_QB}, 3")
    signal(a, S_WS, 50, 8, S_W, attn.TMP, WS_FLAG + 256 * C_ATT, drain=False)
    pstamp(a, "attn:sig")
    pflush(a, 2, S_W, S_WS, attn.TMP, 0)
    a("s_branch k_done")
    a.label("k_ffn")
    preset(a); pstamp(a, "entry")
    a("s_sub_u32 s3, s2, 256")
    a("s_setprio 3")
    jobs.g_job(a, 3, sc1=True, epi_prio=2, loop_prio=ENV('FPRIO', '0'))
    a(f"s_setprio {ENV('FPRIO', '0')}")
    a(f"s_lshl_b32 s50, s{S_RB}, 2")
    signal(a, S_WS, 50, 4, S_W, V_T, WS_FLAG + 256 * C_G)
    pstamp(a, "sig")

    def wait_g(a):
        a(f"s_lshr_b32 s50, s{S_RB}, 1")
        a(f"s_lshl_b32 s50, s50, 2")
        a(f"s_and_b32 s51, s{S_CB}, 3")
        a(f"s_add_u32 s50, s50, s51")
        wait_count(a, S_WS, 50, 16, S_W, V_T, S_T, WS_FLAG + 256 * C_G)
    splitk.d_job(a, 3, a_sc1=True, wait=wait_g, post_prio=ENV('DPRIO', '0'))

    def wait_attn(a):
        a(f"s_lshr_b32 s50, s{S_RB}, 1")
        a(f"s_lshl_b32 s50, s50, 2")
        a(f"s_and_b32 s51, s{S_CB}, 3")
        a(f"s_add_u32 s50, s50, s51")
        wait_count(a, S_WS, 50, 32, S_W, V_T, S_T, WS_FLAG + 256 * C_ATT)
    splitk.wo2_job(a, 3, wait=wait_attn)
    pflush(a, 2, S_W, S_WS, V_T, 0)
    a.label("k_done")
    a("s_endpgm")
    a.raw('.section .rodata,"a"')
    a.raw(".p2align 6")
    a.raw(kernel_desc("k1_kernel", 192))
    a.raw(".p2align 6")
    a.raw(kernel_desc(f"{NAME}_kernel", 256))
    return a.text()


def build3():
    a = Asm()
    a.raw(HEADER.rstrip("\\n"))
    LDS = 81920
    a.raw(f"; @launch kernel=k1_kernel grid=(512,1,1) block=(256,1,1) lds={LDS}")
    a.raw(f"; @launch kernel={NAME}_kernel grid=(512,1,1) block=(256,1,1) lds={LDS}")
    a.raw('.amdgcn_target "amdgcn-amd-amdhsa--gfx950"')
    a.raw(".text")
    kernel_header(a, "k1_kernel")
    a("s_cmp_ge_u32 s2, 512")
    a("s_cbranch_scc1 k1_done")
    preset(a); pstamp(a, "entry")
    jobs.common_entry(a)
    a("s_waitcnt lgkmcnt(0)")
    a("s_cmp_ge_u32 s2, 256")
    a("s_cbranch_scc1 k1_g")
    a("s_setprio 1")

    def post_qkv(a):
        a("s_lshl_b32 s52, s2, 2")
        a(f"s_add_u32 s52, s52, s{S_W}")
        prefetch1(a, KA_WD, 1376 * 1024, 52, 1024, 182, 177, 54, 60)
        prefetch1(a, KA_WO, 512 * 1024, 52, 1024, 183, 177, 54, 60)
    jobs.qkv_job(a, 2, sc1=False, post_loop=post_qkv)
    a(f"s_or_b32 s50, s2, s{S_W}")
    a("s_cmp_lg_u32 s50, 0")
    a("s_cbranch_scc1 k1_noinit")
    a(f"v_lshlrev_b32 v{V_T}, 8, v0")
    a(f"v_add_u32 v{V_T}, {WS_FLAG}, v{V_T}")
    a(f"v_mov_b32 v{V_T+1}, 0")
    for i in range(4):
        a(f"global_store_dword v{V_T}, v{V_T+1}, s[{S_WS}:{S_WS+1}]")
        if i < 3:
            a(f"v_add_u32 v{V_T}, 16384, v{V_T}")
    a.label("k1_noinit")
    pflush(a, 2, S_W, S_WS, V_T, 1)
    a("s_branch k1_done")
    a.label("k1_g")
    preset(a); pstamp(a, "entry")
    a("s_sub_u32 s3, s2, 256")
    jobs.g_job(a, 3, sc1=False)
    pflush(a, 2, S_W, S_WS, V_T, 1)
    a.label("k1_done")
    a("s_endpgm")
    kernel_header(a, f"{NAME}_kernel")
    a("s_cmp_ge_u32 s2, 512")
    a("s_cbranch_scc1 k_done")
    preset(a); pstamp(a, "entry")
    jobs.common_entry(a)
    a("s_waitcnt lgkmcnt(0)")
    a("s_cmp_ge_u32 s2, 256")
    a("s_cbranch_scc1 k_ffn")
    attn.OUT_SC1 = True
    attn.IN_SC1 = False
    attn.WAIT_IN = None
    a(f"s_setprio {ENV('APRIO', '1')}")
    attn.attn_body(a, 2, None)
    a(f"s_lshl_b32 s50, s{attn.S_QB}, 3")
    signal(a, S_WS, 50, 8, S_W, attn.TMP, WS_FLAG + 256 * C_ATT, drain=False)
    pstamp(a, "attn:sig")
    pflush(a, 2, S_W, S_WS, attn.TMP, 0)
    a("s_branch k_done")
    a.label("k_ffn")
    preset(a); pstamp(a, "entry")
    a("s_sub_u32 s3, s2, 256")
    splitk.d_job(a, 3, a_sc1=False, wait=None, post_prio=ENV('DPRIO', '0'))

    def wait_attn(a):
        a(f"s_lshr_b32 s50, s{S_RB}, 1")
        a(f"s_lshl_b32 s50, s50, 2")
        a(f"s_and_b32 s51, s{S_CB}, 3")
        a(f"s_add_u32 s50, s50, s51")
        wait_count(a, S_WS, 50, 32, S_W, V_T, S_T, WS_FLAG + 256 * C_ATT)
    splitk.wo2_job(a, 3, wait=wait_attn)
    pflush(a, 2, S_W, S_WS, V_T, 0)
    a.label("k_done")
    a("s_endpgm")
    a.raw('.section .rodata,"a"')
    a.raw(".p2align 6")
    a.raw(kernel_desc("k1_kernel", 256))
    a.raw(".p2align 6")
    a.raw(kernel_desc(f"{NAME}_kernel", 256))
    return a.text()


if __name__ == "__main__":
    out = sys.argv[1] if len(sys.argv) > 1 else f"cdna_kernels/{NAME}.s"
    open(out, "w").write(build3() if ENV("TWO") == "y" else build2() if ENV("TWO") else build())
    print("wrote", out, os.path.getsize(out), "bytes")
```

```python
from asmlib import *
from layout import *
from gemm import *
from sync import *
import struct, os
NTQ = ' nt' if os.environ.get('NTQ') else ''
NTG = ' nt' if os.environ.get('NTG') else ''

def f2u(x):
    return struct.unpack("<I", struct.pack("<f", x))[0]


S_DBG = 48


def common_entry(a):
    a(f"s_load_dwordx16 s[{S_P0}:{S_P0+15}], s[0:1], 0")
    a(f"s_load_dwordx2 s[{S_WS}:{S_WS+1}], s[0:1], {KA_WS}")
    a(f"s_load_dwordx2 s[{S_DBG}:{S_DBG+1}], s[0:1], {KA_DBG}")
    a(f"v_lshrrev_b32 v{V_T}, 6, v0")
    a("v_and_b32 v0, 63, v0")
    a(f"v_readfirstlane_b32 s{S_W}, v{V_T}")
    if WS_BASE:
        a("s_waitcnt lgkmcnt(0)")
        a(f"s_add_u32 s{S_WS}, s{S_WS}, {WS_BASE}")
        a(f"s_addc_u32 s{S_WS+1}, s{S_WS+1}, 0")


def decode_rb_cb(a, idreg):
    if os.environ.get("MAP2", "1") != "0":
        a(f"s_and_b32 s{S_RB}, s{idreg}, 1")
        a(f"s_lshl_b32 s{S_RB}, s{S_RB}, 3")
        a(f"s_bfe_u32 s{S_T}, s{idreg}, 0x30003")
        a(f"s_add_u32 s{S_RB}, s{S_RB}, s{S_T}")
        a(f"s_bfe_u32 s{S_CB}, s{idreg}, 0x20001")
        a(f"s_lshl_b32 s{S_CB}, s{S_CB}, 2")
        a(f"s_lshr_b32 s{S_T}, s{idreg}, 6")
        a(f"s_add_u32 s{S_CB}, s{S_CB}, s{S_T}")
        return
    a(f"s_and_b32 s{S_RB}, s{idreg}, 3")
    a(f"s_lshl_b32 s{S_RB}, s{S_RB}, 2")
    a(f"s_bfe_u32 s{S_T}, s{idreg}, 0x20003")
    a(f"s_add_u32 s{S_RB}, s{S_RB}, s{S_T}")
    a(f"s_bfe_u32 s{S_CB}, s{idreg}, 0x10002")
    a(f"s_lshl_b32 s{S_CB}, s{S_CB}, 3")
    a(f"s_lshr_b32 s{S_T}, s{idreg}, 5")
    a(f"s_add_u32 s{S_CB}, s{S_CB}, s{S_T}")


def srd_from(a, dst, lo, hi, size, add=0):
    if add > 0:
        a(f"s_add_u32 s{dst}, s{lo}, {add}")
        a(f"s_addc_u32 s{dst+1}, s{hi}, 0")
    elif add < 0:
        a(f"s_sub_u32 s{dst}, s{lo}, {-add}")
        a(f"s_subb_u32 s{dst+1}, s{hi}, 0")
    else:
        a(f"s_mov_b32 s{dst}, s{lo}")
        a(f"s_mov_b32 s{dst+1}, s{hi}")
    a(f"s_and_b32 s{dst+1}, s{dst+1}, 0xffff")
    a(f"s_mov_b32 s{dst+2}, {size}")
    a(f"s_mov_b32 s{dst+3}, 0x20000")


def store_pk8(a, src, tmp, scale_sreg=None):
    if scale_sreg is not None:
        for r in range(8):
            a(f"v_mul_f32 v{src+r}, s{scale_sreg}, v{src+r}")
    for r in range(4):
        a(f"v_cvt_pk_bf16_f32 v{tmp+r}, v{src+2*r}, v{src+2*r+1}")


def touch_x(a, vdst):
    a(f"s_and_b32 s{S_T}, s{S_CB}, 7")
    a(f"s_lshl_b32 s{S_T}, s{S_T}, 4")
    a(f"s_lshl_b32 s{S_T+1}, s{S_W}, 2")
    a(f"s_add_u32 s{S_T}, s{S_T}, s{S_T+1}")
    a(f"s_lshl_b32 s{S_T}, s{S_T}, 10")
    a(f"s_add_u32 s{S_T}, s{S_T}, s{S_SOA}")
    a(f"v_lshrrev_b32 v{V_T}, 3, v0")
    a(f"v_lshlrev_b32 v{V_T}, 10, v{V_T}")
    a(f"v_and_b32 v{V_T+1}, 7, v0")
    a(f"v_lshlrev_b32 v{V_T+1}, 7, v{V_T+1}")
    a(f"v_add_u32 v{V_T}, v{V_T}, v{V_T+1}")
    a(f"s_mov_b32 exec_hi, 0")
    a(f"buffer_load_dword v{vdst}, v{V_T}, s[{SRD_A}:{SRD_A+3}], s{S_T} offen")
    a(f"s_mov_b32 exec_hi, -1")


def decode_qkv(a, idreg):
    if os.environ.get("MAP2", "1") != "0":
        a(f"s_and_b32 s{S_RB}, s{idreg}, 1")
        a(f"s_lshl_b32 s{S_RB}, s{S_RB}, 4")
        a(f"s_bfe_u32 s{S_T}, s{idreg}, 0x40003")
        a(f"s_add_u32 s{S_RB}, s{S_RB}, s{S_T}")
        a(f"s_bfe_u32 s{S_CB}, s{idreg}, 0x20001")
        a(f"s_lshl_b32 s{S_CB}, s{S_CB}, 1")
        a(f"s_lshr_b32 s{S_T}, s{idreg}, 7")
        a(f"s_add_u32 s{S_CB}, s{S_CB}, s{S_T}")
        return
    a(f"s_and_b32 s{S_RB}, s{idreg}, 3")
    a(f"s_lshl_b32 s{S_RB}, s{S_RB}, 3")
    a(f"s_bfe_u32 s{S_T}, s{idreg}, 0x30003")
    a(f"s_add_u32 s{S_RB}, s{S_RB}, s{S_T}")
    a(f"s_bfe_u32 s{S_CB}, s{idreg}, 0x10002")
    a(f"s_lshl_b32 s{S_CB}, s{S_CB}, 2")
    a(f"s_lshr_b32 s{S_T}, s{idreg}, 6")
    a(f"s_add_u32 s{S_CB}, s{S_CB}, s{S_T}")


def qkv_ltouch(a, vx, vw):
    a(f"s_lshl_b32 s{S_T}, s{S_RB}, 6")
    a(f"s_and_b32 s{S_T+1}, s{S_CB}, 3")
    a(f"s_lshl_b32 s{S_T+1}, s{S_T+1}, 4")
    a(f"s_add_u32 s{S_T}, s{S_T}, s{S_T+1}")
    a(f"s_lshl_b32 s{S_T+1}, s{S_W}, 2")
    a(f"s_add_u32 s{S_T}, s{S_T}, s{S_T+1}")
    a(f"s_lshl_b32 s{S_T}, s{S_T}, 10")
    a(f"s_and_b32 s{S_T+2}, s{S_RB}, 7")
    a(f"s_lshl_b32 s{S_T+2}, s{S_T+2}, 6")
    a(f"s_lshl_b32 s{S_T+1}, s{S_W}, 4")
    a(f"s_add_u32 s{S_T+2}, s{S_T+2}, s{S_T+1}")
    a(f"s_mul_i32 s{S_T+2}, s{S_T+2}, 3072")
    a(f"s_lshl_b32 s{S_T+1}, s{S_CB}, 7")
    a(f"s_add_u32 s{S_T+2}, s{S_T+2}, s{S_T+1}")
    a(f"v_and_b32 v{V_T}, 15, v0")
    a(f"v_mul_u32_u24 v{V_T}, 3072, v{V_T}")
    a(f"v_lshrrev_b32 v{V_T+1}, 4, v0")
    a(f"v_lshlrev_b32 v{V_T+1}, 10, v{V_T+1}")
    a(f"v_add_u32 v{V_T}, v{V_T}, v{V_T+1}")
    a(f"s_mov_b32 exec_hi, 0xffff")
    a(f"buffer_load_dword v{vw}, v{V_T}, s[{SRD_W}:{SRD_W+3}], s{S_T+2} offen")
    a(f"v_lshrrev_b32 v{V_T}, 3, v0")
    a(f"v_lshlrev_b32 v{V_T}, 10, v{V_T}")
    a(f"v_and_b32 v{V_T+1}, 7, v0")
    a(f"v_lshlrev_b32 v{V_T+1}, 7, v{V_T+1}")
    a(f"v_add_u32 v{V_T}, v{V_T}, v{V_T+1}")
    a(f"s_mov_b32 exec_hi, 0")
    a(f"buffer_load_dword v{vx}, v{V_T}, s[{SRD_A}:{SRD_A+3}], s{S_T} offen")
    a(f"s_mov_b32 exec_hi, -1")


def qkv_job(a, idreg, pre=None, post_loop=None, sc1=False, ltouch=False):
    import gemm2 as g2
    SC = ' sc1' if sc1 else ''
    FA2, FW2, ACC = 16, 32, 80
    V_RW2, V_RW2H, RAH = 12 + 4 - 4 + 128, 141, 142
    V_RW2 = 140
    j = g2.J2()
    j.name, j.NS, j.RA, j.RW, j.nA, j.nW = "qkv", 16, int(os.environ.get("QRA", "3")), int(os.environ.get("QRW", "4")), 2, 3
    ASLOT, WSLOT, WBASE = 8192, 12288, 3 * 8192
    P_X, P_W, P_GW = S_P0, S_P0 + 2, S_P0 + 14
    decode_qkv(a, idreg)
    T0, T1, T2 = V_T, V_T + 1, V_T + 2
    srd_from(a, SRD_A, P_X, P_X + 1, 2048 * 1024)
    srd_from(a, SRD_W, P_W, P_W + 1, 512 * 3072)
    a(f"s_lshl_b32 s{S_SOA}, s{S_RB}, 16")
    a(f"s_mov_b32 s{S_SOW}, 0")
    if ltouch:
        qkv_ltouch(a, 180, 181)
    a(f"s_lshl_b32 s{S_T}, s{S_W}, 14")
    g2.a_dma_lane(a, g2.V_OA, 0)
    a(f"v_add_u32 v{g2.V_OA}, s{S_T}, v{g2.V_OA}")
    g2.a_dma_lane(a, g2.V_OA + 1, 1)
    a(f"v_add_u32 v{g2.V_OA+1}, s{S_T}, v{g2.V_OA+1}")
    a(f"v_add_u32 v{g2.V_OA+1}, {8 * 1024 - 1024}, v{g2.V_OA+1}")
    a(f"s_lshl_b32 s{S_LDA}, s{S_W}, 11")
    a(f"v_lshrrev_b32 v{T0}, 3, v0")
    a(f"v_mul_u32_u24 v{T0}, 3072, v{T0}")
    a(f"v_bfe_u32 v{T1}, v0, 4, 1")
    a(f"v_lshlrev_b32 v{T1}, 2, v{T1}")
    a(f"v_and_b32 v{T2}, 7, v0")
    a(f"v_xor_b32 v{T1}, v{T1}, v{T2}")
    a(f"v_lshlrev_b32 v{T1}, 4, v{T1}")
    a(f"s_mul_i32 s{S_T}, s{S_W}, {8 * 3072}")
    a(f"s_lshl_b32 s{S_T+1}, s{S_CB}, 7")
    a(f"s_add_u32 s{S_T}, s{S_T}, s{S_T+1}")
    a(f"v_add3_u32 v{g2.V_OW}, v{T0}, v{T1}, s{S_T}")
    a(f"s_mul_i32 s{S_LDW}, s{S_W}, 3072")
    GX, GWR = 128, 136

    def late_setup(a):
        n = 0
        if pre:
            n += pre(a) or 0
        a(f"s_and_b32 s{S_T}, s{S_W}, 1")
        a(f"s_lshl_b32 s{S_T}, s{S_T}, 12")
        g2.a_read_setup(a, S_T, RAH)
        a(f"v_lshrrev_b32 v{T0}, 5, v0")
        a(f"v_mul_u32_u24 v{T0}, 3072, v{T0}")
        a(f"v_bfe_u32 v{T1}, v0, 2, 2")
        a(f"v_lshlrev_b32 v{T1}, 7, v{T1}")
        a(f"v_add_u32 v{T0}, v{T0}, v{T1}")
        a(f"s_lshr_b32 s{S_T}, s{S_W}, 1")
        a(f"v_bfe_u32 v{T1}, v0, 3, 1")
        a(f"v_xor_b32 v{T1}, s{S_T}, v{T1}")
        a(f"v_lshlrev_b32 v{T1}, 6, v{T1}")
        a(f"v_add_u32 v{T0}, v{T0}, v{T1}")
        a(f"v_bfe_u32 v{T1}, v0, 4, 1")
        a(f"v_lshlrev_b32 v{T1}, 5, v{T1}")
        a(f"v_and_b32 v{T2}, 3, v0")
        a(f"v_lshlrev_b32 v{T2}, 3, v{T2}")
        a(f"v_add3_u32 v{V_RW2}, v{T0}, v{T1}, v{T2}")
        a(f"v_add_u32 v{V_RW2H}, {HI}, v{V_RW2}")
        a(f"s_lshl_b32 s{S_T}, s{S_RB}, 6")
        a(f"s_lshl_b32 s{S_T+1}, s{S_CB}, 3")
        a(f"s_add_u32 s{S_T}, s{S_T}, s{S_T+1}")
        a(f"s_lshl_b32 s{S_T+1}, s{S_W}, 1")
        a(f"s_add_u32 s{S_T+7}, s{S_T}, s{S_T+1}")
        a(f"s_lshl_b32 s{S_T+3}, s{S_T+7}, 10")
        a(f"v_lshlrev_b32 v{V_T}, 4, v0")
        a(f"v_add_u32 v{V_T+1}, s{S_T+3}, v{V_T}")
        a(f"global_load_dwordx4 v[{GX}:{GX+3}], v{V_T+1}, s[{P_X}:{P_X+1}]")
        a(f"global_load_dwordx4 v[{GX+4}:{GX+7}], v{V_T+1}, s[{P_X}:{P_X+1}] offset:1024")
        a(f"global_load_dwordx4 v[{GWR}:{GWR+3}], v{V_T}, s[{P_GW}:{P_GW+1}]")
        return n + 3

    def dmaA(a, S):
        a(f"s_add_u32 m0, s{S_LDA}, {(S % j.RA) * ASLOT}")
        a("s_nop 0")
        a(f"buffer_load_dwordx4 v{g2.V_OA}, s[{SRD_A}:{SRD_A+3}], s{S_SOA} offen{NTQ} lds")
        a(f"buffer_load_dwordx4 v{g2.V_OA+1}, s[{SRD_A}:{SRD_A+3}], s{S_SOA} offen offset:1024{NTQ} lds")
        a(f"s_add_u32 s{S_SOA}, s{S_SOA}, 128")

    def dmaW(a, s_):
        a(f"s_add_u32 m0, s{S_LDW}, {WBASE + (s_ % j.RW) * WSLOT}")
        a("s_nop 0")
        for t in range(3):
            off = f" offset:{1024 * t}" if t else ""
            a(f"buffer_load_dwordx4 v{g2.V_OW}, s[{SRD_W}:{SRD_W+3}], s{S_SOW} offen{off}{NTQ} lds")
        a(f"s_add_u32 s{S_SOW}, s{S_SOW}, {32 * 3072}")

    def reads(st):
        b = st & 1
        asl = ((st >> 1) % j.RA) * ASLOT
        wsl = WBASE + (st % j.RW) * WSLOT
        out = []
        for s_ in range(2):
            k = 2 * (st & 1) + s_
            out.append(g2.ds_rd("ds_read_b128", FA2 + (2 * b + s_) * 4, 4, g2.V_RA + k, RAH + k, asl))
            for t in range(3):
                d = FW2 + ((2 * b + s_) * 3 + t) * 4
                for half in range(2):
                    out.append(g2.ds_rd("ds_read_b64_tr_b16", d + 2 * half, 2, V_RW2, V_RW2H, wsl + s_ * 6144 + half * 512 + t * 1024))
        return out

    def mfmas(st):
        b = st & 1
        out = []
        for s_ in range(2):
            f = FA2 + (2 * b + s_) * 4
            for t in range(3):
                w = FW2 + ((2 * b + s_) * 3 + t) * 4
                out.append(g2.mfma(ACC + 16 * t, w, f) if t < 2 else g2.mfma(ACC + 16 * t, f, w))
        return out

    def after_prologue(a):
        n = late_setup(a)
        for r in range(48):
            a(f"v_mov_b32 v{ACC + r}, 0")
        return n
    def gate(a):
        G0, G1 = 146, 147
        a(f"v_mov_b32 v{G0}, 0")
        a(f"v_mov_b32 v{G1}, 0")
        for r in range(4):
            a(f"v_dot2_f32_bf16 v{G0}, v{GX+r}, v{GWR+r}, v{G0}")
            a(f"v_dot2_f32_bf16 v{G1}, v{GX+4+r}, v{GWR+r}, v{G1}")
        for rot in (8, 4, 2, 1):
            a("s_nop 1")
            a(f"v_add_f32_dpp v{G0}, v{G0}, v{G0} row_ror:{rot} row_mask:0xf bank_mask:0xf")
            a(f"v_add_f32_dpp v{G1}, v{G1}, v{G1} row_ror:{rot} row_mask:0xf bank_mask:0xf")
        a("s_nop 1")
        for gi, g in enumerate((G0, G1)):
            for q in range(4):
                a(f"v_readlane_b32 s{S_T+q}, v{g}, {16*q}")
            a("s_nop 1")
            a(f"v_mov_b32 v{V_T+gi}, s{S_T}")
            a(f"v_add_f32 v{V_T+gi}, s{S_T+1}, v{V_T+gi}")
            a(f"v_add_f32 v{V_T+gi}, s{S_T+2}, v{V_T+gi}")
            a(f"v_add_f32 v{V_T+gi}, s{S_T+3}, v{V_T+gi}")
        a(f"v_and_b32 v{V_T+2}, 1, v0")
        a(f"v_cmp_eq_u32 vcc, 1, v{V_T+2}")
        a("s_nop 1")
        a(f"v_cndmask_b32 v{V_T}, v{V_T}, v{V_T+1}, vcc")
        a(f"v_mul_f32 v{V_T}, {f2u(-1.4426950408889634)}, v{V_T}")
        a(f"v_exp_f32 v{V_T}, v{V_T}")
        a("s_nop 0")
        a(f"v_add_f32 v{V_T}, 1.0, v{V_T}")
        a(f"v_rcp_f32 v{V_T}, v{V_T}")
        a(f"v_lshlrev_b32 v{V_T+1}, 2, v0")
        a(f"s_lshl_b32 s{S_T}, s{S_T+7}, 6")
        a(f"s_add_u32 s{S_T}, s{S_T}, {WS_G}")
        a(f"v_add_u32 v{V_T+1}, s{S_T}, v{V_T+1}")
        a(f"s_mov_b32 exec_hi, 0")
        a(f"global_store_dword v{V_T+1}, v{V_T}, s[{S_WS}:{S_WS+1}]{SC}")
        a(f"s_mov_b32 exec_hi, -1")
    j.mid = (7, gate)
    j.dmaA, j.dmaW, j.reads, j.mfmas, j.after_prologue = dmaA, dmaW, reads, mfmas, after_prologue
    g2.engine(a, j)
    pstamp(a, 'qkv:loopend')
    if post_loop:
        post_loop(a)
    a("s_nop 7")
    TMP = 148
    a(f"s_lshl_b32 s{S_T}, s{S_RB}, 1")
    a(f"s_and_b32 s{S_T+1}, s{S_W}, 1")
    a(f"s_add_u32 s{S_T}, s{S_T}, s{S_T+1}")
    a(f"s_lshl_b32 s{S_T+2}, s{S_CB}, 1")
    a(f"s_lshr_b32 s{S_T+1}, s{S_W}, 1")
    a(f"s_add_u32 s{S_T+2}, s{S_T+2}, s{S_T+1}")
    a(f"s_lshl_b32 s{S_T+2}, s{S_T+2}, 17")
    a(f"s_lshl_b32 s{S_T+1}, s{S_T}, 10")
    a(f"s_add_u32 s{S_T+1}, s{S_T+1}, s{S_T+2}")
    a(f"v_lshlrev_b32 v{V_T}, 4, v0")
    a(f"v_add_u32 v{V_T}, s{S_T+1}, v{V_T}")
    a(f"v_add_u32 v{V_T+1}, 0x10000, v{V_T}")
    a(f"s_mov_b32 s{S_T+3}, {f2u(QSCALE)}")
    a(f"s_add_u32 s{S_P0+6}, s{S_WS}, {WS_KF}")
    a(f"s_addc_u32 s{S_P0+7}, s{S_WS+1}, 0")
    store_pk8(a, ACC, TMP, S_T + 3)
    a(f"global_store_dwordx4 v{V_T}, v[{TMP}:{TMP+3}], s[{S_WS}:{S_WS+1}]{SC}")
    store_pk8(a, ACC + 8, TMP + 4, S_T + 3)
    a(f"global_store_dwordx4 v{V_T+1}, v[{TMP+4}:{TMP+7}], s[{S_WS}:{S_WS+1}]{SC}")
    store_pk8(a, ACC + 16, TMP + 8)
    a(f"global_store_dwordx4 v{V_T}, v[{TMP+8}:{TMP+11}], s[{S_P0+6}:{S_P0+7}]{SC}")
    store_pk8(a, ACC + 24, TMP + 12)
    a(f"global_store_dwordx4 v{V_T+1}, v[{TMP+12}:{TMP+15}], s[{S_P0+6}:{S_P0+7}]{SC}")
    a(f"s_lshl_b32 s{S_T+1}, s{S_T}, 10")
    a(f"s_add_u32 s{S_T+1}, s{S_T+1}, s{S_T+2}")
    a(f"s_add_u32 s{S_T+1}, s{S_T+1}, {WS_VF}")
    a(f"v_bfe_u32 v{V_T+2}, v0, 4, 1")
    a(f"v_lshlrev_b32 v{V_T+2}, 16, v{V_T+2}")
    a(f"v_lshrrev_b32 v{V_T+3}, 5, v0")
    a(f"v_lshlrev_b32 v{V_T+3}, 8, v{V_T+3}")
    a(f"v_add3_u32 v{V_T+2}, v{V_T+2}, v{V_T+3}, s{S_T+1}")
    a(f"v_and_b32 v{V_T+3}, 15, v0")
    a(f"v_lshlrev_b32 v{V_T+3}, 4, v{V_T+3}")
    a(f"v_add_u32 v{V_T+2}, v{V_T+2}, v{V_T+3}")
    VT = TMP + 16
    for p in range(2):
        src = ACC + 32 + 8 * p
        t = VT + 4 * p
        for r in range(4):
            a(f"v_cvt_pk_bf16_f32 v{t+r}, v{src+2*r}, v{src+2*r+1}")
        a("s_nop 1")
        a(f"v_permlane32_swap_b32 v{t}, v{t+2}")
        a(f"v_permlane32_swap_b32 v{t+1}, v{t+3}")
        off = f" offset:512" if p else ""
        a(f"global_store_dwordx4 v{V_T+2}, v[{t}:{t+3}], s[{S_WS}:{S_WS+1}]{off}{SC}")
    pstamp(a, 'qkv:end')
    return j


GA = -2.0 * 1.4426950408889634 * 0.7978845608028654
GB = GA * 0.044715

def g_job(a, idreg, done=None, sc1=False, epi_prio=None, loop_prio=None, post_loop=None, ltouch=False):
    import gemm2 as g2
    FA2, FW2, ACC = 16, 32, 128
    V_RW2, V_RW2H, RAH = 224, 225, 226
    j = g2.J2()
    import os
    j.name, j.NS, j.RA, j.RW, j.nA, j.nW = "g", 16, 2, int(os.environ.get("GRW", "4")), 4, 3
    ASLOT, WSLOT, WBASE = 16384, 12288, 2 * 16384
    P_X, P_WG, P_WU = S_P0, S_P0 + 8, S_P0 + 10
    decode_rb_cb(a, idreg)
    T0, T1, T2 = V_T, V_T + 1, V_T + 2
    a(f"s_lshl_b32 s{S_T}, s{S_W}, 15")
    g2.a_dma_lane(a, g2.V_OA, 0)
    g2.a_dma_lane(a, g2.V_OA + 1, 1)
    a(f"v_add_u32 v{g2.V_OA}, s{S_T}, v{g2.V_OA}")
    a(f"v_add_u32 v{g2.V_OA+1}, s{S_T}, v{g2.V_OA+1}")
    a(f"v_add_u32 v{g2.V_OA+2}, {2 * 7168}, v{g2.V_OA}")
    a(f"v_add_u32 v{g2.V_OA+3}, {3 * 7168}, v{g2.V_OA+1}")
    a(f"v_add_u32 v{g2.V_OA+1}, 7168, v{g2.V_OA+1}")
    a(f"s_lshl_b32 s{S_LDA}, s{S_W}, 12")
    g2.a_read_setup(a, S_LDA, RAH)
    TILE0 = S_P0 + 6
    a(f"s_mul_i32 s{TILE0}, s{S_CB}, 3")
    a(f"s_lshl_b32 s{S_T}, s{S_CB}, 1")
    a(f"s_add_u32 s{S_T}, s{S_T}, 11")
    a(f"s_cmp_lt_u32 s{S_CB}, 11")
    a(f"s_cselect_b32 s{TILE0}, s{TILE0}, s{S_T}")
    a(f"s_cselect_b32 s{S_NP}, 3, 2")
    BIAS = 2048
    a(f"s_and_b32 s{S_T}, s{S_W}, 1")
    a(f"s_lshr_b32 s{S_T+1}, s{S_W}, 1")
    a(f"s_mul_i32 s{S_LDW}, s{S_T+1}, 6144")
    a(f"s_mul_i32 s{S_T+2}, s{S_T}, 3072")
    a(f"s_add_u32 s{S_LDW}, s{S_LDW}, s{S_T+2}")
    a(f"s_mul_i32 s{S_T+3}, s{S_T}, 192")
    for q in range(3):
        a(f"v_add_u32 v{T0}, s{S_T+3}, v0")
        if q:
            a(f"v_add_u32 v{T0}, {64 * q}, v{T0}")
        a(f"v_mul_u32_u24 v{T1}, 43691, v{T0}")
        a(f"v_lshrrev_b32 v{T1}, 19, v{T1}")
        a(f"v_mul_u32_u24 v{T2}, 12, v{T1}")
        a(f"v_sub_u32 v{T0}, v{T0}, v{T2}")
        a(f"v_lshlrev_b32 v{T0}, 4, v{T0}")
        a(f"v_mul_u32_u24 v{T1}, 2752, v{T1}")
        a(f"v_add_u32 v{T0}, v{T0}, v{T1}")
        a(f"v_add_u32 v{g2.V_OW+q}, {BIAS - 1024 * q}, v{T0}")
    a(f"v_lshrrev_b32 v{T0}, 5, v0")
    a(f"v_lshlrev_b32 v{T0}, 3, v{T0}")
    a(f"v_bfe_u32 v{T1}, v0, 2, 2")
    a(f"v_add_u32 v{T0}, v{T0}, v{T1}")
    a(f"v_mul_u32_u24 v{T0}, 192, v{T0}")
    a(f"v_bfe_u32 v{T1}, v0, 4, 1")
    a(f"v_lshlrev_b32 v{T1}, 5, v{T1}")
    a(f"v_and_b32 v{T2}, 3, v0")
    a(f"v_lshlrev_b32 v{T2}, 3, v{T2}")
    a(f"v_add3_u32 v{V_RW2}, v{T0}, v{T1}, v{T2}")
    a(f"v_add_u32 v{V_RW2H}, {HI}, v{V_RW2}")
    a(f"s_lshl_b32 s{S_SOA}, s{S_RB}, 17")
    a(f"s_lshl_b32 s{S_SOW}, s{TILE0}, 6")
    a("s_waitcnt lgkmcnt(0)")
    srd_from(a, SRD_A, P_X, P_X + 1, 2048 * 1024)
    a(f"s_cmp_eq_u32 s{S_T+1}, 0")
    a(f"s_cselect_b32 s{S_T+4}, s{P_WG}, s{P_WU}")
    a(f"s_cselect_b32 s{S_T+5}, s{P_WG+1}, s{P_WU+1}")
    srd_from(a, SRD_W, S_T + 4, S_T + 5, 512 * 2752 + BIAS, add=-BIAS)
    if ltouch:
        touch_x(a, 242)
        a(f"s_and_b32 s{S_T}, s{S_RB}, 3")
        a(f"s_lshl_b32 s{S_T}, s{S_T}, 7")
        a(f"s_and_b32 s{S_T+1}, s{S_W}, 1")
        a(f"s_lshl_b32 s{S_T+1}, s{S_T+1}, 6")
        a(f"s_add_u32 s{S_T}, s{S_T}, s{S_T+1}")
        a(f"s_mul_i32 s{S_T}, s{S_T}, 2752")
        a(f"s_add_u32 s{S_T}, s{S_T}, s{S_SOW}")
        a(f"s_add_u32 s{S_T}, s{S_T}, {BIAS}")
        a(f"v_mul_u32_u24 v{V_T}, 2752, v0")
        for q, off in enumerate((0, 128, 188)):
            a(f"buffer_load_dword v{243+q}, v{V_T}, s[{SRD_W}:{SRD_W+3}], s{S_T} offen offset:{off}")

    def dmaA(a, S):
        a(f"s_add_u32 m0, s{S_LDA}, {(S % j.RA) * ASLOT}")
        a("s_nop 0")
        for i in range(4):
            off = f" offset:{1024 * i}" if i else ""
            a(f"buffer_load_dwordx4 v{g2.V_OA+i}, s[{SRD_A}:{SRD_A+3}], s{S_SOA} offen{off}{NTG} lds")
        a(f"s_add_u32 s{S_SOA}, s{S_SOA}, 128")

    def dmaW(a, s_):
        a(f"s_add_u32 m0, s{S_LDW}, {WBASE + (s_ % j.RW) * WSLOT}")
        a("s_nop 0")
        for q in range(3):
            off = f" offset:{1024 * q}" if q else ""
            a(f"buffer_load_dwordx4 v{g2.V_OW+q}, s[{SRD_W}:{SRD_W+3}], s{S_SOW} offen{off}{NTG} lds")
        a(f"s_add_u32 s{S_SOW}, s{S_SOW}, {32 * 2752}")

    cols = {'c': list(range(6))}

    def reads(st):
        b = st & 1
        asl = ((st >> 1) % j.RA) * ASLOT
        wsl = WBASE + (st % j.RW) * WSLOT
        out = []
        for s_ in range(2):
            k = 2 * (st & 1) + s_
            out.append(g2.ds_rd("ds_read_b128", FA2 + (2 * b + s_) * 4, 4, g2.V_RA + k, RAH + k, asl))
            for c in cols['c']:
                d = FW2 + ((2 * b + s_) * 6 + c) * 4
                for half in range(2):
                    out.append(g2.ds_rd("ds_read_b64_tr_b16", d + 2 * half, 2, V_RW2, V_RW2H, wsl + (c // 3) * 6144 + (c % 3) * 64 + (16 * s_ + 4 * half) * 192))
        return out

    def mfmas(st):
        b = st & 1
        out = []
        for s_ in range(2):
            f = FA2 + (2 * b + s_) * 4
            for c in cols['c']:
                out.append(g2.mfma(ACC + 16 * c, FW2 + ((2 * b + s_) * 6 + c) * 4, f))
        return out

    def after_prologue(a):
        for r in range(96):
            a(f"v_mov_b32 v{ACC + r}, 0")
        if loop_prio is not None:
            a(f"s_setprio {loop_prio}")
    j.dmaA, j.dmaW, j.reads, j.mfmas, j.after_prologue = dmaA, dmaW, reads, mfmas, after_prologue
    import os
    a(f"s_cmp_lt_u32 s{S_NP}, {0 if os.environ.get('NONP2') else 3}")
    a("s_cbranch_scc1 g_np2")
    g2.engine(a, j)
    a("s_branch g_loop_done")
    a.label("g_np2")
    cols['c'] = [0, 1, 3, 4]
    save = (getattr(a, 'pidx', 0), list(getattr(a, 'pnames', [])))
    if PROF:
        a.pidx -= 3; a.pnames.pop(); a.pnames.pop(); a.pnames.pop()
    g2.engine(a, j)
    a.label("g_loop_done")
    pstamp(a, 'g:loopend')
    if post_loop:
        post_loop(a)
    if epi_prio is not None:
        a(f"s_setprio {epi_prio}")
    a("s_nop 7")
    a("s_nop 7")
    T = 32
    a(f"s_mov_b32 s{S_T}, {f2u(GA)}")
    a(f"s_mov_b32 s{S_T+1}, {f2u(GB)}")
    a(f"s_mul_i32 s{S_T+2}, s{S_RB}, 43")
    a(f"s_add_u32 s{S_T+2}, s{S_T+2}, s{TILE0}")
    a(f"s_lshl_b32 s{S_T+2}, s{S_T+2}, 13")
    a(f"s_lshl_b32 s{S_T+3}, s{S_W}, 11")
    a(f"s_add_u32 s{S_T+2}, s{S_T+2}, s{S_T+3}")
    a(f"s_add_u32 s{S_T+2}, s{S_T+2}, {WS_H}")
    a(f"v_lshlrev_b32 v{V_T}, 4, v0")
    a(f"v_add_u32 v{V_T}, s{S_T+2}, v{V_T}")
    a(f"s_mov_b32 s{S_T+4}, {f2u(GB)}")
    a(f"s_mov_b32 s{S_T+5}, {f2u(GB)}")
    a(f"v_mov_b32 v{T+8}, s{S_T}")
    a(f"v_mov_b32 v{T+9}, s{S_T}")
    a(f"v_mov_b32 v{T+10}, 1.0")
    a(f"v_mov_b32 v{T+11}, 1.0")
    for p in range(3):
        if p == 2:
            a(f"s_cmp_lt_u32 s{S_NP}, 3")
            a(f"s_cbranch_scc1 g_skip")
        G, U = ACC + 16 * p, ACC + 16 * (3 + p)
        for r0 in range(0, 16, 8):
            pr = range(r0, r0 + 8, 2)
            t = lambda r: T + (r - r0)
            for r in pr:
                a(f"v_pk_mul_f32 v[{t(r)}:{t(r)+1}], v[{G+r}:{G+r+1}], v[{G+r}:{G+r+1}]")
            for r in pr:
                a(f"v_pk_fma_f32 v[{t(r)}:{t(r)+1}], v[{t(r)}:{t(r)+1}], s[{S_T+4}:{S_T+5}], v[{T+8}:{T+9}]")
            for r in pr:
                a(f"v_pk_mul_f32 v[{t(r)}:{t(r)+1}], v[{t(r)}:{t(r)+1}], v[{G+r}:{G+r+1}]")
            for r in range(r0, r0 + 8):
                a(f"v_exp_f32 v{t(r)}, v{t(r)}")
            for r in pr:
                a(f"v_pk_mul_f32 v[{U+r}:{U+r+1}], v[{U+r}:{U+r+1}], v[{G+r}:{G+r+1}]")
            for r in pr:
                a(f"v_pk_add_f32 v[{t(r)}:{t(r)+1}], v[{t(r)}:{t(r)+1}], v[{T+10}:{T+11}]")
            for r in range(r0, r0 + 8):
                a(f"v_rcp_f32 v{t(r)}, v{t(r)}")
            a("s_nop 0")
            for r in pr:
                a(f"v_pk_mul_f32 v[{U+r}:{U+r+1}], v[{U+r}:{U+r+1}], v[{t(r)}:{t(r)+1}]")
        for r in range(8):
            a(f"v_cvt_pk_bf16_f32 v{G+r}, v{U+2*r}, v{U+2*r+1}")
        if p:
            a(f"v_add_u32 v{V_T}, 8192, v{V_T}")
        sc = " sc1" if sc1 else ""
        a(f"global_store_dwordx4 v{V_T}, v[{G}:{G+3}], s[{S_WS}:{S_WS+1}]{sc}")
        a(f"global_store_dwordx4 v{V_T}, v[{G+4}:{G+7}], s[{S_WS}:{S_WS+1}] offset:1024{sc}")
    a.label("g_skip")
    pstamp(a, 'g:end')
    return j


def nc1_setup(a, j, idreg, kaW, ws_off, nst):
    P_W = S_P0
    a(f"s_load_dwordx2 s[{P_W}:{P_W+1}], s[0:1], {kaW}")
    decode_rb_cb(a, idreg)
    lane_setup(a, j)
    a(f"s_and_b32 s{S_T}, s{S_W}, 1")
    a(f"s_lshl_b32 s{S_LDW}, s{S_T}, 10")
    a(f"s_lshl_b32 s{S_T}, s{S_T}, 14")
    a(f"s_lshl_b32 s{S_T+1}, s{S_CB}, 6")
    a(f"s_add_u32 s{S_T}, s{S_T}, s{S_T+1}")
    a(f"v_add_u32 v{V_OW}, s{S_T}, v{V_OW}")
    a(f"s_mov_b32 s{S_SOA}, 0")
    a(f"s_mov_b32 s{S_SOW}, 0")
    a(f"s_mul_i32 s{S_T+2}, s{S_RB}, {nst * 8192}")
    a(f"s_add_u32 s{S_T+2}, s{S_T+2}, {ws_off}")
    a("s_waitcnt lgkmcnt(0)")
    a(f"s_add_u32 s{S_T+4}, s{S_WS}, s{S_T+2}")
    a(f"s_addc_u32 s{S_T+5}, s{S_WS+1}, 0")
    srd_from(a, SRD_A, S_T + 4, S_T + 5, nst * 8192)
    srd_from(a, SRD_W, P_W, P_W + 1, nst * 32 * 1024)


def bp_addr(a, dst):
    a(f"s_lshl_b32 s{S_T}, s{S_RB}, 4")
    a(f"s_add_u32 s{S_T}, s{S_T}, s{S_CB}")
    a(f"s_lshl_b32 s{S_T}, s{S_T}, 2")
    a(f"s_add_u32 s{S_T}, s{S_T}, s{S_W}")
    a(f"s_lshl_b32 s{S_T}, s{S_T}, 12")
    a(f"s_add_u32 s{S_T}, s{S_T}, {WS_BP}")
    a(f"v_lshlrev_b32 v{dst}, 4, v0")
    a(f"v_add_u32 v{dst}, s{S_T}, v{dst}")


def g_load(a, dst, tmp):
    a(f"s_lshl_b32 s{S_T}, s{S_RB}, 7")
    a(f"s_lshl_b32 s{S_T+1}, s{S_W}, 5")
    a(f"s_add_u32 s{S_T}, s{S_T}, s{S_T+1}")
    a(f"s_lshl_b32 s{S_T}, s{S_T}, 2")
    a(f"s_add_u32 s{S_T}, s{S_T}, {WS_G}")
    a(f"v_and_b32 v{tmp}, 31, v0")
    a(f"v_lshlrev_b32 v{tmp}, 2, v{tmp}")
    a(f"v_add_u32 v{tmp}, s{S_T}, v{tmp}")
    a(f"global_load_dword v{dst}, v{tmp}, s[{S_WS}:{S_WS+1}]")


def d_job(a, idreg, done, ring=8, lds0=0, a_sc1=False):
    ACC = 40
    j = Job("d", NC=1, nstages=43, ring=ring, nW=1, a_rs=64, a_ss=8192, w_ws=1024,
            chunk='frag', wrow='perm', orient=['FM'], acc=ACC, lds0=lds0, a_sc1=a_sc1)
    nc1_setup(a, j, idreg, KA_WD, WS_H, 43)
    GV = 60
    g_load(a, GV, V_T)
    prologue_dma(a, j)
    zero_acc(a, j)
    main_loop(a, j)
    pstamp(a, j.name + ':loopend')
    a("s_nop 7")
    a("s_nop 7")
    a(f"v_sub_f32 v{GV}, 1.0, v{GV}")
    bp_addr(a, V_T)
    for r in range(16):
        a(f"v_mul_f32 v{ACC+r}, v{ACC+r}, v{GV}")
    for q in range(4):
        off = f" offset:{1024*q}" if q else ""
        a(f"global_store_dwordx4 v{V_T}, v[{ACC+4*q}:{ACC+4*q+3}], s[{S_WS}:{S_WS+1}]{off}")
    pstamp(a, j.name + ':end')
    if done:
        a(f"s_branch {done}")
    return j


def wo_job(a, idreg, done, ring=8, lds0=0):
    ACC = 40
    j = Job("wo", NC=1, nstages=16, ring=ring, nW=1, a_rs=64, a_ss=8192, w_ws=1024,
            chunk='frag', wrow='perm', orient=['FM'], acc=ACC, lds0=lds0)
    P_OUT = S_P0 + 2
    a(f"s_load_dwordx2 s[{P_OUT}:{P_OUT+1}], s[0:1], {KA_OUT}")
    nc1_setup(a, j, idreg, KA_WO, WS_OB, 16)
    GV, BPV = 60, 64
    g_load(a, GV, V_T)
    bp_addr(a, V_T + 1)
    for q in range(4):
        off = f" offset:{1024*q}" if q else ""
        a(f"global_load_dwordx4 v[{BPV+4*q}:{BPV+4*q+3}], v{V_T+1}, s[{S_WS}:{S_WS+1}]{off}")
    prologue_dma(a, j)
    zero_acc(a, j)
    main_loop(a, j)
    pstamp(a, j.name + ':loopend')
    a("s_nop 7")
    a("s_nop 7")
    for r in range(16):
        a(f"v_fma_f32 v{ACC+r}, v{ACC+r}, v{GV}, v{BPV+r}")
    a(f"s_lshl_b32 s{S_T}, s{S_RB}, 7")
    a(f"s_lshl_b32 s{S_T+1}, s{S_W}, 5")
    a(f"s_add_u32 s{S_T}, s{S_T}, s{S_T+1}")
    a(f"s_lshl_b32 s{S_T}, s{S_T}, 10")
    a(f"s_lshl_b32 s{S_T+1}, s{S_CB}, 6")
    a(f"s_add_u32 s{S_T}, s{S_T}, s{S_T+1}")
    a(f"v_and_b32 v{V_T}, 31, v0")
    a(f"v_lshlrev_b32 v{V_T}, 10, v{V_T}")
    a(f"v_lshrrev_b32 v{V_T+1}, 5, v0")
    a(f"v_lshlrev_b32 v{V_T+1}, 4, v{V_T+1}")
    a(f"v_add3_u32 v{V_T}, v{V_T}, v{V_T+1}, s{S_T}")
    T = 80
    for p in range(2):
        t = T + 4 * p
        for r in range(4):
            a(f"v_cvt_pk_bf16_f32 v{t+r}, v{ACC+8*p+2*r}, v{ACC+8*p+2*r+1}")
        a("s_nop 1")
        a(f"v_permlane32_swap_b32 v{t}, v{t+2}")
        a(f"v_permlane32_swap_b32 v{t+1}, v{t+3}")
        off = " offset:32" if p else ""
        a(f"global_store_dwordx4 v{V_T}, v[{t}:{t+3}], s[{P_OUT}:{P_OUT+1}]{off}")
    pstamp(a, j.name + ':end')
    if done:
        a(f"s_branch {done}")
    return j


def qkv_touch(a, idreg):
    P_X, P_W = S_P0, S_P0 + 2
    a(f"s_load_dwordx2 s[{P_X}:{P_X+1}], s[0:1], {KA_AX}")
    a(f"s_load_dwordx2 s[{P_W}:{P_W+1}], s[0:1], {KA_WQKV}")
    decode_qkv(a, idreg)
    a("s_waitcnt lgkmcnt(0)")
    srd_from(a, SRD_A, P_X, P_X + 1, 2048 * 1024)
    srd_from(a, SRD_W, P_W, P_W + 1, 512 * 3072)
    a(f"s_lshl_b32 s{S_T}, s{S_RB}, 6")
    a(f"s_and_b32 s{S_T+1}, s{S_CB}, 3")
    a(f"s_lshl_b32 s{S_T+1}, s{S_T+1}, 4")
    a(f"s_add_u32 s{S_T}, s{S_T}, s{S_T+1}")
    a(f"s_lshl_b32 s{S_T+1}, s{S_W}, 2")
    a(f"s_add_u32 s{S_T}, s{S_T}, s{S_T+1}")
    a(f"s_lshl_b32 s{S_T}, s{S_T}, 10")
    a(f"v_lshrrev_b32 v{V_T}, 3, v0")
    a(f"v_lshlrev_b32 v{V_T}, 10, v{V_T}")
    a(f"v_and_b32 v{V_T+1}, 7, v0")
    a(f"v_lshlrev_b32 v{V_T+1}, 7, v{V_T+1}")
    a(f"v_add_u32 v{V_T}, v{V_T}, v{V_T+1}")
    a(f"s_mov_b32 exec_hi, 0")
    a(f"buffer_load_dword v242, v{V_T}, s[{SRD_A}:{SRD_A+3}], s{S_T} offen")
    a(f"s_mov_b32 exec_hi, -1")
    a(f"s_and_b32 s{S_T}, s{S_RB}, 7")
    a(f"s_lshl_b32 s{S_T}, s{S_T}, 6")
    a(f"s_lshl_b32 s{S_T+1}, s{S_W}, 4")
    a(f"s_add_u32 s{S_T}, s{S_T}, s{S_T+1}")
    a(f"s_mul_i32 s{S_T}, s{S_T}, 3072")
    a(f"s_lshl_b32 s{S_T+1}, s{S_CB}, 7")
    a(f"s_add_u32 s{S_T}, s{S_T}, s{S_T+1}")
    a(f"v_and_b32 v{V_T}, 15, v0")
    a(f"v_mul_u32_u24 v{V_T}, 3072, v{V_T}")
    a(f"v_lshrrev_b32 v{V_T+1}, 4, v0")
    a(f"v_lshlrev_b32 v{V_T+1}, 10, v{V_T+1}")
    a(f"v_add_u32 v{V_T}, v{V_T}, v{V_T+1}")
    a(f"s_mov_b32 exec_hi, 0xffff")
    a(f"buffer_load_dword v243, v{V_T}, s[{SRD_W}:{SRD_W+3}], s{S_T} offen")
    a(f"s_mov_b32 exec_hi, -1")
```

```python
import sys, os
sys.path.insert(0, os.path.dirname(os.path.abspath(__file__)))
from asmlib import *
from layout import *
import attn, jobs, splitk
from sync import *
from gemm import S_W, S_WS, S_T, S_RB, S_CB, V_T, SRD_A

NAME = "gated_mix__mha_block__glu_gated_geglu__prompt"
HEADER = open(os.path.join(os.path.dirname(os.path.abspath(__file__)), "header.txt")).read()
_DEFAULTS = {"FAST": "1", "FW": "gu", "LATEPF": "1"}


def ENV(k, d=None):
    return os.environ.get(k, _DEFAULTS.get(k, d))
C_QKV, C_G, C_ATT, C_TWIN = 0, 128, 192, 256


def tlb_warm(a):
    a("s_load_dwordx16 s[32:47], s[0:1], 0")
    a("s_load_dwordx2 s[50:51], s[0:1], 64")
    a("v_mov_b32 v250, 0")
    a(f"v_lshlrev_b32 v251, 21, v0")
    a(f"v_cmp_gt_u32 vcc, 10, v0")
    a("s_and_saveexec_b64 s[52:53], vcc")
    a(f"global_load_dword v252, v251, s[{S_WS}:{S_WS+1}]")
    a("s_mov_b64 exec, s[52:53]")
    a("s_waitcnt lgkmcnt(0)")
    a("s_mov_b64 exec, 1")
    for i in (0, 1, 2, 4, 5, 6, 7):
        a(f"global_load_dword v253, v250, s[{32+2*i}:{33+2*i}]")
    a("global_load_dword v253, v250, s[50:51]")
    a("s_mov_b64 exec, -1")


def code_touch(a, idx_sreg, nidx, start_label, nbytes, vdst, vtmp, stmp):
    lines = (nbytes + 127) // 128
    per = (lines + nidx - 1) // nidx
    assert per <= 64
    lab = a.uid("ct")
    a(f"s_getpc_b64 s[{stmp}:{stmp+1}]")
    a.label(lab)
    a(f"s_sub_u32 s{stmp}, s{stmp}, {lab}-{start_label}")
    a(f"s_subb_u32 s{stmp+1}, s{stmp+1}, 0")
    a(f"s_mul_i32 s{stmp+2}, s{idx_sreg}, {per * 128}")
    a(f"v_lshlrev_b32 v{vtmp}, 7, v0")
    a(f"v_add_u32 v{vtmp}, s{stmp+2}, v{vtmp}")
    a(f"v_min_u32 v{vtmp}, {(lines - 1) * 128}, v{vtmp}")
    a(f"s_mov_b64 exec, {hex((1 << per) - 1)}")
    a(f"global_load_dword v{vdst}, v{vtmp}, s[{stmp}:{stmp+1}]")
    a("s_mov_b64 exec, -1")


def build():
    a = Asm()
    a.raw(HEADER.rstrip("\n"))
    LDS = 81920
    if ENV("ASLIST"):
        a.raw(f"; @launch kernel={NAME}_kernel grid=(512,1,1) block=(256,1,1) lds={LDS}")
    else:
        a.raw(f"; @launch grid=(512,1,1) block=(256,1,1) lds={LDS}")
    a.raw('.amdgcn_target "amdgcn-amd-amdhsa--gfx950"')
    a.raw(".text")
    kernel_header(a, f"{NAME}_kernel")
    a("s_cmp_ge_u32 s2, 512")
    a("s_cbranch_scc1 k_done")
    preset(a); pstamp(a, "entry")
    jobs.common_entry(a)
    a("s_waitcnt lgkmcnt(0)")
    pstamp(a, "karg")
    if ENV("TLBW"):
        tlb_warm(a)
    a("s_cmp_ge_u32 s2, 256")
    a("s_cbranch_scc1 k_ffn")
    if ENV("NOA"):
        a("s_branch k_done")
    a("s_setprio 2")

    def pre_qkv(a):
        a("s_lshl_b32 s52, s2, 2")
        a(f"s_add_u32 s52, s52, s{S_W}")
        nw = 1024 if ENV("APF") == "full" else 2048
        prefetch1(a, KA_WQKV, 512 * 3072, 52, nw, 178, 177, 54, 60)
        prefetch1(a, KA_AX, 2048 * 1024, 52, nw, 176, 177, 54, 60)
        if ENV("APF") != "full":
            a("s_waitcnt vmcnt(0)")
        pstamp(a, "pf1")
        init_probe(a, jobs.S_DBG, 179)

    def post_qkv(a):
        wait_init(a, jobs.S_DBG, S_W, V_T, S_T, probe=179)
        if ENV("TWIN") == "1":
            signal(a, S_WS, 2, 1, S_W, V_T, WS_FLAG + 256 * C_TWIN, drain=False)
    def pre_qkv0(a):
        init_probe(a, jobs.S_DBG, 179)
        return 1
    jobs.qkv_job(a, 2, sc1=True, pre=pre_qkv if ENV("APF") else pre_qkv0, post_loop=post_qkv, ltouch=bool(ENV("QLT")))
    a(f"s_lshl_b32 s50, s{S_CB}, 4")
    signal(a, S_WS, 50, 16, S_W, V_T, WS_FLAG + 256 * C_QKV)
    if ENV("TWIN") == "2":
        signal(a, S_WS, 2, 1, S_W, V_T, WS_FLAG + 256 * C_TWIN, drain=False)
    pstamp(a, "qkv:sig")
    if ENV("NOF"):
        pflush(a, 2, S_W, S_WS, attn.TMP, 0)
        a("s_branch k_done")

    def wait_qkv(a):
        a(f"s_lshr_b32 s50, s{attn.S_HEAD}, 2")
        a(f"s_lshl_b32 s50, s50, 4")
        a(f"s_add_u32 s50, s50, s{attn.S_QB}")
        (wait_count_fast if ENV('FAST') else wait_count)(a, S_WS, 50, 32, S_W, attn.TMP, 60, WS_FLAG + 256 * C_QKV)
        pstamp(a, "qkv:flag")
    attn.OUT_SC1 = True
    attn.IN_SC1 = True
    attn.WAIT_IN = wait_qkv
    a(f"s_setprio {ENV('APRIO', '1')}")
    attn.attn_body(a, 2, None)
    a(f"s_lshl_b32 s50, s{attn.S_QB}, 3")
    signal(a, S_WS, 50, 8, S_W, attn.TMP, WS_FLAG + 256 * C_ATT, drain=False)
    pstamp(a, "attn:sig")
    pflush(a, 2, S_W, S_WS, attn.TMP, 0)
    a("s_branch k_done")
    a.label("k_ffn")
    if ENV("NOF"):
        a("s_branch k_done")
    preset(a); pstamp(a, "entry")
    a("s_sub_u32 s3, s2, 256")
    if ENV("CTOUCH"):
        a("s_lshr_b32 s53, s3, 3")
        a("s_lshl_b32 s53, s53, 2")
        a(f"s_add_u32 s53, s53, s{S_W}")
        code_touch(a, 53, 128, f"{NAME}_kernel", int(ENV("CTOUCH")), 250, 251, 54)
    a(f"s_or_b32 s50, s3, s{S_W}")
    a("s_cmp_lg_u32 s50, 0")
    a("s_cbranch_scc1 k_noinit")
    a("s_waitcnt lgkmcnt(0)")
    init_counters(a, S_WS, jobs.S_DBG, V_T, WS_FLAG)
    a.label("k_noinit")
    a("s_lshl_b32 s52, s3, 2")
    a(f"s_add_u32 s52, s52, s{S_W}")
    def f_weights_pf(a):
        m = ENV("FW", "gudo")
        if "g" in m:
            prefetch1(a, KA_WG, 512 * 2752, 52, 1024, 244, 241, 54, 60)
        if "u" in m:
            prefetch1(a, KA_WU, 512 * 2752, 52, 1024, 245, 241, 54, 60)
        if "d" in m:
            prefetch1(a, KA_WD, 1376 * 1024, 52, 1024, 246, 241, 54, 60)
        if "o" in m:
            prefetch1(a, KA_WO, 512 * 1024, 52, 1024, 247, 241, 54, 60)

    def late_pf(a):
        prefetch1(a, KA_WD, 1376 * 1024, 52, 1024, 246, 241, 54, 60)
        prefetch1(a, KA_WO, 512 * 1024, 52, 1024, 247, 241, 54, 60)
    if not ENV("NOPF"):
        if ENV("APF") == "full":
            pass
        elif ENV("APF"):
            a("s_add_u32 s53, s52, 1024")
            prefetch1(a, KA_AX, 2048 * 1024, 53, 2048, 244, 241, 54, 60)
            prefetch1(a, KA_WQKV, 512 * 3072, 53, 2048, 245, 241, 54, 60)
        elif not ENV("NOPF1"):
            prefetch1(a, KA_WQKV, 512 * 3072, 52, 1024, 245, 241, 54, 60)
            prefetch1(a, KA_AX, 2048 * 1024, 52, 1024, 244, 241, 54, 60)
        a("s_waitcnt vmcnt(0)")
        pstamp(a, "pf1")
        if ENV("TOUCH"):
            jobs.qkv_touch(a, 3)
        if ENV("WSPF"):
            prefetch_ws(a, S_WS, WS_QF, 0x600000, 52, 1024, 243, 241, 54, 60)
        if not ENV("FLATE"):
            f_weights_pf(a)
        if ENV("WSPF") == "2":
            prefetch_ws(a, S_WS, WS_H, 16 * 43 * 8192, 52, 1024, 242, 241, 54, 60)
    if ENV("LIGHT"):
        light_prefetch(a, [(KA_WG, 512 * 2752), (KA_WU, 512 * 2752), (KA_WD, 1376 * 1024), (KA_WO, 512 * 1024)], 3, 256, S_W, 244, 241, 54, 60, lanes=int(ENV("LIGHT")))
    wait_init(a, jobs.S_DBG, S_W, V_T, S_T)
    if ENV("HOLD"):
        jobs.decode_qkv(a, 3)
        a(f"s_lshl_b32 s50, s{S_CB}, 4")
        a(f"s_and_b32 s51, s{S_RB}, 7")
        a(f"s_add_u32 s50, s50, s51")
        a(f"s_add_u32 s50, s50, 8")
        wait_count(a, S_WS, 50, int(ENV("HOLDN", "32")), S_W, V_T, S_T, WS_FLAG + 256 * C_QKV)
        pstamp(a, "hold")
        if ENV("FLATE"):
            f_weights_pf(a)
    if ENV("TWIN"):
        wait_count(a, S_WS, 3, 1, S_W, V_T, S_T, WS_FLAG + 256 * C_TWIN)
        pstamp(a, "twin")
    a("s_setprio 3")
    jobs.g_job(a, 3, sc1=True, epi_prio=ENV('EPRIO', '2'), loop_prio=ENV('FPRIO', '0'), post_loop=late_pf if ENV("LATEPF") else None, ltouch=bool(ENV("GLT")))
    a(f"s_setprio {ENV('FPRIO', '0')}")
    a(f"s_lshl_b32 s50, s{S_RB}, 2")
    signal(a, S_WS, 50, 4, S_W, V_T, WS_FLAG + 256 * C_G)
    pstamp(a, "sig")
    if ENV("NOA"):
        pflush(a, 2, S_W, S_WS, V_T, 0)
        a("s_branch k_done")

    def wait_g(a):
        a(f"s_lshr_b32 s50, s{S_RB}, 1")
        a(f"s_lshl_b32 s50, s50, 2")
        a(f"s_and_b32 s51, s{S_CB}, 3")
        a(f"s_add_u32 s50, s50, s51")
        wait_count(a, S_WS, 50, 16, S_W, V_T, S_T, WS_FLAG + 256 * C_G)
    splitk.d_job(a, 3, a_sc1=True, wait=wait_g, post_prio=ENV('DPRIO', '0'), loop_prio=ENV('DLPRIO'))

    def wait_attn(a):
        a(f"s_lshr_b32 s50, s{S_RB}, 1")
        a(f"s_lshl_b32 s50, s50, 2")
        a(f"s_and_b32 s51, s{S_CB}, 3")
        a(f"s_add_u32 s50, s50, s51")
        (wait_count_fast if ENV('FAST') else wait_count)(a, S_WS, 50, 32, S_W, V_T, S_T, WS_FLAG + 256 * C_ATT)
    splitk.wo2_job(a, 3, wait=wait_attn)
    pflush(a, 2, S_W, S_WS, V_T, 0)
    a.label("k_done")
    a("s_endpgm")
    a.label("k_code_end")
    a.raw('.section .rodata,"a"')
    a.raw(".p2align 6")
    a.raw(kernel_desc(f"{NAME}_kernel", 256))
    return a.text()


def build2():
    a = Asm()
    a.raw(HEADER.rstrip("\\n"))
    LDS = 81920
    a.raw(f"; @launch kernel=k1_kernel grid=(256,1,1) block=(256,1,1) lds={LDS}")
    a.raw(f"; @launch kernel={NAME}_kernel grid=(512,1,1) block=(256,1,1) lds={LDS}")
    a.raw('.amdgcn_target "amdgcn-amd-amdhsa--gfx950"')
    a.raw(".text")
    kernel_header(a, "k1_kernel")
    a("s_cmp_ge_u32 s2, 256")
    a("s_cbranch_scc1 k1_done")
    preset(a); pstamp(a, "entry")
    jobs.common_entry(a)
    a("s_waitcnt lgkmcnt(0)")

    def pre_qkv(a):
        a("s_lshl_b32 s52, s2, 2")
        a(f"s_add_u32 s52, s52, s{S_W}")
        prefetch1(a, KA_WQKV, 512 * 3072, 52, 1024, 178, 177, 54, 60)
        prefetch1(a, KA_AX, 2048 * 1024, 52, 1024, 176, 177, 54, 60)

    def post_qkv(a):
        prefetch1(a, KA_WG, 512 * 2752, 52, 1024, 180, 177, 54, 60)
        prefetch1(a, KA_WU, 512 * 2752, 52, 1024, 181, 177, 54, 60)
        prefetch1(a, KA_WD, 1376 * 1024, 52, 1024, 182, 177, 54, 60)
        prefetch1(a, KA_WO, 512 * 1024, 52, 1024, 183, 177, 54, 60)
    jobs.qkv_job(a, 2, sc1=False, pre=pre_qkv, post_loop=post_qkv)
    a(f"s_or_b32 s50, s2, s{S_W}")
    a("s_cmp_lg_u32 s50, 0")
    a("s_cbranch_scc1 k1_noinit")
    a(f"v_lshlrev_b32 v{V_T}, 8, v0")
    a(f"v_add_u32 v{V_T}, {WS_FLAG}, v{V_T}")
    a(f"v_mov_b32 v{V_T+1}, 0")
    for i in range(4):
        a(f"global_store_dword v{V_T}, v{V_T+1}, s[{S_WS}:{S_WS+1}]")
        if i < 3:
            a(f"v_add_u32 v{V_T}, 16384, v{V_T}")
    a.label("k1_noinit")
    pflush(a, 2, S_W, S_WS, V_T, 1)
    a.label("k1_done")
    a("s_endpgm")
    kernel_header(a, f"{NAME}_kernel")
    a("s_cmp_ge_u32 s2, 512")
    a("s_cbranch_scc1 k_done")
    preset(a); pstamp(a, "entry")
    jobs.common_entry(a)
    a("s_waitcnt lgkmcnt(0)")
    a("s_cmp_ge_u32 s2, 256")
    a("s_cbranch_scc1 k_ffn")
    attn.OUT_SC1 = True
    attn.IN_SC1 = False
    attn.WAIT_IN = None
    a(f"s_setprio {ENV('APRIO', '1')}")
    attn.attn_body(a, 2, None)
    a(f"s_lshl_b32 s50, s{attn.S_QB}, 3")
    signal(a, S_WS, 50, 8, S_W, attn.TMP, WS_FLAG + 256 * C_ATT, drain=False)
    pstamp(a, "attn:sig")
    pflush(a, 2, S_W, S_WS, attn.TMP, 0)
    a("s_branch k_done")
    a.label("k_ffn")
    preset(a); pstamp(a, "entry")
    a("s_sub_u32 s3, s2, 256")
    a("s_setprio 3")
    jobs.g_job(a, 3, sc1=True, epi_prio=2, loop_prio=ENV('FPRIO', '0'))
    a(f"s_setprio {ENV('FPRIO', '0')}")
    a(f"s_lshl_b32 s50, s{S_RB}, 2")
    signal(a, S_WS, 50, 4, S_W, V_T, WS_FLAG + 256 * C_G)
    pstamp(a, "sig")

    def wait_g(a):
        a(f"s_lshr_b32 s50, s{S_RB}, 1")
        a(f"s_lshl_b32 s50, s50, 2")
        a(f"s_and_b32 s51, s{S_CB}, 3")
        a(f"s_add_u32 s50, s50, s51")
        wait_count(a, S_WS, 50, 16, S_W, V_T, S_T, WS_FLAG + 256 * C_G)
    splitk.d_job(a, 3, a_sc1=True, wait=wait_g, post_prio=ENV('DPRIO', '0'))

    def wait_attn(a):
        a(f"s_lshr_b32 s50, s{S_RB}, 1")
        a(f"s_lshl_b32 s50, s50, 2")
        a(f"s_and_b32 s51, s{S_CB}, 3")
        a(f"s_add_u32 s50, s50, s51")
        wait_count(a, S_WS, 50, 32, S_W, V_T, S_T, WS_FLAG + 256 * C_ATT)
    splitk.wo2_job(a, 3, wait=wait_attn)
    pflush(a, 2, S_W, S_WS, V_T, 0)
    a.label("k_done")
    a("s_endpgm")
    a.raw('.section .rodata,"a"')
    a.raw(".p2align 6")
    a.raw(kernel_desc("k1_kernel", 192))
    a.raw(".p2align 6")
    a.raw(kernel_desc(f"{NAME}_kernel", 256))
    return a.text()


def build3():
    a = Asm()
    a.raw(HEADER.rstrip("\\n"))
    LDS = 81920
    a.raw(f"; @launch kernel=k1_kernel grid=(512,1,1) block=(256,1,1) lds={LDS}")
    a.raw(f"; @launch kernel={NAME}_kernel grid=(512,1,1) block=(256,1,1) lds={LDS}")
    a.raw('.amdgcn_target "amdgcn-amd-amdhsa--gfx950"')
    a.raw(".text")
    kernel_header(a, "k1_kernel")
    a("s_cmp_ge_u32 s2, 512")
    a("s_cbranch_scc1 k1_done")
    preset(a); pstamp(a, "entry")
    jobs.common_entry(a)
    a("s_waitcnt lgkmcnt(0)")
    a("s_cmp_ge_u32 s2, 256")
    a("s_cbranch_scc1 k1_g")
    a("s_setprio 1")

    def post_qkv(a):
        a("s_lshl_b32 s52, s2, 2")
        a(f"s_add_u32 s52, s52, s{S_W}")
        prefetch1(a, KA_WD, 1376 * 1024, 52, 1024, 182, 177, 54, 60)
        prefetch1(a, KA_WO, 512 * 1024, 52, 1024, 183, 177, 54, 60)
    jobs.qkv_job(a, 2, sc1=False, post_loop=post_qkv)
    a(f"s_or_b32 s50, s2, s{S_W}")
    a("s_cmp_lg_u32 s50, 0")
    a("s_cbranch_scc1 k1_noinit")
    a(f"v_lshlrev_b32 v{V_T}, 8, v0")
    a(f"v_add_u32 v{V_T}, {WS_FLAG}, v{V_T}")
    a(f"v_mov_b32 v{V_T+1}, 0")
    for i in range(4):
        a(f"global_store_dword v{V_T}, v{V_T+1}, s[{S_WS}:{S_WS+1}]")
        if i < 3:
            a(f"v_add_u32 v{V_T}, 16384, v{V_T}")
    a.label("k1_noinit")
    pflush(a, 2, S_W, S_WS, V_T, 1)
    a("s_branch k1_done")
    a.label("k1_g")
    preset(a); pstamp(a, "entry")
    a("s_sub_u32 s3, s2, 256")
    jobs.g_job(a, 3, sc1=False)
    pflush(a, 2, S_W, S_WS, V_T, 1)
    a.label("k1_done")
    a("s_endpgm")
    kernel_header(a, f"{NAME}_kernel")
    a("s_cmp_ge_u32 s2, 512")
    a("s_cbranch_scc1 k_done")
    preset(a); pstamp(a, "entry")
    jobs.common_entry(a)
    a("s_waitcnt lgkmcnt(0)")
    a("s_cmp_ge_u32 s2, 256")
    a("s_cbranch_scc1 k_ffn")
    attn.OUT_SC1 = True
    attn.IN_SC1 = False
    attn.WAIT_IN = None
    a(f"s_setprio {ENV('APRIO', '1')}")
    attn.attn_body(a, 2, None)
    a(f"s_lshl_b32 s50, s{attn.S_QB}, 3")
    signal(a, S_WS, 50, 8, S_W, attn.TMP, WS_FLAG + 256 * C_ATT, drain=False)
    pstamp(a, "attn:sig")
    pflush(a, 2, S_W, S_WS, attn.TMP, 0)
    a("s_branch k_done")
    a.label("k_ffn")
    preset(a); pstamp(a, "entry")
    a("s_sub_u32 s3, s2, 256")
    splitk.d_job(a, 3, a_sc1=False, wait=None, post_prio=ENV('DPRIO', '0'))

    def wait_attn(a):
        a(f"s_lshr_b32 s50, s{S_RB}, 1")
        a(f"s_lshl_b32 s50, s50, 2")
        a(f"s_and_b32 s51, s{S_CB}, 3")
        a(f"s_add_u32 s50, s50, s51")
        wait_count(a, S_WS, 50, 32, S_W, V_T, S_T, WS_FLAG + 256 * C_ATT)
    splitk.wo2_job(a, 3, wait=wait_attn)
    pflush(a, 2, S_W, S_WS, V_T, 0)
    a.label("k_done")
    a("s_endpgm")
    a.raw('.section .rodata,"a"')
    a.raw(".p2align 6")
    a.raw(kernel_desc("k1_kernel", 256))
    a.raw(".p2align 6")
    a.raw(kernel_desc(f"{NAME}_kernel", 256))
    return a.text()


if __name__ == "__main__":
    out = sys.argv[1] if len(sys.argv) > 1 else f"cdna_kernels/{NAME}.s"
    open(out, "w").write(build3() if ENV("TWO") == "y" else build2() if ENV("TWO") else build())
    print("wrote", out, os.path.getsize(out), "bytes")
```

```python
from asmlib import *
from layout import *
import os
DBG = os.environ.get('ATTN_DBG', '')
SPACING = os.environ.get('SPACING', '1') != '0'

V_LANE16 = 1
V_VOFF = 2
V_T0 = 3
QA, QB = 4, 8
V_IDX = 12
V_T1, V_T2, V_T3 = 13, 14, 15
V_LANE16H = 152
KB = [16, 20]
V0B = [24, 28]
V1B = [32, 36]
SA, SB = 40, 56
OA, OB_ = 72, 88
CA, CB = 104, 120
TMP = 136
NV_ATTN = 160

SLOT = 16384
LDS_ONES = 3 * SLOT
LDS_FLAG = LDS_ONES + 8192
LDS_ATTN = LDS_FLAG + 64
V_VA = [153, 154, 155]

S_WS = 4
S_HEAD = 6
S_QB = 7
S_W = 8
S_KSRD = 12
S_VSRD = 16
S_MASK = 20
S_T = 22
S_PASS = 32
S_QBASE = 34
S_OBASE = 36
S_KBASE = 38


def dma_chunk(a, c):
    slot = (c % 3) * SLOT
    a(f"s_add_u32 m0, s{S_T}, {slot}")
    if CHK:
        a(f"s_add_u32 s{S_T+3}, s{S_QB}, {c}")
        a(f"s_and_b32 s{S_T+3}, s{S_T+3}, 7")
        a(f"s_lshl_b32 s{S_T+3}, s{S_T+3}, 13")
        a(f"s_add_u32 s{S_T+3}, s{S_T+3}, s{S_T}")
    else:
        a(f"s_add_u32 s{S_T+3}, s{S_T}, {c * 8192}")
    a(f"buffer_load_dwordx4 v{V_LANE16}, s[{S_KSRD}:{S_KSRD+3}], s{S_T+3} offen{' sc1' if IN_SC1 else ''} lds")
    a(f"buffer_load_dwordx4 v{V_LANE16}, s[{S_KSRD}:{S_KSRD+3}], s{S_T+3} offen offset:1024{' sc1' if IN_SC1 else ''} lds")
    a(f"s_add_u32 m0, s{S_T}, {slot + 8192}")
    a("s_nop 0")
    a(f"buffer_load_dwordx4 v{V_LANE16}, s[{S_VSRD}:{S_VSRD+3}], s{S_T+3} offen{' sc1' if IN_SC1 else ''} lds")
    a(f"buffer_load_dwordx4 v{V_LANE16}, s[{S_VSRD}:{S_VSRD+3}], s{S_T+3} offen offset:1024{' sc1' if IN_SC1 else ''} lds")


def k_addr(t):
    c, i = t >> 3, t & 7
    return (c % 3) * SLOT + i * 1024


def ds_rd_k(a, dst, t):
    if 'nods' in DBG:
        return
    a(f"ds_read_b128 v[{dst}:{dst+3}], v{V_LANE16} offset:{k_addr(t)}")


def ds_rd_v(a, dst, t, half):
    if 'nods' in DBG:
        return
    c, i = t >> 3, t & 7
    a(f"ds_read_b128 v[{dst}:{dst+3}], v{V_VA[c % 3]} offset:{(2 * i + half) * 512}")


def qk(a, S, K, Q, C):
    if 'noqk' in DBG:
        return
    a(f"v_mfma_f32_32x32x16_bf16 v[{S}:{S+15}], v[{K}:{K+3}], v[{Q}:{Q+3}], v[{C}:{C+15}]")


def pv(a, O, V, P):
    if 'nopv' in DBG:
        return
    a(f"v_smfmac_f32_32x32x32_bf16 v[{O}:{O+15}], v[{V}:{V+3}], v[{P}:{P+7}], v{V_IDX}")


def exps(a, S, lo, hi):
    for r in range(lo, hi):
        a(f"v_exp_f32 v{S+r}, v{S+r}")


def main_loop(a):
    NT = 64
    ds_rd_k(a, KB[1], 0)
    ds_rd_v(a, V1B[0], 0, 1)
    ds_rd_k(a, KB[0], 1)
    ds_rd_v(a, V0B[0], 0, 0)
    a("s_waitcnt lgkmcnt(3)")
    qk(a, SA, KB[1], QA, CA)
    a("s_nop 7")
    a("s_nop 3")
    for t in range(NT):
        cur, prv = t & 1, (t - 1) & 1
        more = t + 1 < NT
        P1, P2 = (4, 7) if SPACING else (2, 5)
        exps(a, SA, 0, P1)
        if t > 0:
            pv(a, OB_, V1B[prv], SB + 8)
        n = 0
        if more:
            ds_rd_v(a, V1B[prv], t + 1, 1); n += 1
        exps(a, SA, P1, P2)
        qk(a, SB, KB[prv], QB, CB)
        if t + 2 < NT:
            ds_rd_k(a, KB[prv], t + 2); n += 1
        exps(a, SA, P2, 10)
        if 'nowait' not in DBG:
            a(f"s_waitcnt lgkmcnt({n})")
        pv(a, OA, V0B[cur], SA)
        if more:
            ds_rd_v(a, V0B[prv], t + 1, 0)
        exps(a, SA, 10, 16)
        exps(a, SB, 0, P1)
        pv(a, OA, V1B[cur], SA + 8)
        exps(a, SB, P1, P2)
        if more:
            qk(a, SA, KB[cur], QA, CA)
        bnd = (t & 7) == 4 and 'nobar' not in DBG and (t >> 3) + 1 < 8
        if bnd:
            a("s_waitcnt vmcnt(0)")
            a("s_barrier")
            if CHK and (t >> 3) == 0:
                lab = a.uid("ca")
                a.label(lab)
                a(f"v_cmp_le_u32 vcc, 4, v{V_PROBE}")
                a("s_and_b32 s60, vcc_lo, 0xff")
                a("s_cmp_eq_u32 s60, 0xff")
                a(f"s_cbranch_scc1 {lab}_o")
                a("s_mov_b64 exec, 0xff")
                a(f"global_load_dword v{V_PROBE}, v{V_PROBE+1}, s[{S_WS}:{S_WS+1}] sc1")
                a("s_mov_b64 exec, -1")
                a("s_sub_u32 s61, s61, 1")
                a("s_waitcnt vmcnt(0)")
                a("s_cmp_lg_u32 s61, 0")
                a(f"s_cbranch_scc1 {lab}")
                a.label(f"{lab}_o")
        exps(a, SB, P2, 10)
        pv(a, OB_, V0B[cur], SB)
        if bnd and (t >> 3) + 2 < 8:
            dma_chunk(a, (t >> 3) + 2)
        exps(a, SB, 10, 16)
    a("s_nop 1")
    pv(a, OB_, V1B[(NT - 1) & 1], SB + 8)


STAMP = False
IN_SC1 = False
CHK = None
V_PROBE = 157
WAIT_IN = None
OUT_SC1 = False
TWICE = False
S_ST = 40

def stamp(a, i):
    if STAMP:
        a(f"s_memtime s[{S_ST+2*i}:{S_ST+2*i+1}]")
        if i in (1, 2):
            a(f"s_memrealtime s[{S_ST+8+2*(i-1)}:{S_ST+8+2*(i-1)+1}]")


def attn_body(a, idreg, done_label):
    stamp(a, 0)
    a(f"s_and_b32 s{S_HEAD}, s{idreg}, 7")
    a(f"s_lshl_b32 s{S_HEAD}, s{S_HEAD}, 2")
    a(f"s_lshr_b32 s{S_T}, s{idreg}, 6")
    a(f"s_add_u32 s{S_HEAD}, s{S_HEAD}, s{S_T}")
    a(f"s_lshr_b32 s{S_QB}, s{idreg}, 3")
    a(f"s_and_b32 s{S_QB}, s{S_QB}, 7")
    a(f"v_lshlrev_b32 v{V_LANE16}, 4, v0")
    a(f"v_lshrrev_b32 v{V_T1}, 5, v0")
    a(f"v_lshlrev_b32 v{V_T1}, 8, v{V_T1}")
    a(f"v_and_b32 v{V_T2}, 15, v0")
    a(f"v_lshlrev_b32 v{V_T2}, 4, v{V_T2}")
    a(f"v_add_u32 v{V_VOFF}, v{V_T1}, v{V_T2}")
    a(f"v_and_b32 v{V_T1}, 16, v0")
    a(f"v_cmp_eq_u32 vcc, 0, v{V_T1}")
    for sl in range(3):
        a(f"v_mov_b32 v{V_T1}, {LDS_ONES}")
        a(f"v_mov_b32 v{V_T2}, {sl * SLOT + 8192}")
        a(f"v_cndmask_b32 v{V_T1}, v{V_T1}, v{V_T2}, vcc")
        a(f"v_add_u32 v{V_VA[sl]}, v{V_T1}, v{V_VOFF}")
    a(f"v_mov_b32 v{V_IDX}, 0xdddddddd")
    a(f"s_mov_b32 s{S_MASK}, 0x0000ffff")
    a(f"s_mov_b32 s{S_MASK+1}, 0x0000ffff")
    a(f"s_lshl_b32 s{S_T+4}, s{S_HEAD}, 16")
    a("s_waitcnt lgkmcnt(0)")
    a(f"s_add_u32 s{S_KBASE}, s{S_WS}, s{S_T+4}")
    a(f"s_addc_u32 s{S_KBASE+1}, s{S_WS+1}, 0")
    a(f"s_add_u32 s{S_QBASE}, s{S_KBASE}, {WS_QF}")
    a(f"s_addc_u32 s{S_QBASE+1}, s{S_KBASE+1}, 0")
    a(f"s_add_u32 s{S_T+5}, s{S_KBASE}, {WS_VF}")
    a(f"s_addc_u32 s{S_T+6}, s{S_KBASE+1}, 0")
    make_srd(a, S_VSRD, S_T + 5, S_T + 6, 65536)
    a(f"s_add_u32 s{S_KBASE}, s{S_KBASE}, {WS_KF}")
    a(f"s_addc_u32 s{S_KBASE+1}, s{S_KBASE+1}, 0")
    make_srd(a, S_KSRD, S_KBASE, S_KBASE + 1, 65536)
    a(f"s_lshl_b32 s{S_T}, s{S_W}, 11")
    a(f"s_lshr_b32 s{S_T+4}, s{S_HEAD}, 1")
    a(f"s_lshl_b32 s{S_T+4}, s{S_T+4}, 13")
    a(f"s_and_b32 s{S_T+5}, s{S_HEAD}, 1")
    a(f"s_lshl_b32 s{S_T+5}, s{S_T+5}, 10")
    a(f"s_add_u32 s{S_T+4}, s{S_T+4}, s{S_T+5}")
    a(f"s_add_u32 s{S_T+4}, s{S_T+4}, {WS_OB}")
    a(f"s_add_u32 s{S_OBASE}, s{S_WS}, s{S_T+4}")
    a(f"s_addc_u32 s{S_OBASE+1}, s{S_WS+1}, 0")
    a(f"s_lshl_b32 s{S_T+4}, s{S_QB}, 13")
    a(f"s_lshl_b32 s{S_T+5}, s{S_W}, 11")
    a(f"s_add_u32 s{S_T+4}, s{S_T+4}, s{S_T+5}")
    a(f"v_add_u32 v{V_T1}, s{S_T+4}, v{V_LANE16}")
    for r in range(32):
        a(f"v_mov_b32 v{CA+r}, 0")
    a(f"s_mov_b32 s{S_PASS}, 0")
    a(f"v_and_b32 v{V_T1}, 11, v0")
    a(f"v_cmp_eq_u32 vcc, 0, v{V_T1}")
    a(f"v_mov_b32 v{V_T2}, 0x3f803f80")
    a("s_nop 1")
    a(f"v_cndmask_b32 v{TMP}, 0, v{V_T2}, vcc")
    for r in range(1, 4):
        a(f"v_mov_b32 v{TMP+r}, v{TMP}")
    a(f"v_add_u32 v{V_T1}, s{S_T}, v{V_LANE16}")
    for i in range(2):
        a(f"ds_write_b128 v{V_T1}, v[{TMP}:{TMP+3}] offset:{LDS_ONES + i * 1024}")
    a(f"v_add_u32 v{V_T1}, s{S_T+4}, v{V_LANE16}")
    sc = ' sc1' if IN_SC1 else ''
    if CHK:
        CW = 62
        a(f"s_lshr_b32 s{CW}, s{S_HEAD}, 2")
        a(f"s_lshl_b32 s{CW}, s{CW}, 4")
        a(f"s_and_b32 s61, s{S_HEAD}, 1")
        a(f"s_add_u32 s{CW}, s{CW}, s61")

        a(f"v_lshlrev_b32 v{V_PROBE+1}, 1, v0")
        a(f"v_add_u32 v{V_PROBE+1}, s{CW}, v{V_PROBE+1}")
        a(f"v_lshlrev_b32 v{V_PROBE+1}, 8, v{V_PROBE+1}")
        a(f"v_add_u32 v{V_PROBE+1}, {CHK['base']}, v{V_PROBE+1}")
        a("s_mov_b32 s61, 200000")

        def wave_wait(i, first):
            lab = a.uid("cw")
            a(f"s_add_u32 s60, s{S_QB}, {i}")
            a("s_and_b32 s60, s60, 7")
            if not first:
                a("s_lshr_b32 s59, s63, s60")
                a("s_bitcmp1_b32 s59, 0")
                a(f"s_cbranch_scc1 {lab}_o")
            a.label(lab)
            a("s_mov_b64 exec, 0xff")
            a(f"global_load_dword v{V_PROBE}, v{V_PROBE+1}, s[{S_WS}:{S_WS+1}] sc1")
            a("s_mov_b64 exec, -1")
            a("s_waitcnt vmcnt(0)")
            a(f"v_cmp_le_u32 vcc, 4, v{V_PROBE}")
            a("s_sub_u32 s61, s61, 1")
            a("s_and_b32 s63, vcc_lo, 0xff")
            a("s_cmp_eq_u32 s61, 0")
            a(f"s_cbranch_scc1 {lab}_o")
            a("s_lshr_b32 s59, s63, s60")
            a("s_bitcmp1_b32 s59, 0")
            a(f"s_cbranch_scc1 {lab}_o")
            a("s_sleep 2")
            a(f"s_branch {lab}")
            a.label(f"{lab}_o")
        wave_wait(0, True)
        pstamp(a, "qkv:flag")
    elif WAIT_IN:
        WAIT_IN(a)
    a(f"global_load_dwordx4 v[{QA}:{QA+3}], v{V_T1}, s[{S_QBASE}:{S_QBASE+1}]{sc}")
    a(f"global_load_dwordx4 v[{QB}:{QB+3}], v{V_T1}, s[{S_QBASE}:{S_QBASE+1}] offset:1024{sc}")
    dma_chunk(a, 0)
    if CHK:
        wave_wait(1, False)
    dma_chunk(a, 1)
    if CHK:
        a("s_mov_b64 exec, 0xff")
        a(f"global_load_dword v{V_PROBE}, v{V_PROBE+1}, s[{S_WS}:{S_WS+1}] sc1")
        a("s_mov_b64 exec, -1")
        a("s_waitcnt vmcnt(5)")
    a.label("attn_pass")
    for r in range(32):
        a(f"v_mov_b32 v{OA+r}, 0")
    a(f"s_waitcnt vmcnt({5 if CHK else 4}) lgkmcnt(0)")
    a("s_barrier")
    stamp(a, 1)
    pstamp(a, 'attn:first')
    main_loop(a)
    stamp(a, 2)
    pstamp(a, 'attn:loopend')
    if TWICE:
        a(f"s_cmp_lg_u32 s{S_PASS}, 0")
        a("s_cbranch_scc1 attn_tw")
        a(f"s_mov_b32 s{S_PASS}, 1")
        a("s_waitcnt lgkmcnt(0)")
        a(f"s_mov_b64 s[{S_ST}:{S_ST+1}], s[{S_ST+4}:{S_ST+5}]")
        a("s_barrier")
        dma_chunk(a, 0)
        dma_chunk(a, 1)
        a("s_branch attn_pass")
        a.label("attn_tw")
    a("s_nop 7")
    a("s_nop 7")
    a(f"v_mov_b32 v{TMP+12}, 0")
    for O in (OA, OB_):
        for r in range(8):
            a(f"v_fma_f32 v{TMP+12}, v{O+r}, 0, v{TMP+12}")
    a(f"s_mov_b32 s{S_T+4}, 0x21800000")
    a(f"s_mov_b32 s{S_T+5}, 0x71800000")
    a(f"v_cmp_eq_f32 vcc, 0, v{TMP+12}")
    a(f"v_cmp_ge_f32 s[{S_T+6}:{S_T+7}], v{OA+8}, s{S_T+4}")
    a(f"s_and_b64 vcc, vcc, s[{S_T+6}:{S_T+7}]")
    a(f"v_cmp_le_f32 s[{S_T+6}:{S_T+7}], v{OA+8}, s{S_T+5}")
    a(f"s_and_b64 vcc, vcc, s[{S_T+6}:{S_T+7}]")
    a(f"v_cmp_ge_f32 s[{S_T+6}:{S_T+7}], v{OB_+8}, s{S_T+4}")
    a(f"s_and_b64 vcc, vcc, s[{S_T+6}:{S_T+7}]")
    a(f"v_cmp_le_f32 s[{S_T+6}:{S_T+7}], v{OB_+8}, s{S_T+5}")
    a(f"s_and_b64 vcc, vcc, s[{S_T+6}:{S_T+7}]")
    a(f"s_cmp_eq_u64 vcc, -1")
    a(f"s_cselect_b32 s{S_T+4}, 0, 1")
    a(f"s_lshl_b32 s{S_T+5}, s{S_W}, 2")
    a(f"s_add_u32 s{S_T+5}, s{S_T+5}, {LDS_FLAG}")
    a(f"v_mov_b32 v{TMP+12}, s{S_T+5}")
    a(f"v_mov_b32 v{TMP+13}, s{S_T+4}")
    a(f"ds_write_b32 v{TMP+12}, v{TMP+13}")
    a(f"s_lshl_b32 s{S_T+4}, s{S_QB}, 1")
    a(f"s_lshr_b32 s{S_T+5}, s{S_W}, 1")
    a(f"s_add_u32 s{S_T+4}, s{S_T+4}, s{S_T+5}")
    a(f"s_lshl_b32 s{S_T+4}, s{S_T+4}, 17")
    a(f"s_and_b32 s{S_T+5}, s{S_W}, 1")
    a(f"s_lshl_b32 s{S_T+5}, s{S_T+5}, 12")
    a(f"s_add_u32 s{S_T+4}, s{S_T+4}, s{S_T+5}")
    a(f"v_add_u32 v{V_T1}, s{S_T+4}, v{V_LANE16}")
    a(f"v_add_u32 v{V_T2}, 2048, v{V_T1}")
    for O, T, A in ((OA, TMP, V_T1), (OB_, TMP + 4, V_T2)):
        a(f"v_rcp_f32 v{V_T3}, v{O+8}")
        a("s_nop 0")
        for r in range(8):
            a(f"v_mul_f32 v{O+r}, v{O+r}, v{V_T3}")
        for r in range(4):
            a(f"v_cvt_pk_bf16_f32 v{T+r}, v{O+2*r}, v{O+2*r+1}")
        a(f"global_store_dwordx4 v{A}, v[{T}:{T+3}], s[{S_OBASE}:{S_OBASE+1}]{' sc1' if OUT_SC1 else ''}")
    a("s_waitcnt vmcnt(0) lgkmcnt(0)")
    a("s_barrier")
    a(f"s_cmp_lg_u32 s{S_PASS}, 0")
    a("s_cbranch_scc1 attn_fin")
    a(f"v_mov_b32 v{TMP}, {LDS_FLAG}")
    a(f"ds_read_b128 v[{TMP+4}:{TMP+7}], v{TMP}")
    a("s_waitcnt lgkmcnt(0)")
    a(f"v_or_b32 v{TMP+4}, v{TMP+4}, v{TMP+5}")
    a(f"v_or3_b32 v{TMP+4}, v{TMP+4}, v{TMP+6}, v{TMP+7}")
    a("s_nop 1")
    a(f"v_readfirstlane_b32 s{S_T+4}, v{TMP+4}")
    a("s_nop 3")
    a(f"s_cmp_eq_u32 s{S_T+4}, 0")
    a("s_cbranch_scc1 attn_fin")
    a(f"s_mov_b32 s{S_PASS}, 1")
    a(f"v_mov_b32 v{TMP+8}, 0xff800000")
    a(f"v_mov_b32 v{TMP+9}, 0xff800000")
    a(f"v_mov_b32 v{V_T1}, v{V_LANE16}")
    a(f"s_mov_b32 s{S_T+4}, 64")
    a.label("attn_maxloop")
    a(f"global_load_dwordx4 v[{KB[0]}:{KB[0]+3}], v{V_T1}, s[{S_KBASE}:{S_KBASE+1}]{' sc1' if IN_SC1 else ''}")
    a(f"v_add_u32 v{V_T1}, 1024, v{V_T1}")
    a("s_waitcnt vmcnt(0)")
    a(f"v_mfma_f32_32x32x16_bf16 v[{SA}:{SA+15}], v[{KB[0]}:{KB[0]+3}], v[{QA}:{QA+3}], 0")
    a(f"v_mfma_f32_32x32x16_bf16 v[{SB}:{SB+15}], v[{KB[0]}:{KB[0]+3}], v[{QB}:{QB+3}], 0")
    a("s_nop 15")
    a("s_nop 7")
    for S, M in ((SA, TMP + 8), (SB, TMP + 9)):
        for r in range(0, 16, 2):
            a(f"v_max3_f32 v{M}, v{S+r}, v{S+r+1}, v{M}")
    a(f"s_sub_u32 s{S_T+4}, s{S_T+4}, 1")
    a(f"s_cmp_lg_u32 s{S_T+4}, 0")
    a("s_cbranch_scc1 attn_maxloop")
    for M in (TMP + 8, TMP + 9):
        a(f"v_mov_b32 v{TMP+10}, v{M}")
        a("s_nop 1")
        a(f"v_permlane32_swap_b32 v{TMP+10}, v{M}")
        a("s_nop 1")
        a(f"v_max_f32 v{M}, v{TMP+10}, v{M}")
    for r in range(16):
        a(f"v_sub_f32 v{CA+r}, 0, v{TMP+8}")
        a(f"v_sub_f32 v{CB+r}, 0, v{TMP+9}")
    a("s_barrier")
    dma_chunk(a, 0)
    dma_chunk(a, 1)
    a("s_waitcnt vmcnt(4)")
    a("s_branch attn_pass")
    a.label("attn_fin")
    if STAMP:
        stamp(a, 3)
        a("s_waitcnt lgkmcnt(0)")
        a(f"s_load_dwordx2 s[60:61], s[0:1], {KA_DBG}")
        a(f"s_lshl_b32 s62, s{idreg}, 2")
        a(f"s_add_u32 s62, s62, s{S_W}")
        a(f"s_lshl_b32 s62, s62, 4")
        a(f"s_sub_u32 s{S_ST+2}, s{S_ST+2}, s{S_ST}")
        a(f"s_sub_u32 s{S_ST+4}, s{S_ST+4}, s{S_ST}")
        a(f"s_sub_u32 s{S_ST+6}, s{S_ST+6}, s{S_ST}")
        a(f"s_sub_u32 s{S_ST}, s{S_ST+10}, s{S_ST+8}")
        a(f"v_mov_b32 v{TMP}, s{S_ST}")
        a(f"v_mov_b32 v{TMP+1}, s{S_ST+2}")
        a(f"v_mov_b32 v{TMP+2}, s{S_ST+4}")
        a(f"v_mov_b32 v{TMP+3}, s{S_ST+6}")
        a(f"v_mov_b32 v{TMP+4}, s62")
        a("s_waitcnt lgkmcnt(0)")
        a(f"global_store_dwordx4 v{TMP+4}, v[{TMP}:{TMP+3}], s[60:61]")
    pstamp(a, 'attn:end')
    if done_label:
        a(f"s_branch {done_label}")
```

```python
import sys, os
sys.path.insert(0, os.path.dirname(os.path.abspath(__file__)))
from asmlib import *
from layout import *
import attn, jobs, splitk
from sync import *
from gemm import S_W, S_WS, S_T, S_RB, S_CB, V_T, SRD_A

NAME = "gated_mix__mha_block__glu_gated_geglu__prompt"
HEADER = open(os.path.join(os.path.dirname(os.path.abspath(__file__)), "header.txt")).read()
_DEFAULTS = {"FAST": "1", "FW": "gu", "LATEPF": "1", "CHK": "1"}


def ENV(k, d=None):
    return os.environ.get(k, _DEFAULTS.get(k, d))
C_QKV, C_G, C_ATT, C_TWIN = 0, 128, 192, 256


def tlb_warm(a):
    a("s_load_dwordx16 s[32:47], s[0:1], 0")
    a("s_load_dwordx2 s[50:51], s[0:1], 64")
    a("v_mov_b32 v250, 0")
    a(f"v_lshlrev_b32 v251, 21, v0")
    a(f"v_cmp_gt_u32 vcc, 10, v0")
    a("s_and_saveexec_b64 s[52:53], vcc")
    a(f"global_load_dword v252, v251, s[{S_WS}:{S_WS+1}]")
    a("s_mov_b64 exec, s[52:53]")
    a("s_waitcnt lgkmcnt(0)")
    a("s_mov_b64 exec, 1")
    for i in (0, 1, 2, 4, 5, 6, 7):
        a(f"global_load_dword v253, v250, s[{32+2*i}:{33+2*i}]")
    a("global_load_dword v253, v250, s[50:51]")
    a("s_mov_b64 exec, -1")


def code_touch(a, idx_sreg, nidx, start_label, nbytes, vdst, vtmp, stmp):
    lines = (nbytes + 127) // 128
    per = (lines + nidx - 1) // nidx
    assert per <= 64
    lab = a.uid("ct")
    a(f"s_getpc_b64 s[{stmp}:{stmp+1}]")
    a.label(lab)
    a(f"s_sub_u32 s{stmp}, s{stmp}, {lab}-{start_label}")
    a(f"s_subb_u32 s{stmp+1}, s{stmp+1}, 0")
    a(f"s_mul_i32 s{stmp+2}, s{idx_sreg}, {per * 128}")
    a(f"v_lshlrev_b32 v{vtmp}, 7, v0")
    a(f"v_add_u32 v{vtmp}, s{stmp+2}, v{vtmp}")
    a(f"v_min_u32 v{vtmp}, {(lines - 1) * 128}, v{vtmp}")
    a(f"s_mov_b64 exec, {hex((1 << per) - 1)}")
    a(f"global_load_dword v{vdst}, v{vtmp}, s[{stmp}:{stmp+1}]")
    a("s_mov_b64 exec, -1")


def build():
    a = Asm()
    a.raw(HEADER.rstrip("\n"))
    LDS = 81920
    if ENV("ASLIST"):
        a.raw(f"; @launch kernel={NAME}_kernel grid=(512,1,1) block=(256,1,1) lds={LDS}")
    else:
        a.raw(f"; @launch grid=(512,1,1) block=(256,1,1) lds={LDS}")
    a.raw('.amdgcn_target "amdgcn-amd-amdhsa--gfx950"')
    a.raw(".text")
    kernel_header(a, f"{NAME}_kernel")
    a("s_cmp_ge_u32 s2, 512")
    a("s_cbranch_scc1 k_done")
    preset(a); pstamp(a, "entry")
    jobs.common_entry(a)
    a("s_waitcnt lgkmcnt(0)")
    pstamp(a, "karg")
    if ENV("TLBW"):
        tlb_warm(a)
    a("s_cmp_ge_u32 s2, 256")
    a("s_cbranch_scc1 k_ffn")
    if ENV("NOA"):
        a("s_branch k_done")
    a("s_setprio 2")

    def pre_qkv(a):
        a("s_lshl_b32 s52, s2, 2")
        a(f"s_add_u32 s52, s52, s{S_W}")
        nw = 1024 if ENV("APF") == "full" else 2048
        prefetch1(a, KA_WQKV, 512 * 3072, 52, nw, 178, 177, 54, 60)
        prefetch1(a, KA_AX, 2048 * 1024, 52, nw, 176, 177, 54, 60)
        if ENV("APF") != "full":
            a("s_waitcnt vmcnt(0)")
        pstamp(a, "pf1")
        init_probe(a, jobs.S_DBG, 179)

    def post_qkv(a):
        wait_init(a, jobs.S_DBG, S_W, V_T, S_T, probe=179)
        if ENV("TWIN") == "1":
            signal(a, S_WS, 2, 1, S_W, V_T, WS_FLAG + 256 * C_TWIN, drain=False)
    def pre_qkv0(a):
        init_probe(a, jobs.S_DBG, 179)
        return 1
    jobs.qkv_job(a, 2, sc1=True, pre=pre_qkv if ENV("APF") else pre_qkv0, post_loop=post_qkv, ltouch=bool(ENV("QLT")))
    if ENV("CHK"):
        a(f"s_lshl_b32 s50, s{S_CB}, 3")
        a(f"s_lshr_b32 s51, s{S_RB}, 2")
        a("s_add_u32 s50, s50, s51")
        a("s_lshl_b32 s50, s50, 1")
        signal(a, S_WS, 50, 2, S_W, V_T, WS_FLAG + 256 * C_QKV)
    else:
        a(f"s_lshl_b32 s50, s{S_CB}, 4")
        signal(a, S_WS, 50, 16, S_W, V_T, WS_FLAG + 256 * C_QKV)
    if ENV("TWIN") == "2":
        signal(a, S_WS, 2, 1, S_W, V_T, WS_FLAG + 256 * C_TWIN, drain=False)
    pstamp(a, "qkv:sig")
    if ENV("NOF"):
        pflush(a, 2, S_W, S_WS, attn.TMP, 0)
        a("s_branch k_done")

    def wait_qkv(a):
        a(f"s_lshr_b32 s50, s{attn.S_HEAD}, 2")
        a(f"s_lshl_b32 s50, s50, 4")
        a(f"s_add_u32 s50, s50, s{attn.S_QB}")
        (wait_count_fast if ENV('FAST') else wait_count)(a, S_WS, 50, 32, S_W, attn.TMP, 60, WS_FLAG + 256 * C_QKV)
        pstamp(a, "qkv:flag")
    attn.OUT_SC1 = True
    attn.IN_SC1 = True
    attn.WAIT_IN = wait_qkv
    attn.CHK = dict(base=WS_FLAG + 256 * C_QKV) if ENV("CHK") else None
    a(f"s_setprio {ENV('APRIO', '1')}")
    attn.attn_body(a, 2, None)
    a(f"s_lshl_b32 s50, s{attn.S_QB}, 3")
    signal(a, S_WS, 50, 8, S_W, attn.TMP, WS_FLAG + 256 * C_ATT, drain=False)
    pstamp(a, "attn:sig")
    pflush(a, 2, S_W, S_WS, attn.TMP, 0)
    a("s_branch k_done")
    a.label("k_ffn")
    if ENV("NOF"):
        a("s_branch k_done")
    preset(a); pstamp(a, "entry")
    a("s_sub_u32 s3, s2, 256")
    if ENV("CTOUCH"):
        a("s_lshr_b32 s53, s3, 3")
        a("s_lshl_b32 s53, s53, 2")
        a(f"s_add_u32 s53, s53, s{S_W}")
        code_touch(a, 53, 128, f"{NAME}_kernel", int(ENV("CTOUCH")), 250, 251, 54)
    a(f"s_or_b32 s50, s3, s{S_W}")
    a("s_cmp_lg_u32 s50, 0")
    a("s_cbranch_scc1 k_noinit")
    a("s_waitcnt lgkmcnt(0)")
    init_counters(a, S_WS, jobs.S_DBG, V_T, WS_FLAG)
    a.label("k_noinit")
    a("s_lshl_b32 s52, s3, 2")
    a(f"s_add_u32 s52, s52, s{S_W}")
    def f_weights_pf(a):
        m = ENV("FW", "gudo")
        if "g" in m:
            prefetch1(a, KA_WG, 512 * 2752, 52, 1024, 244, 241, 54, 60)
        if "u" in m:
            prefetch1(a, KA_WU, 512 * 2752, 52, 1024, 245, 241, 54, 60)
        if "d" in m:
            prefetch1(a, KA_WD, 1376 * 1024, 52, 1024, 246, 241, 54, 60)
        if "o" in m:
            prefetch1(a, KA_WO, 512 * 1024, 52, 1024, 247, 241, 54, 60)

    def late_pf(a):
        prefetch1(a, KA_WD, 1376 * 1024, 52, 1024, 246, 241, 54, 60)
        prefetch1(a, KA_WO, 512 * 1024, 52, 1024, 247, 241, 54, 60)
    if not ENV("NOPF"):
        if ENV("APF") == "full":
            pass
        elif ENV("APF"):
            a("s_add_u32 s53, s52, 1024")
            prefetch1(a, KA_AX, 2048 * 1024, 53, 2048, 244, 241, 54, 60)
            prefetch1(a, KA_WQKV, 512 * 3072, 53, 2048, 245, 241, 54, 60)
        elif not ENV("NOPF1"):
            prefetch1(a, KA_WQKV, 512 * 3072, 52, 1024, 245, 241, 54, 60)
            prefetch1(a, KA_AX, 2048 * 1024, 52, 1024, 244, 241, 54, 60)
        a("s_waitcnt vmcnt(0)")
        pstamp(a, "pf1")
        if ENV("TOUCH"):
            jobs.qkv_touch(a, 3)
        if ENV("WSPF"):
            prefetch_ws(a, S_WS, WS_QF, 0x600000, 52, 1024, 243, 241, 54, 60)
        if not ENV("FLATE"):
            f_weights_pf(a)
        if ENV("WSPF") == "2":
            prefetch_ws(a, S_WS, WS_H, 16 * 43 * 8192, 52, 1024, 242, 241, 54, 60)
    if ENV("LIGHT"):
        light_prefetch(a, [(KA_WG, 512 * 2752), (KA_WU, 512 * 2752), (KA_WD, 1376 * 1024), (KA_WO, 512 * 1024)], 3, 256, S_W, 244, 241, 54, 60, lanes=int(ENV("LIGHT")))
    wait_init(a, jobs.S_DBG, S_W, V_T, S_T)
    if ENV("HOLD"):
        jobs.decode_qkv(a, 3)
        a(f"s_lshl_b32 s50, s{S_CB}, 4")
        a(f"s_and_b32 s51, s{S_RB}, 7")
        a(f"s_add_u32 s50, s50, s51")
        a(f"s_add_u32 s50, s50, 8")
        wait_count(a, S_WS, 50, int(ENV("HOLDN", "32")), S_W, V_T, S_T, WS_FLAG + 256 * C_QKV)
        pstamp(a, "hold")
        if ENV("FLATE"):
            f_weights_pf(a)
    if ENV("TWIN"):
        wait_count(a, S_WS, 3, 1, S_W, V_T, S_T, WS_FLAG + 256 * C_TWIN)
        pstamp(a, "twin")
    a("s_setprio 3")
    jobs.g_job(a, 3, sc1=True, epi_prio=ENV('EPRIO', '2'), loop_prio=ENV('FPRIO', '0'), post_loop=late_pf if ENV("LATEPF") else None, ltouch=bool(ENV("GLT")))
    a(f"s_setprio {ENV('FPRIO', '0')}")
    a(f"s_lshl_b32 s50, s{S_RB}, 2")
    signal(a, S_WS, 50, 4, S_W, V_T, WS_FLAG + 256 * C_G)
    pstamp(a, "sig")
    if ENV("NOA"):
        pflush(a, 2, S_W, S_WS, V_T, 0)
        a("s_branch k_done")

    def wait_g(a):
        a(f"s_lshr_b32 s50, s{S_RB}, 1")
        a(f"s_lshl_b32 s50, s50, 2")
        a(f"s_and_b32 s51, s{S_CB}, 3")
        a(f"s_add_u32 s50, s50, s51")
        wait_count(a, S_WS, 50, 16, S_W, V_T, S_T, WS_FLAG + 256 * C_G, sleep=int(ENV('GSLEEP', '4')))
    splitk.d_job(a, 3, a_sc1=True, wait=wait_g, post_prio=ENV('DPRIO', '0'), loop_prio=ENV('DLPRIO'))

    def wait_attn(a):
        a(f"s_lshr_b32 s50, s{S_RB}, 1")
        a(f"s_lshl_b32 s50, s50, 2")
        a(f"s_and_b32 s51, s{S_CB}, 3")
        a(f"s_add_u32 s50, s50, s51")
        (wait_count_fast if ENV('FAST') else wait_count)(a, S_WS, 50, 32, S_W, V_T, S_T, WS_FLAG + 256 * C_ATT)
    splitk.wo2_job(a, 3, wait=wait_attn)
    pflush(a, 2, S_W, S_WS, V_T, 0)
    a.label("k_done")
    a("s_endpgm")
    a.label("k_code_end")
    a.raw('.section .rodata,"a"')
    a.raw(".p2align 6")
    a.raw(kernel_desc(f"{NAME}_kernel", 256))
    return a.text()


def build2():
    a = Asm()
    a.raw(HEADER.rstrip("\\n"))
    LDS = 81920
    a.raw(f"; @launch kernel=k1_kernel grid=(256,1,1) block=(256,1,1) lds={LDS}")
    a.raw(f"; @launch kernel={NAME}_kernel grid=(512,1,1) block=(256,1,1) lds={LDS}")
    a.raw('.amdgcn_target "amdgcn-amd-amdhsa--gfx950"')
    a.raw(".text")
    kernel_header(a, "k1_kernel")
    a("s_cmp_ge_u32 s2, 256")
    a("s_cbranch_scc1 k1_done")
    preset(a); pstamp(a, "entry")
    jobs.common_entry(a)
    a("s_waitcnt lgkmcnt(0)")

    def pre_qkv(a):
        a("s_lshl_b32 s52, s2, 2")
        a(f"s_add_u32 s52, s52, s{S_W}")
        prefetch1(a, KA_WQKV, 512 * 3072, 52, 1024, 178, 177, 54, 60)
        prefetch1(a, KA_AX, 2048 * 1024, 52, 1024, 176, 177, 54, 60)

    def post_qkv(a):
        prefetch1(a, KA_WG, 512 * 2752, 52, 1024, 180, 177, 54, 60)
        prefetch1(a, KA_WU, 512 * 2752, 52, 1024, 181, 177, 54, 60)
        prefetch1(a, KA_WD, 1376 * 1024, 52, 1024, 182, 177, 54, 60)
        prefetch1(a, KA_WO, 512 * 1024, 52, 1024, 183, 177, 54, 60)
    jobs.qkv_job(a, 2, sc1=False, pre=pre_qkv, post_loop=post_qkv)
    a(f"s_or_b32 s50, s2, s{S_W}")
    a("s_cmp_lg_u32 s50, 0")
    a("s_cbranch_scc1 k1_noinit")
    a(f"v_lshlrev_b32 v{V_T}, 8, v0")
    a(f"v_add_u32 v{V_T}, {WS_FLAG}, v{V_T}")
    a(f"v_mov_b32 v{V_T+1}, 0")
    for i in range(4):
        a(f"global_store_dword v{V_T}, v{V_T+1}, s[{S_WS}:{S_WS+1}]")
        if i < 3:
            a(f"v_add_u32 v{V_T}, 16384, v{V_T}")
    a.label("k1_noinit")
    pflush(a, 2, S_W, S_WS, V_T, 1)
    a.label("k1_done")
    a("s_endpgm")
    kernel_header(a, f"{NAME}_kernel")
    a("s_cmp_ge_u32 s2, 512")
    a("s_cbranch_scc1 k_done")
    preset(a); pstamp(a, "entry")
    jobs.common_entry(a)
    a("s_waitcnt lgkmcnt(0)")
    a("s_cmp_ge_u32 s2, 256")
    a("s_cbranch_scc1 k_ffn")
    attn.OUT_SC1 = True
    attn.IN_SC1 = False
    attn.WAIT_IN = None
    attn.CHK = None
    a(f"s_setprio {ENV('APRIO', '1')}")
    attn.attn_body(a, 2, None)
    a(f"s_lshl_b32 s50, s{attn.S_QB}, 3")
    signal(a, S_WS, 50, 8, S_W, attn.TMP, WS_FLAG + 256 * C_ATT, drain=False)
    pstamp(a, "attn:sig")
    pflush(a, 2, S_W, S_WS, attn.TMP, 0)
    a("s_branch k_done")
    a.label("k_ffn")
    preset(a); pstamp(a, "entry")
    a("s_sub_u32 s3, s2, 256")
    a("s_setprio 3")
    jobs.g_job(a, 3, sc1=True, epi_prio=2, loop_prio=ENV('FPRIO', '0'))
    a(f"s_setprio {ENV('FPRIO', '0')}")
    a(f"s_lshl_b32 s50, s{S_RB}, 2")
    signal(a, S_WS, 50, 4, S_W, V_T, WS_FLAG + 256 * C_G)
    pstamp(a, "sig")

    def wait_g(a):
        a(f"s_lshr_b32 s50, s{S_RB}, 1")
        a(f"s_lshl_b32 s50, s50, 2")
        a(f"s_and_b32 s51, s{S_CB}, 3")
        a(f"s_add_u32 s50, s50, s51")
        wait_count(a, S_WS, 50, 16, S_W, V_T, S_T, WS_FLAG + 256 * C_G)
    splitk.d_job(a, 3, a_sc1=True, wait=wait_g, post_prio=ENV('DPRIO', '0'))

    def wait_attn(a):
        a(f"s_lshr_b32 s50, s{S_RB}, 1")
        a(f"s_lshl_b32 s50, s50, 2")
        a(f"s_and_b32 s51, s{S_CB}, 3")
        a(f"s_add_u32 s50, s50, s51")
        wait_count(a, S_WS, 50, 32, S_W, V_T, S_T, WS_FLAG + 256 * C_ATT)
    splitk.wo2_job(a, 3, wait=wait_attn)
    pflush(a, 2, S_W, S_WS, V_T, 0)
    a.label("k_done")
    a("s_endpgm")
    a.raw('.section .rodata,"a"')
    a.raw(".p2align 6")
    a.raw(kernel_desc("k1_kernel", 192))
    a.raw(".p2align 6")
    a.raw(kernel_desc(f"{NAME}_kernel", 256))
    return a.text()


def build3():
    a = Asm()
    a.raw(HEADER.rstrip("\\n"))
    LDS = 81920
    a.raw(f"; @launch kernel=k1_kernel grid=(512,1,1) block=(256,1,1) lds={LDS}")
    a.raw(f"; @launch kernel={NAME}_kernel grid=(512,1,1) block=(256,1,1) lds={LDS}")
    a.raw('.amdgcn_target "amdgcn-amd-amdhsa--gfx950"')
    a.raw(".text")
    kernel_header(a, "k1_kernel")
    a("s_cmp_ge_u32 s2, 512")
    a("s_cbranch_scc1 k1_done")
    preset(a); pstamp(a, "entry")
    jobs.common_entry(a)
    a("s_waitcnt lgkmcnt(0)")
    a("s_cmp_ge_u32 s2, 256")
    a("s_cbranch_scc1 k1_g")
    a("s_setprio 1")

    def post_qkv(a):
        a("s_lshl_b32 s52, s2, 2")
        a(f"s_add_u32 s52, s52, s{S_W}")
        prefetch1(a, KA_WD, 1376 * 1024, 52, 1024, 182, 177, 54, 60)
        prefetch1(a, KA_WO, 512 * 1024, 52, 1024, 183, 177, 54, 60)
    jobs.qkv_job(a, 2, sc1=False, post_loop=post_qkv)
    a(f"s_or_b32 s50, s2, s{S_W}")
    a("s_cmp_lg_u32 s50, 0")
    a("s_cbranch_scc1 k1_noinit")
    a(f"v_lshlrev_b32 v{V_T}, 8, v0")
    a(f"v_add_u32 v{V_T}, {WS_FLAG}, v{V_T}")
    a(f"v_mov_b32 v{V_T+1}, 0")
    for i in range(4):
        a(f"global_store_dword v{V_T}, v{V_T+1}, s[{S_WS}:{S_WS+1}]")
        if i < 3:
            a(f"v_add_u32 v{V_T}, 16384, v{V_T}")
    a.label("k1_noinit")
    pflush(a, 2, S_W, S_WS, V_T, 1)
    a("s_branch k1_done")
    a.label("k1_g")
    preset(a); pstamp(a, "entry")
    a("s_sub_u32 s3, s2, 256")
    jobs.g_job(a, 3, sc1=False)
    pflush(a, 2, S_W, S_WS, V_T, 1)
    a.label("k1_done")
    a("s_endpgm")
    kernel_header(a, f"{NAME}_kernel")
    a("s_cmp_ge_u32 s2, 512")
    a("s_cbranch_scc1 k_done")
    preset(a); pstamp(a, "entry")
    jobs.common_entry(a)
    a("s_waitcnt lgkmcnt(0)")
    a("s_cmp_ge_u32 s2, 256")
    a("s_cbranch_scc1 k_ffn")
    attn.OUT_SC1 = True
    attn.IN_SC1 = False
    attn.WAIT_IN = None
    attn.CHK = None
    a(f"s_setprio {ENV('APRIO', '1')}")
    attn.attn_body(a, 2, None)
    a(f"s_lshl_b32 s50, s{attn.S_QB}, 3")
    signal(a, S_WS, 50, 8, S_W, attn.TMP, WS_FLAG + 256 * C_ATT, drain=False)
    pstamp(a, "attn:sig")
    pflush(a, 2, S_W, S_WS, attn.TMP, 0)
    a("s_branch k_done")
    a.label("k_ffn")
    preset(a); pstamp(a, "entry")
    a("s_sub_u32 s3, s2, 256")
    splitk.d_job(a, 3, a_sc1=False, wait=None, post_prio=ENV('DPRIO', '0'))

    def wait_attn(a):
        a(f"s_lshr_b32 s50, s{S_RB}, 1")
        a(f"s_lshl_b32 s50, s50, 2")
        a(f"s_and_b32 s51, s{S_CB}, 3")
        a(f"s_add_u32 s50, s50, s51")
        wait_count(a, S_WS, 50, 32, S_W, V_T, S_T, WS_FLAG + 256 * C_ATT)
    splitk.wo2_job(a, 3, wait=wait_attn)
    pflush(a, 2, S_W, S_WS, V_T, 0)
    a.label("k_done")
    a("s_endpgm")
    a.raw('.section .rodata,"a"')
    a.raw(".p2align 6")
    a.raw(kernel_desc("k1_kernel", 256))
    a.raw(".p2align 6")
    a.raw(kernel_desc(f"{NAME}_kernel", 256))
    return a.text()


if __name__ == "__main__":
    out = sys.argv[1] if len(sys.argv) > 1 else f"cdna_kernels/{NAME}.s"
    open(out, "w").write(build3() if ENV("TWO") == "y" else build2() if ENV("TWO") else build())
    print("wrote", out, os.path.getsize(out), "bytes")
```

```python
from asmlib import *
from layout import *
import os
DBG = os.environ.get('ATTN_DBG', '')
SPACING = os.environ.get('SPACING', '1') != '0'

V_LANE16 = 1
V_VOFF = 2
V_T0 = 3
QA, QB = 4, 8
V_IDX = 12
V_T1, V_T2, V_T3 = 13, 14, 15
V_LANE16H = 152
KB = [16, 20]
V0B = [24, 28]
V1B = [32, 36]
SA, SB = 40, 56
OA, OB_ = 72, 88
CA, CB = 104, 120
TMP = 136
NV_ATTN = 160

SLOT = 16384
LDS_ONES = 3 * SLOT
LDS_FLAG = LDS_ONES + 8192
LDS_ATTN = LDS_FLAG + 64
V_VA = [153, 154, 155]

S_WS = 4
S_HEAD = 6
S_QB = 7
S_W = 8
S_KSRD = 12
S_VSRD = 16
S_MASK = 20
S_T = 22
S_PASS = 32
S_QBASE = 34
S_OBASE = 36
S_KBASE = 38


def dma_chunk(a, c):
    slot = (c % 3) * SLOT
    a(f"s_add_u32 m0, s{S_T}, {slot}")
    if CHK:
        a(f"s_add_u32 s{S_T+3}, s{S_QB}, {c}")
        a(f"s_and_b32 s{S_T+3}, s{S_T+3}, 7")
        a(f"s_lshl_b32 s{S_T+3}, s{S_T+3}, 13")
        a(f"s_add_u32 s{S_T+3}, s{S_T+3}, s{S_T}")
    else:
        a(f"s_add_u32 s{S_T+3}, s{S_T}, {c * 8192}")
    a(f"buffer_load_dwordx4 v{V_LANE16}, s[{S_KSRD}:{S_KSRD+3}], s{S_T+3} offen{' sc1' if IN_SC1 else ''} lds")
    a(f"buffer_load_dwordx4 v{V_LANE16}, s[{S_KSRD}:{S_KSRD+3}], s{S_T+3} offen offset:1024{' sc1' if IN_SC1 else ''} lds")
    a(f"s_add_u32 m0, s{S_T}, {slot + 8192}")
    a("s_nop 0")
    a(f"buffer_load_dwordx4 v{V_LANE16}, s[{S_VSRD}:{S_VSRD+3}], s{S_T+3} offen{' sc1' if IN_SC1 else ''} lds")
    a(f"buffer_load_dwordx4 v{V_LANE16}, s[{S_VSRD}:{S_VSRD+3}], s{S_T+3} offen offset:1024{' sc1' if IN_SC1 else ''} lds")


def k_addr(t):
    c, i = t >> 3, t & 7
    return (c % 3) * SLOT + i * 1024


def ds_rd_k(a, dst, t):
    if 'nods' in DBG:
        return
    a(f"ds_read_b128 v[{dst}:{dst+3}], v{V_LANE16} offset:{k_addr(t)}")


def ds_rd_v(a, dst, t, half):
    if 'nods' in DBG:
        return
    c, i = t >> 3, t & 7
    a(f"ds_read_b128 v[{dst}:{dst+3}], v{V_VA[c % 3]} offset:{(2 * i + half) * 512}")


def qk(a, S, K, Q, C):
    if 'noqk' in DBG:
        return
    a(f"v_mfma_f32_32x32x16_bf16 v[{S}:{S+15}], v[{K}:{K+3}], v[{Q}:{Q+3}], v[{C}:{C+15}]")


def pv(a, O, V, P):
    if 'nopv' in DBG:
        return
    a(f"v_smfmac_f32_32x32x32_bf16 v[{O}:{O+15}], v[{V}:{V+3}], v[{P}:{P+7}], v{V_IDX}")


def exps(a, S, lo, hi):
    for r in range(lo, hi):
        a(f"v_exp_f32 v{S+r}, v{S+r}")


def main_loop(a):
    NT = 64
    ds_rd_k(a, KB[1], 0)
    ds_rd_v(a, V1B[0], 0, 1)
    ds_rd_k(a, KB[0], 1)
    ds_rd_v(a, V0B[0], 0, 0)
    a("s_waitcnt lgkmcnt(3)")
    qk(a, SA, KB[1], QA, CA)
    a("s_nop 7")
    a("s_nop 3")
    for t in range(NT):
        cur, prv = t & 1, (t - 1) & 1
        more = t + 1 < NT
        P1, P2 = (4, 7) if SPACING else (2, 5)
        exps(a, SA, 0, P1)
        if t > 0:
            pv(a, OB_, V1B[prv], SB + 8)
        n = 0
        if more:
            ds_rd_v(a, V1B[prv], t + 1, 1); n += 1
        exps(a, SA, P1, P2)
        qk(a, SB, KB[prv], QB, CB)
        if t + 2 < NT:
            ds_rd_k(a, KB[prv], t + 2); n += 1
        exps(a, SA, P2, 10)
        if 'nowait' not in DBG:
            a(f"s_waitcnt lgkmcnt({n})")
        pv(a, OA, V0B[cur], SA)
        if more:
            ds_rd_v(a, V0B[prv], t + 1, 0)
        exps(a, SA, 10, 16)
        exps(a, SB, 0, P1)
        pv(a, OA, V1B[cur], SA + 8)
        exps(a, SB, P1, P2)
        if more:
            qk(a, SA, KB[cur], QA, CA)
        bnd = (t & 7) == 4 and 'nobar' not in DBG and (t >> 3) + 1 < 8
        if bnd:
            a("s_waitcnt vmcnt(0)")
            if CHK and (t >> 3) == 0:
                lab = a.uid("ca")
                a(f"s_cmp_lg_u32 s{S_W}, 0")
                a(f"s_cbranch_scc1 {lab}_o")
                a.label(lab)
                a(f"v_cmp_le_u32 vcc, 4, v{V_PROBE}")
                a("s_nop 0")
                a("s_and_b32 s60, vcc_lo, 0xff")
                a("s_cmp_eq_u32 s60, 0xff")
                a(f"s_cbranch_scc1 {lab}_o")
                a("s_mov_b64 exec, 0xff")
                a(f"global_load_dword v{V_PROBE}, v{V_PROBE+1}, s[{S_WS}:{S_WS+1}] sc1")
                a("s_mov_b64 exec, -1")
                a("s_sub_u32 s61, s61, 1")
                a("s_waitcnt vmcnt(0)")
                a("s_cmp_lg_u32 s61, 0")
                a(f"s_cbranch_scc1 {lab}")
                a.label(f"{lab}_o")
            a("s_barrier")
        exps(a, SB, P2, 10)
        pv(a, OB_, V0B[cur], SB)
        if bnd and (t >> 3) + 2 < 8:
            dma_chunk(a, (t >> 3) + 2)
        exps(a, SB, 10, 16)
    a("s_nop 1")
    pv(a, OB_, V1B[(NT - 1) & 1], SB + 8)


STAMP = False
IN_SC1 = False
CHK = None
V_PROBE = 157
WAIT_IN = None
OUT_SC1 = False
TWICE = False
S_ST = 40

def stamp(a, i):
    if STAMP:
        a(f"s_memtime s[{S_ST+2*i}:{S_ST+2*i+1}]")
        if i in (1, 2):
            a(f"s_memrealtime s[{S_ST+8+2*(i-1)}:{S_ST+8+2*(i-1)+1}]")


def attn_body(a, idreg, done_label):
    stamp(a, 0)
    a(f"s_and_b32 s{S_HEAD}, s{idreg}, 7")
    a(f"s_lshl_b32 s{S_HEAD}, s{S_HEAD}, 2")
    a(f"s_lshr_b32 s{S_T}, s{idreg}, 6")
    a(f"s_add_u32 s{S_HEAD}, s{S_HEAD}, s{S_T}")
    a(f"s_lshr_b32 s{S_QB}, s{idreg}, 3")
    a(f"s_and_b32 s{S_QB}, s{S_QB}, 7")
    a(f"v_lshlrev_b32 v{V_LANE16}, 4, v0")
    a(f"v_lshrrev_b32 v{V_T1}, 5, v0")
    a(f"v_lshlrev_b32 v{V_T1}, 8, v{V_T1}")
    a(f"v_and_b32 v{V_T2}, 15, v0")
    a(f"v_lshlrev_b32 v{V_T2}, 4, v{V_T2}")
    a(f"v_add_u32 v{V_VOFF}, v{V_T1}, v{V_T2}")
    a(f"v_and_b32 v{V_T1}, 16, v0")
    a(f"v_cmp_eq_u32 vcc, 0, v{V_T1}")
    for sl in range(3):
        a(f"v_mov_b32 v{V_T1}, {LDS_ONES}")
        a(f"v_mov_b32 v{V_T2}, {sl * SLOT + 8192}")
        a(f"v_cndmask_b32 v{V_T1}, v{V_T1}, v{V_T2}, vcc")
        a(f"v_add_u32 v{V_VA[sl]}, v{V_T1}, v{V_VOFF}")
    a(f"v_mov_b32 v{V_IDX}, 0xdddddddd")
    a(f"s_mov_b32 s{S_MASK}, 0x0000ffff")
    a(f"s_mov_b32 s{S_MASK+1}, 0x0000ffff")
    a(f"s_lshl_b32 s{S_T+4}, s{S_HEAD}, 16")
    a("s_waitcnt lgkmcnt(0)")
    a(f"s_add_u32 s{S_KBASE}, s{S_WS}, s{S_T+4}")
    a(f"s_addc_u32 s{S_KBASE+1}, s{S_WS+1}, 0")
    a(f"s_add_u32 s{S_QBASE}, s{S_KBASE}, {WS_QF}")
    a(f"s_addc_u32 s{S_QBASE+1}, s{S_KBASE+1}, 0")
    a(f"s_add_u32 s{S_T+5}, s{S_KBASE}, {WS_VF}")
    a(f"s_addc_u32 s{S_T+6}, s{S_KBASE+1}, 0")
    make_srd(a, S_VSRD, S_T + 5, S_T + 6, 65536)
    a(f"s_add_u32 s{S_KBASE}, s{S_KBASE}, {WS_KF}")
    a(f"s_addc_u32 s{S_KBASE+1}, s{S_KBASE+1}, 0")
    make_srd(a, S_KSRD, S_KBASE, S_KBASE + 1, 65536)
    a(f"s_lshl_b32 s{S_T}, s{S_W}, 11")
    a(f"s_lshr_b32 s{S_T+4}, s{S_HEAD}, 1")
    a(f"s_lshl_b32 s{S_T+4}, s{S_T+4}, 13")
    a(f"s_and_b32 s{S_T+5}, s{S_HEAD}, 1")
    a(f"s_lshl_b32 s{S_T+5}, s{S_T+5}, 10")
    a(f"s_add_u32 s{S_T+4}, s{S_T+4}, s{S_T+5}")
    a(f"s_add_u32 s{S_T+4}, s{S_T+4}, {WS_OB}")
    a(f"s_add_u32 s{S_OBASE}, s{S_WS}, s{S_T+4}")
    a(f"s_addc_u32 s{S_OBASE+1}, s{S_WS+1}, 0")
    a(f"s_lshl_b32 s{S_T+4}, s{S_QB}, 13")
    a(f"s_lshl_b32 s{S_T+5}, s{S_W}, 11")
    a(f"s_add_u32 s{S_T+4}, s{S_T+4}, s{S_T+5}")
    a(f"v_add_u32 v{V_T1}, s{S_T+4}, v{V_LANE16}")
    for r in range(32):
        a(f"v_mov_b32 v{CA+r}, 0")
    a(f"s_mov_b32 s{S_PASS}, 0")
    a(f"v_and_b32 v{V_T1}, 11, v0")
    a(f"v_cmp_eq_u32 vcc, 0, v{V_T1}")
    a(f"v_mov_b32 v{V_T2}, 0x3f803f80")
    a("s_nop 1")
    a(f"v_cndmask_b32 v{TMP}, 0, v{V_T2}, vcc")
    for r in range(1, 4):
        a(f"v_mov_b32 v{TMP+r}, v{TMP}")
    a(f"v_add_u32 v{V_T1}, s{S_T}, v{V_LANE16}")
    for i in range(2):
        a(f"ds_write_b128 v{V_T1}, v[{TMP}:{TMP+3}] offset:{LDS_ONES + i * 1024}")
    a(f"v_add_u32 v{V_T1}, s{S_T+4}, v{V_LANE16}")
    sc = ' sc1' if IN_SC1 else ''
    if CHK:
        CW = 62
        a(f"s_lshr_b32 s{CW}, s{S_HEAD}, 2")
        a(f"s_lshl_b32 s{CW}, s{CW}, 4")
        a(f"s_and_b32 s61, s{S_HEAD}, 1")
        a(f"s_add_u32 s{CW}, s{CW}, s61")

        a(f"v_lshlrev_b32 v{V_PROBE+1}, 1, v0")
        a(f"v_add_u32 v{V_PROBE+1}, s{CW}, v{V_PROBE+1}")
        a(f"v_lshlrev_b32 v{V_PROBE+1}, 8, v{V_PROBE+1}")
        a(f"v_add_u32 v{V_PROBE+1}, {CHK['base']}, v{V_PROBE+1}")
        a("s_mov_b32 s61, 200000")

        lab = a.uid("cw")
        a(f"s_cmp_lg_u32 s{S_W}, 0")
        a(f"s_cbranch_scc1 {lab}_o")
        a(f"s_lshl_b32 s59, 1, s{S_QB}")
        a(f"s_add_u32 s60, s{S_QB}, 1")
        a("s_and_b32 s60, s60, 7")
        a("s_lshl_b32 s60, 1, s60")
        a("s_or_b32 s59, s59, s60")
        a.label(lab)
        a("s_mov_b32 exec_lo, s59")
        a("s_mov_b32 exec_hi, 0")
        a(f"global_load_dword v{V_PROBE}, v{V_PROBE+1}, s[{S_WS}:{S_WS+1}] sc1")
        a("s_waitcnt vmcnt(0)")
        a(f"v_cmp_le_u32 vcc, 4, v{V_PROBE}")
        a("s_mov_b64 exec, -1")
        a("s_sub_u32 s61, s61, 1")
        a("s_and_b32 s63, vcc_lo, s59")
        a("s_cmp_eq_u32 s61, 0")
        a(f"s_cbranch_scc1 {lab}_o")
        a("s_cmp_eq_u32 s63, s59")
        a(f"s_cbranch_scc1 {lab}_o")
        a(f"s_sleep {os.environ.get('QSLEEP', '2')}")
        a(f"s_branch {lab}")
        a.label(f"{lab}_o")
        a("s_barrier")
        pstamp(a, "qkv:flag")
    elif WAIT_IN:
        WAIT_IN(a)
    a(f"global_load_dwordx4 v[{QA}:{QA+3}], v{V_T1}, s[{S_QBASE}:{S_QBASE+1}]{sc}")
    a(f"global_load_dwordx4 v[{QB}:{QB+3}], v{V_T1}, s[{S_QBASE}:{S_QBASE+1}] offset:1024{sc}")
    dma_chunk(a, 0)
    dma_chunk(a, 1)
    if CHK:
        a(f"s_cmp_eq_u32 s{S_W}, 0")
        a("s_cselect_b32 s60, 0xff, 1")
        a("s_mov_b32 exec_lo, s60")
        a("s_mov_b32 exec_hi, 0")
        a(f"global_load_dword v{V_PROBE}, v{V_PROBE+1}, s[{S_WS}:{S_WS+1}] sc1")
        a("s_mov_b64 exec, -1")
    a.label("attn_pass")
    for r in range(32):
        a(f"v_mov_b32 v{OA+r}, 0")
    a(f"s_waitcnt vmcnt({5 if CHK else 4}) lgkmcnt(0)")
    a("s_barrier")
    stamp(a, 1)
    pstamp(a, 'attn:first')
    main_loop(a)
    stamp(a, 2)
    pstamp(a, 'attn:loopend')
    if TWICE:
        a(f"s_cmp_lg_u32 s{S_PASS}, 0")
        a("s_cbranch_scc1 attn_tw")
        a(f"s_mov_b32 s{S_PASS}, 1")
        a("s_waitcnt lgkmcnt(0)")
        a(f"s_mov_b64 s[{S_ST}:{S_ST+1}], s[{S_ST+4}:{S_ST+5}]")
        a("s_barrier")
        dma_chunk(a, 0)
        dma_chunk(a, 1)
        a("s_branch attn_pass")
        a.label("attn_tw")
    a("s_nop 7")
    a("s_nop 7")
    a(f"v_mov_b32 v{TMP+12}, 0")
    for O in (OA, OB_):
        for r in range(8):
            a(f"v_fma_f32 v{TMP+12}, v{O+r}, 0, v{TMP+12}")
    a(f"s_mov_b32 s{S_T+4}, 0x21800000")
    a(f"s_mov_b32 s{S_T+5}, 0x71800000")
    a(f"v_cmp_eq_f32 vcc, 0, v{TMP+12}")
    a(f"v_cmp_ge_f32 s[{S_T+6}:{S_T+7}], v{OA+8}, s{S_T+4}")
    a(f"s_and_b64 vcc, vcc, s[{S_T+6}:{S_T+7}]")
    a(f"v_cmp_le_f32 s[{S_T+6}:{S_T+7}], v{OA+8}, s{S_T+5}")
    a(f"s_and_b64 vcc, vcc, s[{S_T+6}:{S_T+7}]")
    a(f"v_cmp_ge_f32 s[{S_T+6}:{S_T+7}], v{OB_+8}, s{S_T+4}")
    a(f"s_and_b64 vcc, vcc, s[{S_T+6}:{S_T+7}]")
    a(f"v_cmp_le_f32 s[{S_T+6}:{S_T+7}], v{OB_+8}, s{S_T+5}")
    a(f"s_and_b64 vcc, vcc, s[{S_T+6}:{S_T+7}]")
    a(f"s_cmp_eq_u64 vcc, -1")
    a(f"s_cselect_b32 s{S_T+4}, 0, 1")
    a(f"s_lshl_b32 s{S_T+5}, s{S_W}, 2")
    a(f"s_add_u32 s{S_T+5}, s{S_T+5}, {LDS_FLAG}")
    a(f"v_mov_b32 v{TMP+12}, s{S_T+5}")
    a(f"v_mov_b32 v{TMP+13}, s{S_T+4}")
    a(f"ds_write_b32 v{TMP+12}, v{TMP+13}")
    a(f"s_lshl_b32 s{S_T+4}, s{S_QB}, 1")
    a(f"s_lshr_b32 s{S_T+5}, s{S_W}, 1")
    a(f"s_add_u32 s{S_T+4}, s{S_T+4}, s{S_T+5}")
    a(f"s_lshl_b32 s{S_T+4}, s{S_T+4}, 17")
    a(f"s_and_b32 s{S_T+5}, s{S_W}, 1")
    a(f"s_lshl_b32 s{S_T+5}, s{S_T+5}, 12")
    a(f"s_add_u32 s{S_T+4}, s{S_T+4}, s{S_T+5}")
    a(f"v_add_u32 v{V_T1}, s{S_T+4}, v{V_LANE16}")
    a(f"v_add_u32 v{V_T2}, 2048, v{V_T1}")
    for O, T, A in ((OA, TMP, V_T1), (OB_, TMP + 4, V_T2)):
        a(f"v_rcp_f32 v{V_T3}, v{O+8}")
        a("s_nop 0")
        for r in range(8):
            a(f"v_mul_f32 v{O+r}, v{O+r}, v{V_T3}")
        for r in range(4):
            a(f"v_cvt_pk_bf16_f32 v{T+r}, v{O+2*r}, v{O+2*r+1}")
        a(f"global_store_dwordx4 v{A}, v[{T}:{T+3}], s[{S_OBASE}:{S_OBASE+1}]{' sc1' if OUT_SC1 else ''}")
    a("s_waitcnt vmcnt(0) lgkmcnt(0)")
    a("s_barrier")
    a(f"s_cmp_lg_u32 s{S_PASS}, 0")
    a("s_cbranch_scc1 attn_fin")
    a(f"v_mov_b32 v{TMP}, {LDS_FLAG}")
    a(f"ds_read_b128 v[{TMP+4}:{TMP+7}], v{TMP}")
    a("s_waitcnt lgkmcnt(0)")
    a(f"v_or_b32 v{TMP+4}, v{TMP+4}, v{TMP+5}")
    a(f"v_or3_b32 v{TMP+4}, v{TMP+4}, v{TMP+6}, v{TMP+7}")
    a("s_nop 1")
    a(f"v_readfirstlane_b32 s{S_T+4}, v{TMP+4}")
    a("s_nop 3")
    a(f"s_cmp_eq_u32 s{S_T+4}, 0")
    a("s_cbranch_scc1 attn_fin")
    a(f"s_mov_b32 s{S_PASS}, 1")
    a(f"v_mov_b32 v{TMP+8}, 0xff800000")
    a(f"v_mov_b32 v{TMP+9}, 0xff800000")
    a(f"v_mov_b32 v{V_T1}, v{V_LANE16}")
    a(f"s_mov_b32 s{S_T+4}, 64")
    a.label("attn_maxloop")
    a(f"global_load_dwordx4 v[{KB[0]}:{KB[0]+3}], v{V_T1}, s[{S_KBASE}:{S_KBASE+1}]{' sc1' if IN_SC1 else ''}")
    a(f"v_add_u32 v{V_T1}, 1024, v{V_T1}")
    a("s_waitcnt vmcnt(0)")
    a(f"v_mfma_f32_32x32x16_bf16 v[{SA}:{SA+15}], v[{KB[0]}:{KB[0]+3}], v[{QA}:{QA+3}], 0")
    a(f"v_mfma_f32_32x32x16_bf16 v[{SB}:{SB+15}], v[{KB[0]}:{KB[0]+3}], v[{QB}:{QB+3}], 0")
    a("s_nop 15")
    a("s_nop 7")
    for S, M in ((SA, TMP + 8), (SB, TMP + 9)):
        for r in range(0, 16, 2):
            a(f"v_max3_f32 v{M}, v{S+r}, v{S+r+1}, v{M}")
    a(f"s_sub_u32 s{S_T+4}, s{S_T+4}, 1")
    a(f"s_cmp_lg_u32 s{S_T+4}, 0")
    a("s_cbranch_scc1 attn_maxloop")
    for M in (TMP + 8, TMP + 9):
        a(f"v_mov_b32 v{TMP+10}, v{M}")
        a("s_nop 1")
        a(f"v_permlane32_swap_b32 v{TMP+10}, v{M}")
        a("s_nop 1")
        a(f"v_max_f32 v{M}, v{TMP+10}, v{M}")
    for r in range(16):
        a(f"v_sub_f32 v{CA+r}, 0, v{TMP+8}")
        a(f"v_sub_f32 v{CB+r}, 0, v{TMP+9}")
    a("s_barrier")
    dma_chunk(a, 0)
    dma_chunk(a, 1)
    a("s_waitcnt vmcnt(4)")
    a("s_branch attn_pass")
    a.label("attn_fin")
    if STAMP:
        stamp(a, 3)
        a("s_waitcnt lgkmcnt(0)")
        a(f"s_load_dwordx2 s[60:61], s[0:1], {KA_DBG}")
        a(f"s_lshl_b32 s62, s{idreg}, 2")
        a(f"s_add_u32 s62, s62, s{S_W}")
        a(f"s_lshl_b32 s62, s62, 4")
        a(f"s_sub_u32 s{S_ST+2}, s{S_ST+2}, s{S_ST}")
        a(f"s_sub_u32 s{S_ST+4}, s{S_ST+4}, s{S_ST}")
        a(f"s_sub_u32 s{S_ST+6}, s{S_ST+6}, s{S_ST}")
        a(f"s_sub_u32 s{S_ST}, s{S_ST+10}, s{S_ST+8}")
        a(f"v_mov_b32 v{TMP}, s{S_ST}")
        a(f"v_mov_b32 v{TMP+1}, s{S_ST+2}")
        a(f"v_mov_b32 v{TMP+2}, s{S_ST+4}")
        a(f"v_mov_b32 v{TMP+3}, s{S_ST+6}")
        a(f"v_mov_b32 v{TMP+4}, s62")
        a("s_waitcnt lgkmcnt(0)")
        a(f"global_store_dwordx4 v{TMP+4}, v[{TMP}:{TMP+3}], s[60:61]")
    pstamp(a, 'attn:end')
    if done_label:
        a(f"s_branch {done_label}")
```

```python
from asmlib import *
from layout import *
import os
DBG = os.environ.get('ATTN_DBG', '')
SPACING = os.environ.get('SPACING', '1') != '0'

V_LANE16 = 1
V_VOFF = 2
V_T0 = 3
QA, QB = 4, 8
V_IDX = 12
V_T1, V_T2, V_T3 = 13, 14, 15
V_LANE16H = 152
KB = [16, 20]
V0B = [24, 28]
V1B = [32, 36]
SA, SB = 40, 56
OA, OB_ = 72, 88
CA, CB = 104, 120
TMP = 136
NV_ATTN = 160

SLOT = 16384
LDS_ONES = 3 * SLOT
LDS_FLAG = LDS_ONES + 8192
LDS_ATTN = LDS_FLAG + 64
V_VA = [153, 154, 155]

S_WS = 4
S_HEAD = 6
S_QB = 7
S_W = 8
S_KSRD = 12
S_VSRD = 16
S_MASK = 20
S_T = 22
S_PASS = 32
S_QBASE = 34
S_OBASE = 36
S_KBASE = 38


def dma_chunk(a, c):
    slot = (c % 3) * SLOT
    a(f"s_add_u32 m0, s{S_T}, {slot}")
    if CHK:
        a(f"s_add_u32 s{S_T+3}, s{S_QB}, {c}")
        a(f"s_and_b32 s{S_T+3}, s{S_T+3}, 7")
        a(f"s_lshl_b32 s{S_T+3}, s{S_T+3}, 13")
        a(f"s_add_u32 s{S_T+3}, s{S_T+3}, s{S_T}")
    else:
        a(f"s_add_u32 s{S_T+3}, s{S_T}, {c * 8192}")
    a(f"buffer_load_dwordx4 v{V_LANE16}, s[{S_KSRD}:{S_KSRD+3}], s{S_T+3} offen{' sc1' if IN_SC1 else ''} lds")
    a(f"buffer_load_dwordx4 v{V_LANE16}, s[{S_KSRD}:{S_KSRD+3}], s{S_T+3} offen offset:1024{' sc1' if IN_SC1 else ''} lds")
    a(f"s_add_u32 m0, s{S_T}, {slot + 8192}")
    a("s_nop 0")
    a(f"buffer_load_dwordx4 v{V_LANE16}, s[{S_VSRD}:{S_VSRD+3}], s{S_T+3} offen{' sc1' if IN_SC1 else ''} lds")
    a(f"buffer_load_dwordx4 v{V_LANE16}, s[{S_VSRD}:{S_VSRD+3}], s{S_T+3} offen offset:1024{' sc1' if IN_SC1 else ''} lds")


def k_addr(t):
    c, i = t >> 3, t & 7
    return (c % 3) * SLOT + i * 1024


def ds_rd_k(a, dst, t):
    if 'nods' in DBG:
        return
    a(f"ds_read_b128 v[{dst}:{dst+3}], v{V_LANE16} offset:{k_addr(t)}")


def ds_rd_v(a, dst, t, half):
    if 'nods' in DBG:
        return
    c, i = t >> 3, t & 7
    a(f"ds_read_b128 v[{dst}:{dst+3}], v{V_VA[c % 3]} offset:{(2 * i + half) * 512}")


def qk(a, S, K, Q, C):
    if 'noqk' in DBG:
        return
    a(f"v_mfma_f32_32x32x16_bf16 v[{S}:{S+15}], v[{K}:{K+3}], v[{Q}:{Q+3}], v[{C}:{C+15}]")


def pv(a, O, V, P):
    if 'nopv' in DBG:
        return
    a(f"v_smfmac_f32_32x32x32_bf16 v[{O}:{O+15}], v[{V}:{V+3}], v[{P}:{P+7}], v{V_IDX}")


def exps(a, S, lo, hi):
    for r in range(lo, hi):
        a(f"v_exp_f32 v{S+r}, v{S+r}")


def main_loop(a):
    NT = 64
    ds_rd_k(a, KB[1], 0)
    ds_rd_v(a, V1B[0], 0, 1)
    ds_rd_k(a, KB[0], 1)
    ds_rd_v(a, V0B[0], 0, 0)
    a("s_waitcnt lgkmcnt(3)")
    qk(a, SA, KB[1], QA, CA)
    a("s_nop 7")
    a("s_nop 3")
    for t in range(NT):
        cur, prv = t & 1, (t - 1) & 1
        more = t + 1 < NT
        P1, P2 = (4, 7) if SPACING else (2, 5)
        exps(a, SA, 0, P1)
        if t > 0:
            pv(a, OB_, V1B[prv], SB + 8)
        n = 0
        if more:
            ds_rd_v(a, V1B[prv], t + 1, 1); n += 1
        exps(a, SA, P1, P2)
        qk(a, SB, KB[prv], QB, CB)
        if t + 2 < NT:
            ds_rd_k(a, KB[prv], t + 2); n += 1
        exps(a, SA, P2, 10)
        if 'nowait' not in DBG:
            a(f"s_waitcnt lgkmcnt({n})")
        pv(a, OA, V0B[cur], SA)
        if more:
            ds_rd_v(a, V0B[prv], t + 1, 0)
        exps(a, SA, 10, 16)
        exps(a, SB, 0, P1)
        pv(a, OA, V1B[cur], SA + 8)
        exps(a, SB, P1, P2)
        if more:
            qk(a, SA, KB[cur], QA, CA)
        bnd = (t & 7) == 4 and 'nobar' not in DBG and (t >> 3) + 1 < 8
        if bnd:
            a("s_waitcnt vmcnt(0)")
            if CHK and (t >> 3) == 0:
                lab = a.uid("ca")
                a(f"s_cmp_lg_u32 s{S_W}, 0")
                a(f"s_cbranch_scc1 {lab}_o")
                a.label(lab)
                a(f"v_cmp_le_u32 vcc, 4, v{V_PROBE}")
                a("s_nop 0")
                a("s_and_b32 s60, vcc_lo, 0xff")
                a("s_cmp_eq_u32 s60, 0xff")
                a(f"s_cbranch_scc1 {lab}_o")
                a("s_mov_b64 exec, 0xff")
                a(f"global_load_dword v{V_PROBE}, v{V_PROBE+1}, s[{S_WS}:{S_WS+1}] sc1")
                a("s_mov_b64 exec, -1")
                a("s_sub_u32 s61, s61, 1")
                a("s_waitcnt vmcnt(0)")
                a("s_cmp_lg_u32 s61, 0")
                a(f"s_cbranch_scc1 {lab}")
                a.label(f"{lab}_o")
            a("s_barrier")
        exps(a, SB, P2, 10)
        pv(a, OB_, V0B[cur], SB)
        if bnd and (t >> 3) + 2 < 8:
            dma_chunk(a, (t >> 3) + 2)
        exps(a, SB, 10, 16)
        if CHK and OWN1 and t == 0:
            lab = a.uid("c1")
            a("s_waitcnt vmcnt(0)")
            a(f"s_cmp_lg_u32 s{S_W}, 0")
            a(f"s_cbranch_scc1 {lab}_o")
            a(f"s_add_u32 s59, s{S_QB}, 1")
            a("s_and_b32 s59, s59, 7")
            a.label(lab)
            a(f"v_cmp_le_u32 vcc, 4, v{V_PROBE}")
            a("s_nop 0")
            a("s_lshr_b32 s60, vcc_lo, s59")
            a("s_bitcmp1_b32 s60, 0")
            a(f"s_cbranch_scc1 {lab}_p")
            a("s_mov_b64 exec, 0xff")
            a(f"global_load_dword v{V_PROBE}, v{V_PROBE+1}, s[{S_WS}:{S_WS+1}] sc1")
            a("s_mov_b64 exec, -1")
            a("s_sub_u32 s61, s61, 1")
            a("s_waitcnt vmcnt(0)")
            a("s_cmp_lg_u32 s61, 0")
            a(f"s_cbranch_scc1 {lab}")
            a.label(f"{lab}_p")
            a("s_mov_b64 exec, 0xff")
            a(f"global_load_dword v{V_PROBE}, v{V_PROBE+1}, s[{S_WS}:{S_WS+1}] sc1")
            a("s_mov_b64 exec, -1")
            a.label(f"{lab}_o")
            a("s_barrier")
            dma_chunk(a, 1)
    a("s_nop 1")
    pv(a, OB_, V1B[(NT - 1) & 1], SB + 8)


STAMP = False
IN_SC1 = False
OWN1 = os.environ.get('OWN1')
CHK = None
V_PROBE = 157
WAIT_IN = None
OUT_SC1 = False
TWICE = False
S_ST = 40

def stamp(a, i):
    if STAMP:
        a(f"s_memtime s[{S_ST+2*i}:{S_ST+2*i+1}]")
        if i in (1, 2):
            a(f"s_memrealtime s[{S_ST+8+2*(i-1)}:{S_ST+8+2*(i-1)+1}]")


def attn_body(a, idreg, done_label):
    stamp(a, 0)
    a(f"s_and_b32 s{S_HEAD}, s{idreg}, 7")
    a(f"s_lshl_b32 s{S_HEAD}, s{S_HEAD}, 2")
    a(f"s_lshr_b32 s{S_T}, s{idreg}, 6")
    a(f"s_add_u32 s{S_HEAD}, s{S_HEAD}, s{S_T}")
    a(f"s_lshr_b32 s{S_QB}, s{idreg}, 3")
    a(f"s_and_b32 s{S_QB}, s{S_QB}, 7")
    a(f"v_lshlrev_b32 v{V_LANE16}, 4, v0")
    a(f"v_lshrrev_b32 v{V_T1}, 5, v0")
    a(f"v_lshlrev_b32 v{V_T1}, 8, v{V_T1}")
    a(f"v_and_b32 v{V_T2}, 15, v0")
    a(f"v_lshlrev_b32 v{V_T2}, 4, v{V_T2}")
    a(f"v_add_u32 v{V_VOFF}, v{V_T1}, v{V_T2}")
    a(f"v_and_b32 v{V_T1}, 16, v0")
    a(f"v_cmp_eq_u32 vcc, 0, v{V_T1}")
    for sl in range(3):
        a(f"v_mov_b32 v{V_T1}, {LDS_ONES}")
        a(f"v_mov_b32 v{V_T2}, {sl * SLOT + 8192}")
        a(f"v_cndmask_b32 v{V_T1}, v{V_T1}, v{V_T2}, vcc")
        a(f"v_add_u32 v{V_VA[sl]}, v{V_T1}, v{V_VOFF}")
    a(f"v_mov_b32 v{V_IDX}, 0xdddddddd")
    a(f"s_mov_b32 s{S_MASK}, 0x0000ffff")
    a(f"s_mov_b32 s{S_MASK+1}, 0x0000ffff")
    a(f"s_lshl_b32 s{S_T+4}, s{S_HEAD}, 16")
    a("s_waitcnt lgkmcnt(0)")
    a(f"s_add_u32 s{S_KBASE}, s{S_WS}, s{S_T+4}")
    a(f"s_addc_u32 s{S_KBASE+1}, s{S_WS+1}, 0")
    a(f"s_add_u32 s{S_QBASE}, s{S_KBASE}, {WS_QF}")
    a(f"s_addc_u32 s{S_QBASE+1}, s{S_KBASE+1}, 0")
    a(f"s_add_u32 s{S_T+5}, s{S_KBASE}, {WS_VF}")
    a(f"s_addc_u32 s{S_T+6}, s{S_KBASE+1}, 0")
    make_srd(a, S_VSRD, S_T + 5, S_T + 6, 65536)
    a(f"s_add_u32 s{S_KBASE}, s{S_KBASE}, {WS_KF}")
    a(f"s_addc_u32 s{S_KBASE+1}, s{S_KBASE+1}, 0")
    make_srd(a, S_KSRD, S_KBASE, S_KBASE + 1, 65536)
    a(f"s_lshl_b32 s{S_T}, s{S_W}, 11")
    a(f"s_lshr_b32 s{S_T+4}, s{S_HEAD}, 1")
    a(f"s_lshl_b32 s{S_T+4}, s{S_T+4}, 13")
    a(f"s_and_b32 s{S_T+5}, s{S_HEAD}, 1")
    a(f"s_lshl_b32 s{S_T+5}, s{S_T+5}, 10")
    a(f"s_add_u32 s{S_T+4}, s{S_T+4}, s{S_T+5}")
    a(f"s_add_u32 s{S_T+4}, s{S_T+4}, {WS_OB}")
    a(f"s_add_u32 s{S_OBASE}, s{S_WS}, s{S_T+4}")
    a(f"s_addc_u32 s{S_OBASE+1}, s{S_WS+1}, 0")
    a(f"s_lshl_b32 s{S_T+4}, s{S_QB}, 13")
    a(f"s_lshl_b32 s{S_T+5}, s{S_W}, 11")
    a(f"s_add_u32 s{S_T+4}, s{S_T+4}, s{S_T+5}")
    a(f"v_add_u32 v{V_T1}, s{S_T+4}, v{V_LANE16}")
    for r in range(32):
        a(f"v_mov_b32 v{CA+r}, 0")
    a(f"s_mov_b32 s{S_PASS}, 0")
    a(f"v_and_b32 v{V_T1}, 11, v0")
    a(f"v_cmp_eq_u32 vcc, 0, v{V_T1}")
    a(f"v_mov_b32 v{V_T2}, 0x3f803f80")
    a("s_nop 1")
    a(f"v_cndmask_b32 v{TMP}, 0, v{V_T2}, vcc")
    for r in range(1, 4):
        a(f"v_mov_b32 v{TMP+r}, v{TMP}")
    a(f"v_add_u32 v{V_T1}, s{S_T}, v{V_LANE16}")
    for i in range(2):
        a(f"ds_write_b128 v{V_T1}, v[{TMP}:{TMP+3}] offset:{LDS_ONES + i * 1024}")
    a(f"v_add_u32 v{V_T1}, s{S_T+4}, v{V_LANE16}")
    sc = ' sc1' if IN_SC1 else ''
    if CHK:
        CW = 62
        a(f"s_lshr_b32 s{CW}, s{S_HEAD}, 2")
        a(f"s_lshl_b32 s{CW}, s{CW}, 4")
        a(f"s_and_b32 s61, s{S_HEAD}, 1")
        a(f"s_add_u32 s{CW}, s{CW}, s61")

        a(f"v_lshlrev_b32 v{V_PROBE+1}, 1, v0")
        a(f"v_add_u32 v{V_PROBE+1}, s{CW}, v{V_PROBE+1}")
        a(f"v_lshlrev_b32 v{V_PROBE+1}, 8, v{V_PROBE+1}")
        a(f"v_add_u32 v{V_PROBE+1}, {CHK['base']}, v{V_PROBE+1}")
        a("s_mov_b32 s61, 200000")

        lab = a.uid("cw")
        a(f"s_cmp_lg_u32 s{S_W}, 0")
        a(f"s_cbranch_scc1 {lab}_o")
        a(f"s_lshl_b32 s59, 1, s{S_QB}")
        if not OWN1:
            a(f"s_add_u32 s60, s{S_QB}, 1")
            a("s_and_b32 s60, s60, 7")
            a("s_lshl_b32 s60, 1, s60")
            a("s_or_b32 s59, s59, s60")
        a.label(lab)
        a("s_mov_b32 exec_lo, s59")
        a("s_mov_b32 exec_hi, 0")
        a(f"global_load_dword v{V_PROBE}, v{V_PROBE+1}, s[{S_WS}:{S_WS+1}] sc1")
        a("s_waitcnt vmcnt(0)")
        a(f"v_cmp_le_u32 vcc, 4, v{V_PROBE}")
        a("s_mov_b64 exec, -1")
        a("s_sub_u32 s61, s61, 1")
        a("s_and_b32 s63, vcc_lo, s59")
        a("s_cmp_eq_u32 s61, 0")
        a(f"s_cbranch_scc1 {lab}_o")
        a("s_cmp_eq_u32 s63, s59")
        a(f"s_cbranch_scc1 {lab}_o")
        a(f"s_sleep {os.environ.get('QSLEEP', '2')}")
        a(f"s_branch {lab}")
        a.label(f"{lab}_o")
        a("s_barrier")
        pstamp(a, "qkv:flag")
    elif WAIT_IN:
        WAIT_IN(a)
    a(f"global_load_dwordx4 v[{QA}:{QA+3}], v{V_T1}, s[{S_QBASE}:{S_QBASE+1}]{sc}")
    a(f"global_load_dwordx4 v[{QB}:{QB+3}], v{V_T1}, s[{S_QBASE}:{S_QBASE+1}] offset:1024{sc}")
    dma_chunk(a, 0)
    if not (CHK and OWN1):
        dma_chunk(a, 1)
    if CHK:
        a(f"s_cmp_eq_u32 s{S_W}, 0")
        a("s_cselect_b32 s60, 0xff, 1")
        a("s_mov_b32 exec_lo, s60")
        a("s_mov_b32 exec_hi, 0")
        a(f"global_load_dword v{V_PROBE}, v{V_PROBE+1}, s[{S_WS}:{S_WS+1}] sc1")
        a("s_mov_b64 exec, -1")
    a.label("attn_pass")
    for r in range(32):
        a(f"v_mov_b32 v{OA+r}, 0")
    a(f"s_waitcnt vmcnt({(1 if OWN1 else 5) if CHK else 4}) lgkmcnt(0)")
    a("s_barrier")
    stamp(a, 1)
    pstamp(a, 'attn:first')
    main_loop(a)
    stamp(a, 2)
    pstamp(a, 'attn:loopend')
    if TWICE:
        a(f"s_cmp_lg_u32 s{S_PASS}, 0")
        a("s_cbranch_scc1 attn_tw")
        a(f"s_mov_b32 s{S_PASS}, 1")
        a("s_waitcnt lgkmcnt(0)")
        a(f"s_mov_b64 s[{S_ST}:{S_ST+1}], s[{S_ST+4}:{S_ST+5}]")
        a("s_barrier")
        dma_chunk(a, 0)
        dma_chunk(a, 1)
        a("s_branch attn_pass")
        a.label("attn_tw")
    a("s_nop 7")
    a("s_nop 7")
    a(f"v_mov_b32 v{TMP+12}, 0")
    for O in (OA, OB_):
        for r in range(8):
            a(f"v_fma_f32 v{TMP+12}, v{O+r}, 0, v{TMP+12}")
    a(f"s_mov_b32 s{S_T+4}, 0x21800000")
    a(f"s_mov_b32 s{S_T+5}, 0x71800000")
    a(f"v_cmp_eq_f32 vcc, 0, v{TMP+12}")
    a(f"v_cmp_ge_f32 s[{S_T+6}:{S_T+7}], v{OA+8}, s{S_T+4}")
    a(f"s_and_b64 vcc, vcc, s[{S_T+6}:{S_T+7}]")
    a(f"v_cmp_le_f32 s[{S_T+6}:{S_T+7}], v{OA+8}, s{S_T+5}")
    a(f"s_and_b64 vcc, vcc, s[{S_T+6}:{S_T+7}]")
    a(f"v_cmp_ge_f32 s[{S_T+6}:{S_T+7}], v{OB_+8}, s{S_T+4}")
    a(f"s_and_b64 vcc, vcc, s[{S_T+6}:{S_T+7}]")
    a(f"v_cmp_le_f32 s[{S_T+6}:{S_T+7}], v{OB_+8}, s{S_T+5}")
    a(f"s_and_b64 vcc, vcc, s[{S_T+6}:{S_T+7}]")
    a(f"s_cmp_eq_u64 vcc, -1")
    a(f"s_cselect_b32 s{S_T+4}, 0, 1")
    a(f"s_lshl_b32 s{S_T+5}, s{S_W}, 2")
    a(f"s_add_u32 s{S_T+5}, s{S_T+5}, {LDS_FLAG}")
    a(f"v_mov_b32 v{TMP+12}, s{S_T+5}")
    a(f"v_mov_b32 v{TMP+13}, s{S_T+4}")
    a(f"ds_write_b32 v{TMP+12}, v{TMP+13}")
    a(f"s_lshl_b32 s{S_T+4}, s{S_QB}, 1")
    a(f"s_lshr_b32 s{S_T+5}, s{S_W}, 1")
    a(f"s_add_u32 s{S_T+4}, s{S_T+4}, s{S_T+5}")
    a(f"s_lshl_b32 s{S_T+4}, s{S_T+4}, 17")
    a(f"s_and_b32 s{S_T+5}, s{S_W}, 1")
    a(f"s_lshl_b32 s{S_T+5}, s{S_T+5}, 12")
    a(f"s_add_u32 s{S_T+4}, s{S_T+4}, s{S_T+5}")
    a(f"v_add_u32 v{V_T1}, s{S_T+4}, v{V_LANE16}")
    a(f"v_add_u32 v{V_T2}, 2048, v{V_T1}")
    for O, T, A in ((OA, TMP, V_T1), (OB_, TMP + 4, V_T2)):
        a(f"v_rcp_f32 v{V_T3}, v{O+8}")
        a("s_nop 0")
        for r in range(8):
            a(f"v_mul_f32 v{O+r}, v{O+r}, v{V_T3}")
        for r in range(4):
            a(f"v_cvt_pk_bf16_f32 v{T+r}, v{O+2*r}, v{O+2*r+1}")
        a(f"global_store_dwordx4 v{A}, v[{T}:{T+3}], s[{S_OBASE}:{S_OBASE+1}]{' sc1' if OUT_SC1 else ''}")
    a("s_waitcnt vmcnt(0) lgkmcnt(0)")
    a("s_barrier")
    a(f"s_cmp_lg_u32 s{S_PASS}, 0")
    a("s_cbranch_scc1 attn_fin")
    a(f"v_mov_b32 v{TMP}, {LDS_FLAG}")
    a(f"ds_read_b128 v[{TMP+4}:{TMP+7}], v{TMP}")
    a("s_waitcnt lgkmcnt(0)")
    a(f"v_or_b32 v{TMP+4}, v{TMP+4}, v{TMP+5}")
    a(f"v_or3_b32 v{TMP+4}, v{TMP+4}, v{TMP+6}, v{TMP+7}")
    a("s_nop 1")
    a(f"v_readfirstlane_b32 s{S_T+4}, v{TMP+4}")
    a("s_nop 3")
    a(f"s_cmp_eq_u32 s{S_T+4}, 0")
    a("s_cbranch_scc1 attn_fin")
    a(f"s_mov_b32 s{S_PASS}, 1")
    a(f"v_mov_b32 v{TMP+8}, 0xff800000")
    a(f"v_mov_b32 v{TMP+9}, 0xff800000")
    a(f"v_mov_b32 v{V_T1}, v{V_LANE16}")
    a(f"s_mov_b32 s{S_T+4}, 64")
    a.label("attn_maxloop")
    a(f"global_load_dwordx4 v[{KB[0]}:{KB[0]+3}], v{V_T1}, s[{S_KBASE}:{S_KBASE+1}]{' sc1' if IN_SC1 else ''}")
    a(f"v_add_u32 v{V_T1}, 1024, v{V_T1}")
    a("s_waitcnt vmcnt(0)")
    a(f"v_mfma_f32_32x32x16_bf16 v[{SA}:{SA+15}], v[{KB[0]}:{KB[0]+3}], v[{QA}:{QA+3}], 0")
    a(f"v_mfma_f32_32x32x16_bf16 v[{SB}:{SB+15}], v[{KB[0]}:{KB[0]+3}], v[{QB}:{QB+3}], 0")
    a("s_nop 15")
    a("s_nop 7")
    for S, M in ((SA, TMP + 8), (SB, TMP + 9)):
        for r in range(0, 16, 2):
            a(f"v_max3_f32 v{M}, v{S+r}, v{S+r+1}, v{M}")
    a(f"s_sub_u32 s{S_T+4}, s{S_T+4}, 1")
    a(f"s_cmp_lg_u32 s{S_T+4}, 0")
    a("s_cbranch_scc1 attn_maxloop")
    for M in (TMP + 8, TMP + 9):
        a(f"v_mov_b32 v{TMP+10}, v{M}")
        a("s_nop 1")
        a(f"v_permlane32_swap_b32 v{TMP+10}, v{M}")
        a("s_nop 1")
        a(f"v_max_f32 v{M}, v{TMP+10}, v{M}")
    for r in range(16):
        a(f"v_sub_f32 v{CA+r}, 0, v{TMP+8}")
        a(f"v_sub_f32 v{CB+r}, 0, v{TMP+9}")
    a("s_barrier")
    dma_chunk(a, 0)
    dma_chunk(a, 1)
    a("s_waitcnt vmcnt(4)")
    a("s_branch attn_pass")
    a.label("attn_fin")
    if STAMP:
        stamp(a, 3)
        a("s_waitcnt lgkmcnt(0)")
        a(f"s_load_dwordx2 s[60:61], s[0:1], {KA_DBG}")
        a(f"s_lshl_b32 s62, s{idreg}, 2")
        a(f"s_add_u32 s62, s62, s{S_W}")
        a(f"s_lshl_b32 s62, s62, 4")
        a(f"s_sub_u32 s{S_ST+2}, s{S_ST+2}, s{S_ST}")
        a(f"s_sub_u32 s{S_ST+4}, s{S_ST+4}, s{S_ST}")
        a(f"s_sub_u32 s{S_ST+6}, s{S_ST+6}, s{S_ST}")
        a(f"s_sub_u32 s{S_ST}, s{S_ST+10}, s{S_ST+8}")
        a(f"v_mov_b32 v{TMP}, s{S_ST}")
        a(f"v_mov_b32 v{TMP+1}, s{S_ST+2}")
        a(f"v_mov_b32 v{TMP+2}, s{S_ST+4}")
        a(f"v_mov_b32 v{TMP+3}, s{S_ST+6}")
        a(f"v_mov_b32 v{TMP+4}, s62")
        a("s_waitcnt lgkmcnt(0)")
        a(f"global_store_dwordx4 v{TMP+4}, v[{TMP}:{TMP+3}], s[60:61]")
    pstamp(a, 'attn:end')
    if done_label:
        a(f"s_branch {done_label}")
```

```python
from asmlib import *
from layout import *
import os
DBG = os.environ.get('ATTN_DBG', '')
SPACING = os.environ.get('SPACING', '1') != '0'

V_LANE16 = 1
V_VOFF = 2
V_T0 = 3
QA, QB = 4, 8
V_IDX = 12
V_T1, V_T2, V_T3 = 13, 14, 15
V_LANE16H = 152
KB = [16, 20]
V0B = [24, 28]
V1B = [32, 36]
SA, SB = 40, 56
OA, OB_ = 72, 88
CA, CB = 104, 120
TMP = 136
NV_ATTN = 160

SLOT = 16384
LDS_ONES = 3 * SLOT
LDS_FLAG = LDS_ONES + 8192
LDS_ATTN = LDS_FLAG + 64
V_VA = [153, 154, 155]

S_WS = 4
S_HEAD = 6
S_QB = 7
S_W = 8
S_KSRD = 12
S_VSRD = 16
S_MASK = 20
S_T = 22
S_PASS = 32
S_QBASE = 34
S_OBASE = 36
S_KBASE = 38


def dma_chunk(a, c):
    slot = (c % 3) * SLOT
    a(f"s_add_u32 m0, s{S_T}, {slot}")
    if CHK:
        a(f"s_add_u32 s{S_T+3}, s{S_QB}, {c}")
        a(f"s_and_b32 s{S_T+3}, s{S_T+3}, 7")
        a(f"s_lshl_b32 s{S_T+3}, s{S_T+3}, 13")
        a(f"s_add_u32 s{S_T+3}, s{S_T+3}, s{S_T}")
    else:
        a(f"s_add_u32 s{S_T+3}, s{S_T}, {c * 8192}")
    a(f"buffer_load_dwordx4 v{V_LANE16}, s[{S_KSRD}:{S_KSRD+3}], s{S_T+3} offen{' sc1' if IN_SC1 else ''} lds")
    a(f"buffer_load_dwordx4 v{V_LANE16}, s[{S_KSRD}:{S_KSRD+3}], s{S_T+3} offen offset:1024{' sc1' if IN_SC1 else ''} lds")
    a(f"s_add_u32 m0, s{S_T}, {slot + 8192}")
    a("s_nop 0")
    a(f"buffer_load_dwordx4 v{V_LANE16}, s[{S_VSRD}:{S_VSRD+3}], s{S_T+3} offen{' sc1' if IN_SC1 else ''} lds")
    a(f"buffer_load_dwordx4 v{V_LANE16}, s[{S_VSRD}:{S_VSRD+3}], s{S_T+3} offen offset:1024{' sc1' if IN_SC1 else ''} lds")


def k_addr(t):
    c, i = t >> 3, t & 7
    return (c % 3) * SLOT + i * 1024


def ds_rd_k(a, dst, t):
    if 'nods' in DBG:
        return
    a(f"ds_read_b128 v[{dst}:{dst+3}], v{V_LANE16} offset:{k_addr(t)}")


def ds_rd_v(a, dst, t, half):
    if 'nods' in DBG:
        return
    c, i = t >> 3, t & 7
    a(f"ds_read_b128 v[{dst}:{dst+3}], v{V_VA[c % 3]} offset:{(2 * i + half) * 512}")


def qk(a, S, K, Q, C):
    if 'noqk' in DBG:
        return
    a(f"v_mfma_f32_32x32x16_bf16 v[{S}:{S+15}], v[{K}:{K+3}], v[{Q}:{Q+3}], v[{C}:{C+15}]")


def pv(a, O, V, P):
    if 'nopv' in DBG:
        return
    a(f"v_smfmac_f32_32x32x32_bf16 v[{O}:{O+15}], v[{V}:{V+3}], v[{P}:{P+7}], v{V_IDX}")


def exps(a, S, lo, hi):
    for r in range(lo, hi):
        a(f"v_exp_f32 v{S+r}, v{S+r}")


def main_loop(a):
    NT = 64
    ds_rd_k(a, KB[1], 0)
    ds_rd_v(a, V1B[0], 0, 1)
    ds_rd_k(a, KB[0], 1)
    ds_rd_v(a, V0B[0], 0, 0)
    a("s_waitcnt lgkmcnt(3)")
    qk(a, SA, KB[1], QA, CA)
    a("s_nop 7")
    a("s_nop 3")
    for t in range(NT):
        cur, prv = t & 1, (t - 1) & 1
        more = t + 1 < NT
        P1, P2 = (4, 7) if SPACING else (2, 5)
        exps(a, SA, 0, P1)
        if t > 0:
            pv(a, OB_, V1B[prv], SB + 8)
        n = 0
        if more:
            ds_rd_v(a, V1B[prv], t + 1, 1); n += 1
        exps(a, SA, P1, P2)
        qk(a, SB, KB[prv], QB, CB)
        if t + 2 < NT:
            ds_rd_k(a, KB[prv], t + 2); n += 1
        exps(a, SA, P2, 10)
        if 'nowait' not in DBG:
            a(f"s_waitcnt lgkmcnt({n})")
        pv(a, OA, V0B[cur], SA)
        if more:
            ds_rd_v(a, V0B[prv], t + 1, 0)
        exps(a, SA, 10, 16)
        exps(a, SB, 0, P1)
        pv(a, OA, V1B[cur], SA + 8)
        exps(a, SB, P1, P2)
        if more:
            qk(a, SA, KB[cur], QA, CA)
        bnd = (t & 7) == 4 and 'nobar' not in DBG and (t >> 3) + 1 < 8
        if bnd:
            a("s_waitcnt vmcnt(0)")
            if CHK and (t >> 3) == 0:
                lab = a.uid("ca")
                a(f"s_cmp_lg_u32 s{S_W}, 0")
                a(f"s_cbranch_scc1 {lab}_o")
                a.label(lab)
                a(f"v_cmp_le_u32 vcc, 4, v{V_PROBE}")
                a("s_nop 0")
                a("s_and_b32 s60, vcc_lo, 0xff")
                a("s_cmp_eq_u32 s60, 0xff")
                a(f"s_cbranch_scc1 {lab}_o")
                a("s_mov_b64 exec, 0xff")
                a(f"global_load_dword v{V_PROBE}, v{V_PROBE+1}, s[{S_WS}:{S_WS+1}] sc1")
                a("s_mov_b64 exec, -1")
                a("s_sub_u32 s61, s61, 1")
                a("s_waitcnt vmcnt(0)")
                a("s_cmp_lg_u32 s61, 0")
                a(f"s_cbranch_scc1 {lab}")
                a.label(f"{lab}_o")
            a("s_barrier")
        exps(a, SB, P2, 10)
        pv(a, OB_, V0B[cur], SB)
        if bnd and (t >> 3) + 2 < 8:
            dma_chunk(a, (t >> 3) + 2)
        exps(a, SB, 10, 16)
        if CHK and OWN1 and t == 0:
            lab = a.uid("c1")
            a("s_waitcnt vmcnt(0)")
            a(f"s_cmp_lg_u32 s{S_W}, 0")
            a(f"s_cbranch_scc1 {lab}_o")
            a(f"s_add_u32 s59, s{S_QB}, 1")
            a("s_and_b32 s59, s59, 7")
            a.label(lab)
            a(f"v_cmp_le_u32 vcc, 4, v{V_PROBE}")
            a("s_nop 0")
            a("s_lshr_b32 s60, vcc_lo, s59")
            a("s_bitcmp1_b32 s60, 0")
            a(f"s_cbranch_scc1 {lab}_p")
            a("s_mov_b64 exec, 0xff")
            a(f"global_load_dword v{V_PROBE}, v{V_PROBE+1}, s[{S_WS}:{S_WS+1}] sc1")
            a("s_mov_b64 exec, -1")
            a("s_sub_u32 s61, s61, 1")
            a("s_waitcnt vmcnt(0)")
            a("s_cmp_lg_u32 s61, 0")
            a(f"s_cbranch_scc1 {lab}")
            a.label(f"{lab}_p")
            a("s_mov_b64 exec, 0xff")
            a(f"global_load_dword v{V_PROBE}, v{V_PROBE+1}, s[{S_WS}:{S_WS+1}] sc1")
            a("s_mov_b64 exec, -1")
            a.label(f"{lab}_o")
            a("s_barrier")
            dma_chunk(a, 1)
    a("s_nop 1")
    pv(a, OB_, V1B[(NT - 1) & 1], SB + 8)


STAMP = False
IN_SC1 = False
OWN1 = os.environ.get('OWN1')
CHK = None
V_PROBE = 157
V_OAD, V_OAD2 = 156, 159
WAIT_IN = None
OUT_SC1 = False
TWICE = False
S_ST = 40

def stamp(a, i):
    if STAMP:
        a(f"s_memtime s[{S_ST+2*i}:{S_ST+2*i+1}]")
        if i in (1, 2):
            a(f"s_memrealtime s[{S_ST+8+2*(i-1)}:{S_ST+8+2*(i-1)+1}]")


def attn_body(a, idreg, done_label):
    stamp(a, 0)
    a(f"s_and_b32 s{S_HEAD}, s{idreg}, 7")
    a(f"s_lshl_b32 s{S_HEAD}, s{S_HEAD}, 2")
    a(f"s_lshr_b32 s{S_T}, s{idreg}, 6")
    a(f"s_add_u32 s{S_HEAD}, s{S_HEAD}, s{S_T}")
    a(f"s_lshr_b32 s{S_QB}, s{idreg}, 3")
    a(f"s_and_b32 s{S_QB}, s{S_QB}, 7")
    a(f"v_lshlrev_b32 v{V_LANE16}, 4, v0")
    a(f"v_lshrrev_b32 v{V_T1}, 5, v0")
    a(f"v_lshlrev_b32 v{V_T1}, 8, v{V_T1}")
    a(f"v_and_b32 v{V_T2}, 15, v0")
    a(f"v_lshlrev_b32 v{V_T2}, 4, v{V_T2}")
    a(f"v_add_u32 v{V_VOFF}, v{V_T1}, v{V_T2}")
    a(f"v_and_b32 v{V_T1}, 16, v0")
    a(f"v_cmp_eq_u32 vcc, 0, v{V_T1}")
    for sl in range(3):
        a(f"v_mov_b32 v{V_T1}, {LDS_ONES}")
        a(f"v_mov_b32 v{V_T2}, {sl * SLOT + 8192}")
        a(f"v_cndmask_b32 v{V_T1}, v{V_T1}, v{V_T2}, vcc")
        a(f"v_add_u32 v{V_VA[sl]}, v{V_T1}, v{V_VOFF}")
    a(f"v_mov_b32 v{V_IDX}, 0xdddddddd")
    a(f"s_mov_b32 s{S_MASK}, 0x0000ffff")
    a(f"s_mov_b32 s{S_MASK+1}, 0x0000ffff")
    a(f"s_lshl_b32 s{S_T+4}, s{S_HEAD}, 16")
    a("s_waitcnt lgkmcnt(0)")
    a(f"s_add_u32 s{S_KBASE}, s{S_WS}, s{S_T+4}")
    a(f"s_addc_u32 s{S_KBASE+1}, s{S_WS+1}, 0")
    a(f"s_add_u32 s{S_QBASE}, s{S_KBASE}, {WS_QF}")
    a(f"s_addc_u32 s{S_QBASE+1}, s{S_KBASE+1}, 0")
    a(f"s_add_u32 s{S_T+5}, s{S_KBASE}, {WS_VF}")
    a(f"s_addc_u32 s{S_T+6}, s{S_KBASE+1}, 0")
    make_srd(a, S_VSRD, S_T + 5, S_T + 6, 65536)
    a(f"s_add_u32 s{S_KBASE}, s{S_KBASE}, {WS_KF}")
    a(f"s_addc_u32 s{S_KBASE+1}, s{S_KBASE+1}, 0")
    make_srd(a, S_KSRD, S_KBASE, S_KBASE + 1, 65536)
    a(f"s_lshl_b32 s{S_T}, s{S_W}, 11")
    a(f"s_lshr_b32 s{S_T+4}, s{S_HEAD}, 1")
    a(f"s_lshl_b32 s{S_T+4}, s{S_T+4}, 13")
    a(f"s_and_b32 s{S_T+5}, s{S_HEAD}, 1")
    a(f"s_lshl_b32 s{S_T+5}, s{S_T+5}, 10")
    a(f"s_add_u32 s{S_T+4}, s{S_T+4}, s{S_T+5}")
    a(f"s_add_u32 s{S_T+4}, s{S_T+4}, {WS_OB}")
    a(f"s_add_u32 s{S_OBASE}, s{S_WS}, s{S_T+4}")
    a(f"s_addc_u32 s{S_OBASE+1}, s{S_WS+1}, 0")
    a(f"s_lshl_b32 s{S_T+4}, s{S_QB}, 1")
    a(f"s_lshr_b32 s{S_T+5}, s{S_W}, 1")
    a(f"s_add_u32 s{S_T+4}, s{S_T+4}, s{S_T+5}")
    a(f"s_lshl_b32 s{S_T+4}, s{S_T+4}, 17")
    a(f"s_and_b32 s{S_T+5}, s{S_W}, 1")
    a(f"s_lshl_b32 s{S_T+5}, s{S_T+5}, 12")
    a(f"s_add_u32 s{S_T+4}, s{S_T+4}, s{S_T+5}")
    a(f"v_add_u32 v{V_OAD}, s{S_T+4}, v{V_LANE16}")
    a(f"v_add_u32 v{V_OAD2}, 2048, v{V_OAD}")
    a(f"s_lshl_b32 s{S_T+4}, s{S_QB}, 13")
    a(f"s_lshl_b32 s{S_T+5}, s{S_W}, 11")
    a(f"s_add_u32 s{S_T+4}, s{S_T+4}, s{S_T+5}")
    a(f"v_add_u32 v{V_T1}, s{S_T+4}, v{V_LANE16}")
    for r in range(32):
        a(f"v_mov_b32 v{CA+r}, 0")
    a(f"s_mov_b32 s{S_PASS}, 0")
    a(f"v_and_b32 v{V_T1}, 11, v0")
    a(f"v_cmp_eq_u32 vcc, 0, v{V_T1}")
    a(f"v_mov_b32 v{V_T2}, 0x3f803f80")
    a("s_nop 1")
    a(f"v_cndmask_b32 v{TMP}, 0, v{V_T2}, vcc")
    for r in range(1, 4):
        a(f"v_mov_b32 v{TMP+r}, v{TMP}")
    a(f"v_add_u32 v{V_T1}, s{S_T}, v{V_LANE16}")
    for i in range(2):
        a(f"ds_write_b128 v{V_T1}, v[{TMP}:{TMP+3}] offset:{LDS_ONES + i * 1024}")
    a(f"v_add_u32 v{V_T1}, s{S_T+4}, v{V_LANE16}")
    sc = ' sc1' if IN_SC1 else ''
    if CHK:
        CW = 62
        a(f"s_lshr_b32 s{CW}, s{S_HEAD}, 2")
        a(f"s_lshl_b32 s{CW}, s{CW}, 4")
        a(f"s_and_b32 s61, s{S_HEAD}, 1")
        a(f"s_add_u32 s{CW}, s{CW}, s61")

        a(f"v_lshlrev_b32 v{V_PROBE+1}, 1, v0")
        a(f"v_add_u32 v{V_PROBE+1}, s{CW}, v{V_PROBE+1}")
        a(f"v_lshlrev_b32 v{V_PROBE+1}, 8, v{V_PROBE+1}")
        a(f"v_add_u32 v{V_PROBE+1}, {CHK['base']}, v{V_PROBE+1}")
        a("s_mov_b32 s61, 200000")

        lab = a.uid("cw")
        a(f"s_cmp_lg_u32 s{S_W}, 0")
        a(f"s_cbranch_scc1 {lab}_o")
        a(f"s_lshl_b32 s59, 1, s{S_QB}")
        if not OWN1:
            a(f"s_add_u32 s60, s{S_QB}, 1")
            a("s_and_b32 s60, s60, 7")
            a("s_lshl_b32 s60, 1, s60")
            a("s_or_b32 s59, s59, s60")
        a.label(lab)
        a("s_mov_b32 exec_lo, s59")
        a("s_mov_b32 exec_hi, 0")
        a(f"global_load_dword v{V_PROBE}, v{V_PROBE+1}, s[{S_WS}:{S_WS+1}] sc1")
        a("s_waitcnt vmcnt(0)")
        a(f"v_cmp_le_u32 vcc, 4, v{V_PROBE}")
        a("s_mov_b64 exec, -1")
        a("s_sub_u32 s61, s61, 1")
        a("s_and_b32 s63, vcc_lo, s59")
        a("s_cmp_eq_u32 s61, 0")
        a(f"s_cbranch_scc1 {lab}_o")
        a("s_cmp_eq_u32 s63, s59")
        a(f"s_cbranch_scc1 {lab}_o")
        a(f"s_sleep {os.environ.get('QSLEEP', '2')}")
        a(f"s_branch {lab}")
        a.label(f"{lab}_o")
        a("s_barrier")
        pstamp(a, "qkv:flag")
    elif WAIT_IN:
        WAIT_IN(a)
    a(f"global_load_dwordx4 v[{QA}:{QA+3}], v{V_T1}, s[{S_QBASE}:{S_QBASE+1}]{sc}")
    a(f"global_load_dwordx4 v[{QB}:{QB+3}], v{V_T1}, s[{S_QBASE}:{S_QBASE+1}] offset:1024{sc}")
    dma_chunk(a, 0)
    if not (CHK and OWN1):
        dma_chunk(a, 1)
    if CHK:
        a(f"s_cmp_eq_u32 s{S_W}, 0")
        a("s_cselect_b32 s60, 0xff, 1")
        a("s_mov_b32 exec_lo, s60")
        a("s_mov_b32 exec_hi, 0")
        a(f"global_load_dword v{V_PROBE}, v{V_PROBE+1}, s[{S_WS}:{S_WS+1}] sc1")
        a("s_mov_b64 exec, -1")
    a.label("attn_pass")
    for r in range(32):
        a(f"v_mov_b32 v{OA+r}, 0")
    a(f"s_waitcnt vmcnt({(1 if OWN1 else 5) if CHK else 4}) lgkmcnt(0)")
    a("s_barrier")
    stamp(a, 1)
    pstamp(a, 'attn:first')
    main_loop(a)
    stamp(a, 2)
    pstamp(a, 'attn:loopend')
    if TWICE:
        a(f"s_cmp_lg_u32 s{S_PASS}, 0")
        a("s_cbranch_scc1 attn_tw")
        a(f"s_mov_b32 s{S_PASS}, 1")
        a("s_waitcnt lgkmcnt(0)")
        a(f"s_mov_b64 s[{S_ST}:{S_ST+1}], s[{S_ST+4}:{S_ST+5}]")
        a("s_barrier")
        dma_chunk(a, 0)
        dma_chunk(a, 1)
        a("s_branch attn_pass")
        a.label("attn_tw")
    a("s_nop 7")
    a("s_nop 7")
    for O, T, A in ((OA, TMP, V_OAD), (OB_, TMP + 4, V_OAD2)):
        a(f"v_rcp_f32 v{V_T3}, v{O+8}")
        a("s_nop 0")
        for r in range(8):
            a(f"v_mul_f32 v{O+r}, v{O+r}, v{V_T3}")
        for r in range(4):
            a(f"v_cvt_pk_bf16_f32 v{T+r}, v{O+2*r}, v{O+2*r+1}")
        a(f"global_store_dwordx4 v{A}, v[{T}:{T+3}], s[{S_OBASE}:{S_OBASE+1}]{' sc1' if OUT_SC1 else ''}")
    a(f"v_mov_b32 v{TMP+12}, 0")
    for O in (OA, OB_):
        for r in range(8):
            a(f"v_fma_f32 v{TMP+12}, v{O+r}, 0, v{TMP+12}")
    a(f"s_mov_b32 s{S_T+4}, 0x21800000")
    a(f"s_mov_b32 s{S_T+5}, 0x71800000")
    a(f"v_cmp_eq_f32 vcc, 0, v{TMP+12}")
    a(f"v_cmp_ge_f32 s[{S_T+6}:{S_T+7}], v{OA+8}, s{S_T+4}")
    a(f"s_and_b64 vcc, vcc, s[{S_T+6}:{S_T+7}]")
    a(f"v_cmp_le_f32 s[{S_T+6}:{S_T+7}], v{OA+8}, s{S_T+5}")
    a(f"s_and_b64 vcc, vcc, s[{S_T+6}:{S_T+7}]")
    a(f"v_cmp_ge_f32 s[{S_T+6}:{S_T+7}], v{OB_+8}, s{S_T+4}")
    a(f"s_and_b64 vcc, vcc, s[{S_T+6}:{S_T+7}]")
    a(f"v_cmp_le_f32 s[{S_T+6}:{S_T+7}], v{OB_+8}, s{S_T+5}")
    a(f"s_and_b64 vcc, vcc, s[{S_T+6}:{S_T+7}]")
    a(f"s_cmp_eq_u64 vcc, -1")
    a(f"s_cselect_b32 s{S_T+4}, 0, 1")
    a(f"s_lshl_b32 s{S_T+5}, s{S_W}, 2")
    a(f"s_add_u32 s{S_T+5}, s{S_T+5}, {LDS_FLAG}")
    a(f"v_mov_b32 v{TMP+12}, s{S_T+5}")
    a(f"v_mov_b32 v{TMP+13}, s{S_T+4}")
    a(f"ds_write_b32 v{TMP+12}, v{TMP+13}")
    a("s_waitcnt vmcnt(0) lgkmcnt(0)")
    a("s_barrier")
    a(f"s_cmp_lg_u32 s{S_PASS}, 0")
    a("s_cbranch_scc1 attn_fin")
    a(f"v_mov_b32 v{TMP}, {LDS_FLAG}")
    a(f"ds_read_b128 v[{TMP+4}:{TMP+7}], v{TMP}")
    a("s_waitcnt lgkmcnt(0)")
    a(f"v_or_b32 v{TMP+4}, v{TMP+4}, v{TMP+5}")
    a(f"v_or3_b32 v{TMP+4}, v{TMP+4}, v{TMP+6}, v{TMP+7}")
    a("s_nop 1")
    a(f"v_readfirstlane_b32 s{S_T+4}, v{TMP+4}")
    a("s_nop 3")
    a(f"s_cmp_eq_u32 s{S_T+4}, 0")
    a("s_cbranch_scc1 attn_fin")
    a(f"s_mov_b32 s{S_PASS}, 1")
    a(f"v_mov_b32 v{TMP+8}, 0xff800000")
    a(f"v_mov_b32 v{TMP+9}, 0xff800000")
    a(f"v_mov_b32 v{V_T1}, v{V_LANE16}")
    a(f"s_mov_b32 s{S_T+4}, 64")
    a.label("attn_maxloop")
    a(f"global_load_dwordx4 v[{KB[0]}:{KB[0]+3}], v{V_T1}, s[{S_KBASE}:{S_KBASE+1}]{' sc1' if IN_SC1 else ''}")
    a(f"v_add_u32 v{V_T1}, 1024, v{V_T1}")
    a("s_waitcnt vmcnt(0)")
    a(f"v_mfma_f32_32x32x16_bf16 v[{SA}:{SA+15}], v[{KB[0]}:{KB[0]+3}], v[{QA}:{QA+3}], 0")
    a(f"v_mfma_f32_32x32x16_bf16 v[{SB}:{SB+15}], v[{KB[0]}:{KB[0]+3}], v[{QB}:{QB+3}], 0")
    a("s_nop 15")
    a("s_nop 7")
    for S, M in ((SA, TMP + 8), (SB, TMP + 9)):
        for r in range(0, 16, 2):
            a(f"v_max3_f32 v{M}, v{S+r}, v{S+r+1}, v{M}")
    a(f"s_sub_u32 s{S_T+4}, s{S_T+4}, 1")
    a(f"s_cmp_lg_u32 s{S_T+4}, 0")
    a("s_cbranch_scc1 attn_maxloop")
    for M in (TMP + 8, TMP + 9):
        a(f"v_mov_b32 v{TMP+10}, v{M}")
        a("s_nop 1")
        a(f"v_permlane32_swap_b32 v{TMP+10}, v{M}")
        a("s_nop 1")
        a(f"v_max_f32 v{M}, v{TMP+10}, v{M}")
    for r in range(16):
        a(f"v_sub_f32 v{CA+r}, 0, v{TMP+8}")
        a(f"v_sub_f32 v{CB+r}, 0, v{TMP+9}")
    a("s_barrier")
    dma_chunk(a, 0)
    dma_chunk(a, 1)
    a("s_waitcnt vmcnt(4)")
    a("s_branch attn_pass")
    a.label("attn_fin")
    if STAMP:
        stamp(a, 3)
        a("s_waitcnt lgkmcnt(0)")
        a(f"s_load_dwordx2 s[60:61], s[0:1], {KA_DBG}")
        a(f"s_lshl_b32 s62, s{idreg}, 2")
        a(f"s_add_u32 s62, s62, s{S_W}")
        a(f"s_lshl_b32 s62, s62, 4")
        a(f"s_sub_u32 s{S_ST+2}, s{S_ST+2}, s{S_ST}")
        a(f"s_sub_u32 s{S_ST+4}, s{S_ST+4}, s{S_ST}")
        a(f"s_sub_u32 s{S_ST+6}, s{S_ST+6}, s{S_ST}")
        a(f"s_sub_u32 s{S_ST}, s{S_ST+10}, s{S_ST+8}")
        a(f"v_mov_b32 v{TMP}, s{S_ST}")
        a(f"v_mov_b32 v{TMP+1}, s{S_ST+2}")
        a(f"v_mov_b32 v{TMP+2}, s{S_ST+4}")
        a(f"v_mov_b32 v{TMP+3}, s{S_ST+6}")
        a(f"v_mov_b32 v{TMP+4}, s62")
        a("s_waitcnt lgkmcnt(0)")
        a(f"global_store_dwordx4 v{TMP+4}, v[{TMP}:{TMP+3}], s[60:61]")
    pstamp(a, 'attn:end')
    if done_label:
        a(f"s_branch {done_label}")
```

```python
from asmlib import *
from layout import *
import os
DBG = os.environ.get('ATTN_DBG', '')
SPACING = os.environ.get('SPACING', '1') != '0'

V_LANE16 = 1
V_VOFF = 2
V_T0 = 3
QA, QB = 4, 8
V_IDX = 12
V_T1, V_T2, V_T3 = 13, 14, 15
V_LANE16H = 152
KB = [16, 20]
V0B = [24, 28]
V1B = [32, 36]
SA, SB = 40, 56
OA, OB_ = 72, 88
CA, CB = 104, 120
TMP = 136
NV_ATTN = 160

SLOT = 16384
LDS_ONES = 3 * SLOT
LDS_FLAG = LDS_ONES + 8192
LDS_ATTN = LDS_FLAG + 64
V_VA = [153, 154, 155]

S_WS = 4
S_HEAD = 6
S_QB = 7
S_W = 8
S_KSRD = 12
S_VSRD = 16
S_MASK = 20
S_T = 22
S_PASS = 32
S_QBASE = 34
S_OBASE = 36
S_KBASE = 38


def dma_chunk(a, c):
    slot = (c % 3) * SLOT
    a(f"s_add_u32 m0, s{S_T}, {slot}")
    if CHK:
        a(f"s_add_u32 s{S_T+3}, s{S_QB}, {c}")
        a(f"s_and_b32 s{S_T+3}, s{S_T+3}, 7")
        a(f"s_lshl_b32 s{S_T+3}, s{S_T+3}, 13")
        a(f"s_add_u32 s{S_T+3}, s{S_T+3}, s{S_T}")
    else:
        a(f"s_add_u32 s{S_T+3}, s{S_T}, {c * 8192}")
    a(f"buffer_load_dwordx4 v{V_LANE16}, s[{S_KSRD}:{S_KSRD+3}], s{S_T+3} offen{' sc1' if IN_SC1 else ''} lds")
    a(f"buffer_load_dwordx4 v{V_LANE16}, s[{S_KSRD}:{S_KSRD+3}], s{S_T+3} offen offset:1024{' sc1' if IN_SC1 else ''} lds")
    a(f"s_add_u32 m0, s{S_T}, {slot + 8192}")
    a("s_nop 0")
    a(f"buffer_load_dwordx4 v{V_LANE16}, s[{S_VSRD}:{S_VSRD+3}], s{S_T+3} offen{' sc1' if IN_SC1 else ''} lds")
    a(f"buffer_load_dwordx4 v{V_LANE16}, s[{S_VSRD}:{S_VSRD+3}], s{S_T+3} offen offset:1024{' sc1' if IN_SC1 else ''} lds")


def k_addr(t):
    c, i = t >> 3, t & 7
    return (c % 3) * SLOT + i * 1024


def ds_rd_k(a, dst, t):
    if 'nods' in DBG:
        return
    a(f"ds_read_b128 v[{dst}:{dst+3}], v{V_LANE16} offset:{k_addr(t)}")


def ds_rd_v(a, dst, t, half):
    if 'nods' in DBG:
        return
    c, i = t >> 3, t & 7
    a(f"ds_read_b128 v[{dst}:{dst+3}], v{V_VA[c % 3]} offset:{(2 * i + half) * 512}")


def qk(a, S, K, Q, C):
    if 'noqk' in DBG:
        return
    a(f"v_mfma_f32_32x32x16_bf16 v[{S}:{S+15}], v[{K}:{K+3}], v[{Q}:{Q+3}], v[{C}:{C+15}]")


def pv(a, O, V, P):
    if 'nopv' in DBG:
        return
    a(f"v_smfmac_f32_32x32x32_bf16 v[{O}:{O+15}], v[{V}:{V+3}], v[{P}:{P+7}], v{V_IDX}")


def exps(a, S, lo, hi):
    for r in range(lo, hi):
        a(f"v_exp_f32 v{S+r}, v{S+r}")


def main_loop(a):
    NT = 64
    al = os.environ.get("ALIGN")
    if al is not None:
        a.raw(".p2align 6")
        for i in range(int(al)):
            a("s_nop 0")
    ds_rd_k(a, KB[1], 0)
    ds_rd_v(a, V1B[0], 0, 1)
    ds_rd_k(a, KB[0], 1)
    ds_rd_v(a, V0B[0], 0, 0)
    a("s_waitcnt lgkmcnt(3)")
    qk(a, SA, KB[1], QA, CA)
    a("s_nop 7")
    a("s_nop 3")
    for t in range(NT):
        cur, prv = t & 1, (t - 1) & 1
        more = t + 1 < NT
        P1, P2 = (4, 7) if SPACING else (2, 5)
        exps(a, SA, 0, P1)
        if t > 0:
            pv(a, OB_, V1B[prv], SB + 8)
        n = 0
        if more:
            ds_rd_v(a, V1B[prv], t + 1, 1); n += 1
        exps(a, SA, P1, P2)
        qk(a, SB, KB[prv], QB, CB)
        if t + 2 < NT:
            ds_rd_k(a, KB[prv], t + 2); n += 1
        exps(a, SA, P2, 10)
        if 'nowait' not in DBG:
            a(f"s_waitcnt lgkmcnt({n})")
        pv(a, OA, V0B[cur], SA)
        if more:
            ds_rd_v(a, V0B[prv], t + 1, 0)
        exps(a, SA, 10, 16)
        exps(a, SB, 0, P1)
        pv(a, OA, V1B[cur], SA + 8)
        exps(a, SB, P1, P2)
        if more:
            qk(a, SA, KB[cur], QA, CA)
        bnd = (t & 7) == 4 and 'nobar' not in DBG and (t >> 3) + 1 < 8
        if bnd:
            a("s_waitcnt vmcnt(0)")
            if CHK and (t >> 3) == 0:
                lab = a.uid("ca")
                a(f"s_cmp_lg_u32 s{S_W}, 0")
                a(f"s_cbranch_scc1 {lab}_o")
                a.label(lab)
                a(f"v_cmp_le_u32 vcc, 4, v{V_PROBE}")
                a("s_nop 0")
                a("s_and_b32 s60, vcc_lo, 0xff")
                a("s_cmp_eq_u32 s60, 0xff")
                a(f"s_cbranch_scc1 {lab}_o")
                a("s_mov_b64 exec, 0xff")
                a(f"global_load_dword v{V_PROBE}, v{V_PROBE+1}, s[{S_WS}:{S_WS+1}] sc1")
                a("s_mov_b64 exec, -1")
                a("s_sub_u32 s61, s61, 1")
                a("s_waitcnt vmcnt(0)")
                a("s_cmp_lg_u32 s61, 0")
                a(f"s_cbranch_scc1 {lab}")
                a.label(f"{lab}_o")
            a("s_barrier")
        exps(a, SB, P2, 10)
        pv(a, OB_, V0B[cur], SB)
        if bnd and (t >> 3) + 2 < 8:
            dma_chunk(a, (t >> 3) + 2)
        exps(a, SB, 10, 16)
        if CHK and OWN1 and t == 0:
            lab = a.uid("c1")
            a("s_waitcnt vmcnt(0)")
            a(f"s_cmp_lg_u32 s{S_W}, 0")
            a(f"s_cbranch_scc1 {lab}_o")
            a(f"s_add_u32 s59, s{S_QB}, 1")
            a("s_and_b32 s59, s59, 7")
            a.label(lab)
            a(f"v_cmp_le_u32 vcc, 4, v{V_PROBE}")
            a("s_nop 0")
            a("s_lshr_b32 s60, vcc_lo, s59")
            a("s_bitcmp1_b32 s60, 0")
            a(f"s_cbranch_scc1 {lab}_p")
            a("s_mov_b64 exec, 0xff")
            a(f"global_load_dword v{V_PROBE}, v{V_PROBE+1}, s[{S_WS}:{S_WS+1}] sc1")
            a("s_mov_b64 exec, -1")
            a("s_sub_u32 s61, s61, 1")
            a("s_waitcnt vmcnt(0)")
            a("s_cmp_lg_u32 s61, 0")
            a(f"s_cbranch_scc1 {lab}")
            a.label(f"{lab}_p")
            a("s_mov_b64 exec, 0xff")
            a(f"global_load_dword v{V_PROBE}, v{V_PROBE+1}, s[{S_WS}:{S_WS+1}] sc1")
            a("s_mov_b64 exec, -1")
            a.label(f"{lab}_o")
            a("s_barrier")
            dma_chunk(a, 1)
    a("s_nop 1")
    pv(a, OB_, V1B[(NT - 1) & 1], SB + 8)


STAMP = False
IN_SC1 = False
OWN1 = os.environ.get('OWN1')
CHK = None
V_PROBE = 157
V_OAD, V_OAD2 = 156, 159
WAIT_IN = None
OUT_SC1 = False
TWICE = False
S_ST = 40

def stamp(a, i):
    if STAMP:
        a(f"s_memtime s[{S_ST+2*i}:{S_ST+2*i+1}]")
        if i in (1, 2):
            a(f"s_memrealtime s[{S_ST+8+2*(i-1)}:{S_ST+8+2*(i-1)+1}]")


def attn_body(a, idreg, done_label):
    stamp(a, 0)
    a(f"s_and_b32 s{S_HEAD}, s{idreg}, 7")
    a(f"s_lshl_b32 s{S_HEAD}, s{S_HEAD}, 2")
    a(f"s_lshr_b32 s{S_T}, s{idreg}, 6")
    a(f"s_add_u32 s{S_HEAD}, s{S_HEAD}, s{S_T}")
    a(f"s_lshr_b32 s{S_QB}, s{idreg}, 3")
    a(f"s_and_b32 s{S_QB}, s{S_QB}, 7")
    a(f"v_lshlrev_b32 v{V_LANE16}, 4, v0")
    a(f"v_lshrrev_b32 v{V_T1}, 5, v0")
    a(f"v_lshlrev_b32 v{V_T1}, 8, v{V_T1}")
    a(f"v_and_b32 v{V_T2}, 15, v0")
    a(f"v_lshlrev_b32 v{V_T2}, 4, v{V_T2}")
    a(f"v_add_u32 v{V_VOFF}, v{V_T1}, v{V_T2}")
    a(f"v_and_b32 v{V_T1}, 16, v0")
    a(f"v_cmp_eq_u32 vcc, 0, v{V_T1}")
    for sl in range(3):
        a(f"v_mov_b32 v{V_T1}, {LDS_ONES}")
        a(f"v_mov_b32 v{V_T2}, {sl * SLOT + 8192}")
        a(f"v_cndmask_b32 v{V_T1}, v{V_T1}, v{V_T2}, vcc")
        a(f"v_add_u32 v{V_VA[sl]}, v{V_T1}, v{V_VOFF}")
    a(f"v_mov_b32 v{V_IDX}, 0xdddddddd")
    a(f"s_mov_b32 s{S_MASK}, 0x0000ffff")
    a(f"s_mov_b32 s{S_MASK+1}, 0x0000ffff")
    a(f"s_lshl_b32 s{S_T+4}, s{S_HEAD}, 16")
    a("s_waitcnt lgkmcnt(0)")
    a(f"s_add_u32 s{S_KBASE}, s{S_WS}, s{S_T+4}")
    a(f"s_addc_u32 s{S_KBASE+1}, s{S_WS+1}, 0")
    a(f"s_add_u32 s{S_QBASE}, s{S_KBASE}, {WS_QF}")
    a(f"s_addc_u32 s{S_QBASE+1}, s{S_KBASE+1}, 0")
    a(f"s_add_u32 s{S_T+5}, s{S_KBASE}, {WS_VF}")
    a(f"s_addc_u32 s{S_T+6}, s{S_KBASE+1}, 0")
    make_srd(a, S_VSRD, S_T + 5, S_T + 6, 65536)
    a(f"s_add_u32 s{S_KBASE}, s{S_KBASE}, {WS_KF}")
    a(f"s_addc_u32 s{S_KBASE+1}, s{S_KBASE+1}, 0")
    make_srd(a, S_KSRD, S_KBASE, S_KBASE + 1, 65536)
    a(f"s_lshl_b32 s{S_T}, s{S_W}, 11")
    a(f"s_lshr_b32 s{S_T+4}, s{S_HEAD}, 1")
    a(f"s_lshl_b32 s{S_T+4}, s{S_T+4}, 13")
    a(f"s_and_b32 s{S_T+5}, s{S_HEAD}, 1")
    a(f"s_lshl_b32 s{S_T+5}, s{S_T+5}, 10")
    a(f"s_add_u32 s{S_T+4}, s{S_T+4}, s{S_T+5}")
    a(f"s_add_u32 s{S_T+4}, s{S_T+4}, {WS_OB}")
    a(f"s_add_u32 s{S_OBASE}, s{S_WS}, s{S_T+4}")
    a(f"s_addc_u32 s{S_OBASE+1}, s{S_WS+1}, 0")
    a(f"s_lshl_b32 s{S_T+4}, s{S_QB}, 1")
    a(f"s_lshr_b32 s{S_T+5}, s{S_W}, 1")
    a(f"s_add_u32 s{S_T+4}, s{S_T+4}, s{S_T+5}")
    a(f"s_lshl_b32 s{S_T+4}, s{S_T+4}, 17")
    a(f"s_and_b32 s{S_T+5}, s{S_W}, 1")
    a(f"s_lshl_b32 s{S_T+5}, s{S_T+5}, 12")
    a(f"s_add_u32 s{S_T+4}, s{S_T+4}, s{S_T+5}")
    a(f"v_add_u32 v{V_OAD}, s{S_T+4}, v{V_LANE16}")
    a(f"v_add_u32 v{V_OAD2}, 2048, v{V_OAD}")
    a(f"s_lshl_b32 s{S_T+4}, s{S_QB}, 13")
    a(f"s_lshl_b32 s{S_T+5}, s{S_W}, 11")
    a(f"s_add_u32 s{S_T+4}, s{S_T+4}, s{S_T+5}")
    a(f"v_add_u32 v{V_T1}, s{S_T+4}, v{V_LANE16}")
    for r in range(32):
        a(f"v_mov_b32 v{CA+r}, 0")
    a(f"s_mov_b32 s{S_PASS}, 0")
    a(f"v_and_b32 v{V_T1}, 11, v0")
    a(f"v_cmp_eq_u32 vcc, 0, v{V_T1}")
    a(f"v_mov_b32 v{V_T2}, 0x3f803f80")
    a("s_nop 1")
    a(f"v_cndmask_b32 v{TMP}, 0, v{V_T2}, vcc")
    for r in range(1, 4):
        a(f"v_mov_b32 v{TMP+r}, v{TMP}")
    a(f"v_add_u32 v{V_T1}, s{S_T}, v{V_LANE16}")
    for i in range(2):
        a(f"ds_write_b128 v{V_T1}, v[{TMP}:{TMP+3}] offset:{LDS_ONES + i * 1024}")
    a(f"v_add_u32 v{V_T1}, s{S_T+4}, v{V_LANE16}")
    sc = ' sc1' if IN_SC1 else ''
    if CHK:
        CW = 62
        a(f"s_lshr_b32 s{CW}, s{S_HEAD}, 2")
        a(f"s_lshl_b32 s{CW}, s{CW}, 4")
        a(f"s_and_b32 s61, s{S_HEAD}, 1")
        a(f"s_add_u32 s{CW}, s{CW}, s61")

        a(f"v_lshlrev_b32 v{V_PROBE+1}, 1, v0")
        a(f"v_add_u32 v{V_PROBE+1}, s{CW}, v{V_PROBE+1}")
        a(f"v_lshlrev_b32 v{V_PROBE+1}, 8, v{V_PROBE+1}")
        a(f"v_add_u32 v{V_PROBE+1}, {CHK['base']}, v{V_PROBE+1}")
        a("s_mov_b32 s61, 200000")

        lab = a.uid("cw")
        a(f"s_cmp_lg_u32 s{S_W}, 0")
        a(f"s_cbranch_scc1 {lab}_o")
        a(f"s_lshl_b32 s59, 1, s{S_QB}")
        if not OWN1:
            a(f"s_add_u32 s60, s{S_QB}, 1")
            a("s_and_b32 s60, s60, 7")
            a("s_lshl_b32 s60, 1, s60")
            a("s_or_b32 s59, s59, s60")
        a.label(lab)
        a("s_mov_b32 exec_lo, s59")
        a("s_mov_b32 exec_hi, 0")
        a(f"global_load_dword v{V_PROBE}, v{V_PROBE+1}, s[{S_WS}:{S_WS+1}] sc1")
        a("s_waitcnt vmcnt(0)")
        a(f"v_cmp_le_u32 vcc, 4, v{V_PROBE}")
        a("s_mov_b64 exec, -1")
        a("s_sub_u32 s61, s61, 1")
        a("s_and_b32 s63, vcc_lo, s59")
        a("s_cmp_eq_u32 s61, 0")
        a(f"s_cbranch_scc1 {lab}_o")
        a("s_cmp_eq_u32 s63, s59")
        a(f"s_cbranch_scc1 {lab}_o")
        a(f"s_sleep {os.environ.get('QSLEEP', '2')}")
        a(f"s_branch {lab}")
        a.label(f"{lab}_o")
        a("s_barrier")
        pstamp(a, "qkv:flag")
    elif WAIT_IN:
        WAIT_IN(a)
    a(f"global_load_dwordx4 v[{QA}:{QA+3}], v{V_T1}, s[{S_QBASE}:{S_QBASE+1}]{sc}")
    a(f"global_load_dwordx4 v[{QB}:{QB+3}], v{V_T1}, s[{S_QBASE}:{S_QBASE+1}] offset:1024{sc}")
    dma_chunk(a, 0)
    if not (CHK and OWN1):
        dma_chunk(a, 1)
    if CHK:
        a(f"s_cmp_eq_u32 s{S_W}, 0")
        a("s_cselect_b32 s60, 0xff, 1")
        a("s_mov_b32 exec_lo, s60")
        a("s_mov_b32 exec_hi, 0")
        a(f"global_load_dword v{V_PROBE}, v{V_PROBE+1}, s[{S_WS}:{S_WS+1}] sc1")
        a("s_mov_b64 exec, -1")
    a.label("attn_pass")
    for r in range(32):
        a(f"v_mov_b32 v{OA+r}, 0")
    a(f"s_waitcnt vmcnt({(1 if OWN1 else 5) if CHK else 4}) lgkmcnt(0)")
    a("s_barrier")
    stamp(a, 1)
    pstamp(a, 'attn:first')
    main_loop(a)
    stamp(a, 2)
    pstamp(a, 'attn:loopend')
    if TWICE:
        a(f"s_cmp_lg_u32 s{S_PASS}, 0")
        a("s_cbranch_scc1 attn_tw")
        a(f"s_mov_b32 s{S_PASS}, 1")
        a("s_waitcnt lgkmcnt(0)")
        a(f"s_mov_b64 s[{S_ST}:{S_ST+1}], s[{S_ST+4}:{S_ST+5}]")
        a("s_barrier")
        dma_chunk(a, 0)
        dma_chunk(a, 1)
        a("s_branch attn_pass")
        a.label("attn_tw")
    a("s_nop 7")
    a("s_nop 7")
    for O, T, A in ((OA, TMP, V_OAD), (OB_, TMP + 4, V_OAD2)):
        a(f"v_rcp_f32 v{V_T3}, v{O+8}")
        a("s_nop 0")
        for r in range(8):
            a(f"v_mul_f32 v{O+r}, v{O+r}, v{V_T3}")
        for r in range(4):
            a(f"v_cvt_pk_bf16_f32 v{T+r}, v{O+2*r}, v{O+2*r+1}")
        a(f"global_store_dwordx4 v{A}, v[{T}:{T+3}], s[{S_OBASE}:{S_OBASE+1}]{' sc1' if OUT_SC1 else ''}")
    a(f"v_mov_b32 v{TMP+12}, 0")
    for O in (OA, OB_):
        for r in range(8):
            a(f"v_fma_f32 v{TMP+12}, v{O+r}, 0, v{TMP+12}")
    a(f"s_mov_b32 s{S_T+4}, 0x21800000")
    a(f"s_mov_b32 s{S_T+5}, 0x71800000")
    a(f"v_cmp_eq_f32 vcc, 0, v{TMP+12}")
    a(f"v_cmp_ge_f32 s[{S_T+6}:{S_T+7}], v{OA+8}, s{S_T+4}")
    a(f"s_and_b64 vcc, vcc, s[{S_T+6}:{S_T+7}]")
    a(f"v_cmp_le_f32 s[{S_T+6}:{S_T+7}], v{OA+8}, s{S_T+5}")
    a(f"s_and_b64 vcc, vcc, s[{S_T+6}:{S_T+7}]")
    a(f"v_cmp_ge_f32 s[{S_T+6}:{S_T+7}], v{OB_+8}, s{S_T+4}")
    a(f"s_and_b64 vcc, vcc, s[{S_T+6}:{S_T+7}]")
    a(f"v_cmp_le_f32 s[{S_T+6}:{S_T+7}], v{OB_+8}, s{S_T+5}")
    a(f"s_and_b64 vcc, vcc, s[{S_T+6}:{S_T+7}]")
    a(f"s_cmp_eq_u64 vcc, -1")
    a(f"s_cselect_b32 s{S_T+4}, 0, 1")
    a(f"s_lshl_b32 s{S_T+5}, s{S_W}, 2")
    a(f"s_add_u32 s{S_T+5}, s{S_T+5}, {LDS_FLAG}")
    a(f"v_mov_b32 v{TMP+12}, s{S_T+5}")
    a(f"v_mov_b32 v{TMP+13}, s{S_T+4}")
    a(f"ds_write_b32 v{TMP+12}, v{TMP+13}")
    a("s_waitcnt vmcnt(0) lgkmcnt(0)")
    a("s_barrier")
    a(f"s_cmp_lg_u32 s{S_PASS}, 0")
    a("s_cbranch_scc1 attn_fin")
    a(f"v_mov_b32 v{TMP}, {LDS_FLAG}")
    a(f"ds_read_b128 v[{TMP+4}:{TMP+7}], v{TMP}")
    a("s_waitcnt lgkmcnt(0)")
    a(f"v_or_b32 v{TMP+4}, v{TMP+4}, v{TMP+5}")
    a(f"v_or3_b32 v{TMP+4}, v{TMP+4}, v{TMP+6}, v{TMP+7}")
    a("s_nop 1")
    a(f"v_readfirstlane_b32 s{S_T+4}, v{TMP+4}")
    a("s_nop 3")
    a(f"s_cmp_eq_u32 s{S_T+4}, 0")
    a("s_cbranch_scc1 attn_fin")
    a(f"s_mov_b32 s{S_PASS}, 1")
    a(f"v_mov_b32 v{TMP+8}, 0xff800000")
    a(f"v_mov_b32 v{TMP+9}, 0xff800000")
    a(f"v_mov_b32 v{V_T1}, v{V_LANE16}")
    a(f"s_mov_b32 s{S_T+4}, 64")
    a.label("attn_maxloop")
    a(f"global_load_dwordx4 v[{KB[0]}:{KB[0]+3}], v{V_T1}, s[{S_KBASE}:{S_KBASE+1}]{' sc1' if IN_SC1 else ''}")
    a(f"v_add_u32 v{V_T1}, 1024, v{V_T1}")
    a("s_waitcnt vmcnt(0)")
    a(f"v_mfma_f32_32x32x16_bf16 v[{SA}:{SA+15}], v[{KB[0]}:{KB[0]+3}], v[{QA}:{QA+3}], 0")
    a(f"v_mfma_f32_32x32x16_bf16 v[{SB}:{SB+15}], v[{KB[0]}:{KB[0]+3}], v[{QB}:{QB+3}], 0")
    a("s_nop 15")
    a("s_nop 7")
    for S, M in ((SA, TMP + 8), (SB, TMP + 9)):
        for r in range(0, 16, 2):
            a(f"v_max3_f32 v{M}, v{S+r}, v{S+r+1}, v{M}")
    a(f"s_sub_u32 s{S_T+4}, s{S_T+4}, 1")
    a(f"s_cmp_lg_u32 s{S_T+4}, 0")
    a("s_cbranch_scc1 attn_maxloop")
    for M in (TMP + 8, TMP + 9):
        a(f"v_mov_b32 v{TMP+10}, v{M}")
        a("s_nop 1")
        a(f"v_permlane32_swap_b32 v{TMP+10}, v{M}")
        a("s_nop 1")
        a(f"v_max_f32 v{M}, v{TMP+10}, v{M}")
    for r in range(16):
        a(f"v_sub_f32 v{CA+r}, 0, v{TMP+8}")
        a(f"v_sub_f32 v{CB+r}, 0, v{TMP+9}")
    a("s_barrier")
    dma_chunk(a, 0)
    dma_chunk(a, 1)
    a("s_waitcnt vmcnt(4)")
    a("s_branch attn_pass")
    a.label("attn_fin")
    if STAMP:
        stamp(a, 3)
        a("s_waitcnt lgkmcnt(0)")
        a(f"s_load_dwordx2 s[60:61], s[0:1], {KA_DBG}")
        a(f"s_lshl_b32 s62, s{idreg}, 2")
        a(f"s_add_u32 s62, s62, s{S_W}")
        a(f"s_lshl_b32 s62, s62, 4")
        a(f"s_sub_u32 s{S_ST+2}, s{S_ST+2}, s{S_ST}")
        a(f"s_sub_u32 s{S_ST+4}, s{S_ST+4}, s{S_ST}")
        a(f"s_sub_u32 s{S_ST+6}, s{S_ST+6}, s{S_ST}")
        a(f"s_sub_u32 s{S_ST}, s{S_ST+10}, s{S_ST+8}")
        a(f"v_mov_b32 v{TMP}, s{S_ST}")
        a(f"v_mov_b32 v{TMP+1}, s{S_ST+2}")
        a(f"v_mov_b32 v{TMP+2}, s{S_ST+4}")
        a(f"v_mov_b32 v{TMP+3}, s{S_ST+6}")
        a(f"v_mov_b32 v{TMP+4}, s62")
        a("s_waitcnt lgkmcnt(0)")
        a(f"global_store_dwordx4 v{TMP+4}, v[{TMP}:{TMP+3}], s[60:61]")
    pstamp(a, 'attn:end')
    if done_label:
        a(f"s_branch {done_label}")
```

```python
from asmlib import *
from layout import *
from gemm import S_W, S_RB, S_CB, SRD_A, SRD_W, S_SOA, S_SOW, S_LDW, S_T, S_P0, S_WS, V_T

V_OA = 1
V_OW = 2
V_RW = 6
AR = 16
BIAS = 4096


class VmQ:
    def __init__(self):
        self.q = []
    def add(self, tag, n):
        self.q.append((tag, n))
    def wait_for(self, tags):
        last = max(i for i, (t, n) in enumerate(self.q) if t in tags)
        return sum(n for t, n in self.q[last + 1:])


class SK:
    def __init__(self, name, nst, ring, acc, wf, a_sc1):
        self.name, self.NS, self.R, self.acc, self.wf = name, nst, ring, acc, wf
        self.sc = " sc1" if a_sc1 else ""


def decode64(a, idreg):
    a(f"s_and_b32 s{S_RB}, s{idreg}, 3")
    a(f"s_lshl_b32 s{S_RB}, s{S_RB}, 3")
    a(f"s_bfe_u32 s{S_T}, s{idreg}, 0x30003")
    a(f"s_add_u32 s{S_RB}, s{S_RB}, s{S_T}")
    a(f"s_bfe_u32 s{S_CB}, s{idreg}, 0x10002")
    a(f"s_lshl_b32 s{S_CB}, s{S_CB}, 2")
    a(f"s_lshr_b32 s{S_T}, s{idreg}, 6")
    a(f"s_add_u32 s{S_CB}, s{S_CB}, s{S_T}")


def setup_lanes(a):
    T0, T1, T2 = V_T, V_T + 1, V_T + 2
    a(f"v_lshlrev_b32 v{V_OA}, 4, v0")
    a(f"v_lshrrev_b32 v{T0}, 2, v0")
    a(f"v_lshlrev_b32 v{T0}, 10, v{T0}")
    a(f"v_and_b32 v{T1}, 3, v0")
    a(f"v_lshlrev_b32 v{T1}, 4, v{T1}")
    a(f"s_lshl_b32 s{S_T}, s{S_CB}, 7")
    a(f"v_add3_u32 v{T0}, v{T0}, v{T1}, s{S_T}")
    for q in range(4):
        i, c = q >> 1, q & 1
        a(f"v_add_u32 v{V_OW+q}, {16 * 1024 * i + 64 * c - 1024 * q + BIAS}, v{T0}")
    a(f"s_mul_i32 s{S_LDW}, s{S_W}, 20480")
    a(f"v_lshrrev_b32 v{T0}, 5, v0")
    a(f"v_lshlrev_b32 v{T0}, 2, v{T0}")
    a(f"v_bfe_u32 v{T1}, v0, 2, 2")
    a(f"v_add_u32 v{T0}, v{T0}, v{T1}")
    a(f"v_lshlrev_b32 v{T0}, 6, v{T0}")
    a(f"v_bfe_u32 v{T1}, v0, 4, 1")
    a(f"v_lshlrev_b32 v{T1}, 5, v{T1}")
    a(f"v_and_b32 v{T2}, 3, v0")
    a(f"v_lshlrev_b32 v{T2}, 3, v{T2}")
    a(f"v_add3_u32 v{T0}, v{T0}, v{T1}, v{T2}")
    a(f"v_add_u32 v{V_RW}, s{S_LDW}, v{T0}")


def setup_srds(a, j, w_lo, a_ws_off, ntiles, per_wave):
    a(f"s_lshr_b32 s{S_T}, s{S_RB}, 1")
    a(f"s_mul_i32 s{S_T}, s{S_T}, {ntiles * 8192}")
    a(f"s_add_u32 s{S_T}, s{S_T}, {a_ws_off}")
    a(f"s_add_u32 s{SRD_A}, s{S_WS}, s{S_T}")
    a(f"s_addc_u32 s{SRD_A+1}, s{S_WS+1}, 0")
    a(f"s_and_b32 s{SRD_A+1}, s{SRD_A+1}, 0xffff")
    a(f"s_mov_b32 s{SRD_A+2}, {ntiles * 8192}")
    a(f"s_mov_b32 s{SRD_A+3}, 0x20000")
    a(f"s_mul_i32 s{S_SOA}, s{S_W}, {per_wave * 8192}")
    a(f"s_and_b32 s{S_T}, s{S_RB}, 1")
    a(f"s_lshl_b32 s{S_T}, s{S_T}, 12")
    a(f"s_add_u32 s{S_SOA}, s{S_SOA}, s{S_T}")
    a(f"s_sub_u32 s{SRD_W}, s{w_lo}, {BIAS}")
    a(f"s_subb_u32 s{SRD_W+1}, s{w_lo+1}, 0")
    a(f"s_and_b32 s{SRD_W+1}, s{SRD_W+1}, 0xffff")
    a(f"s_mov_b32 s{SRD_W+2}, {ntiles * 32 * 1024 + BIAS}")
    a(f"s_mov_b32 s{SRD_W+3}, 0x20000")
    a(f"s_mul_i32 s{S_SOW}, s{S_W}, {per_wave * 32 * 1024}")


def w_loads(a, j, st):
    a(f"s_add_u32 m0, s{S_LDW}, {(st % j.R) * 4096}")
    a("s_nop 0")
    for q in range(4):
        off = f" offset:{1024 * q}" if q else ""
        a(f"buffer_load_dwordx4 v{V_OW+q}, s[{SRD_W}:{SRD_W+3}], s{S_SOW} offen{off} lds")
    a(f"s_add_u32 s{S_SOW}, s{S_SOW}, 32768")


def a_loads(a, j, st):
    r = AR + (st % j.R) * 16
    for q in range(4):
        off = f" offset:{1024 * q}" if q else ""
        a(f"buffer_load_dwordx4 v[{r+4*q}:{r+4*q+3}], v{V_OA}, s[{SRD_A}:{SRD_A+3}], s{S_SOA} offen{off}{j.sc}")
    a(f"s_add_u32 s{S_SOA}, s{S_SOA}, 8192")


def w_reads(j, st):
    b = st & 1
    out = []
    for s in range(2):
        for c in range(2):
            d = j.wf + b * 16 + (2 * s + c) * 4
            for half in range(2):
                off = (st % j.R) * 4096 + s * 2048 + c * 1024 + half * 512
                out.append(f"ds_read_b64_tr_b16 v[{d+2*half}:{d+2*half+1}], v{V_RW} offset:{off}")
    return out


def mfmas(j, st):
    b = st & 1
    r = AR + (st % j.R) * 16
    out = []
    for s in range(2):
        for aa in range(2):
            for c in range(2):
                acc = j.acc + (2 * aa + c) * 16
                w = j.wf + b * 16 + (2 * s + c) * 4
                f = r + (2 * aa + s) * 4
                out.append(f"v_mfma_f32_32x32x16_bf16 v[{acc}:{acc+15}], v[{w}:{w+3}], v[{f}:{f+3}], v[{acc}:{acc+15}]")
    return out


def loop(a, j, q, need=None):
    R, NS = j.R, j.NS
    issued = min(R, NS)
    a(f"s_waitcnt vmcnt({q.wait_for([('W', 0), ('A', 0)])})")
    pstamp(a, j.name + ":first")
    for r in w_reads(j, 0):
        a(r)
    for st in range(NS):
        ms = mfmas(j, st)
        if st + 1 < NS:
            a(f"s_waitcnt vmcnt({q.wait_for([('W', st + 1), ('A', st + 1)])}) lgkmcnt(0)")
            rs = w_reads(j, st + 1)
            for i, m in enumerate(ms):
                a(m)
                a(rs[i])
            if issued < NS:
                w_loads(a, j, issued); q.add(('W', issued), 4)
                if need:
                    need(a, issued)
                a_loads(a, j, issued); q.add(('A', issued), 4)
                issued += 1
        else:
            a("s_waitcnt lgkmcnt(0)")
            for m in ms:
                a(m)


def reduce(a, j, tmp):
    a("s_nop 7")
    a("s_nop 7")
    a("s_barrier")
    a(f"s_lshl_b32 s{S_T}, s{S_W}, 12")
    a(f"v_add_u32 v{V_T}, s{S_T}, v{V_OA}")
    for t in range(4):
        for q in range(4):
            a(f"ds_write_b128 v{V_T}, v[{j.acc+16*t+4*q}:{j.acc+16*t+4*q+3}] offset:{t * 16384 + q * 1024}")
    a("s_waitcnt lgkmcnt(0)")
    a("s_barrier")
    a(f"s_lshl_b32 s{S_T}, s{S_W}, 14")
    a(f"v_add_u32 v{V_T}, s{S_T}, v{V_OA}")
    for w in range(4):
        for q in range(4):
            a(f"ds_read_b128 v[{j.acc+16*w+4*q}:{j.acc+16*w+4*q+3}], v{V_T} offset:{w * 4096 + q * 1024}")
    a("s_waitcnt lgkmcnt(0)")
    for r in range(16):
        a(f"v_add_f32 v{tmp+r}, v{j.acc+r}, v{j.acc+16+r}")
        a(f"v_add_f32 v{j.acc+32+r}, v{j.acc+32+r}, v{j.acc+48+r}")
    for r in range(16):
        a(f"v_add_f32 v{tmp+r}, v{tmp+r}, v{j.acc+32+r}")


def zero_acc(a, j):
    for r in range(64):
        a(f"v_mov_b32 v{j.acc+r}, 0")


ACC, WF, RES_D, RES_W = 96, 160, 232, 208


def g_load(a, dst, tmp):
    a(f"s_lshl_b32 s{S_T}, s{S_RB}, 6")
    a(f"s_lshr_b32 s{S_T+1}, s{S_W}, 1")
    a(f"s_lshl_b32 s{S_T+1}, s{S_T+1}, 5")
    a(f"s_add_u32 s{S_T}, s{S_T}, s{S_T+1}")
    a(f"s_lshl_b32 s{S_T}, s{S_T}, 6")
    a(f"s_add_u32 s{S_T}, s{S_T}, {WS_G}")
    a(f"v_bfe_u32 v{tmp}, v0, 1, 4")
    a(f"v_lshlrev_b32 v{tmp}, 7, v{tmp}")
    a(f"v_and_b32 v{dst}, 1, v0")
    a(f"v_lshlrev_b32 v{dst}, 2, v{dst}")
    a(f"v_add3_u32 v{tmp}, v{tmp}, v{dst}, s{S_T}")
    a(f"global_load_dword v{dst}, v{tmp}, s[{S_WS}:{S_WS+1}] sc1")


def d_job(a, idreg, a_sc1=True, wait=None, post_prio=None, loop_prio=None, prog=None):
    j = SK("d", 11, 5, ACC, WF, a_sc1)
    P_W = S_P0
    a(f"s_load_dwordx2 s[{P_W}:{P_W+1}], s[0:1], {KA_WD}")
    decode64(a, idreg)
    setup_lanes(a)
    a("s_waitcnt lgkmcnt(0)")
    setup_srds(a, j, P_W, WS_H, 43, 11)
    q = VmQ()
    nw0 = j.R if prog is None else 2
    for st in range(nw0):
        w_loads(a, j, st); q.add(('W', st), 4)
    zero_acc(a, j)
    need = None
    if prog is not None:
        VP, VPA, S_RDY, S_LIM = 9, 10, 58, 59
        a(f"s_mul_i32 s{S_T}, s{S_W}, 11")
        a(f"v_add_u32 v{VPA}, s{S_T}, v0")
        a(f"v_min_u32 v{VPA}, 42, v{VPA}")
        a(f"v_mul_u32_u24 v{VP}, 21846, v{VPA}")
        a(f"v_lshrrev_b32 v{VP}, 16, v{VP}")
        a(f"v_subrev_u32 v{V_T}, 33, v{VPA}")
        a(f"v_lshrrev_b32 v{V_T}, 1, v{V_T}")
        a(f"v_add_u32 v{V_T}, 11, v{V_T}")
        a(f"v_cmp_gt_u32 vcc, 33, v{VPA}")
        a("s_nop 1")
        a(f"v_cndmask_b32 v{VP}, v{V_T}, v{VP}, vcc")
        a(f"s_lshr_b32 s{S_T}, s{S_RB}, 1")
        a(f"s_lshl_b32 s{S_T}, s{S_T}, 4")
        a(f"v_add_u32 v{VPA}, s{S_T}, v{VP}")
        a(f"v_lshlrev_b32 v{VPA}, 8, v{VPA}")
        a(f"v_add_u32 v{VPA}, {prog}, v{VPA}")
        a(f"s_mov_b32 s{S_RDY}, 0")
        a(f"s_mov_b32 s{S_LIM}, 200000")

        def need(a, st):
            lab = a.uid("nd")
            a(f"s_bitcmp1_b32 s{S_RDY}, {st}")
            a(f"s_cbranch_scc1 {lab}_ok")
            a.label(lab)
            a("s_mov_b64 exec, 0x7ff")
            a(f"global_load_dword v{VP}, v{VPA}, s[{S_WS}:{S_WS+1}] sc1")
            a("s_mov_b64 exec, -1")
            a("s_waitcnt vmcnt(0)")
            a(f"v_cmp_le_u32 vcc, 1, v{VP}")
            a(f"s_sub_u32 s{S_LIM}, s{S_LIM}, 1")
            a(f"s_and_b32 s{S_RDY}, vcc_lo, 0x7ff")
            a(f"s_cmp_eq_u32 s{S_LIM}, 0")
            a(f"s_cbranch_scc1 {lab}_ok")
            a(f"s_bitcmp1_b32 s{S_RDY}, {st}")
            a(f"s_cbranch_scc1 {lab}_ok")
            a("s_sleep 6")
            a(f"s_branch {lab}")
            a.label(f"{lab}_ok")
    elif wait:
        wait(a)
    pstamp(a, "flag")
    if loop_prio is not None:
        a(f"s_setprio {loop_prio}")
    for st in range(j.R):
        if st >= nw0:
            w_loads(a, j, st); q.add(('W', st), 4)
        if need:
            need(a, st)
        a_loads(a, j, st); q.add(('A', st), 4)
    loop(a, j, q, need)
    pstamp(a, "d:loopend")
    if post_prio is not None:
        a(f"s_setprio {post_prio}")
    reduce(a, j, RES_D)
    pstamp(a, "d:end")
    return j


def bp_addr(a, dst):
    a(f"s_lshl_b32 s{S_T}, s{S_RB}, 3")
    a(f"s_add_u32 s{S_T}, s{S_T}, s{S_CB}")
    a(f"s_lshl_b32 s{S_T}, s{S_T}, 2")
    a(f"s_add_u32 s{S_T}, s{S_T}, s{S_W}")
    a(f"s_lshl_b32 s{S_T}, s{S_T}, 12")
    a(f"s_add_u32 s{S_T}, s{S_T}, {WS_BP}")
    a(f"v_lshlrev_b32 v{dst}, 4, v0")
    a(f"v_add_u32 v{dst}, s{S_T}, v{dst}")


def store_bp(a):
    bp_addr(a, V_T)
    for q in range(4):
        off = f" offset:{1024*q}" if q else ""
        a(f"global_store_dwordx4 v{V_T}, v[{RES_D+4*q}:{RES_D+4*q+3}], s[{S_WS}:{S_WS+1}]{off}")


def load_bp(a):
    bp_addr(a, V_T)
    for q in range(4):
        off = f" offset:{1024*q}" if q else ""
        a(f"global_load_dwordx4 v[{RES_D+4*q}:{RES_D+4*q+3}], v{V_T}, s[{S_WS}:{S_WS+1}]{off}")


def wo_job(a, idreg, wait=None, pre=None, a_sc1=False):
    j = SK("wo", 4, 5, ACC, WF, a_sc1)
    P_W, P_OUT = S_P0, S_P0 + 2
    GV = 8
    a(f"s_load_dwordx2 s[{P_W}:{P_W+1}], s[0:1], {KA_WO}")
    a(f"s_load_dwordx2 s[{P_OUT}:{P_OUT+1}], s[0:1], {KA_OUT}")
    decode64(a, idreg)
    setup_lanes(a)
    a("s_waitcnt lgkmcnt(0)")
    g_load(a, GV, V_T)
    if pre:
        pre(a)
    setup_srds(a, j, P_W, WS_OB, 16, 4)
    a("s_barrier")
    for st in range(4):
        w_loads(a, j, st)
    zero_acc(a, j)
    a("s_waitcnt vmcnt(0)")
    if wait:
        wait(a)
        pstamp(a, "wo:flag")
    for st in range(4):
        a_loads(a, j, st)
    for r in w_reads(j, 0):
        a(r)
    for st in range(4):
        a(f"s_waitcnt vmcnt({4 * (3 - st)}) lgkmcnt(0)")
        ms = mfmas(j, st)
        if st + 1 < 4:
            rs = w_reads(j, st + 1)
            for i, m in enumerate(ms):
                a(m)
                a(rs[i])
        else:
            for m in ms:
                a(m)
    pstamp(a, "wo:loopend")
    reduce(a, j, RES_W)
    for r in range(16):
        a(f"v_sub_f32 v{RES_W+r}, v{RES_W+r}, v{RES_D+r}")
    for r in range(16):
        a(f"v_fma_f32 v{RES_W+r}, v{RES_W+r}, v{GV}, v{RES_D+r}")
    a(f"s_lshl_b32 s{S_T}, s{S_RB}, 6")
    a(f"s_lshr_b32 s{S_T+1}, s{S_W}, 1")
    a(f"s_lshl_b32 s{S_T+1}, s{S_T+1}, 5")
    a(f"s_add_u32 s{S_T}, s{S_T}, s{S_T+1}")
    a(f"s_lshl_b32 s{S_T}, s{S_T}, 10")
    a(f"s_lshl_b32 s{S_T+1}, s{S_CB}, 7")
    a(f"s_add_u32 s{S_T}, s{S_T}, s{S_T+1}")
    a(f"s_and_b32 s{S_T+1}, s{S_W}, 1")
    a(f"s_lshl_b32 s{S_T+1}, s{S_T+1}, 6")
    a(f"s_add_u32 s{S_T}, s{S_T}, s{S_T+1}")
    a(f"v_and_b32 v{V_T}, 31, v0")
    a(f"v_lshlrev_b32 v{V_T}, 10, v{V_T}")
    a(f"v_lshrrev_b32 v{V_T+1}, 5, v0")
    a(f"v_lshlrev_b32 v{V_T+1}, 4, v{V_T+1}")
    a(f"v_add3_u32 v{V_T}, v{V_T}, v{V_T+1}, s{S_T}")
    T = ACC
    for p in range(2):
        t = T + 4 * p
        for r in range(4):
            a(f"v_cvt_pk_bf16_f32 v{t+r}, v{RES_W+8*p+2*r}, v{RES_W+8*p+2*r+1}")
        a("s_nop 1")
        a(f"v_permlane32_swap_b32 v{t}, v{t+2}")
        a(f"v_permlane32_swap_b32 v{t+1}, v{t+3}")
        off = " offset:32" if p else ""
        import os
        a(f"global_store_dwordx4 v{V_T}, v[{t}:{t+3}], s[{P_OUT}:{P_OUT+1}]{off}{' ' + os.environ['OUTF'] if os.environ.get('OUTF') else ''}")
    pstamp(a, "wo:end")
    return j


def wo2_job(a, idreg, wait=None):
    WR, AF, AC, GV = 16, 144, 208, 8
    P_W, P_OUT = S_P0, S_P0 + 2
    j = SK("wo", 16, 16, 0, 0, True)
    a(f"s_load_dwordx2 s[{P_W}:{P_W+1}], s[0:1], {KA_WO}")
    a(f"s_load_dwordx2 s[{P_OUT}:{P_OUT+1}], s[0:1], {KA_OUT}")
    decode64(a, idreg)
    setup_lanes(a)
    T0, T1, T2 = V_T, V_T + 1, V_T + 2
    a(f"v_subrev_u32 v{V_RW}, s{S_LDW}, v{V_RW}")
    a(f"s_and_b32 s{S_T}, s{S_W}, 1")
    a(f"s_lshl_b32 s{S_T}, s{S_T}, 10")
    a(f"v_add_u32 v{V_RW}, s{S_T}, v{V_RW}")
    a(f"v_add_u32 v{V_RW+1}, {32768}, v{V_RW}")
    a("s_waitcnt lgkmcnt(0)")
    setup_srds(a, j, P_W, WS_OB, 16, 0)
    a(f"s_lshl_b32 s{S_SOW}, s{S_W}, 17")
    a(f"s_lshl_b32 s{S_LDW}, s{S_W}, 14")
    a("s_barrier")
    for st in range(4):
        a(f"s_add_u32 m0, s{S_LDW}, {st * 4096}")
        a("s_nop 0")
        for q in range(4):
            off = f" offset:{1024 * q}" if q else ""
            a(f"buffer_load_dwordx4 v{V_OW+q}, s[{SRD_W}:{SRD_W+3}], s{S_SOW} offen{off} lds")
        a(f"s_add_u32 s{S_SOW}, s{S_SOW}, 32768")
    for r in range(16):
        a(f"v_mov_b32 v{AC+r}, 0")
    a("s_waitcnt vmcnt(0)")
    a("s_barrier")
    for st in range(16):
        for s_ in range(2):
            d = WR + (2 * st + s_) * 4
            for half in range(2):
                off = st * 4096 + s_ * 2048 + half * 512
                reg = V_RW
                if off >= 32768:
                    reg, off = V_RW + 1, off - 32768
                a(f"ds_read_b64_tr_b16 v[{d+2*half}:{d+2*half+1}], v{reg} offset:{off}")
        if st % 3 == 2:
            a("s_waitcnt lgkmcnt(4)")
    a("s_waitcnt lgkmcnt(0)")
    pstamp(a, "wo:wready")
    a(f"s_lshl_b32 s{S_T}, s{S_W}, 13")
    a(f"s_add_u32 s{S_SOA}, s{S_SOA}, s{S_T}")
    a(f"s_lshl_b32 s{S_LDW}, s{S_W}, 12")
    a(f"s_lshr_b32 s{S_T}, s{S_W}, 1")
    a(f"s_lshl_b32 s{S_T}, s{S_T}, 11")
    a(f"v_add_u32 v{V_OW}, s{S_T}, v{V_OA}")
    a(f"v_add_u32 v{V_OW+1}, 32768, v{V_OW}")
    if wait:
        wait(a)
        pstamp(a, "wo:flag")
    g_load(a, GV, V_T)
    for g in range(4):
        a(f"s_add_u32 m0, s{S_LDW}, {g * 16384}")
        a("s_nop 0")
        for q in range(4):
            off = f" offset:{1024 * q}" if q else ""
            a(f"buffer_load_dwordx4 v{V_OA}, s[{SRD_A}:{SRD_A+3}], s{S_SOA} offen{off} sc1 lds")
        a(f"s_add_u32 s{S_SOA}, s{S_SOA}, 32768")

    def reads(g):
        out = []
        for k in range(4):
            st = 4 * g + k
            for s_ in range(2):
                d = AF + (g & 1) * 32 + (2 * k + s_) * 4
                off = st * 4096 + s_ * 1024
                reg = V_OW
                if off >= 32768:
                    reg, off = V_OW + 1, off - 32768
                out.append(f"ds_read_b128 v[{d}:{d+3}], v{reg} offset:{off}")
        return out

    def mf(g):
        out = []
        for k in range(4):
            st = 4 * g + k
            for s_ in range(2):
                w = WR + (2 * st + s_) * 4
                f = AF + (g & 1) * 32 + (2 * k + s_) * 4
                out.append(f"v_mfma_f32_32x32x16_bf16 v[{AC}:{AC+15}], v[{w}:{w+3}], v[{f}:{f+3}], v[{AC}:{AC+15}]")
        return out
    a("s_waitcnt vmcnt(12)")
    a("s_barrier")
    for r in reads(0):
        a(r)
    for g in range(4):
        if g + 1 < 4:
            a(f"s_waitcnt vmcnt({4 * (2 - g)})")
            a("s_barrier")
            for r in reads(g + 1):
                a(r)
            a("s_waitcnt lgkmcnt(8)")
        else:
            a("s_waitcnt lgkmcnt(0)")
        for m in mf(g):
            a(m)
    pstamp(a, "wo:loopend")
    a(f"s_lshl_b32 s{S_T}, s{S_RB}, 6")
    a(f"s_lshr_b32 s{S_T+1}, s{S_W}, 1")
    a(f"s_lshl_b32 s{S_T+1}, s{S_T+1}, 5")
    a(f"s_add_u32 s{S_T}, s{S_T}, s{S_T+1}")
    a(f"s_lshl_b32 s{S_T}, s{S_T}, 10")
    a(f"s_lshl_b32 s{S_T+1}, s{S_CB}, 7")
    a(f"s_add_u32 s{S_T}, s{S_T}, s{S_T+1}")
    a(f"s_and_b32 s{S_T+1}, s{S_W}, 1")
    a(f"s_lshl_b32 s{S_T+1}, s{S_T+1}, 6")
    a(f"s_add_u32 s{S_T}, s{S_T}, s{S_T+1}")
    a(f"v_and_b32 v{V_T}, 31, v0")
    a(f"v_lshlrev_b32 v{V_T}, 10, v{V_T}")
    a(f"v_lshrrev_b32 v{V_T+1}, 5, v0")
    a(f"v_lshlrev_b32 v{V_T+1}, 4, v{V_T+1}")
    a(f"v_add3_u32 v{V_T}, v{V_T}, v{V_T+1}, s{S_T}")
    a("s_nop 7")
    for r in range(16):
        a(f"v_sub_f32 v{AC+r}, v{AC+r}, v{RES_D+r}")
    for r in range(16):
        a(f"v_fma_f32 v{AC+r}, v{AC+r}, v{GV}, v{RES_D+r}")
    T = AF
    for p in range(2):
        t = T + 4 * p
        for r in range(4):
            a(f"v_cvt_pk_bf16_f32 v{t+r}, v{AC+8*p+2*r}, v{AC+8*p+2*r+1}")
        a("s_nop 1")
        a(f"v_permlane32_swap_b32 v{t}, v{t+2}")
        a(f"v_permlane32_swap_b32 v{t+1}, v{t+3}")
        off = " offset:32" if p else ""
        import os
        a(f"global_store_dwordx4 v{V_T}, v[{t}:{t+3}], s[{P_OUT}:{P_OUT+1}]{off}{' ' + os.environ['OUTF'] if os.environ.get('OUTF') else ''}")
    pstamp(a, "wo:end")
```

```python
import sys, os
sys.path.insert(0, os.path.dirname(os.path.abspath(__file__)))
from asmlib import *
from layout import *
import attn, jobs, splitk
from sync import *
from gemm import S_W, S_WS, S_T, S_RB, S_CB, V_T, SRD_A

NAME = "gated_mix__mha_block__glu_gated_geglu__prompt"
HEADER = open(os.path.join(os.path.dirname(os.path.abspath(__file__)), "header.txt")).read()
_DEFAULTS = {"FAST": "1", "FW": "gu", "LATEPF": "1", "CHK": "1"}


def ENV(k, d=None):
    return os.environ.get(k, _DEFAULTS.get(k, d))
C_QKV, C_G, C_ATT, C_TWIN = 0, 128, 192, 256


def tlb_warm(a):
    a("s_load_dwordx16 s[32:47], s[0:1], 0")
    a("s_load_dwordx2 s[50:51], s[0:1], 64")
    a("v_mov_b32 v250, 0")
    a(f"v_lshlrev_b32 v251, 21, v0")
    a(f"v_cmp_gt_u32 vcc, 10, v0")
    a("s_and_saveexec_b64 s[52:53], vcc")
    a(f"global_load_dword v252, v251, s[{S_WS}:{S_WS+1}]")
    a("s_mov_b64 exec, s[52:53]")
    a("s_waitcnt lgkmcnt(0)")
    a("s_mov_b64 exec, 1")
    for i in (0, 1, 2, 4, 5, 6, 7):
        a(f"global_load_dword v253, v250, s[{32+2*i}:{33+2*i}]")
    a("global_load_dword v253, v250, s[50:51]")
    a("s_mov_b64 exec, -1")


def code_touch(a, idx_sreg, nidx, start_label, nbytes, vdst, vtmp, stmp):
    lines = (nbytes + 127) // 128
    per = (lines + nidx - 1) // nidx
    assert per <= 64
    lab = a.uid("ct")
    a(f"s_getpc_b64 s[{stmp}:{stmp+1}]")
    a.label(lab)
    a(f"s_sub_u32 s{stmp}, s{stmp}, {lab}-{start_label}")
    a(f"s_subb_u32 s{stmp+1}, s{stmp+1}, 0")
    a(f"s_mul_i32 s{stmp+2}, s{idx_sreg}, {per * 128}")
    a(f"v_lshlrev_b32 v{vtmp}, 7, v0")
    a(f"v_add_u32 v{vtmp}, s{stmp+2}, v{vtmp}")
    a(f"v_min_u32 v{vtmp}, {(lines - 1) * 128}, v{vtmp}")
    a(f"s_mov_b64 exec, {hex((1 << per) - 1)}")
    a(f"global_load_dword v{vdst}, v{vtmp}, s[{stmp}:{stmp+1}]")
    a("s_mov_b64 exec, -1")


def build():
    a = Asm()
    a.raw(HEADER.rstrip("\n"))
    LDS = 81920
    if ENV("ASLIST"):
        a.raw(f"; @launch kernel={NAME}_kernel grid=(512,1,1) block=(256,1,1) lds={LDS}")
    else:
        a.raw(f"; @launch grid=(512,1,1) block=(256,1,1) lds={LDS}")
    a.raw('.amdgcn_target "amdgcn-amd-amdhsa--gfx950"')
    a.raw(".text")
    kernel_header(a, f"{NAME}_kernel")
    a("s_cmp_ge_u32 s2, 512")
    a("s_cbranch_scc1 k_done")
    preset(a); pstamp(a, "entry")
    jobs.common_entry(a)
    a("s_waitcnt lgkmcnt(0)")
    pstamp(a, "karg")
    if ENV("TLBW"):
        tlb_warm(a)
    a("s_cmp_ge_u32 s2, 256")
    a("s_cbranch_scc1 k_ffn")
    if ENV("NOA"):
        a("s_branch k_done")
    a("s_setprio 2")

    def pre_qkv(a):
        a("s_lshl_b32 s52, s2, 2")
        a(f"s_add_u32 s52, s52, s{S_W}")
        nw = 1024 if ENV("APF") == "full" else 2048
        prefetch1(a, KA_WQKV, 512 * 3072, 52, nw, 178, 177, 54, 60)
        prefetch1(a, KA_AX, 2048 * 1024, 52, nw, 176, 177, 54, 60)
        if ENV("APF") != "full":
            a("s_waitcnt vmcnt(0)")
        pstamp(a, "pf1")
        init_probe(a, jobs.S_DBG, 179)

    def post_qkv(a):
        wait_init(a, jobs.S_DBG, S_W, V_T, S_T, probe=179)
        if ENV("TWIN") == "1":
            signal(a, S_WS, 2, 1, S_W, V_T, WS_FLAG + 256 * C_TWIN, drain=False)
    def pre_qkv0(a):
        init_probe(a, jobs.S_DBG, 179)
        return 1
    jobs.qkv_job(a, 2, sc1=True, pre=pre_qkv if ENV("APF") else pre_qkv0, post_loop=post_qkv, ltouch=bool(ENV("QLT")))
    if ENV("CHK"):
        a(f"s_lshl_b32 s50, s{S_CB}, 3")
        a(f"s_lshr_b32 s51, s{S_RB}, 2")
        a("s_add_u32 s50, s50, s51")
        a("s_lshl_b32 s50, s50, 1")
        signal(a, S_WS, 50, 2, S_W, V_T, WS_FLAG + 256 * C_QKV)
    else:
        a(f"s_lshl_b32 s50, s{S_CB}, 4")
        signal(a, S_WS, 50, 16, S_W, V_T, WS_FLAG + 256 * C_QKV)
    if ENV("TWIN") == "2":
        signal(a, S_WS, 2, 1, S_W, V_T, WS_FLAG + 256 * C_TWIN, drain=False)
    pstamp(a, "qkv:sig")
    if ENV("NOF"):
        pflush(a, 2, S_W, S_WS, attn.TMP, 0)
        a("s_branch k_done")

    def wait_qkv(a):
        a(f"s_lshr_b32 s50, s{attn.S_HEAD}, 2")
        a(f"s_lshl_b32 s50, s50, 4")
        a(f"s_add_u32 s50, s50, s{attn.S_QB}")
        (wait_count_fast if ENV('FAST') else wait_count)(a, S_WS, 50, 32, S_W, attn.TMP, 60, WS_FLAG + 256 * C_QKV)
        pstamp(a, "qkv:flag")
    attn.OUT_SC1 = True
    attn.IN_SC1 = True
    attn.WAIT_IN = wait_qkv
    attn.CHK = dict(base=WS_FLAG + 256 * C_QKV) if ENV("CHK") else None
    a(f"s_setprio {ENV('APRIO', '1')}")
    attn.attn_body(a, 2, None)
    a(f"s_lshl_b32 s50, s{attn.S_QB}, 3")
    signal(a, S_WS, 50, 8, S_W, attn.TMP, WS_FLAG + 256 * C_ATT, drain=False)
    pstamp(a, "attn:sig")
    pflush(a, 2, S_W, S_WS, attn.TMP, 0)
    a("s_branch k_done")
    a.label("k_ffn")
    if ENV("NOF"):
        a("s_branch k_done")
    preset(a); pstamp(a, "entry")
    a("s_sub_u32 s3, s2, 256")
    if ENV("CTOUCH"):
        a("s_lshr_b32 s53, s3, 3")
        a("s_lshl_b32 s53, s53, 2")
        a(f"s_add_u32 s53, s53, s{S_W}")
        code_touch(a, 53, 128, f"{NAME}_kernel", int(ENV("CTOUCH")), 250, 251, 54)
    a(f"s_or_b32 s50, s3, s{S_W}")
    a("s_cmp_lg_u32 s50, 0")
    a("s_cbranch_scc1 k_noinit")
    a("s_waitcnt lgkmcnt(0)")
    init_counters(a, S_WS, jobs.S_DBG, V_T, WS_FLAG)
    a.label("k_noinit")
    a("s_lshl_b32 s52, s3, 2")
    a(f"s_add_u32 s52, s52, s{S_W}")
    def f_weights_pf(a):
        m = ENV("FW", "gudo")
        if "g" in m:
            prefetch1(a, KA_WG, 512 * 2752, 52, 1024, 244, 241, 54, 60)
        if "u" in m:
            prefetch1(a, KA_WU, 512 * 2752, 52, 1024, 245, 241, 54, 60)
        if "d" in m:
            prefetch1(a, KA_WD, 1376 * 1024, 52, 1024, 246, 241, 54, 60)
        if "o" in m:
            prefetch1(a, KA_WO, 512 * 1024, 52, 1024, 247, 241, 54, 60)

    def late_pf(a):
        prefetch1(a, KA_WD, 1376 * 1024, 52, 1024, 246, 241, 54, 60)
        prefetch1(a, KA_WO, 512 * 1024, 52, 1024, 247, 241, 54, 60)
    if not ENV("NOPF"):
        if ENV("APF") == "full":
            pass
        elif ENV("APF"):
            a("s_add_u32 s53, s52, 1024")
            prefetch1(a, KA_AX, 2048 * 1024, 53, 2048, 244, 241, 54, 60)
            prefetch1(a, KA_WQKV, 512 * 3072, 53, 2048, 245, 241, 54, 60)
        elif not ENV("NOPF1"):
            prefetch1(a, KA_WQKV, 512 * 3072, 52, 1024, 245, 241, 54, 60)
            prefetch1(a, KA_AX, 2048 * 1024, 52, 1024, 244, 241, 54, 60)
        a("s_waitcnt vmcnt(0)")
        pstamp(a, "pf1")
        if ENV("TOUCH"):
            jobs.qkv_touch(a, 3)
        if ENV("WSPF"):
            prefetch_ws(a, S_WS, WS_QF, 0x600000, 52, 1024, 243, 241, 54, 60)
        if not ENV("FLATE"):
            f_weights_pf(a)
            if ENV("FWAIT"):
                a("s_waitcnt vmcnt(0)")
        if ENV("WSPF") == "2":
            prefetch_ws(a, S_WS, WS_H, 16 * 43 * 8192, 52, 1024, 242, 241, 54, 60)
    if ENV("LIGHT"):
        light_prefetch(a, [(KA_WG, 512 * 2752), (KA_WU, 512 * 2752), (KA_WD, 1376 * 1024), (KA_WO, 512 * 1024)], 3, 256, S_W, 244, 241, 54, 60, lanes=int(ENV("LIGHT")))
    wait_init(a, jobs.S_DBG, S_W, V_T, S_T)
    if ENV("HOLD"):
        jobs.decode_qkv(a, 3)
        a(f"s_lshl_b32 s50, s{S_CB}, 4")
        a(f"s_and_b32 s51, s{S_RB}, 7")
        a(f"s_add_u32 s50, s50, s51")
        a(f"s_add_u32 s50, s50, 8")
        wait_count(a, S_WS, 50, int(ENV("HOLDN", "32")), S_W, V_T, S_T, WS_FLAG + 256 * C_QKV)
        pstamp(a, "hold")
        if ENV("FLATE"):
            f_weights_pf(a)
    if ENV("TWIN"):
        wait_count(a, S_WS, 3, 1, S_W, V_T, S_T, WS_FLAG + 256 * C_TWIN)
        pstamp(a, "twin")
    a("s_setprio 3")
    jobs.g_job(a, 3, sc1=True, epi_prio=ENV('EPRIO', '2'), loop_prio=ENV('FPRIO', '0'), post_loop=late_pf if ENV("LATEPF") else None, ltouch=bool(ENV("GLT")))
    if not ENV("DSETUP"):
        a(f"s_setprio {ENV('FPRIO', '0')}")
    if ENV("PROG"):
        a(f"s_lshl_b32 s50, s{S_RB}, 4")
        a(f"s_add_u32 s50, s50, s{S_CB}")
        signal(a, S_WS, 50, 1, S_W, V_T, WS_FLAG + 256 * C_TWIN)
    else:
        a(f"s_lshl_b32 s50, s{S_RB}, 2")
        signal(a, S_WS, 50, 4, S_W, V_T, WS_FLAG + 256 * C_G)
    pstamp(a, "sig")
    if ENV("NOA"):
        pflush(a, 2, S_W, S_WS, V_T, 0)
        a("s_branch k_done")

    def wait_g(a):
        a(f"s_lshr_b32 s50, s{S_RB}, 1")
        a(f"s_lshl_b32 s50, s50, 2")
        a(f"s_and_b32 s51, s{S_CB}, 3")
        a(f"s_add_u32 s50, s50, s51")
        wait_count(a, S_WS, 50, 16, S_W, V_T, S_T, WS_FLAG + 256 * C_G, sleep=int(ENV('GSLEEP', '4')))
    splitk.d_job(a, 3, a_sc1=True, wait=wait_g, post_prio=ENV('DPRIO', '0'), loop_prio=ENV('DLPRIO', '0' if ENV('DSETUP') else None), prog=(WS_FLAG + 256 * C_TWIN) if ENV('PROG') else None)

    def wait_attn(a):
        a(f"s_lshr_b32 s50, s{S_RB}, 1")
        a(f"s_lshl_b32 s50, s50, 2")
        a(f"s_and_b32 s51, s{S_CB}, 3")
        a(f"s_add_u32 s50, s50, s51")
        (wait_count_fast if ENV('FAST') else wait_count)(a, S_WS, 50, 32, S_W, V_T, S_T, WS_FLAG + 256 * C_ATT)
    splitk.wo2_job(a, 3, wait=wait_attn)
    pflush(a, 2, S_W, S_WS, V_T, 0)
    a.label("k_done")
    a("s_endpgm")
    a.label("k_code_end")
    a.raw('.section .rodata,"a"')
    a.raw(".p2align 6")
    a.raw(kernel_desc(f"{NAME}_kernel", 256))
    return a.text()


def build2():
    a = Asm()
    a.raw(HEADER.rstrip("\\n"))
    LDS = 81920
    a.raw(f"; @launch kernel=k1_kernel grid=(256,1,1) block=(256,1,1) lds={LDS}")
    a.raw(f"; @launch kernel={NAME}_kernel grid=(512,1,1) block=(256,1,1) lds={LDS}")
    a.raw('.amdgcn_target "amdgcn-amd-amdhsa--gfx950"')
    a.raw(".text")
    kernel_header(a, "k1_kernel")
    a("s_cmp_ge_u32 s2, 256")
    a("s_cbranch_scc1 k1_done")
    preset(a); pstamp(a, "entry")
    jobs.common_entry(a)
    a("s_waitcnt lgkmcnt(0)")

    def pre_qkv(a):
        a("s_lshl_b32 s52, s2, 2")
        a(f"s_add_u32 s52, s52, s{S_W}")
        prefetch1(a, KA_WQKV, 512 * 3072, 52, 1024, 178, 177, 54, 60)
        prefetch1(a, KA_AX, 2048 * 1024, 52, 1024, 176, 177, 54, 60)

    def post_qkv(a):
        prefetch1(a, KA_WG, 512 * 2752, 52, 1024, 180, 177, 54, 60)
        prefetch1(a, KA_WU, 512 * 2752, 52, 1024, 181, 177, 54, 60)
        prefetch1(a, KA_WD, 1376 * 1024, 52, 1024, 182, 177, 54, 60)
        prefetch1(a, KA_WO, 512 * 1024, 52, 1024, 183, 177, 54, 60)
    jobs.qkv_job(a, 2, sc1=False, pre=pre_qkv, post_loop=post_qkv)
    a(f"s_or_b32 s50, s2, s{S_W}")
    a("s_cmp_lg_u32 s50, 0")
    a("s_cbranch_scc1 k1_noinit")
    a(f"v_lshlrev_b32 v{V_T}, 8, v0")
    a(f"v_add_u32 v{V_T}, {WS_FLAG}, v{V_T}")
    a(f"v_mov_b32 v{V_T+1}, 0")
    for i in range(4):
        a(f"global_store_dword v{V_T}, v{V_T+1}, s[{S_WS}:{S_WS+1}]")
        if i < 3:
            a(f"v_add_u32 v{V_T}, 16384, v{V_T}")
    a.label("k1_noinit")
    pflush(a, 2, S_W, S_WS, V_T, 1)
    a.label("k1_done")
    a("s_endpgm")
    kernel_header(a, f"{NAME}_kernel")
    a("s_cmp_ge_u32 s2, 512")
    a("s_cbranch_scc1 k_done")
    preset(a); pstamp(a, "entry")
    jobs.common_entry(a)
    a("s_waitcnt lgkmcnt(0)")
    a("s_cmp_ge_u32 s2, 256")
    a("s_cbranch_scc1 k_ffn")
    attn.OUT_SC1 = True
    attn.IN_SC1 = False
    attn.WAIT_IN = None
    attn.CHK = None
    a(f"s_setprio {ENV('APRIO', '1')}")
    attn.attn_body(a, 2, None)
    a(f"s_lshl_b32 s50, s{attn.S_QB}, 3")
    signal(a, S_WS, 50, 8, S_W, attn.TMP, WS_FLAG + 256 * C_ATT, drain=False)
    pstamp(a, "attn:sig")
    pflush(a, 2, S_W, S_WS, attn.TMP, 0)
    a("s_branch k_done")
    a.label("k_ffn")
    preset(a); pstamp(a, "entry")
    a("s_sub_u32 s3, s2, 256")
    a("s_setprio 3")
    jobs.g_job(a, 3, sc1=True, epi_prio=2, loop_prio=ENV('FPRIO', '0'))
    a(f"s_setprio {ENV('FPRIO', '0')}")
    a(f"s_lshl_b32 s50, s{S_RB}, 2")
    signal(a, S_WS, 50, 4, S_W, V_T, WS_FLAG + 256 * C_G)
    pstamp(a, "sig")

    def wait_g(a):
        a(f"s_lshr_b32 s50, s{S_RB}, 1")
        a(f"s_lshl_b32 s50, s50, 2")
        a(f"s_and_b32 s51, s{S_CB}, 3")
        a(f"s_add_u32 s50, s50, s51")
        wait_count(a, S_WS, 50, 16, S_W, V_T, S_T, WS_FLAG + 256 * C_G)
    splitk.d_job(a, 3, a_sc1=True, wait=wait_g, post_prio=ENV('DPRIO', '0'))

    def wait_attn(a):
        a(f"s_lshr_b32 s50, s{S_RB}, 1")
        a(f"s_lshl_b32 s50, s50, 2")
        a(f"s_and_b32 s51, s{S_CB}, 3")
        a(f"s_add_u32 s50, s50, s51")
        wait_count(a, S_WS, 50, 32, S_W, V_T, S_T, WS_FLAG + 256 * C_ATT)
    splitk.wo2_job(a, 3, wait=wait_attn)
    pflush(a, 2, S_W, S_WS, V_T, 0)
    a.label("k_done")
    a("s_endpgm")
    a.raw('.section .rodata,"a"')
    a.raw(".p2align 6")
    a.raw(kernel_desc("k1_kernel", 192))
    a.raw(".p2align 6")
    a.raw(kernel_desc(f"{NAME}_kernel", 256))
    return a.text()


def build3():
    a = Asm()
    a.raw(HEADER.rstrip("\\n"))
    LDS = 81920
    a.raw(f"; @launch kernel=k1_kernel grid=(512,1,1) block=(256,1,1) lds={LDS}")
    a.raw(f"; @launch kernel={NAME}_kernel grid=(512,1,1) block=(256,1,1) lds={LDS}")
    a.raw('.amdgcn_target "amdgcn-amd-amdhsa--gfx950"')
    a.raw(".text")
    kernel_header(a, "k1_kernel")
    a("s_cmp_ge_u32 s2, 512")
    a("s_cbranch_scc1 k1_done")
    preset(a); pstamp(a, "entry")
    jobs.common_entry(a)
    a("s_waitcnt lgkmcnt(0)")
    a("s_cmp_ge_u32 s2, 256")
    a("s_cbranch_scc1 k1_g")
    a("s_setprio 1")

    def post_qkv(a):
        a("s_lshl_b32 s52, s2, 2")
        a(f"s_add_u32 s52, s52, s{S_W}")
        prefetch1(a, KA_WD, 1376 * 1024, 52, 1024, 182, 177, 54, 60)
        prefetch1(a, KA_WO, 512 * 1024, 52, 1024, 183, 177, 54, 60)
    jobs.qkv_job(a, 2, sc1=False, post_loop=post_qkv)
    a(f"s_or_b32 s50, s2, s{S_W}")
    a("s_cmp_lg_u32 s50, 0")
    a("s_cbranch_scc1 k1_noinit")
    a(f"v_lshlrev_b32 v{V_T}, 8, v0")
    a(f"v_add_u32 v{V_T}, {WS_FLAG}, v{V_T}")
    a(f"v_mov_b32 v{V_T+1}, 0")
    for i in range(4):
        a(f"global_store_dword v{V_T}, v{V_T+1}, s[{S_WS}:{S_WS+1}]")
        if i < 3:
            a(f"v_add_u32 v{V_T}, 16384, v{V_T}")
    a.label("k1_noinit")
    pflush(a, 2, S_W, S_WS, V_T, 1)
    a("s_branch k1_done")
    a.label("k1_g")
    preset(a); pstamp(a, "entry")
    a("s_sub_u32 s3, s2, 256")
    jobs.g_job(a, 3, sc1=False)
    pflush(a, 2, S_W, S_WS, V_T, 1)
    a.label("k1_done")
    a("s_endpgm")
    kernel_header(a, f"{NAME}_kernel")
    a("s_cmp_ge_u32 s2, 512")
    a("s_cbranch_scc1 k_done")
    preset(a); pstamp(a, "entry")
    jobs.common_entry(a)
    a("s_waitcnt lgkmcnt(0)")
    a("s_cmp_ge_u32 s2, 256")
    a("s_cbranch_scc1 k_ffn")
    attn.OUT_SC1 = True
    attn.IN_SC1 = False
    attn.WAIT_IN = None
    attn.CHK = None
    a(f"s_setprio {ENV('APRIO', '1')}")
    attn.attn_body(a, 2, None)
    a(f"s_lshl_b32 s50, s{attn.S_QB}, 3")
    signal(a, S_WS, 50, 8, S_W, attn.TMP, WS_FLAG + 256 * C_ATT, drain=False)
    pstamp(a, "attn:sig")
    pflush(a, 2, S_W, S_WS, attn.TMP, 0)
    a("s_branch k_done")
    a.label("k_ffn")
    preset(a); pstamp(a, "entry")
    a("s_sub_u32 s3, s2, 256")
    splitk.d_job(a, 3, a_sc1=False, wait=None, post_prio=ENV('DPRIO', '0'))

    def wait_attn(a):
        a(f"s_lshr_b32 s50, s{S_RB}, 1")
        a(f"s_lshl_b32 s50, s50, 2")
        a(f"s_and_b32 s51, s{S_CB}, 3")
        a(f"s_add_u32 s50, s50, s51")
        wait_count(a, S_WS, 50, 32, S_W, V_T, S_T, WS_FLAG + 256 * C_ATT)
    splitk.wo2_job(a, 3, wait=wait_attn)
    pflush(a, 2, S_W, S_WS, V_T, 0)
    a.label("k_done")
    a("s_endpgm")
    a.raw('.section .rodata,"a"')
    a.raw(".p2align 6")
    a.raw(kernel_desc("k1_kernel", 256))
    a.raw(".p2align 6")
    a.raw(kernel_desc(f"{NAME}_kernel", 256))
    return a.text()


if __name__ == "__main__":
    out = sys.argv[1] if len(sys.argv) > 1 else f"cdna_kernels/{NAME}.s"
    open(out, "w").write(build3() if ENV("TWO") == "y" else build2() if ENV("TWO") else build())
    print("wrote", out, os.path.getsize(out), "bytes")
```
